```python
import torch

def _softmax(x, axis=-1):
    return torch.softmax(x, dim=axis)
def _gelu(x):
    return torch.nn.functional.gelu(x, approximate="tanh")
def _silu(x):
    return torch.nn.functional.silu(x)
def _sigmoid(x):
    return torch.sigmoid(x)
def _layernorm(x, axis=-1, eps=1e-5):
    m = x.mean(dim=axis, keepdim=True)
    v = x.var(dim=axis, keepdim=True, unbiased=False)
    return (x - m) / torch.sqrt(v + eps)
def _scatter_add(tgt, idx, src, axis=0):
    return tgt.clone().index_add_(axis, idx, src)
def _segment_sum(src, seg, n):
    out = torch.zeros((n,) + src.shape[1:], dtype=src.dtype)
    return out.index_add_(0, seg, src)
def _pad(x, pw):
    flat = tuple(v for pair in reversed(pw) for v in pair)
    return torch.nn.functional.pad(x, flat)

kernel_name = 'standalone__mpnn_edge_mlp__graph'

def setup_inputs():

    _w = (lambda a: (lambda t: t.to(torch.bfloat16) if t.is_floating_point() else t)(torch.as_tensor(a)))
    N, deg, D, De = 10000, 16, 256, max(4, 1)
    E = N * deg
    return {
        "x": _w((lambda *s: torch.randn(*s, dtype=torch.bfloat16) * 0.05)(N, D)),
        "e_attr": _w((lambda *s: torch.randn(*s, dtype=torch.bfloat16) * 0.4)(E, De)),
        "src": _w((lambda lo, hi, *s: torch.randint(lo, hi, s))(0, N, E).to(torch.int64)),
        "dst": _w((lambda lo, hi, *s: torch.randint(lo, hi, s))(0, N, E).to(torch.int64)),
        "w_msg": _w((lambda *s: torch.randn(*s, dtype=torch.bfloat16) * 0.4)(2 * D + De, D)),
        "w_upd": _w((lambda *s: torch.randn(*s, dtype=torch.bfloat16) * 0.05)(2 * D, D)),
    }

def reference(x, e_attr, src, dst, w_msg, w_upd):
    N, D = x.shape
    m_in = torch.concatenate([x[src], x[dst], e_attr], axis=-1)
    msg = _silu(m_in @ w_msg)
    agg = _segment_sum(msg, dst, N)
    return _silu(torch.concatenate([x, agg], axis=-1) @ w_upd)
```

```python
import sys
mode = sys.argv[1] if len(sys.argv)>1 else 'none'
val = float(sys.argv[2]) if len(sys.argv)>2 else 0.0
nextra = int(sys.argv[3]) if len(sys.argv)>3 else 0
import struct
def f2u(f): return struct.unpack('<I', struct.pack('<f', f))[0]
hdr = open('standalone__mpnn_edge_mlp__graph.s.ref').read().split('; Override')[0]
o = []
o.append(hdr.rstrip('\n'))
o.append('; @launch kernel=ka_kernel grid=(10000,1,1) block=(256,1,1) lds=0')
o.append('; @launch kernel=kb_kernel grid=(10000,1,1) block=(256,1,1) lds=0')
o.append('; @launch kernel=kc_kernel grid=(10000,1,1) block=(256,1,1) lds=0')
for i in range(nextra):
    o.append('; @launch kernel=kn_kernel grid=(256,1,1) block=(256,1,1) lds=0')
o.append('.amdgcn_target "amdgcn-amd-amdhsa--gfx950"\n.text')
def srd(d, ptr_off, nbytes, base_add=0):
    s = f'''
    s_load_dwordx2 s[{d}:{d+1}], s[0:1], {ptr_off}
    s_waitcnt lgkmcnt(0)
    s_add_u32 s{d}, s{d}, {base_add}
    s_addc_u32 s{d+1}, s{d+1}, 0
    s_and_b32 s{d+1}, s{d+1}, 0xffff
    s_mov_b32 s{d+2}, {nbytes}
    s_mov_b32 s{d+3}, 0x20000
'''
    return s
def head(name):
    return f'.globl {name}\n.p2align 8\n.type {name},@function\n{name}:\n    s_cmp_ge_u32 s2, 10000\n    s_cbranch_scc1 {name}_done\n'
N=10000
PB=N*256*4
o.append(head('ka_kernel') + srd(8,0,N*512) + srd(12,32,516*512) + srd(16,64,3*PB) + f'''
    s_lshl_b32 s20, s2, 9          ; x row byte off
    v_lshlrev_b32 v1, 1, v0        ; col byte off bf16
    v_mov_b32 v2, 0
    v_mov_b32 v3, 0
    v_mov_b32 v10, 0
    s_mov_b32 s21, 0               ; k
    s_mov_b32 s22, 0               ; w off
ka_loop:
    s_add_u32 s23, s22, {256*512}
    buffer_load_ushort v4, v10, s[8:11], s20 offen
    buffer_load_ushort v5, v1, s[12:15], s22 offen
    buffer_load_ushort v6, v1, s[12:15], s23 offen
    s_waitcnt vmcnt(0)
    v_lshlrev_b32 v4, 16, v4
    v_lshlrev_b32 v5, 16, v5
    v_lshlrev_b32 v6, 16, v6
    v_fmac_f32 v2, v4, v5
    v_fmac_f32 v3, v4, v6
    s_add_u32 s20, s20, 2
    s_add_u32 s22, s22, 512
    s_add_u32 s21, s21, 1
    s_cmp_lt_u32 s21, 256
    s_cbranch_scc1 ka_loop
    s_lshl_b32 s20, s2, 10
    v_lshlrev_b32 v1, 2, v0
    s_add_u32 s21, s20, {PB}
    s_add_u32 s22, s20, {2*PB}
    buffer_store_dword v2, v1, s[16:19], s20 offen
    buffer_store_dword v3, v1, s[16:19], s21 offen
    buffer_store_dword v10, v1, s[16:19], s22 offen
ka_kernel_done:
    s_endpgm
''')
o.append(head('kb_kernel') + srd(8,8,160000*8) + srd(12,32,516*512) + srd(16,64,3*PB) + f'''
    s_load_dwordx2 s[24:25], s[0:1], 16
    s_load_dwordx2 s[26:27], s[0:1], 24
    s_waitcnt lgkmcnt(0)
    v_lshlrev_b32 v1, 1, v0
    s_mov_b32 s20, {512*512}
    buffer_load_ushort v20, v1, s[12:15], s20 offen
    buffer_load_ushort v21, v1, s[12:15], s20 offen offset:512
    buffer_load_ushort v22, v1, s[12:15], s20 offen offset:1024
    buffer_load_ushort v23, v1, s[12:15], s20 offen offset:1536
    s_waitcnt vmcnt(0)
    v_lshlrev_b32 v20, 16, v20
    v_lshlrev_b32 v21, 16, v21
    v_lshlrev_b32 v22, 16, v22
    v_lshlrev_b32 v23, 16, v23
    v_lshlrev_b32 v1, 2, v0
    v_mov_b32 v10, 0
    s_lshl_b32 s21, s2, 4          ; first edge
    s_add_u32 s22, s21, 16
kb_loop:
    s_lshl_b32 s23, s21, 2
    s_load_dword s28, s[24:25], s23
    s_load_dword s29, s[26:27], s23
    s_lshl_b32 s30, s21, 3
    buffer_load_dwordx2 v[4:5], v10, s[8:11], s30 offen
    s_waitcnt lgkmcnt(0)
    s_lshl_b32 s28, s28, 10
    s_lshl_b32 s29, s29, 10
    s_add_u32 s31, s29, {PB}
    s_add_u32 s32, s29, {2*PB}
    buffer_load_dword v6, v1, s[16:19], s28 offen
    buffer_load_dword v7, v1, s[16:19], s31 offen
    s_waitcnt vmcnt(0)
    v_add_f32 v6, v6, v7
    v_lshlrev_b32 v8, 16, v4
    v_fmac_f32 v6, v8, v20
    v_and_b32 v8, 0xffff0000, v4
    v_fmac_f32 v6, v8, v21
    v_lshlrev_b32 v8, 16, v5
    v_fmac_f32 v6, v8, v22
    v_and_b32 v8, 0xffff0000, v5
    v_fmac_f32 v6, v8, v23
    v_mul_f32 v8, 0xbfb8aa3b, v6
    v_exp_f32 v8, v8
    s_nop 1
    v_add_f32 v8, 1.0, v8
    v_rcp_f32 v8, v8
    s_nop 1
    v_mul_f32 v8, v8, v6
    buffer_atomic_add_f32 v8, v1, s[16:19], s32 offen
    s_add_u32 s21, s21, 1
    s_cmp_lt_u32 s21, s22
    s_cbranch_scc1 kb_loop
    s_waitcnt vmcnt(0)
kb_kernel_done:
    s_endpgm
''')
pert = ''
if mode == 'mul':
    pert = f'    v_mul_f32 v8, {hex(f2u(1.0+val))}, v8\n'
elif mode == 'add':
    pert = f'    v_add_f32 v8, {hex(f2u(val))}, v8\n'
elif mode == 'one':
    pert = f'    s_cmp_eq_u32 s2, 5\n    s_cbranch_scc0 kc_np\n    v_add_f32 v8, {hex(f2u(val))}, v8\nkc_np:\n'
o.append(head('kc_kernel') + srd(8,0,N*512) + srd(12,40,512*512) + srd(16,64,3*PB) + srd(24,48,N*512) + f'''
    s_lshl_b32 s20, s2, 9          ; x row byte off
    s_lshl_b32 s28, s2, 10
    s_add_u32 s28, s28, {2*PB}
    v_lshlrev_b32 v1, 1, v0        ; col byte off bf16
    v_mov_b32 v2, 0
    v_mov_b32 v10, 0
    s_mov_b32 s21, 0               ; k
    s_mov_b32 s22, 0               ; w off
kc_loop:
    s_add_u32 s23, s22, {256*512}
    buffer_load_ushort v4, v10, s[8:11], s20 offen
    buffer_load_ushort v5, v1, s[12:15], s22 offen
    buffer_load_ushort v6, v1, s[12:15], s23 offen
    buffer_load_dword v7, v10, s[16:19], s28 offen
    s_waitcnt vmcnt(0)
    v_lshlrev_b32 v4, 16, v4
    v_lshlrev_b32 v5, 16, v5
    v_lshlrev_b32 v6, 16, v6
    v_cvt_pk_bf16_f32 v7, v7, v7
    v_lshlrev_b32 v7, 16, v7
    v_fmac_f32 v2, v4, v5
    v_fmac_f32 v2, v7, v6
    s_add_u32 s20, s20, 2
    s_add_u32 s28, s28, 4
    s_add_u32 s22, s22, 512
    s_add_u32 s21, s21, 1
    s_cmp_lt_u32 s21, 256
    s_cbranch_scc1 kc_loop
    v_mul_f32 v8, 0xbfb8aa3b, v2
    v_exp_f32 v8, v8
    s_nop 1
    v_add_f32 v8, 1.0, v8
    v_rcp_f32 v8, v8
    s_nop 1
    v_mul_f32 v8, v8, v2
{pert}    v_cvt_pk_bf16_f32 v8, v8, v8
    s_lshl_b32 s20, s2, 9
    buffer_store_short v8, v1, s[24:27], s20 offen
kc_kernel_done:
    s_endpgm
''')
if nextra:
    o.append('.globl kn_kernel\n.p2align 8\n.type kn_kernel,@function\nkn_kernel:\n    s_endpgm\n')
o.append('.section .rodata,"a"')
for k in ['ka_kernel','kb_kernel','kc_kernel'] + (['kn_kernel'] if nextra else []):
    o.append(f'''.p2align 6
.amdhsa_kernel {k}
  .amdhsa_next_free_vgpr 32
  .amdhsa_next_free_sgpr 48
  .amdhsa_accum_offset 32
  .amdhsa_group_segment_fixed_size 0
  .amdhsa_kernarg_size 72
  .amdhsa_user_sgpr_count 2
  .amdhsa_user_sgpr_kernarg_segment_ptr 1
  .amdhsa_system_sgpr_workgroup_id_x 1
.end_amdhsa_kernel''')
print('\n'.join(o))
```

```python
import struct
def f2u(f): return struct.unpack('<I', struct.pack('<f', f))[0]
LOG2E = 1.4426950408889634
LN2 = 0.6931471805599453

N = 10000; E = 160000
NB = 256; NPB = 40
NCH = 64; CHE = 2500
WS_P = 4096
WS_CELLS = 5242880
WS_NOVF = WS_CELLS + 2097152
WS_OVF = WS_NOVF + 4096
WS_WF = WS_OVF + 1310720
WS_END = WS_WF + 393216

class Asm:
    def __init__(self):
        self.lines = []
    def __call__(self, s):
        for l in s.split('\n'):
            l = l.strip()
            if l: self.lines.append('    ' + l)
    def label(self, l): self.lines.append(l + ':')
    def raw(self, s): self.lines.append(s)
    def text(self): return '\n'.join(self.lines)

def srd(a, d, ptr, nbytes, add=0, stride=0):
    if add:
        a(f's_add_u32 s{d}, s{ptr}, {add}')
        a(f's_addc_u32 s{d+1}, s{ptr+1}, 0')
        a(f's_and_b32 s{d+1}, s{d+1}, 0xffff')
    else:
        a(f's_mov_b32 s{d}, s{ptr}')
        a(f's_and_b32 s{d+1}, s{ptr+1}, 0xffff')
    if stride:
        a(f's_or_b32 s{d+1}, s{d+1}, {stride << 16}')
    a(f's_mov_b32 s{d+2}, {nbytes}')
    a(f's_mov_b32 s{d+3}, 0x20000')

def kd(name, vgpr, sgpr):
    acc = (vgpr + 3) // 4 * 4
    return f'''.p2align 6
.amdhsa_kernel {name}
  .amdhsa_next_free_vgpr {vgpr}
  .amdhsa_next_free_sgpr {sgpr}
  .amdhsa_accum_offset {acc}
  .amdhsa_group_segment_fixed_size 0
  .amdhsa_kernarg_size 72
  .amdhsa_user_sgpr_count 2
  .amdhsa_user_sgpr_kernarg_segment_ptr 1
  .amdhsa_system_sgpr_workgroup_id_x 1
.end_amdhsa_kernel'''


class VM:
    def __init__(self): self.ops = []
    def issue(self, tag): self.ops.append(tag)
    def count_after(self, tag):
        idx = max(i for i, t in enumerate(self.ops) if t == tag)
        return len(self.ops) - 1 - idx
    def wait(self, tag):
        n = self.count_after(tag)
        assert n <= 63, n
        return f's_waitcnt vmcnt({n})'
```

```python
from common import *
K1_GRID = 240
K1_LDS = 131072

def gen_k1(a, opt):
    st = opt.get('k1_store', '')
    a.raw('.globl k1_kernel\n.p2align 8\n.type k1_kernel,@function')
    a.label('k1_kernel')
    a(f'''s_cmp_ge_u32 s2, {K1_GRID}
    s_cbranch_scc1 k1_done
    s_load_dwordx4 s[4:7], s[0:1], 0
    s_load_dwordx4 s[8:11], s[0:1], 16
    s_load_dwordx4 s[12:15], s[0:1], 32
    s_load_dwordx2 s[16:17], s[0:1], 64
    s_cmp_lt_u32 s2, 64
    s_cbranch_scc1 k1_sort
    s_cmp_lt_u32 s2, 80
    s_cbranch_scc1 k1_relayout''')
    a(f'''s_sub_u32 s3, s2, 80
    s_lshr_b32 s18, s3, 4
    s_lshl_b32 s18, s18, 3
    s_and_b32 s19, s3, 7
    s_add_u32 s18, s18, s19
    s_bfe_u32 s19, s3, 0x10003
    s_cmp_ge_u32 s18, 79
    s_cbranch_scc1 k1_done
    v_lshrrev_b32 v1, 6, v0
    v_and_b32 v2, 63, v0
    v_readfirstlane_b32 s33, v1
    v_lshrrev_b32 v3, 5, v2
    v_and_b32 v4, 31, v2''')
    a(f'''v_xor_b32 v5, v4, v3
    v_lshlrev_b32 v5, 4, v5
    v_lshl_add_u32 v5, v3, 9, v5''')
    a(f'''v_lshrrev_b32 v6, 4, v2
    v_and_b32 v7, 15, v2
    v_lshlrev_b32 v8, 2, v6
    v_xor_b32 v7, v7, v8
    v_lshlrev_b32 v7, 4, v7
    v_lshl_add_u32 v7, v6, 9, v7''')
    a('s_waitcnt lgkmcnt(0)')
    srd(a, 20, 4, N*512)
    srd(a, 24, 12, 256*512)
    srd(a, 28, 16, N*512, add=WS_P)
    a(f'''s_lshl_b32 s34, s33, 14
    s_lshl_b32 s35, s19, 8
    s_add_u32 s34, s34, s35
    s_lshl_b32 s35, s33, 13
    s_add_u32 s36, s35, 65536
    s_lshl_b32 s37, s18, 16
    s_add_u32 s37, s37, s35''')
    for t in range(8):
        if t % 4 == 0:
            if t: a('s_add_u32 s37, s37, 4096\ns_add_u32 s35, s35, 4096')
        a(f's_mov_b32 m0, s35')
        if t: a(f'v_xor_b32 v9, {t<<5}, v5')
        else: a('s_nop 0')
        a(f'buffer_load_dwordx4 v{9 if t else 5}, s[20:23], s37 offen offset:{(t%4)*1024} lds' if t%4 else f'buffer_load_dwordx4 v{9 if t else 5}, s[20:23], s37 offen lds')
        a(f's_mov_b32 m0, s36')
        a('s_add_u32 s36, s36, 1024')
        a(f'buffer_load_dwordx4 v7, s[24:27], s34 offen lds')
        a('s_add_u32 s34, s34, 2048')
    a(f'''s_lshr_b32 s38, s33, 1
    s_and_b32 s39, s33, 1
    s_lshl_b32 s40, s38, 14
    v_and_b32 v10, 15, v4
    v_xor_b32 v10, v10, v3
    v_lshlrev_b32 v10, 4, v10
    v_lshl_add_u32 v10, v4, 9, v10
    v_add_u32 v10, s40, v10''')
    for s in range(1, 8):
        a(f'v_xor_b32 v{10+s}, {s<<5}, v10')
    a(f'''v_bfe_u32 v20, v2, 2, 2
    v_bfe_u32 v21, v2, 4, 1
    v_bfe_u32 v22, v2, 1, 1
    v_lshl_add_u32 v21, v21, 1, v22
    s_lshl_b32 s41, s39, 3
    v_add_u32 v21, s41, v21
    v_lshlrev_b32 v22, 2, v20
    v_xor_b32 v21, v21, v22
    v_lshlrev_b32 v21, 4, v21
    v_lshl_add_u32 v22, v3, 3, v20
    v_lshl_add_u32 v21, v22, 8, v21
    v_and_b32 v22, 1, v2
    v_lshl_add_u32 v21, v22, 3, v21
    v_add_u32 v18, 65536, v21
    v_xor_b32 v19, 64, v18''')
    a(f'''v_lshlrev_b32 v23, 2, v4
    v_lshl_add_u32 v23, v3, 11, v23
    s_lshl_b32 s42, s18, 16
    s_add_u32 s42, s42, s40
    s_lshl_b32 s43, s19, 8
    s_add_u32 s42, s42, s43
    s_lshl_b32 s43, s39, 7
    s_add_u32 s42, s42, s43''')
    a('s_waitcnt vmcnt(0)\ns_barrier')
    NS = 3
    def reads(s):
        b = 32 + (s % 4) * 12
        a(f'ds_read_b128 v[{b}:{b+3}], v{10+(s&7)} offset:{(s>>3)*256}')
        for c in range(2):
            for t in range(2):
                r = b + 4 + c*4 + t*2
                a(f'ds_read_b64_tr_b16 v[{r}:{r+1}], v{18+c} offset:{(16*s+4*t)*256}')
    for s in range(NS): reads(s)
    for s in range(16):
        rem = min(NS - 1, 15 - s)
        a(f's_waitcnt lgkmcnt({rem*5})')
        b = 32 + (s % 4) * 12
        c0 = '0' if s == 0 else 'v[80:95]'
        c1 = '0' if s == 0 else 'v[96:111]'
        a(f'v_mfma_f32_32x32x16_bf16 v[80:95], v[{b}:{b+3}], v[{b+4}:{b+7}], {c0}')
        a(f'v_mfma_f32_32x32x16_bf16 v[96:111], v[{b}:{b+3}], v[{b+8}:{b+11}], {c1}')
        if s + NS < 16: reads(s + NS)
    a(f's_mov_b32 s44, {hex(f2u(-LOG2E))}')
    a('s_nop 7\ns_nop 4')
    for r in range(16):
        a(f'v_mul_f32 v{80+r}, s44, v{80+r}')
    for r in range(16):
        a(f'v_mul_f32 v{96+r}, s44, v{96+r}')
        a(f'v_cvt_pk_bf16_f32 v{32+r}, v{80+r}, v{96+r}')
        g, rr = r >> 2, r & 3
        a(f'buffer_store_dword v{32+r}, v23, s[28:31], s42 offen offset:{rr*512}{st}')
        if rr == 3 and g < 3: a('s_add_u32 s42, s42, 4096')
    a('s_endpgm')
    a.label('k1_sort')
    a(f'''v_lshlrev_b32 v1, 2, v0
    s_mul_i32 s3, s2, {CHE*4}
    s_movk_i32 s19, 625
    s_waitcnt lgkmcnt(0)''')
    srd(a, 20, 8, E*4)
    srd(a, 24, 10, E*4)
    for i in range(5):
        if i == 2: a('s_add_u32 s18, s3, 4096')
        if i == 4: a('s_add_u32 s18, s3, 8192')
        so = 's3' if i < 2 else 's18'
        a(f'buffer_load_dword v{10+i}, v1, s[24:27], {so} offen offset:{(i%2)*2048}')
        a(f'buffer_load_dword v{15+i}, v1, s[20:23], {so} offen offset:{(i%2)*2048}')
    srd(a, 28, 16, NB*NCH*128, add=WS_CELLS)
    srd(a, 32, 16, WS_WF - WS_NOVF, add=WS_NOVF)
    a(f'''v_lshlrev_b32 v2, 4, v0
    v_mov_b32 v4, -1
    v_mov_b32 v5, -1
    v_mov_b32 v6, -1
    v_mov_b32 v7, -1
    v_mov_b32 v8, 0
    v_mov_b32 v9, 1
    ds_write_b128 v2, v[4:7]
    ds_write_b128 v2, v[4:7] offset:8192
    ds_write_b128 v2, v[4:7] offset:16384
    ds_write_b128 v2, v[4:7] offset:24576
    ds_write_b32 v1, v8 offset:32768
    s_waitcnt lgkmcnt(0)
    s_barrier''')
    for i in range(5):
        a(f's_waitcnt vmcnt({8-2*i})')
        a(f'''v_mul_u32_u24 v{20+i}, 429497, v{10+i}
        v_lshrrev_b32 v{20+i}, 24, v{20+i}
        v_mad_u32_u24 v3, v{20+i}, s19, 15
        v_lshrrev_b32 v3, 4, v3
        v_sub_u32 v3, v{10+i}, v3
        v_lshl_or_b32 v{15+i}, v3, 14, v{15+i}
        v_add_u32 v3, {512*i}, v0
        v_lshl_or_b32 v{15+i}, v3, 20, v{15+i}
        v_lshlrev_b32 v3, 2, v{20+i}''')
        if i == 4:
            a(f'v_cmp_gt_u32 vcc, {CHE-2048}, v0\ns_and_saveexec_b64 s[38:39], vcc')
        a(f'ds_add_rtn_u32 v{10+i}, v3, v9 offset:32768')
    a('s_mov_b64 s[36:37], exec\ns_mov_b64 exec, s[38:39]')
    a(f's_mul_i32 s3, s2, {CHE*8}\ns_add_u32 s3, s3, {WS_OVF - WS_NOVF}')
    for i in range(5):
        a(f's_waitcnt lgkmcnt({4-i})' if i < 4 else 's_waitcnt lgkmcnt(0)\ns_mov_b64 exec, s[36:37]')
        a(f'''v_lshlrev_b32 v3, 7, v{20+i}
        v_cmp_gt_u32 vcc, 32, v{10+i}
        v_lshl_add_u32 v3, v{10+i}, 2, v3
        s_and_saveexec_b64 s[40:41], vcc
        ds_write_b32 v3, v{15+i}
        s_andn2_b64 exec, s[40:41], exec
        s_cbranch_execz k1_noovf{i}
        v_mov_b32 v3, 1024
        ds_add_rtn_u32 v3, v3, v9 offset:32768
        v_mov_b32 v26, v{15+i}
        v_mov_b32 v27, v{20+i}
        s_waitcnt lgkmcnt(0)
        v_lshlrev_b32 v3, 3, v3
        buffer_store_dwordx2 v[26:27], v3, s[32:35], s3 offen
        s_waitcnt vmcnt(0)''')
        a.label(f'k1_noovf{i}')
        a('s_mov_b64 exec, s[40:41]')
    a(f'''s_mov_b64 exec, -1
    s_waitcnt lgkmcnt(0)
    s_barrier
    ds_read_b128 v[4:7], v2
    ds_read_b128 v[8:11], v2 offset:8192
    ds_read_b128 v[12:15], v2 offset:16384
    ds_read_b128 v[16:19], v2 offset:24576
    v_mov_b32 v3, 1024
    ds_read_b32 v20, v3 offset:32768
    v_lshrrev_b32 v21, 3, v0
    v_and_b32 v22, 7, v0
    v_lshlrev_b32 v22, 4, v22
    v_lshl_add_u32 v21, v21, 13, v22
    s_lshl_b32 s3, s2, 7''')
    for r in range(4):
        a(f's_waitcnt lgkmcnt({4-r})')
        a(f'buffer_store_dwordx4 v[{4+4*r}:{7+4*r}], v21, s[28:31], s3 offen{st}')
        if r < 3: a(f's_add_u32 s3, s3, {64*8192}')
    a(f'''v_cmp_eq_u32 vcc, 0, v0
    s_lshl_b32 s3, s2, 2
    s_and_saveexec_b64 s[40:41], vcc
    s_cbranch_execz k1_done
    s_waitcnt lgkmcnt(0)
    buffer_store_dword v20, v1, s[32:35], s3 offen{st}
    s_endpgm''')
    a.label('k1_relayout')
    a(f'''v_lshrrev_b32 v1, 6, v0
    v_and_b32 v2, 63, v0
    v_readfirstlane_b32 s33, v1
    s_sub_u32 s3, s2, 64
    s_lshl_b32 s3, s3, 3
    v_and_b32 v3, 15, v2
    v_lshrrev_b32 v4, 4, v2
    s_add_u32 s3, s3, s33
    s_lshr_b32 s18, s3, 4
    s_bfe_u32 s19, s3, 0x30001
    s_and_b32 s34, s3, 1
    v_lshlrev_b32 v5, 12, v4
    v_lshl_add_u32 v6, v3, 2, v5
    v_lshl_add_u32 v5, v3, 1, v5
    v_lshlrev_b32 v7, 11, v4
    v_lshl_add_u32 v7, v3, 2, v7
    s_waitcnt lgkmcnt(0)''')
    srd(a, 20, 12, 516*512)
    srd(a, 24, 14, 512*512)
    srd(a, 28, 16, 393216, add=WS_WF)
    a(f'''s_lshl_b32 s35, s19, 14
    s_lshr_b32 s36, s18, 1
    s_lshl_b32 s36, s36, 7
    s_and_b32 s37, s18, 1
    s_lshl_b32 s37, s37, 5
    s_add_u32 s36, s36, s37
    s_lshl_b32 s37, s34, 6
    s_add_u32 s36, s36, s37
    s_add_u32 s36, s36, s35
    s_add_u32 s36, s36, {256*512}
    s_lshl_b32 s37, s18, 6
    s_lshl_b32 s38, s34, 1
    s_add_u32 s37, s37, s38
    s_add_u32 s38, s37, s35
    s_lshr_b32 s39, s19, 1
    s_lshl_b32 s39, s39, 15
    s_and_b32 s40, s19, 1
    s_lshl_b32 s40, s40, 13
    s_add_u32 s39, s39, s40
    s_add_u32 s39, s39, s37
    s_add_u32 s39, s39, {256*512}
    s_add_u32 s40, s39, 16384''')
    for e in range(8): a(f'buffer_load_ushort v{8+e}, v5, s[20:23], s36 offen offset:{e*512}')
    for e in range(8): a(f'buffer_load_ushort v{16+e}, v6, s[24:27], s38 offen offset:{e*512}')
    for e in range(8): a(f'buffer_load_ushort v{24+e}, v7, s[24:27], s{39+(e&1)} offen offset:{(e>>1)*512}')
    a('v_lshlrev_b32 v1, 4, v2\ns_lshl_b32 s3, s3, 10')
    for m in range(3):
        a(f's_waitcnt vmcnt({16-8*m+m})')
        for p in range(4):
            a(f'v_lshl_or_b32 v{32+4*m+p}, v{9+8*m+2*p}, 16, v{8+8*m+2*p}')
        a(f'buffer_store_dwordx4 v[{32+4*m}:{35+4*m}], v1, s[28:31], s3 offen{st}')
        if m < 2: a('s_add_u32 s3, s3, 131072')
    a.label('k1_done')
    a('s_endpgm')
    return kd('k1_kernel', 112, 48)
```

```python
from common import *
K2_GRID = NB
NT = 29
QT = 98304; QSTR = 576
OH = QT + 41 * QSTR; OSTR = 80
XT = QT + 40 * QSTR + 4096
EAT = XT + 20480
CNT = EAT + NT * 512
SRC = CNT + 256
XL = SRC + (NT + 7) * 64
K2_LDS = 163840
assert XL + 256 <= K2_LDS
C30 = 0x30800000

class R:
    def __init__(self, start): self.n = start
    def get(self, k=1, align=1):
        self.n = (self.n + align - 1) // align * align
        r = self.n; self.n += k; return r

def vr(r, k): return f'v[{r}:{r+k-1}]' if k > 1 else f'v{r}'
def pr(x): return f'v[{x}:{x+1}]'

def gen_k2(a, opt):
    stamp = opt.get('stamp')
    prio = opt.get('prio', 'P')
    vm = VM()
    r = R(1)
    vLane = r.get(); vNOVF = r.get(); vL16 = r.get()
    aSRC = r.get(); aEAT = r.get(); aXL = r.get(); cQ = r.get(); cS = r.get(); vX = r.get(); aQ = r.get()
    aS = r.get(3); aP = r.get(4)
    IDX = r.get(8, 2)
    A2 = r.get(4, 2); B2A = r.get(4, 2); B2B = r.get(4, 2)
    S = r.get(2, 2); MA = r.get(2, 2); MB = r.get(2, 2)
    ACCA = r.get(16, 2); ACCB = r.get(16, 2)
    DA = r.get(16, 2); DB = r.get(16, 2)
    EE = r.get(16, 2); NF = r.get(4, 2); DF = r.get(4, 2)
    PA = r.get(8, 2); PB = r.get(8, 2); I0 = r.get(4, 2); I1 = r.get(4, 2)
    WB2 = r.get(64, 2)
    WB1 = r.get(36, 2)
    assert r.n <= 256, r.n
    NW1A = 9
    t = R(WB1)
    KEY = t.get(4, 2); RK = t.get(4); DL4 = t.get(4); EA = t.get(8, 2); TQ = t.get(4, 2)
    T0 = t.get(); T1 = t.get(); T2 = t.get(); T3 = t.get(); vCB = t.get(); aA = t.get(4)
    assert t.n <= WB1 + 36
    W3 = PA
    QD = ACCA; QF = EE
    IDX1 = DA; IDX2 = DA + 8
    TOUCH = DB
    OA = EE; AF = PA; WB1B = DA
    X0 = DB + 12
    EA_ = IDX
    def w1reg(i): return WB1 + 4 * i if i < NW1A else WB1B + 4 * (i - NW1A)

    sP = 20; sX = 24; sE = 28; sWS = 32; sM = 36; sO = 40
    sWV = 44; sG = 45; sCQ = 46; sHeavy = 47; sB = 48; sQdone = 49; sSplit = 50; sT = 51; sTbase = 52
    sRing = 53; sCnt = 54; sTmp = 55; sTmp2 = 56; sTmp3 = 57; sC = 58
    sMask = 60
    sQs = 68; sOs = 69; sT0 = 70; sT1 = 71; sQt = 72; sWdone = 73; sSv = 74
    sStamp = 76
    sHM = 96; sN0 = 98; sWF = 99; sNN = 3

    names = (stamp if stamp and stamp != '1' else '0,1,2,3,4,5,6,7,8,9').split(',')
    def stampat(nm):
        nm = str(nm)
        if stamp:
            if nm in names:
                i = names.index(nm)
                a(f's_memrealtime s[{sStamp+2*i}:{sStamp+2*i+1}]')
            if nm == '6': a('s_memtime s[8:9]')
            if nm == '7': a('s_memtime s[10:11]')
    WS = f's[{sWS}:{sWS+3}]'
    def wload(dst, mat, i, tag):
        off = mat * 131072 + i * 1024
        ins = [f's_add_u32 s{sTmp3}, s{sWF}, {off & ~4095}',
               f'buffer_load_dwordx4 {vr(dst,4)}, v{vL16}, {WS}, s{sTmp3} offen offset:{off & 4095}']
        vm.issue(tag)
        return ins

    a.raw('.globl k2_kernel\n.p2align 8\n.type k2_kernel,@function')
    a.label('k2_kernel')
    a(f's_cmp_ge_u32 s2, {K2_GRID}\ns_cbranch_scc1 k2_done')
    stampat(0)
    a(f'''s_load_dwordx2 s[18:19], s[0:1], 64
    s_load_dwordx4 s[4:7], s[0:1], 0
    s_load_dwordx2 s[12:13], s[0:1], 32
    s_load_dwordx2 s[16:17], s[0:1], 48
    v_lshrrev_b32 v{T0}, 6, v0
    v_and_b32 v{vLane}, 63, v0
    v_readfirstlane_b32 s{sWV}, v{T0}
    v_lshlrev_b32 v{T1}, 4, v0
    v_lshlrev_b32 v{T2}, 2, v{vLane}
    v_lshlrev_b32 v{vL16}, 4, v{vLane}
    s_lshl_b32 s{sTmp}, s2, 13
    s_mov_b32 s{sTmp2}, {WS_NOVF - WS_CELLS}
    s_mul_i32 s{sN0}, s2, 625
    s_add_u32 s{sNN}, s{sN0}, {625+15}
    s_add_u32 s{sN0}, s{sN0}, 15
    s_lshr_b32 s{sN0}, s{sN0}, 4
    s_lshr_b32 s{sNN}, s{sNN}, 4
    s_sub_u32 s{sNN}, s{sNN}, s{sN0}
    s_bfe_u32 s{sTmp3}, s2, 0x50003
    s_mul_i32 s{sTmp3}, s{sTmp3}, 12288
    s_add_u32 s{sTmp3}, s{sTmp3}, {WS_WF - WS_CELLS}
    s_lshr_b32 s{sG}, s{sWV}, 2
    s_and_b32 s{sCQ}, s{sWV}, 3
    s_lshl_b32 s{sWF}, s{sWV}, 14
    s_add_u32 s{sWF}, s{sWF}, {WS_WF - WS_CELLS}
    v_lshrrev_b32 v{T3}, 5, v{vLane}
    v_and_b32 v{vX}, 31, v{vLane}
    s_lshl_b32 s{sT0}, s{sWV}, 1
    v_xor_b32 v{T0}, v{vX}, v{T3}
    v_xor_b32 v{T0}, s{sT0}, v{T0}
    v_lshlrev_b32 v{T0}, 4, v{T0}
    v_lshl_add_u32 v{T0}, v{T3}, 9, v{T0}
    v_xor_b32 v{vX}, s{sWV}, v{vX}
    v_lshlrev_b32 v{vX}, 4, v{vX}
    s_waitcnt lgkmcnt(0)''')
    srd(a, sWS, 18, WS_END - WS_CELLS, add=WS_CELLS)
    a(f'''buffer_load_dwordx4 {vr(KEY,4)}, v{T1}, {WS}, s{sTmp} offen
    buffer_load_dword v{vNOVF}, v{T2}, {WS}, s{sTmp2} offen''')
    vm.issue('keys'); vm.issue('keys')
    if not opt.get('notouch'):
        a(f'''buffer_load_dwordx4 {vr(TOUCH,4)}, v{T1}, {WS}, s{sTmp3} offen
        s_add_u32 s{sTmp3}, s{sTmp3}, 4096
        buffer_load_dwordx4 {vr(TOUCH+4,4)}, v{T1}, {WS}, s{sTmp3} offen''')
        vm.issue('touch'); vm.issue('touch')
    stampat('a')
    srd(a, sX, 4, N * 512)
    a(f'''s_lshl_b32 s{sTmp}, s{sN0}, 9
    s_lshl_b32 s{sTmp2}, s{sWV}, 10
    s_add_u32 s{sTmp3}, s{sTmp}, s{sTmp2}
    s_add_u32 m0, s{sTmp2}, {XT}
    s_lshl_b32 s{sT0}, s{sWV}, 9
    buffer_load_dwordx4 v{T0}, s[{sX}:{sX+3}], s{sTmp3} offen lds
    s_add_u32 m0, s{sTmp2}, {XT+8192}
    s_add_u32 s{sTmp3}, s{sTmp3}, 8192
    buffer_load_dwordx4 v{T0}, s[{sX}:{sX+3}], s{sTmp3} offen lds
    s_add_u32 m0, s{sT0}, {XT+16384}
    s_add_u32 s{sTmp}, s{sTmp}, s{sT0}
    s_add_u32 s{sTmp}, s{sTmp}, 16384
    s_mov_b32 exec_hi, 0
    buffer_load_dwordx4 v{vX}, s[{sX}:{sX+3}], s{sTmp} offen lds
    s_mov_b32 exec_hi, -1''')
    for _ in range(3): vm.issue('x')
    W2P = [int(x) for x in opt.get('w2parts', '4,4,4,4').split(',')]
    w2i = [0]
    def w2part(k):
        for _ in range(W2P[k]):
            for x in wload(WB2 + 4 * w2i[0], 0, w2i[0], f'w2_{w2i[0]}'): a(x)
            w2i[0] += 1
    w2part(0)
    stampat('b')
    a(f'''v_mov_b32 v{TQ}, 0
    v_mov_b32 v{TQ+1}, 0
    v_mov_b32 v{TQ+2}, 0
    v_mov_b32 v{TQ+3}, 0
    s_mov_b32 s{sHeavy}, 0
    s_mov_b32 s{sQdone}, 0
    s_mov_b32 s{sB}, 0
    s_cmp_lg_u32 s{sWV}, 7
    s_cbranch_scc1 k2_nooh
    v_add_u32 v{T0}, {QT + 40*QSTR}, v{vL16}
    ds_write_b128 v{T0}, {vr(TQ,4)}
    ds_write_b128 v{T0}, {vr(TQ,4)} offset:1024
    ds_write_b128 v{T0}, {vr(TQ,4)} offset:2048
    ds_write_b128 v{T0}, {vr(TQ,4)} offset:3072
    v_mul_u32_u24 v{T0}, {OSTR+2}, v{vLane}
    v_mov_b32 v{T2}, 0x3f80
    v_add_u32 v{T0}, {OH}, v{T0}
    s_mov_b32 exec_hi, 0xff
    ds_write_b16 v{T0}, v{T2}
    s_mov_b32 exec_hi, -1''')
    a.label('k2_nooh')
    a(f'v_lshrrev_b32 v{T0}, 3, v0\nv_mul_u32_u24 v{vCB}, {CHE}, v{T0}')
    a.label('k2_batch')
    nz = (NT * 512 + 256 - 8192) // 16; nf = (NT + 7) * 64 // 16; nx = 16
    a(f'''v_lshlrev_b32 v{T0}, 4, v0
    v_mov_b32 v{TQ}, 0
    v_mov_b32 v{TQ+1}, 0
    v_mov_b32 v{TQ+2}, 0
    v_mov_b32 v{TQ+3}, 0
    v_add_u32 v{T0}, {EAT}, v{T0}
    v_mov_b32 v{T1}, 0x28282828
    ds_write_b128 v{T0}, {vr(TQ,4)}
    v_cmp_gt_u32 vcc, {nz}, v0
    s_and_saveexec_b64 s[{sSv}:{sSv+1}], vcc
    ds_write_b128 v{T0}, {vr(TQ,4)} offset:8192
    s_mov_b64 exec, -1
    v_cmp_gt_u32 vcc, {nf}, v0
    s_mov_b32 s{sWdone}, 0
    s_nop 0
    v_cndmask_b32 v{EA}, v{T1}, -1, vcc
    v_cmp_gt_u32 vcc, {nf+nx}, v0
    v_mov_b32 v{EA+1}, v{EA}
    v_mov_b32 v{EA+2}, v{EA}
    v_mov_b32 v{EA+3}, v{EA}
    s_and_saveexec_b64 s[{sSv}:{sSv+1}], vcc
    ds_write_b128 v{T0}, {vr(EA,4)} offset:{SRC-EAT}
    s_mov_b64 exec, -1
    s_waitcnt lgkmcnt(0)
    s_barrier''')
    stampat(1)
    srd(a, sP, 18, N, add=WS_P - 3072, stride=512)
    srd(a, sE, 6, E * 8)
    a(f'''v_lshrrev_b32 v{T2}, 5, v{vLane}
    v_and_b32 v{T3}, 31, v{vLane}
    v_lshlrev_b32 v{T0}, 3, v{T2}
    v_sub_u32 v{T0}, v{T3}, v{T0}
    v_mov_b32 v{T1}, 0x3f80
    v_and_b32 v{aQ}, 1, v{T0}
    v_lshlrev_b32 v{aQ}, 4, v{aQ}
    v_lshlrev_b32 v{T1}, v{aQ}, v{T1}
    v_lshrrev_b32 v{T0}, 1, v{T0}''')
    for k, reg in enumerate([I0, I0+1, I0+2, I0+3, I1, I1+1, I1+2, I1+3]):
        c = k if k < 4 else k + 4
        m = 'vcc' if k % 2 == 0 else f's[{sSv}:{sSv+1}]'
        a(f'v_cmp_eq_u32 {m}, {c}, v{T0}')
        if k:
            pk, preg = k - 1, [I0, I0+1, I0+2, I0+3, I1, I1+1, I1+2, I1+3][k-1]
            a('s_nop 0')
            a(f'v_cndmask_b32 v{preg}, 0, v{T1}, ' + ('vcc' if pk % 2 == 0 else f's[{sSv}:{sSv+1}]'))
    a(f'''v_bfe_u32 v{T0}, v{T3}, 2, 1
    v_mov_b32 v{A2}, 0
    v_cndmask_b32 v{I1+3}, 0, v{T1}, s[{sSv}:{sSv+1}]
    v_cmp_eq_u32 s[{sHM}:{sHM+1}], v{T0}, v{T2}
    v_mov_b32 v{A2+1}, 0
    v_mov_b32 v{A2+2}, 0
    v_mov_b32 v{A2+3}, 0
    s_mul_i32 s{sRing}, s{sWV}, 12288
    v_bfe_u32 v{T0}, v{T3}, 1, 3
    v_xor_b32 v{T0}, v{T0}, v{T2}
    v_lshlrev_b32 v{T0}, 4, v{T0}
    v_lshl_add_u32 v{T0}, v{T3}, 7, v{T0}
    v_add_u32 v{aP}, s{sRing}, v{T0}
    v_xor_b32 v{aP+1}, 32, v{aP}
    v_xor_b32 v{aP+2}, 64, v{aP}
    v_xor_b32 v{aP+3}, 96, v{aP}
    v_and_b32 v{T0}, 7, v{vLane}
    v_lshrrev_b32 v{T1}, 4, v{vLane}
    v_xor_b32 v{T0}, v{T0}, v{T1}
    s_lshl_b32 s{sTmp}, s{sCQ}, 7
    v_lshl_add_u32 v{T0}, v{T0}, 4, s{sTmp}
    v_xor_b32 v{IDX+7}, 64, v{T0}
    v_add_u32 v{IDX+1}, 3072, v{T0}
    v_add_u32 v{IDX+3}, 2048, v{IDX+7}
    v_add_u32 v{IDX+5}, 1024, v{T0}''')
    for d in range(4):
        a(f'v_mov_b32 v{IDX1+2*d+1}, v{IDX+2*d+1}\nv_mov_b32 v{IDX2+2*d+1}, v{IDX+2*d+1}')
    a(f'''v_bfe_u32 v{T0}, v{vLane}, 4, 1
    v_and_b32 v{T1}, 3, v{vLane}
    v_lshlrev_b32 v{T1}, 3, v{T1}
    v_lshl_add_u32 v{T0}, v{T0}, 5, v{T1}
    s_add_u32 s{sTmp}, s{sTmp}, {QT}
    v_add_u32 v{cQ}, s{sTmp}, v{T0}
    s_lshl_b32 s{sTmp}, s{sG}, 4
    s_add_u32 s{sTmp}, s{sTmp}, {OH}
    v_add_u32 v{cS}, s{sTmp}, v{T0}
    s_mov_b32 s{sQs}, {QSTR}
    s_mov_b32 s{sOs}, {OSTR}
    s_mov_b32 s{sC}, {hex(C30)}
    s_mov_b32 s{sC+1}, {hex(C30)}''')
    a(f'''v_bfe_u32 v{T0}, v{vLane}, 5, 1
    v_bfe_u32 v{T1}, v{vLane}, 3, 1
    v_bfe_u32 v{T2}, v{vLane}, 4, 1
    v_lshlrev_b32 v{aSRC}, 4, v{T0}
    v_lshl_add_u32 v{aSRC}, v{T1}, 3, v{aSRC}
    v_lshl_add_u32 v{aSRC}, v{T2}, 1, v{aSRC}
    v_bfe_u32 v{T3}, v{vLane}, 2, 1
    v_lshl_add_u32 v{aXL}, v{T1}, 1, v{T0}
    v_lshl_add_u32 v{aXL}, v{aXL}, 1, v{T3}
    v_lshlrev_b32 v{aEAT}, 1, v{T2}
    v_add_u32 v{aEAT}, v{aEAT}, v{T3}
    v_and_b32 v{T0}, 1, v{vLane}
    v_lshl_add_u32 v{aEAT}, v{aEAT}, 1, v{T0}
    v_lshl_add_u32 v{aEAT}, v{aEAT}, 1, v{T1}
    v_bfe_u32 v{T0}, v{vLane}, 1, 1
    v_lshl_add_u32 v{aEAT}, v{aEAT}, 1, v{T0}
    v_lshlrev_b32 v{aEAT}, 4, v{aEAT}''')
    def gemm_addr():
        a(f'''v_and_b32 v{T0}, 15, v{vLane}
        v_lshrrev_b32 v{T1}, 4, v{vLane}
        v_xor_b32 v{T1}, v{T1}, v{T0}
        v_lshlrev_b32 v{T1}, 4, v{T1}
        v_lshl_add_u32 v{T0}, v{T0}, 9, v{T1}''')
    gemm_addr()
    a(f'v_add_u32 v{aA}, {XT}, v{T0}')
    for s in range(1, 4):
        a(f'v_xor_b32 v{T1}, {s<<6}, v{T0}\nv_add_u32 v{aA+s}, {XT}, v{T1}')
    a(f'v_mov_b32 v{T3}, 1')
    stampat('e')
    a(vm.wait('keys'))
    stampat(2)
    a(f'''s_cmp_lg_u32 s{sHeavy}, 0
    s_cbranch_scc1 k2_nochk
    v_cmp_ne_u32 vcc, 0, v{vNOVF}
    s_cbranch_vccz k2_nochk
    s_mov_b32 s{sHeavy}, 1
    s_branch k2_fetch''')
    a.label('k2_nochk')
    for i in range(4):
        a(f'''v_cmp_ne_u32 s[{sMask+2*i}:{sMask+2*i+1}], -1, v{KEY+i}
        v_lshrrev_b32 v{DL4+i}, 12, v{KEY+i}
        v_and_b32 v{DL4+i}, 0xfc, v{DL4+i}
        v_add_u32 v{T1}, {CNT}, v{DL4+i}
        s_mov_b64 exec, s[{sMask+2*i}:{sMask+2*i+1}]
        ds_add_rtn_u32 v{RK+i}, v{T1}, v{T3}
        s_mov_b64 exec, -1''')
    for i in range(4):
        a(f'''v_lshrrev_b32 v{T0}, 20, v{KEY+i}
        v_add_lshl_u32 v{T0}, v{T0}, v{vCB}, 3
        s_mov_b64 exec, s[{sMask+2*i}:{sMask+2*i+1}]
        buffer_load_dwordx2 {vr(EA+2*i,2)}, v{T0}, s[{sE}:{sE+3}], 0 offen
        s_mov_b64 exec, -1''')
        vm.issue('ea')
    a(f'''v_lshlrev_b32 v{T0}, 2, v{vLane}
    v_add_u32 v{T0}, {CNT}, v{T0}
    s_waitcnt lgkmcnt(0)''')
    stampat('f')
    a('s_barrier')
    stampat('g')
    a(f'ds_read_b32 v{T1}, v{T0}')
    w2part(1)
    dpp = ['row_shr:1 row_mask:0xf bank_mask:0xf', 'row_shr:2 row_mask:0xf bank_mask:0xf', 'row_shr:4 row_mask:0xf bank_mask:0xf',
           'row_shr:8 row_mask:0xf bank_mask:0xf', 'row_bcast:15 row_mask:0xa bank_mask:0xf', 'row_bcast:31 row_mask:0xc bank_mask:0xf']
    a(f'''s_waitcnt lgkmcnt(0)
    v_add_u32 v{T1}, 3, v{T1}
    v_lshrrev_b32 v{T1}, 2, v{T1}
    v_mov_b32 v{T2}, v{T1}
    s_nop 1''')
    for k, d in enumerate(dpp):
        a(f'v_add_u32_dpp v{T2}, v{T2}, v{T2} {d}' + (' bound_ctrl:0' if k < 4 else ''))
        a('s_nop 1' if k < 5 else 's_nop 0')
    a(f'''v_readlane_b32 s{sQt}, v{T2}, 63
    v_sub_u32 v{T1}, v{T2}, v{T1}
    v_add_u32 v{T2}, 7, v{T1}
    v_lshrrev_b32 v{T2}, 3, v{T2}
    s_add_u32 s{sTmp}, s{sQt}, 7
    v_sub_u32 v{T0}, s{sTmp}, v{T1}
    v_lshrrev_b32 v{T0}, 3, v{T0}
    v_add_u32 v{T2}, v{T2}, v{T0}
    v_lshlrev_b32 v{T0}, 1, v{T1}
    v_sad_u32 v{T0}, v{T0}, s{sQt}, 0
    v_lshl_add_u32 v{T2}, v{T2}, 5, v{T0}
    v_subrev_u32 v{T0}, 8, v{vLane}
    v_lshl_add_u32 v{T2}, v{T2}, 6, v{vLane}
    v_cmp_gt_u32 vcc, 25, v{T0}
    s_nop 1
    v_cndmask_b32 v{T2}, -1, v{T2}, vcc
    s_nop 1''')
    for k, d in enumerate(dpp):
        a(f'v_min_u32_dpp v{T2}, v{T2}, v{T2} {d}')
        a('s_nop 1' if k < 5 else 's_nop 0')
    a(f'''v_readlane_b32 s{sSplit}, v{T2}, 63
    s_and_b32 s{sSplit}, s{sSplit}, 63
    s_cmp_lg_u32 s{sHeavy}, 0
    s_cselect_b32 s{sSplit}, 20, s{sSplit}
    s_nop 0
    v_readlane_b32 s{sTmp}, v{T1}, s{sSplit}
    v_cmp_le_u32 vcc, s{sSplit}, v{vLane}
    s_add_u32 s{sT0}, s{sTmp}, 7
    s_lshr_b32 s{sT0}, s{sT0}, 3
    s_sub_u32 s{sT1}, s{sQt}, s{sTmp}
    s_add_u32 s{sT1}, s{sT1}, 7
    s_lshr_b32 s{sT1}, s{sT1}, 3
    s_add_u32 s{sTmp2}, s{sT0}, s{sT1}
    s_cmp_le_u32 s{sTmp2}, {NT}
    s_cbranch_scc1 k2_fits
    s_mov_b32 s{sHeavy}, 1
    s_branch k2_fetch''')
    a.label('k2_fits')
    stampat('h')
    a(f'''s_lshl_b32 s{sTmp2}, s{sT0}, 3
    s_sub_u32 s{sTmp2}, s{sTmp2}, s{sTmp}
    v_mov_b32 v{T2}, s{sTmp2}
    v_cndmask_b32 v{T2}, 0, v{T2}, vcc
    v_add_lshl_u32 v{T1}, v{T1}, v{T2}, 2''')
    for i in range(4):
        a(f'ds_bpermute_b32 v{TQ+i}, v{DL4+i}, v{T1}')
    a(f'''s_cmp_eq_u32 s{sG}, 0
    s_cselect_b32 s{sT}, s{sT0}, s{sT1}
    s_cselect_b32 s{sTbase}, 0, s{sT0}
    s_cselect_b32 s{sTmp2}, 0, 192
    s_lshl_b32 s{sT0}, s{sT0}, 5
    s_lshl_b32 s{sTmp}, s{sTbase}, 6
    s_add_u32 s{sTmp}, s{sTmp}, s{sTmp2}
    s_add_u32 s{sTmp}, s{sTmp}, {SRC}
    v_add_u32 v{aSRC}, s{sTmp}, v{aSRC}
    s_lshl_b32 s{sTmp}, s{sTbase}, 9
    s_add_u32 s{sTmp}, s{sTmp}, {EAT}
    v_add_u32 v{aEAT}, s{sTmp}, v{aEAT}
    s_lshl_b32 s{sTmp}, s{sTbase}, 3
    s_add_u32 s{sTmp}, s{sTmp}, {XL}
    v_add_u32 v{aXL}, s{sTmp}, v{aXL}
    v_mov_b32 v{vX}, {SRC}
    v_mov_b32 v{aQ}, {SRC+192}''')
    for i in range(4):
        a(f'''s_waitcnt lgkmcnt(3)
        v_add_u32 v{RK+i}, v{RK+i}, v{TQ+i}
        v_and_b32 v{T0}, 0x3fff, v{KEY+i}
        v_cmp_gt_u32 vcc, s{sT0}, v{RK+i}
        v_lshrrev_b32 v{T2}, 2, v{RK+i}
        v_lshrrev_b32 v{T3}, 2, v{DL4+i}
        v_cndmask_b32 v{T1}, v{aQ}, v{vX}, vcc
        v_add_u32 v{T2}, {XL}, v{T2}
        v_lshl_add_u32 v{T1}, v{RK+i}, 1, v{T1}
        s_mov_b64 exec, s[{sMask+2*i}:{sMask+2*i+1}]
        ds_write_b16 v{T1}, v{T0}
        ds_write_b8 v{T2}, v{T3}
        s_mov_b64 exec, -1''')
    a(vm.wait('x') + ' lgkmcnt(0)')
    a('s_barrier')
    stampat(3)
    DOFF = [0, 4, 32, 36]
    def idx_reads(base, toff):
        return [f'ds_read_u16 v{base+2*d}, v{aSRC} offset:{toff*64+DOFF[d]}' for d in range(4)]
    def dma_ins(base, d, tag):
        vm.issue(tag)
        return f'buffer_load_dwordx4 {vr(base+2*d,2)}, s[{sP}:{sP+3}], 0 idxen offen offset:{d*1024} lds'
    for x in idx_reads(IDX1, 0) + idx_reads(IDX2, 1) + idx_reads(IDX, 2): a(x)
    a(f's_mov_b32 m0, s{sRing}\ns_waitcnt lgkmcnt(8)')
    for d in range(4): a(dma_ins(IDX1, d, 'dma0'))
    w2part(2)
    w2part(3)
    srd(a, sM, 12, 4 * 512, add=512 * 512)
    a(f'''v_bfe_u32 v{T0}, v{vLane}, 1, 4
    v_and_b32 v{T1}, 1, v{vLane}
    v_lshlrev_b32 v{T0}, 1, v{T0}
    v_lshl_add_u32 v{T0}, v{T1}, 6, v{T0}
    s_lshl_b32 s{sTmp}, s{sCQ}, 7''')
    for ct in range(2):
        for k in range(4):
            a(f'buffer_load_ushort v{W3+4*ct+k}, v{T0}, s[{sM}:{sM+3}], s{sTmp} offen offset:{k*512+ct*32}')
            vm.issue('w3')
    a(f's_add_u32 m0, s{sRing}, 4096\ns_waitcnt lgkmcnt(0)')
    for d in range(4): a(dma_ins(IDX2, d, 'dma1'))
    a(f's_add_u32 m0, s{sRing}, 8192\ns_nop 0')
    for d in range(4): a(dma_ins(IDX, d, 'dma2'))
    stampat(4)
    a(f'v_mov_b32 v{T3}, 0x3f80')
    a(vm.wait('ea'))
    for i in range(4):
        a(f'''v_lshlrev_b32 v{T1}, 2, v{RK+i}
        v_and_b32 v{T2}, 16, v{RK+i}
        v_and_b32 v{T1}, 16, v{T1}
        v_cmp_eq_u32 vcc, 0, v{T2}
        v_lshlrev_b32 v{T1}, v{T1}, v{T3}
        v_lshlrev_b32 v{T0}, 4, v{RK+i}
        v_mov_b32 v{TQ}, v{EA+2*i}
        v_mov_b32 v{TQ+1}, v{EA+2*i+1}
        v_cndmask_b32 v{TQ+2}, 0, v{T1}, vcc
        v_cndmask_b32 v{TQ+3}, v{T1}, 0, vcc
        v_add_u32 v{T0}, {EAT}, v{T0}
        s_mov_b64 exec, s[{sMask+2*i}:{sMask+2*i+1}]
        ds_write_b128 v{T0}, {vr(TQ,4)}
        s_mov_b64 exec, -1''')
    stampat('i')
    a(f's_cmp_lg_u32 s{sQdone}, 0\ns_cbranch_scc1 k2_noq')
    def gemm(acc, frag, addr, wregs, first, waitv):
        def rd(s):
            for rt in range(3):
                f = frag + (s & 1) * 12 + rt * 4
                a(f'ds_read_b128 {vr(f,4)}, v{addr+(s&3)} offset:{rt*8192+(s>>2)*256}')
        rd(0)
        for s in range(8):
            if s + 1 < 8:
                rd(s + 1); w = 'lgkmcnt(3)'
            else: w = 'lgkmcnt(0)'
            wv = waitv(s)
            a((wv + ' ' + w) if wv else 's_waitcnt ' + w)
            for rt in range(3):
                for c in range(2):
                    d = acc + (rt * 2 + c) * 4; f = frag + (s & 1) * 12 + rt * 4
                    cin = '0' if (first and s == 0) else vr(d, 4)
                    a(f'v_mfma_f32_16x16x32_bf16 {vr(d,4)}, {vr(f,4)}, {vr(wregs(s*2+c),4)}, {cin}')
    gemm(QD, QF, aA, lambda i: WB2 + 4 * i, True, lambda s: vm.wait(f'w2_{2*s+1}'))
    a(f'''s_mov_b32 s{sTmp}, {hex(f2u(-LOG2E))}
    v_lshrrev_b32 v{T0}, 4, v{vLane}
    v_mul_u32_u24 v{T0}, {4*QSTR}, v{T0}
    v_and_b32 v{T1}, 15, v{vLane}
    v_lshl_add_u32 v{T0}, v{T1}, 2, v{T0}
    s_lshl_b32 s{sTmp2}, s{sWV}, 6
    s_add_u32 s{sTmp2}, s{sTmp2}, {QT}
    v_add_u32 v{T0}, s{sTmp2}, v{T0}''')
    for rt in range(3):
        if rt == 2: a('s_mov_b32 exec_hi, 0')
        for rr in range(4):
            d0 = QD + rt * 8 + rr; d1 = d0 + 4
            a(f'''v_mul_f32 v{d0}, s{sTmp}, v{d0}
            v_mul_f32 v{d1}, s{sTmp}, v{d1}
            v_cvt_pk_bf16_f32 v{d0}, v{d0}, v{d1}
            ds_write_b32 v{T0}, v{d0} offset:{(16*rt+rr)*QSTR}''')
    a(f's_mov_b32 exec_hi, -1\ns_mov_b32 s{sQdone}, 1')
    a(vm.wait('w3'))
    for ct, B2 in ((0, B2A), (1, B2B)):
        for k in range(4):
            w = W3 + 4 * ct + k
            a(f'v_lshlrev_b32 v{w}, 16, v{w}\nv_mul_f32 v{w}, s{sTmp}, v{w}')
        for p in range(2):
            w = W3 + 4 * ct + 2 * p
            a(f'v_cvt_pk_bf16_f32 v{B2+p}, v{w}, v{w+1}')
    for i in range(32): a(f'v_mov_b32 v{ACCA+i}, 0')
    a.label('k2_noq')
    for x in (MA, MA + 1, MB, MB + 1, S, S + 1, NF, NF + 1, NF + 2, NF + 3): a(f'v_mov_b32 v{x}, 0')
    for x in range(4): a(f'v_mov_b32 v{DF+x}, 1.0')
    stampat('j')
    a(vm.wait('w3') + ' lgkmcnt(0)')
    a('s_barrier')
    stampat(5)
    a(f'''s_cmp_eq_u32 s{sT}, 0
    s_cbranch_scc1 k2_loopend
    ds_read_u8 v{vX}, v{aXL}
    s_mov_b64 exec, s[{sHM}:{sHM+1}]
    ds_read_b128 {vr(A2,4)}, v{aEAT}
    s_mov_b64 exec, -1''')
    a(vm.wait('dma0'))
    a(f'''ds_read_b128 {vr(PA,4)}, v{aP}
    ds_read_b128 {vr(PA+4,4)}, v{aP+1}
    ds_read_b128 {vr(PB,4)}, v{aP+2}
    ds_read_b128 {vr(PB+4,4)}, v{aP+3}
    s_waitcnt lgkmcnt(5)
    v_mad_u32_u24 v{aQ}, v{vX}, s{sQs}, v{cQ}
    v_mad_u32_u24 v{aS}, v{vX}, s{sOs}, v{cS}
    ds_read_u8 v{vX}, v{aXL} offset:8
    ds_read_b64_tr_b16 {vr(B2A+2,2)}, v{aQ}
    ds_read_b64_tr_b16 {vr(B2B+2,2)}, v{aQ} offset:64''')
    for x in idx_reads(IDX, 3): a(x)
    a(f's_sub_u32 s{sCnt}, s{sT}, 1\ns_waitcnt lgkmcnt(5)')
    def zchain(D, B2, P):
        return [f'v_mfma_f32_32x32x16_bf16 {vr(D,16)}, {vr(A2,4)}, {vr(B2,4)}, 0',
                f'v_mfma_f32_32x32x16_bf16 {vr(D,16)}, {vr(P,4)}, {vr(I0,4)}, {vr(D,16)}',
                f'v_mfma_f32_32x32x16_bf16 {vr(D,16)}, {vr(P+4,4)}, {vr(I1,4)}, {vr(D,16)}']
    for m in zchain(DA, B2A, PA): a(m)
    if prio == 'young': a(f's_cmp_eq_u32 s{sG}, 0\ns_cbranch_scc1 k2_noprio\ns_setprio 1\nk2_noprio:')
    a('s_nop 7\ns_nop 3')
    stampat(6)

    def half(D, accprev, Mprev, Mfin, zc, extra_T, extra_P):
        Ts = [f'v_exp_f32 v{EE+i}, v{D+i}' for i in range(16)] + [f'v_rcp_f32 v{DF+i}, v{DF+i}' for i in range(4)]
        mf = [f'v_mfma_f32_32x32x8_bf16 {vr(accprev,16)}, {vr(Mprev,2)}, {vr(S,2)}, {vr(accprev,16)}'] + zc
        if prio == 'P': a('s_setprio 0')
        for k in range(4):
            a(mf[k])
            for x in extra_T.get(k, []): a(x)
            for t_ in Ts[5 * k:5 * k + 5]: a(t_)
        if prio == 'P': a('s_setprio 1')
        Ps = [f'v_pk_fma_f32 {pr(EE+2*p)}, {pr(EE+2*p)}, s[{sC}:{sC+1}], s[{sC}:{sC+1}] clamp' for p in range(8)]
        Ps += [f'v_pk_mul_f32 {pr(NF)}, {pr(NF)}, {pr(DF)}', f'v_pk_mul_f32 {pr(NF+2)}, {pr(NF+2)}, {pr(DF+2)}']
        bs = [0, 4, 8, 12]
        Ps += [f'v_pk_mul_f32 {pr(D+b)}, {pr(D+b)}, {pr(EE+b+2)}' for b in bs]
        Ps += [f'v_cvt_pk_bf16_f32 v{Mfin}, v{NF}, v{NF+1}', f'v_cvt_pk_bf16_f32 v{Mfin+1}, v{NF+2}, v{NF+3}']
        Ps += [f'v_pk_fma_f32 {pr(D+b)}, {pr(D+b+2)}, {pr(EE+b)}, {pr(D+b)}' for b in bs]
        Ps += [f'v_pk_mul_f32 {pr(EE+b)}, {pr(EE+b)}, {pr(EE+b+2)}' for b in bs]
        Ps += [f'v_pk_mul_f32 {pr(NF+2*B)}, {pr(D+8*B)}, {pr(EE+8*B+4)}' for B in range(2)]
        Ps += [f'v_pk_mul_f32 {pr(DF+2*B)}, {pr(EE+8*B)}, {pr(EE+8*B+4)}' for B in range(2)]
        Ps += [f'v_pk_fma_f32 {pr(NF+2*B)}, {pr(D+8*B+4)}, {pr(EE+8*B)}, {pr(NF+2*B)}' for B in range(2)]
        for i, p in enumerate(Ps):
            for x in extra_P.get(i, []):
                a(x() if callable(x) else x)
            a(p)
    def spread(d, xs, start, step=1):
        for i, x in enumerate(xs):
            d.setdefault(start + i * step, []).extend(x if isinstance(x, list) else [x])
    wsched = [('u2', i) for i in range(16)] + [('u1', i) for i in range(NW1A)]
    NPEEL = 6
    per = [4, 4, 4, 4, 4, 5]
    def iteration(tau, u, peeled):
        sl = (u + 1) % 3
        a('s_waitcnt lgkmcnt(0)')
        eT = {3: [f'v_mad_u32_u24 v{aQ}, v{vX}, s{sQs}, v{cQ}', f'v_mad_u32_u24 v{aS+sl}, v{vX}, s{sOs}, v{cS}']}
        eP = {}
        spread(eP, [(lambda: vm.wait(f'dma{tau+1}')) if peeled else 's_waitcnt vmcnt(4)',
              f'ds_read_b128 {vr(PA,4)}, v{aP} offset:{sl*4096}', f'ds_read_b128 {vr(PA+4,4)}, v{aP+1} offset:{sl*4096}',
              f'ds_read_b64_tr_b16 {vr(B2A+2,2)}, v{aQ}',
              [f's_mov_b64 exec, s[{sHM}:{sHM+1}]', f'ds_read_b128 {vr(A2,4)}, v{aEAT} offset:{(u+1)*512}', 's_mov_b64 exec, -1'],
              f's_add_u32 m0, s{sRing}, {u*4096}'], 1)
        spread(eP, [(lambda d=d: dma_ins(IDX, d, f'dma{tau+3}')) for d in range(4)], 8, 7)
        half(DA, ACCA, MA, MB, zchain(DB, B2B, PB), eT, eP)
        a('s_waitcnt lgkmcnt(0)')
        eP = {}
        xs = [f'ds_read_b128 {vr(PB,4)}, v{aP+2} offset:{sl*4096}', f'ds_read_b128 {vr(PB+4,4)}, v{aP+3} offset:{sl*4096}',
              f'ds_read_b64_tr_b16 {vr(B2B+2,2)}, v{aQ} offset:64', f'ds_read_b64_tr_b16 {vr(S,2)}, v{aS+u}',
              f'ds_read_u8 v{vX}, v{aXL} offset:{(u+2)*8}'] + idx_reads(IDX, u + 4)
        spread(eP, xs, 1, 2)
        if peeled:
            k0 = sum(per[:tau])
            for j, (m, i) in enumerate(wsched[k0:k0 + per[tau]]):
                def f(m=m, i=i):
                    ins = wload(WB2 + 4 * i, 2, i, 'wu') if m == 'u2' else wload(w1reg(i), 1, i, 'wu')
                    return '\n'.join(ins)
                eP.setdefault(18 + 2 * j, []).append(f)
            if tau == NPEEL - 1: eP.setdefault(28, []).append(f's_mov_b32 s{sWdone}, 1')
        if u == 2:
            eP.setdefault(29, []).extend([f'v_add_u32 v{aSRC}, 192, v{aSRC}', f'v_add_u32 v{aEAT}, 1536, v{aEAT}', f'v_add_u32 v{aXL}, 24, v{aXL}'])
        eP.setdefault(29, []).append(f's_sub_u32 s{sCnt}, s{sCnt}, 1')
        half(DB, ACCB, MB, MA, zchain(DA, B2A, PA), {}, eP)
    for tau in range(NPEEL):
        iteration(tau, tau % 3, True)
        a('s_cbranch_scc1 k2_drain')
    a.label('k2_loop')
    for u in range(3):
        iteration(100 + u, u, False)
        a('s_cbranch_scc1 k2_drain' if u < 2 else 's_cbranch_scc0 k2_loop')
    a.label('k2_drain')
    a('s_setprio 0\ns_waitcnt lgkmcnt(0)')
    a(f'v_mfma_f32_32x32x8_bf16 {vr(ACCA,16)}, {vr(MA,2)}, {vr(S,2)}, {vr(ACCA,16)}')
    for i in range(4): a(f'v_rcp_f32 v{DF+i}, v{DF+i}')
    a('s_nop 0')
    for i in range(4): a(f'v_mul_f32 v{NF+i}, v{NF+i}, v{DF+i}')
    a(f'''v_cvt_pk_bf16_f32 v{MB}, v{NF}, v{NF+1}
    v_cvt_pk_bf16_f32 v{MB+1}, v{NF+2}, v{NF+3}
    s_nop 1
    v_mfma_f32_32x32x8_bf16 {vr(ACCB,16)}, {vr(MB,2)}, {vr(S,2)}, {vr(ACCB,16)}''')
    a.label('k2_loopend')
    stampat(7)
    a(f'''s_cmp_eq_u32 s{sHeavy}, 0
    s_cbranch_scc1 k2_epi
    s_add_u32 s{sB}, s{sB}, 1''')
    a.label('k2_fetch')
    a(f'''s_waitcnt vmcnt(0) lgkmcnt(0)
    s_barrier
    s_cmp_ge_u32 s{sB}, 4
    s_cbranch_scc1 k2_fovf
    v_lshlrev_b32 v{T0}, 2, v0
    s_lshl_b32 s{sTmp}, s2, 13
    s_lshl_b32 s{sTmp2}, s{sB}, 11
    s_add_u32 s{sTmp}, s{sTmp}, s{sTmp2}
    buffer_load_dword v{KEY}, v{T0}, {WS}, s{sTmp} offen
    v_lshrrev_b32 v{T0}, 5, v0
    s_lshl_b32 s{sTmp2}, s{sB}, 4
    v_add_u32 v{T0}, s{sTmp2}, v{T0}
    v_mul_u32_u24 v{vCB}, {CHE}, v{T0}
    s_waitcnt vmcnt(0)
    s_branch k2_fend''')
    a.label('k2_fovf')
    a(f'''s_sub_u32 s{sTmp}, s{sB}, 4
    s_lshr_b32 s{sTmp2}, s{sTmp}, 3
    s_cmp_ge_u32 s{sTmp2}, {NCH}
    s_cbranch_scc1 k2_epi
    s_and_b32 s{sTmp}, s{sTmp}, 7
    s_lshl_b32 s{sTmp}, s{sTmp}, 9
    v_readlane_b32 s{sTmp3}, v{vNOVF}, s{sTmp2}
    s_cmp_lt_u32 s{sTmp}, s{sTmp3}
    s_cbranch_scc1 k2_fgo
    s_add_u32 s{sB}, s{sB}, 1
    s_branch k2_fovf''')
    a.label('k2_fgo')
    a(f'''s_sub_u32 s{sTmp3}, s{sTmp3}, s{sTmp}
    s_mul_i32 s{sT0}, s{sTmp2}, {CHE}
    s_add_u32 s{sTmp}, s{sTmp}, s{sT0}
    s_lshl_b32 s{sTmp}, s{sTmp}, 3
    s_add_u32 s{sTmp}, s{sTmp}, {WS_OVF - WS_CELLS}
    v_lshlrev_b32 v{T0}, 3, v0
    buffer_load_dwordx2 {vr(TQ,2)}, v{T0}, {WS}, s{sTmp} offen
    v_mov_b32 v{vCB}, s{sT0}
    s_waitcnt vmcnt(0)
    v_cmp_gt_u32 vcc, s{sTmp3}, v0
    v_cmp_eq_u32 s[{sSv}:{sSv+1}], s2, v{TQ+1}
    s_and_b64 vcc, vcc, s[{sSv}:{sSv+1}]
    v_cndmask_b32 v{KEY}, -1, v{TQ}, vcc''')
    a.label('k2_fend')
    a(f'''v_mov_b32 v{KEY+1}, -1
    v_mov_b32 v{KEY+2}, -1
    v_mov_b32 v{KEY+3}, -1
    s_branch k2_batch''')
    a.label('k2_epi')
    vm.ops = []
    a(f's_waitcnt vmcnt(0)\ns_cmp_lg_u32 s{sWdone}, 0\ns_cbranch_scc1 k2_wok')
    for (m, i) in wsched:
        for x in (wload(WB2 + 4 * i, 2, i, 'c') if m == 'u2' else wload(w1reg(i), 1, i, 'c')): a(x)
    a('s_waitcnt vmcnt(0)')
    a.label('k2_wok')
    vm.ops = []
    for i in range(NW1A, 16):
        for x in wload(w1reg(i), 1, i, f'w1_{i}'): a(x)
    Y0, Y1, Y2, Y3 = X0, X0 + 1, X0 + 2, X0 + 3
    a(f'''v_and_b32 v{Y0}, 15, v{vLane}
    v_lshrrev_b32 v{Y1}, 4, v{vLane}
    v_xor_b32 v{Y2}, v{Y1}, v{Y0}
    v_lshlrev_b32 v{Y2}, 4, v{Y2}
    v_lshl_add_u32 v{Y2}, v{Y0}, 9, v{Y2}
    v_add_u32 v{EA_}, {XT}, v{Y2}''')
    for s in range(1, 4):
        a(f'v_xor_b32 v{Y3}, {s<<6}, v{Y2}\nv_add_u32 v{EA_+s}, {XT}, v{Y3}')
    a(f'''s_mov_b32 s{sTmp}, {hex(f2u(-LN2 * 2.0**-30))}
    v_and_b32 v{Y2}, 31, v{vLane}
    v_bfe_u32 v{Y3}, v{vLane}, 1, 3
    v_lshlrev_b32 v{Y3}, 4, v{Y3}
    v_lshl_add_u32 v{Y2}, v{Y2}, 7, v{Y3}
    v_lshrrev_b32 v{Y3}, 5, v{vLane}
    v_lshl_add_u32 v{Y2}, v{Y3}, 3, v{Y2}
    v_add_u32 v{Y2}, s{sRing}, v{Y2}''')
    for q in range(8):
        for i in range(4): a(f'v_mul_f32 v{ACCA+4*q+i}, s{sTmp}, v{ACCA+4*q+i}')
        a(f'v_cvt_pk_bf16_f32 v{ACCA+4*q}, v{ACCA+4*q}, v{ACCA+4*q+1}\nv_cvt_pk_bf16_f32 v{ACCA+4*q+1}, v{ACCA+4*q+2}, v{ACCA+4*q+3}')
        if q: a(f'v_xor_b32 v{Y3}, {q<<4}, v{Y2}')
        a(f'ds_write_b64 v{Y3 if q else Y2}, {vr(ACCA+4*q,2)}')
    AD = ACCA + 2
    ADR = [ACCA + 2, ACCA + 3, ACCA + 6, ACCA + 7, ACCA + 10, ACCA + 11]
    a(f'v_mov_b32 v{ACCA+14}, {4*12288 - 8*128}')
    for rt in range(3):
        n = ACCA + 15; j = ACCA + 18; tt = ACCA + 19
        a(f'''v_add_u32 v{n}, {16*rt}, v{Y0}
        v_cmp_le_u32 vcc, s{sSplit}, v{n}
        v_lshrrev_b32 v{j}, 1, v{n}
        v_xor_b32 v{tt}, 4, v{j}
        v_cndmask_b32 v{j}, v{j}, v{tt}, vcc
        v_cndmask_b32 v{tt}, 0, v{ACCA+14}, vcc
        v_xor_b32 v{j}, v{j}, v{Y1}
        v_and_b32 v{j}, 7, v{j}
        v_lshl_add_u32 v{tt}, v{n}, 7, v{tt}
        v_lshl_add_u32 v{ADR[2*rt]}, v{j}, 4, v{tt}
        v_xor_b32 v{ADR[2*rt+1]}, 64, v{ADR[2*rt]}''')
    stampat(8)
    gemm(OA, AF, EA_, w1reg, True, lambda s: vm.wait(f'w1_{2*s+1}') if 2 * s + 1 >= NW1A else None)
    a('s_barrier')
    srd(a, sO, 16, N * 512)
    a(f'''v_lshlrev_b32 v{Y2}, 2, v{Y0}
    v_lshl_add_u32 v{Y2}, v{Y1}, 11, v{Y2}
    s_lshl_b32 s{sTmp2}, s{sN0}, 9
    s_lshl_b32 s{sTmp}, s{sWV}, 6
    s_add_u32 s{sTmp2}, s{sTmp2}, s{sTmp}
    s_mov_b32 s{sC}, {hex(f2u(-LOG2E))}''')
    Z = DA
    def silu_ops(rt):
        b = OA + rt * 8
        ops = [f'v_mul_f32 v{Z+p}, s{sC}, v{b+p}' for p in range(8)]
        ops += [f'v_exp_f32 v{Z+p}, v{Z+p}' for p in range(8)]
        ops += [f'v_add_f32 v{Z+p}, 1.0, v{Z+p}' for p in range(8)]
        ops += [f'v_rcp_f32 v{Z+p}, v{Z+p}' for p in range(8)]
        ops += [f'v_mul_f32 v{Z+p}, v{b+p}, v{Z+p}' for p in range(8)]
        for rr in range(4):
            ops.append(f'v_cvt_pk_bf16_f32 v{Z+8+rr}, v{Z+rr}, v{Z+4+rr}')
        for rr in range(4):
            if rt == 2 and rr == 3:
                ops.append(f's_cmp_eq_u32 s{sNN}, 40\ns_cselect_b32 exec_lo, -1, 0xffff')
            ops.append(f'buffer_store_dword v{Z+8+rr}, v{Y2}, s[{sO}:{sO+3}], s{sTmp2} offen offset:{rr*512}')
        ops.append(f's_add_u32 s{sTmp2}, s{sTmp2}, 8192')
        return ops
    seq = [(rt, s) for rt in range(3) for s in range(8)]
    def ard(k):
        rt, s = seq[k]
        a(f'ds_read_b128 {vr(AF+4*(k%6),4)}, v{ADR[2*rt+(s&1)]} offset:{(s>>1)*12288}')
    for k in range(5): ard(k)
    pend = []
    for k, (rt, s) in enumerate(seq):
        if k + 5 < 24: ard(k + 5)
        a(f's_waitcnt lgkmcnt({min(5, 23-k)})')
        for c in range(2):
            d = OA + (rt * 2 + c) * 4
            a(f'v_mfma_f32_16x16x32_bf16 {vr(d,4)}, {vr(AF+4*(k%6),4)}, {vr(WB2+4*(2*s+c),4)}, {vr(d,4)}')
            if s >= 1 or c == 1:
                n = 4 if s >= 1 else 0
                for x in pend[:n]: a(x)
                pend = pend[n:]
        if s == 7:
            for x in pend: a(x)
            pend = silu_ops(rt)
    a('s_mov_b32 exec_hi, 0\ns_nop 6')
    for x in pend: a(x)
    if stamp:
        stampat(9)
        a(f's_mov_b64 exec, 1\ns_waitcnt lgkmcnt(0)')
        srd(a, sX, 18, 1 << 20, add=WS_END)
        a(f's_lshl_b32 s{sTmp}, s2, 3\ns_add_u32 s{sTmp}, s{sTmp}, s{sWV}\ns_lshl_b32 s{sTmp}, s{sTmp}, 6\nv_mov_b32 v{Y0}, 0')
        for i in range(10):
            a(f'v_mov_b32 v{Y1}, s{sStamp+2*i}\nbuffer_store_dword v{Y1}, v{Y0}, s[{sX}:{sX+3}], s{sTmp} offen offset:{4*i}')
        a(f'v_mov_b32 v{Y1}, s{sT}\nbuffer_store_dword v{Y1}, v{Y0}, s[{sX}:{sX+3}], s{sTmp} offen offset:40')
        a(f's_sub_u32 s10, s10, s8\nv_mov_b32 v{Y1}, s10\nbuffer_store_dword v{Y1}, v{Y0}, s[{sX}:{sX+3}], s{sTmp} offen offset:44')
    a.label('k2_done')
    a('s_endpgm')
    return kd('k2_kernel', 256, 102)
```

```python
import sys, json
from common import *
import k1
try:
    import k2
except ImportError:
    k2 = None
opt = {}
for x in sys.argv[2:]:
    k, v = x.split('=', 1); opt[k] = v
hdr = open('standalone__mpnn_edge_mlp__graph.s.ref').read().split('; Override')[0].rstrip('\n')
a = Asm()
a.raw(hdr)
a.raw(f'; @launch kernel=k1_kernel grid=({k1.K1_GRID},1,1) block=(512,1,1) lds={k1.K1_LDS}')
if k2 and not opt.get('nok2'):
    a.raw(f'; @launch kernel=k2_kernel grid=({k2.K2_GRID},1,1) block=(512,1,1) lds={k2.K2_LDS}')
a.raw('.amdgcn_target "amdgcn-amd-amdhsa--gfx950"\n.text')
kds = [k1.gen_k1(a, opt)]
if k2 and not opt.get('nok2'):
    kds.append(k2.gen_k2(a, opt))
a.raw('.section .rodata,"a"')
for k in kds: a.raw(k)
open(sys.argv[1], 'w').write(a.text() + '\n')
```

```python
import struct
def f2u(f): return struct.unpack('<I', struct.pack('<f', f))[0]
LOG2E = 1.4426950408889634
LN2 = 0.6931471805599453

N = 10000; E = 160000
NB = 256; NPB = 40
NCH = 64; CHE = 2500
WS_P = 4096
WS_CELLS = 5242880
WS_EA = WS_CELLS + 2097152
WS_NOVF = WS_EA + 1310720
WS_OVF = WS_NOVF + 4096
WS_WF = WS_OVF + 1310720
WS_WF3 = WS_WF + 393216
WS_END = WS_WF3 + 2048

class Asm:
    def __init__(self):
        self.lines = []
    def __call__(self, s):
        for l in s.split('\n'):
            l = l.strip()
            if l: self.lines.append('    ' + l)
    def label(self, l): self.lines.append(l + ':')
    def raw(self, s): self.lines.append(s)
    def text(self): return '\n'.join(self.lines)

def srd(a, d, ptr, nbytes, add=0, stride=0):
    if add:
        a(f's_add_u32 s{d}, s{ptr}, {add}')
        a(f's_addc_u32 s{d+1}, s{ptr+1}, 0')
        a(f's_and_b32 s{d+1}, s{d+1}, 0xffff')
    else:
        a(f's_mov_b32 s{d}, s{ptr}')
        a(f's_and_b32 s{d+1}, s{ptr+1}, 0xffff')
    if stride:
        a(f's_or_b32 s{d+1}, s{d+1}, {stride << 16}')
    a(f's_mov_b32 s{d+2}, {nbytes}')
    a(f's_mov_b32 s{d+3}, 0x20000')

def kd(name, vgpr, sgpr):
    acc = (vgpr + 3) // 4 * 4
    return f'''.p2align 6
.amdhsa_kernel {name}
  .amdhsa_next_free_vgpr {vgpr}
  .amdhsa_next_free_sgpr {sgpr}
  .amdhsa_accum_offset {acc}
  .amdhsa_group_segment_fixed_size 0
  .amdhsa_kernarg_size 72
  .amdhsa_user_sgpr_count 2
  .amdhsa_user_sgpr_kernarg_segment_ptr 1
  .amdhsa_system_sgpr_workgroup_id_x 1
.end_amdhsa_kernel'''


class VM:
    def __init__(self): self.ops = []
    def issue(self, tag): self.ops.append(tag)
    def count_after(self, tag):
        idx = max(i for i, t in enumerate(self.ops) if t == tag)
        return len(self.ops) - 1 - idx
    def wait(self, tag):
        n = self.count_after(tag)
        assert n <= 63, n
        return f's_waitcnt vmcnt({n})'
```

```python
from common import *
K1_GRID = 240
K1_LDS = 131072

def gen_k1(a, opt):
    k1st = opt.get('k1stamp')
    def st_(i):
        if k1st:
            a(f's_memrealtime s[{60+2*i}:{61+2*i}]')
            if i == 0: a('s_memtime s[50:51]')
    def fin_(n):
        if not k1st: return
        a('s_waitcnt vmcnt(0)')
        st_(n)
        a('s_memtime s[52:53]\ns_mov_b64 exec, 1\ns_waitcnt lgkmcnt(0)')
        srd(a, 20, 16, 1 << 20, add=WS_END + 262144)
        a('v_lshrrev_b32 v1, 6, v0\ns_nop 0\nv_readfirstlane_b32 s54, v1\ns_lshl_b32 s3, s2, 3\ns_add_u32 s3, s3, s54\ns_lshl_b32 s3, s3, 6\nv_mov_b32 v2, 0')
        for i in range(n + 1):
            a(f'v_mov_b32 v1, s{60+2*i}\nbuffer_store_dword v1, v2, s[20:23], s3 offen offset:{4*i}')
        a('s_sub_u32 s52, s52, s50\nv_mov_b32 v1, s52\nbuffer_store_dword v1, v2, s[20:23], s3 offen offset:44')
    st = opt.get('k1_store', ' sc1')
    a.raw('.globl k1_kernel\n.p2align 8\n.type k1_kernel,@function')
    a.label('k1_kernel')
    a(f'''s_cmp_ge_u32 s2, {K1_GRID}
    s_cbranch_scc1 k1_done''')
    st_(0)
    a(f'''s_load_dwordx4 s[4:7], s[0:1], 0
    s_load_dwordx4 s[8:11], s[0:1], 16
    s_load_dwordx4 s[12:15], s[0:1], 32
    s_load_dwordx2 s[16:17], s[0:1], 64
    s_cmp_lt_u32 s2, 64
    s_cbranch_scc1 k1_sort
    s_cmp_lt_u32 s2, 80
    s_cbranch_scc1 k1_relayout''')
    a(f'''s_sub_u32 s3, s2, 80
    s_lshr_b32 s18, s3, 4
    s_lshl_b32 s18, s18, 3
    s_and_b32 s19, s3, 7
    s_add_u32 s18, s18, s19
    s_bfe_u32 s19, s3, 0x10003
    s_cmp_ge_u32 s18, 79
    s_cbranch_scc1 k1_done
    v_lshrrev_b32 v1, 6, v0
    v_and_b32 v2, 63, v0
    v_readfirstlane_b32 s33, v1
    v_lshrrev_b32 v3, 5, v2
    v_and_b32 v4, 31, v2''')
    a(f'''v_xor_b32 v5, v4, v3
    v_lshlrev_b32 v5, 4, v5
    v_lshl_add_u32 v5, v3, 9, v5''')
    a(f'''v_lshrrev_b32 v6, 4, v2
    v_and_b32 v7, 15, v2
    v_lshlrev_b32 v8, 2, v6
    v_xor_b32 v7, v7, v8
    v_lshlrev_b32 v7, 4, v7
    v_lshl_add_u32 v7, v6, 9, v7''')
    a('s_waitcnt lgkmcnt(0)')
    st_(1)
    srd(a, 20, 4, N*512)
    srd(a, 24, 12, 256*512)
    srd(a, 28, 16, N*512, add=WS_P)
    a(f'''s_lshl_b32 s34, s33, 14
    s_lshl_b32 s35, s19, 8
    s_add_u32 s34, s34, s35
    s_lshl_b32 s35, s33, 13
    s_add_u32 s36, s35, 65536
    s_lshl_b32 s37, s18, 16
    s_add_u32 s37, s37, s35''')
    for t in range(8):
        if t % 4 == 0:
            if t: a('s_add_u32 s37, s37, 4096\ns_add_u32 s35, s35, 4096')
        a(f's_mov_b32 m0, s35')
        if t: a(f'v_xor_b32 v9, {t<<5}, v5')
        else: a('s_nop 0')
        a(f'buffer_load_dwordx4 v{9 if t else 5}, s[20:23], s37 offen offset:{(t%4)*1024} lds' if t%4 else f'buffer_load_dwordx4 v{9 if t else 5}, s[20:23], s37 offen lds')
        a(f's_mov_b32 m0, s36')
        a('s_add_u32 s36, s36, 1024')
        a(f'buffer_load_dwordx4 v7, s[24:27], s34 offen lds')
        a('s_add_u32 s34, s34, 2048')
    st_(2)
    a(f'''s_lshr_b32 s38, s33, 1
    s_and_b32 s39, s33, 1
    s_lshl_b32 s40, s38, 14
    v_and_b32 v10, 15, v4
    v_xor_b32 v10, v10, v3
    v_lshlrev_b32 v10, 4, v10
    v_lshl_add_u32 v10, v4, 9, v10
    v_add_u32 v10, s40, v10''')
    for s in range(1, 8):
        a(f'v_xor_b32 v{10+s}, {s<<5}, v10')
    a(f'''v_bfe_u32 v20, v2, 2, 2
    v_bfe_u32 v21, v2, 4, 1
    v_bfe_u32 v22, v2, 1, 1
    v_lshl_add_u32 v21, v21, 1, v22
    s_lshl_b32 s41, s39, 3
    v_add_u32 v21, s41, v21
    v_lshlrev_b32 v22, 2, v20
    v_xor_b32 v21, v21, v22
    v_lshlrev_b32 v21, 4, v21
    v_lshl_add_u32 v22, v3, 3, v20
    v_lshl_add_u32 v21, v22, 8, v21
    v_and_b32 v22, 1, v2
    v_lshl_add_u32 v21, v22, 3, v21
    v_add_u32 v18, 65536, v21
    v_xor_b32 v19, 64, v18''')
    a(f'''v_lshlrev_b32 v23, 2, v4
    v_lshl_add_u32 v23, v3, 11, v23
    s_lshl_b32 s42, s18, 16
    s_add_u32 s42, s42, s40
    s_lshl_b32 s43, s19, 8
    s_add_u32 s42, s42, s43
    s_lshl_b32 s43, s39, 7
    s_add_u32 s42, s42, s43''')
    a('s_waitcnt vmcnt(0)')
    st_(3)
    a('s_barrier')
    st_(4)
    NS = 3
    def reads(s):
        b = 32 + (s % 4) * 12
        a(f'ds_read_b128 v[{b}:{b+3}], v{10+(s&7)} offset:{(s>>3)*256}')
        for c in range(2):
            for t in range(2):
                r = b + 4 + c*4 + t*2
                a(f'ds_read_b64_tr_b16 v[{r}:{r+1}], v{18+c} offset:{(16*s+4*t)*256}')
    for s in range(NS): reads(s)
    for s in range(16):
        rem = min(NS - 1, 15 - s)
        a(f's_waitcnt lgkmcnt({rem*5})')
        b = 32 + (s % 4) * 12
        c0 = '0' if s == 0 else 'v[80:95]'
        c1 = '0' if s == 0 else 'v[96:111]'
        a(f'v_mfma_f32_32x32x16_bf16 v[80:95], v[{b}:{b+3}], v[{b+4}:{b+7}], {c0}')
        a(f'v_mfma_f32_32x32x16_bf16 v[96:111], v[{b}:{b+3}], v[{b+8}:{b+11}], {c1}')
        if s + NS < 16: reads(s + NS)
    st_(5)
    a(f's_mov_b32 s44, {hex(f2u(-LOG2E))}')
    a('s_nop 7\ns_nop 4')
    for r in range(16):
        a(f'v_mul_f32 v{80+r}, s44, v{80+r}')
    for r in range(16):
        a(f'v_mul_f32 v{96+r}, s44, v{96+r}')
        a(f'v_cvt_pk_bf16_f32 v{32+r}, v{80+r}, v{96+r}')
        g, rr = r >> 2, r & 3
        a(f'buffer_store_dword v{32+r}, v23, s[28:31], s42 offen offset:{rr*512}{st}')
        if rr == 3 and g < 3: a('s_add_u32 s42, s42, 4096')
    st_(6)
    fin_(7)
    a('s_endpgm')
    a.label('k1_sort')
    a(f'''v_lshlrev_b32 v1, 2, v0
    s_mul_i32 s3, s2, {CHE*4}
    s_movk_i32 s19, 625
    s_waitcnt lgkmcnt(0)''')
    st_(1)
    srd(a, 20, 8, E*4)
    srd(a, 24, 10, E*4)
    for i in range(5):
        if i == 2: a('s_add_u32 s18, s3, 4096')
        if i == 4: a('s_add_u32 s18, s3, 8192')
        so = 's3' if i < 2 else 's18'
        a(f'buffer_load_dword v{10+i}, v1, s[24:27], {so} offen offset:{(i%2)*2048}')
        a(f'buffer_load_dword v{15+i}, v1, s[20:23], {so} offen offset:{(i%2)*2048}')
    srd(a, 44, 6, E*8)
    a(f'v_lshlrev_b32 v28, 3, v0\ns_lshl_b32 s18, s3, 1')
    for i in range(5):
        a(f'buffer_load_dwordx2 v[{30+2*i}:{31+2*i}], v28, s[44:47], s18 offen')
        if i < 4: a('s_add_u32 s18, s18, 4096')
    srd(a, 28, 16, NB*NCH*384, add=WS_CELLS)
    srd(a, 32, 16, WS_WF - WS_NOVF, add=WS_NOVF)
    a(f'''v_lshlrev_b32 v2, 4, v0
    v_mov_b32 v4, -1
    v_mov_b32 v5, -1
    v_mov_b32 v6, -1
    v_mov_b32 v7, -1
    v_mov_b32 v8, 0
    v_mov_b32 v9, 1
    ds_write_b128 v2, v[4:7]
    ds_write_b128 v2, v[4:7] offset:8192
    ds_write_b128 v2, v[4:7] offset:16384
    ds_write_b128 v2, v[4:7] offset:24576
    ds_write_b32 v1, v8 offset:32768
    s_waitcnt lgkmcnt(0)
    s_barrier''')
    st_(2)
    for i in range(5):
        a(f's_waitcnt vmcnt({13-2*i})')
        if i == 0: st_(3)
        a(f'''v_mul_u32_u24 v{20+i}, 429497, v{10+i}
        v_lshrrev_b32 v{20+i}, 24, v{20+i}
        v_mad_u32_u24 v3, v{20+i}, s19, 15
        v_lshrrev_b32 v3, 4, v3
        v_sub_u32 v3, v{10+i}, v3
        v_lshl_or_b32 v{15+i}, v3, 14, v{15+i}
        v_add_u32 v3, {512*i}, v0
        v_lshl_or_b32 v{15+i}, v3, 20, v{15+i}
        v_lshlrev_b32 v3, 2, v{20+i}''')
        if i == 4:
            a(f'v_cmp_gt_u32 vcc, {CHE-2048}, v0\ns_and_saveexec_b64 s[38:39], vcc')
        a(f'ds_add_rtn_u32 v{10+i}, v3, v9 offset:32768')
    a('s_mov_b64 s[36:37], exec\ns_mov_b64 exec, s[38:39]')
    a(f's_mul_i32 s3, s2, {CHE*8}\ns_add_u32 s3, s3, {WS_OVF - WS_NOVF}')
    for i in range(5):
        a(f's_waitcnt vmcnt({4-i}) lgkmcnt({4-i})' if i < 4 else 's_waitcnt vmcnt(0) lgkmcnt(0)\ns_mov_b64 exec, s[36:37]')
        a(f'''v_lshlrev_b32 v3, 7, v{20+i}
        v_cmp_gt_u32 vcc, 32, v{10+i}
        v_lshl_add_u32 v3, v{10+i}, 2, v3
        s_and_saveexec_b64 s[40:41], vcc
        ds_write_b32 v3, v{15+i}
        v_lshlrev_b32 v3, 1, v3
        ds_write_b64 v3, v[{30+2*i}:{31+2*i}] offset:36864
        s_andn2_b64 exec, s[40:41], exec
        s_cbranch_execz k1_noovf{i}
        v_mov_b32 v3, 1024
        ds_add_rtn_u32 v3, v3, v9 offset:32768
        v_mov_b32 v26, v{15+i}
        v_mov_b32 v27, v{20+i}
        s_waitcnt lgkmcnt(0)
        v_lshlrev_b32 v3, 3, v3
        buffer_store_dwordx2 v[26:27], v3, s[32:35], s3 offen
        s_waitcnt vmcnt(0)''')
        a.label(f'k1_noovf{i}')
        a('s_mov_b64 exec, s[40:41]')
    st_(4)
    a(f'''s_mov_b64 exec, -1
    s_waitcnt lgkmcnt(0)
    s_barrier''')
    st_(5)
    a(f'''ds_read_b128 v[4:7], v2
    ds_read_b128 v[8:11], v2 offset:8192
    ds_read_b128 v[12:15], v2 offset:16384
    ds_read_b128 v[16:19], v2 offset:24576
    v_mov_b32 v3, 1024
    ds_read_b32 v20, v3 offset:32768
    v_lshrrev_b32 v21, 3, v0
    v_and_b32 v22, 7, v0
    v_lshlrev_b32 v22, 4, v22
    v_lshl_add_u32 v21, v21, 13, v22
    s_lshl_b32 s3, s2, 7''')
    a('v_add_u32 v23, 36864, v2')
    for r in range(8): a(f'ds_read_b128 v[{32+4*r}:{35+4*r}], v23 offset:{r*8192}')
    a(f'''v_lshrrev_b32 v24, 4, v0
    v_and_b32 v22, 15, v0
    v_lshlrev_b32 v22, 4, v22
    v_lshl_add_u32 v24, v24, 14, v22
    s_lshl_b32 s18, s2, 8
    s_add_u32 s18, s18, {WS_ECELLS - WS_CELLS}''')
    for r in range(4):
        a(f's_waitcnt lgkmcnt({12-r})')
        a(f'buffer_store_dwordx4 v[{4+4*r}:{7+4*r}], v21, s[28:31], s3 offen{st}')
        if r < 3: a(f's_add_u32 s3, s3, {64*8192}')
    for r in range(8):
        a(f's_waitcnt lgkmcnt({7-r})')
        a(f'buffer_store_dwordx4 v[{32+4*r}:{35+4*r}], v24, s[28:31], s18 offen{st}')
        if r < 7: a(f's_add_u32 s18, s18, {32*16384}')
    st_(6)
    fin_(7)
    if k1st: a('s_mov_b64 exec, -1')
    a(f'''v_cmp_eq_u32 vcc, 0, v0
    s_lshl_b32 s3, s2, 2
    s_and_saveexec_b64 s[40:41], vcc
    s_cbranch_execz k1_done
    s_waitcnt lgkmcnt(0)
    v_mov_b32 v1, 0
    buffer_store_dword v20, v1, s[32:35], s3 offen{st}
    s_endpgm''')
    a.label('k1_relayout')
    a(f'''v_lshrrev_b32 v1, 6, v0
    v_and_b32 v2, 63, v0
    v_readfirstlane_b32 s33, v1
    s_sub_u32 s3, s2, 64
    s_lshl_b32 s3, s3, 3
    v_and_b32 v3, 15, v2
    v_lshrrev_b32 v4, 4, v2
    s_add_u32 s3, s3, s33
    s_lshr_b32 s18, s3, 4
    s_bfe_u32 s19, s3, 0x30001
    s_and_b32 s34, s3, 1
    v_lshlrev_b32 v5, 12, v4
    v_lshl_add_u32 v6, v3, 2, v5
    v_lshl_add_u32 v5, v3, 1, v5
    v_lshlrev_b32 v7, 11, v4
    v_lshl_add_u32 v7, v3, 2, v7
    s_waitcnt lgkmcnt(0)''')
    srd(a, 20, 12, 516*512)
    srd(a, 24, 14, 512*512)
    srd(a, 28, 16, 393216 + 2048, add=WS_WF)
    a(f'''s_lshl_b32 s35, s19, 14
    s_lshr_b32 s36, s18, 1
    s_lshl_b32 s36, s36, 7
    s_and_b32 s37, s18, 1
    s_lshl_b32 s37, s37, 5
    s_add_u32 s36, s36, s37
    s_lshl_b32 s37, s34, 6
    s_add_u32 s36, s36, s37
    s_add_u32 s36, s36, s35
    s_add_u32 s36, s36, {256*512}
    s_lshl_b32 s37, s18, 6
    s_lshl_b32 s38, s34, 1
    s_add_u32 s37, s37, s38
    s_add_u32 s38, s37, s35
    s_lshr_b32 s39, s19, 1
    s_lshl_b32 s39, s39, 15
    s_and_b32 s40, s19, 1
    s_lshl_b32 s40, s40, 13
    s_add_u32 s39, s39, s40
    s_add_u32 s39, s39, s37
    s_add_u32 s39, s39, {256*512}
    s_add_u32 s40, s39, 16384''')
    for e in range(8): a(f'buffer_load_ushort v{8+e}, v5, s[20:23], s36 offen offset:{e*512}')
    for e in range(8): a(f'buffer_load_ushort v{16+e}, v6, s[24:27], s38 offen offset:{e*512}')
    for e in range(8): a(f'buffer_load_ushort v{24+e}, v7, s[24:27], s{39+(e&1)} offen offset:{(e>>1)*512}')
    a('v_lshlrev_b32 v1, 4, v2\ns_lshl_b32 s3, s3, 10')
    for m in range(3):
        a(f's_waitcnt vmcnt({16-8*m+m})')
        for p in range(4):
            a(f'v_lshl_or_b32 v{32+4*m+p}, v{9+8*m+2*p}, 16, v{8+8*m+2*p}')
        a(f'buffer_store_dwordx4 v[{32+4*m}:{35+4*m}], v1, s[28:31], s3 offen{st}')
        if m < 2: a('s_add_u32 s3, s3, 131072')
    a(f'''s_cmp_lg_u32 s2, 64
    s_cbranch_scc1 k1_done
    s_cmp_ge_u32 s33, 2
    s_cbranch_scc1 k1_done
    v_bfe_u32 v3, v0, 1, 4
    v_and_b32 v4, 1, v0
    v_lshlrev_b32 v3, 1, v3
    v_lshl_add_u32 v3, v4, 6, v3
    v_lshrrev_b32 v4, 5, v0
    v_lshl_add_u32 v3, v4, 7, v3
    s_mov_b32 s36, {512*512}
    s_mov_b32 s37, {hex(f2u(-LOG2E))}''')
    for ct in range(2):
        for k in range(4):
            a(f'buffer_load_ushort v{8+4*ct+k}, v3, s[20:23], s36 offen offset:{k*512+ct*32}')
    a('v_lshlrev_b32 v1, 4, v0\ns_mov_b32 s3, 393216\ns_waitcnt vmcnt(0)')
    for k in range(8): a(f'v_lshlrev_b32 v{8+k}, 16, v{8+k}\nv_mul_f32 v{8+k}, s37, v{8+k}')
    for p in range(4): a(f'v_cvt_pk_bf16_f32 v{16+p}, v{8+2*p}, v{9+2*p}')
    a(f'buffer_store_dwordx4 v[16:19], v1, s[28:31], s3 offen{st}')
    a.label('k1_done')
    a('s_endpgm')
    return kd('k1_kernel', 112, 80)
```

```python
from common import *
K2_GRID = NB
NT = 29
QT = 98304; QSTR = 576
OH = QT + 41 * QSTR; OSTR = 80
XT = QT + 40 * QSTR + 4096
EAT = XT + 20480
CNT = EAT + NT * 512
SRC = CNT + 256
XL = SRC + (NT + 7) * 64
K2_LDS = 163840
assert XL + 256 <= K2_LDS
C30 = 0x30800000

class R:
    def __init__(self, start): self.n = start
    def get(self, k=1, align=1):
        self.n = (self.n + align - 1) // align * align
        r = self.n; self.n += k; return r

def vr(r, k): return f'v[{r}:{r+k-1}]' if k > 1 else f'v{r}'
def pr(x): return f'v[{x}:{x+1}]'

def gen_k2(a, opt):
    stamp = opt.get('stamp')
    prio = opt.get('prio', '02,02,13|13,13,02')
    vm = VM()
    r = R(1)
    vLane = r.get(); vNOVF = r.get(); vL16 = r.get()
    aSRC = r.get(); aEAT = r.get(); aXL = r.get(); cQ = r.get(); cS = r.get(); vX = r.get(); aQ = r.get()
    aS = r.get(3); aP = r.get(4)
    IDX = r.get(8, 2)
    A2 = r.get(4, 2); B2A = r.get(4, 2); B2B = r.get(4, 2)
    S = r.get(2, 2); MA = r.get(2, 2); MB = r.get(2, 2)
    ACCA = r.get(16, 2); ACCB = r.get(16, 2)
    DA = r.get(16, 2); DB = r.get(16, 2)
    EE = r.get(16, 2); NF = r.get(4, 2); DF = r.get(4, 2)
    PA = r.get(8, 2); PB = r.get(8, 2); I0 = r.get(4, 2); I1 = r.get(4, 2)
    WB2 = r.get(64, 2)
    WB1 = r.get(36, 2)
    assert r.n <= 256, r.n
    NW1A = 9
    t = R(WB1)
    KEY = t.get(4, 2); RK = t.get(4, 2); DL4 = t.get(4, 2); EA = t.get(8, 2); TQ = t.get(4, 2)
    T0 = t.get(); T1 = t.get(); T2 = t.get(); T3 = t.get(); vCB = t.get(); aA = t.get(4)
    assert t.n <= WB1 + 36
    W3 = DB + 4
    QD = [PA, PA + 4, PB, PB + 4, DB + 8, DB + 12]; QF = EE
    IDX1 = DA; IDX2 = DA + 8
    TOUCH = DB
    OA = EE; AF = PA; WB1B = DA
    X0 = DB + 12
    EA_ = IDX
    def w1reg(i): return WB1 + 4 * i if i < NW1A else WB1B + 4 * (i - NW1A)

    sP = 20; sX = 24; sE = 28; sWS = 32; sM = 36; sO = 40
    sWV = 44; sG = 45; sCQ = 46; sHeavy = 47; sB = 48; sQdone = 49; sSplit = 50; sT = 51; sTbase = 52
    sRing = 53; sCnt = 54; sTmp = 55; sTmp2 = 56; sTmp3 = 57; sC = 58
    sMask = 60
    sQs = 68; sOs = 69; sT0 = 70; sT1 = 71; sQt = 72; sWdone = 73; sSv = 74
    sStamp = 76
    sHM = 96; sN0 = 98; sWF = 99; sNN = 3

    names = (stamp if stamp and stamp != '1' else '0,1,2,3,4,5,6,7,8,9').split(',')
    def stampat(nm):
        nm = str(nm)
        if stamp:
            if nm in names:
                i = names.index(nm)
                a(f's_memrealtime s[{sStamp+2*i}:{sStamp+2*i+1}]')
            if nm == '6': a('s_memtime s[8:9]')
            if nm == '7': a('s_memtime s[10:11]')
    WS = f's[{sWS}:{sWS+3}]'
    def wload(dst, mat, i, tag):
        off = mat * 131072 + i * 1024
        ins = [f's_add_u32 s{sTmp3}, s{sWF}, {off & ~4095}',
               f'buffer_load_dwordx4 {vr(dst,4)}, v{vL16}, {WS}, s{sTmp3} offen offset:{off & 4095}']
        vm.issue(tag)
        return ins

    a.raw('.globl k2_kernel\n.p2align 8\n.type k2_kernel,@function')
    a.label('k2_kernel')
    a(f's_cmp_ge_u32 s2, {K2_GRID}\ns_cbranch_scc1 k2_done')
    stampat(0)
    a(f'''s_load_dwordx2 s[18:19], s[0:1], 64
    s_load_dwordx4 s[4:7], s[0:1], 0
    s_load_dwordx2 s[12:13], s[0:1], 32
    s_load_dwordx2 s[16:17], s[0:1], 48
    v_lshrrev_b32 v{T0}, 6, v0
    v_and_b32 v{vLane}, 63, v0
    v_readfirstlane_b32 s{sWV}, v{T0}
    v_lshlrev_b32 v{T1}, 4, v0
    v_lshlrev_b32 v{T2}, 3, v0
    v_lshlrev_b32 v{vL16}, 4, v{vLane}
    s_lshl_b32 s{sTmp}, s2, 13
    s_mul_i32 s{sN0}, s2, 625
    s_add_u32 s{sNN}, s{sN0}, {625+15}
    s_add_u32 s{sN0}, s{sN0}, 15
    s_lshr_b32 s{sN0}, s{sN0}, 4
    s_lshr_b32 s{sNN}, s{sNN}, 4
    s_sub_u32 s{sNN}, s{sNN}, s{sN0}
    s_bfe_u32 s{sTmp3}, s2, 0x50003
    s_lshl_b32 s{sTmp3}, s{sTmp3}, 12
    s_add_u32 s{sTmp3}, s{sTmp3}, {WS_WF - WS_CELLS}
    s_lshr_b32 s{sG}, s{sWV}, 2
    s_and_b32 s{sCQ}, s{sWV}, 3
    s_lshl_b32 s{sWF}, s{sWV}, 14
    s_add_u32 s{sWF}, s{sWF}, {WS_WF - WS_CELLS}
    v_lshrrev_b32 v{T3}, 5, v{vLane}
    v_and_b32 v{vX}, 31, v{vLane}
    s_lshl_b32 s{sT0}, s{sWV}, 1
    v_xor_b32 v{T0}, v{vX}, v{T3}
    v_xor_b32 v{T0}, s{sT0}, v{T0}
    v_lshlrev_b32 v{T0}, 4, v{T0}
    v_lshl_add_u32 v{T0}, v{T3}, 9, v{T0}
    v_xor_b32 v{vX}, s{sWV}, v{vX}
    v_lshlrev_b32 v{vX}, 4, v{vX}
    s_waitcnt lgkmcnt(0)''')
    srd(a, sWS, 18, WS_END - WS_CELLS, add=WS_CELLS)
    a(f'buffer_load_dwordx4 {vr(KEY,4)}, v{T1}, {WS}, s{sTmp} offen')
    vm.issue('keys')
    a(f'''v_lshlrev_b32 v{vCB}, 5, v0
    s_lshl_b32 s{sTmp}, s2, 14
    s_add_u32 s{sTmp}, s{sTmp}, {WS_ECELLS - WS_CELLS}
    buffer_load_dwordx4 {vr(EA,4)}, v{vCB}, {WS}, s{sTmp} offen
    buffer_load_dwordx4 {vr(EA+4,4)}, v{vCB}, {WS}, s{sTmp} offen offset:16''')
    vm.issue('ea'); vm.issue('ea')
    if not opt.get('notouch'):
        a(f'buffer_load_dwordx2 {vr(TOUCH,2)}, v{T2}, {WS}, s{sTmp3} offen')
        vm.issue('touch')
    stampat('a')
    srd(a, sX, 4, N * 512)
    a(f'''s_lshl_b32 s{sTmp}, s{sN0}, 9
    s_lshl_b32 s{sTmp2}, s{sWV}, 10
    s_add_u32 s{sTmp3}, s{sTmp}, s{sTmp2}
    s_add_u32 m0, s{sTmp2}, {XT}
    s_lshl_b32 s{sT0}, s{sWV}, 9
    buffer_load_dwordx4 v{T0}, s[{sX}:{sX+3}], s{sTmp3} offen lds
    s_add_u32 m0, s{sTmp2}, {XT+8192}
    s_add_u32 s{sTmp3}, s{sTmp3}, 8192
    buffer_load_dwordx4 v{T0}, s[{sX}:{sX+3}], s{sTmp3} offen lds
    s_add_u32 m0, s{sT0}, {XT+16384}
    s_add_u32 s{sTmp}, s{sTmp}, s{sT0}
    s_add_u32 s{sTmp}, s{sTmp}, 16384
    s_mov_b32 exec_hi, 0
    buffer_load_dwordx4 v{vX}, s[{sX}:{sX+3}], s{sTmp} offen lds
    s_mov_b32 exec_hi, -1''')
    for _ in range(3): vm.issue('x')
    W2P = [int(x) for x in opt.get('w2parts', '4,4,4,4').split(',')]
    w2i = [0]
    def w2part(k):
        for _ in range(W2P[k]):
            for x in wload(WB2 + 4 * w2i[0], 0, w2i[0], f'w2_{w2i[0]}'): a(x)
            w2i[0] += 1
    w2part(0)
    a(f'''v_and_b32 v{T0}, 0x1f0, v{vL16}
    s_lshl_b32 s{sTmp}, s{sCQ}, 9
    s_add_u32 s{sTmp}, s{sTmp}, {WS_WF3 - WS_CELLS}
    buffer_load_dwordx4 {vr(W3,4)}, v{T0}, {WS}, s{sTmp} offen''')
    vm.issue('w3')
    stampat('b')
    a(f'''v_mov_b32 v{TQ}, 0
    v_mov_b32 v{TQ+1}, 0
    v_mov_b32 v{TQ+2}, 0
    v_mov_b32 v{TQ+3}, 0
    s_mov_b32 s{sHeavy}, 0
    s_mov_b32 s{sQdone}, 0
    s_mov_b32 s{sB}, 0
    s_cmp_lg_u32 s{sWV}, 7
    s_cbranch_scc1 k2_nooh
    v_add_u32 v{T0}, {QT + 40*QSTR}, v{vL16}
    ds_write_b128 v{T0}, {vr(TQ,4)}
    ds_write_b128 v{T0}, {vr(TQ,4)} offset:1024
    ds_write_b128 v{T0}, {vr(TQ,4)} offset:2048
    ds_write_b128 v{T0}, {vr(TQ,4)} offset:3072
    v_mul_u32_u24 v{T0}, {OSTR+2}, v{vLane}
    v_mov_b32 v{T2}, 0x3f80
    v_add_u32 v{T0}, {OH}, v{T0}
    s_mov_b32 exec_hi, 0xff
    ds_write_b16 v{T0}, v{T2}
    s_mov_b32 exec_hi, -1''')
    a.label('k2_nooh')
    for i in range(32): a(f'v_mov_b32 v{ACCA+i}, 0')
    a.label('k2_batch')
    nz = (NT * 512 + 256 - 8192) // 16; nf = (NT + 7) * 64 // 16; nx = 16
    a(f'''v_lshlrev_b32 v{T0}, 4, v0
    v_mov_b32 v{TQ}, 0
    v_mov_b32 v{TQ+1}, 0
    v_mov_b32 v{TQ+2}, 0
    v_mov_b32 v{TQ+3}, 0
    v_add_u32 v{T0}, {EAT}, v{T0}
    v_mov_b32 v{T1}, 0x28282828
    ds_write_b128 v{T0}, {vr(TQ,4)}
    v_cmp_gt_u32 vcc, {nz}, v0
    s_and_saveexec_b64 s[{sSv}:{sSv+1}], vcc
    ds_write_b128 v{T0}, {vr(TQ,4)} offset:8192
    s_mov_b64 exec, -1
    v_cmp_gt_u32 vcc, {nf}, v0
    s_mov_b32 s{sWdone}, 0
    s_nop 0
    v_cndmask_b32 v{DL4}, v{T1}, -1, vcc
    v_cmp_gt_u32 vcc, {nf+nx}, v0
    v_mov_b32 v{DL4+1}, v{DL4}
    v_mov_b32 v{DL4+2}, v{DL4}
    v_mov_b32 v{DL4+3}, v{DL4}
    s_and_saveexec_b64 s[{sSv}:{sSv+1}], vcc
    ds_write_b128 v{T0}, {vr(DL4,4)} offset:{SRC-EAT}
    s_mov_b64 exec, -1
    s_waitcnt lgkmcnt(0)
    s_barrier''')
    stampat(1)
    srd(a, sP, 18, 0 if opt.get('nogather') else N, add=WS_P - 3072, stride=512)
    a(f'''v_lshrrev_b32 v{T2}, 5, v{vLane}
    v_and_b32 v{T3}, 31, v{vLane}
    v_lshlrev_b32 v{T0}, 3, v{T2}
    v_sub_u32 v{T0}, v{T3}, v{T0}
    v_mov_b32 v{T1}, 0x3f80
    v_and_b32 v{aQ}, 1, v{T0}
    v_lshlrev_b32 v{aQ}, 4, v{aQ}
    v_lshlrev_b32 v{T1}, v{aQ}, v{T1}
    v_lshrrev_b32 v{T0}, 1, v{T0}''')
    for k, reg in enumerate([I0, I0+1, I0+2, I0+3, I1, I1+1, I1+2, I1+3]):
        c = k if k < 4 else k + 4
        m = 'vcc' if k % 2 == 0 else f's[{sSv}:{sSv+1}]'
        a(f'v_cmp_eq_u32 {m}, {c}, v{T0}')
        if k:
            pk, preg = k - 1, [I0, I0+1, I0+2, I0+3, I1, I1+1, I1+2, I1+3][k-1]
            a('s_nop 0')
            a(f'v_cndmask_b32 v{preg}, 0, v{T1}, ' + ('vcc' if pk % 2 == 0 else f's[{sSv}:{sSv+1}]'))
    a(f'''v_bfe_u32 v{T0}, v{T3}, 2, 1
    v_mov_b32 v{A2}, 0
    v_cndmask_b32 v{I1+3}, 0, v{T1}, s[{sSv}:{sSv+1}]
    v_cmp_eq_u32 s[{sHM}:{sHM+1}], v{T0}, v{T2}
    v_mov_b32 v{A2+1}, 0
    v_mov_b32 v{A2+2}, 0
    v_mov_b32 v{A2+3}, 0
    s_mul_i32 s{sRing}, s{sWV}, 12288
    v_bfe_u32 v{T0}, v{T3}, 1, 3
    v_xor_b32 v{T0}, v{T0}, v{T2}
    v_lshlrev_b32 v{T0}, 4, v{T0}
    v_lshl_add_u32 v{T0}, v{T3}, 7, v{T0}
    v_add_u32 v{aP}, s{sRing}, v{T0}
    v_xor_b32 v{aP+1}, 32, v{aP}
    v_xor_b32 v{aP+2}, 64, v{aP}
    v_xor_b32 v{aP+3}, 96, v{aP}
    v_and_b32 v{T0}, 7, v{vLane}
    v_lshrrev_b32 v{T1}, 4, v{vLane}
    v_xor_b32 v{T0}, v{T0}, v{T1}
    s_lshl_b32 s{sTmp}, s{sCQ}, 7
    v_lshl_add_u32 v{T0}, v{T0}, 4, s{sTmp}
    v_xor_b32 v{IDX+7}, 64, v{T0}
    v_add_u32 v{IDX+1}, 3072, v{T0}
    v_add_u32 v{IDX+3}, 2048, v{IDX+7}
    v_add_u32 v{IDX+5}, 1024, v{T0}''')
    for d in range(4):
        a(f'v_mov_b32 v{IDX1+2*d+1}, v{IDX+2*d+1}\nv_mov_b32 v{IDX2+2*d+1}, v{IDX+2*d+1}')
    a(f'''v_bfe_u32 v{T0}, v{vLane}, 4, 1
    v_and_b32 v{T1}, 3, v{vLane}
    v_lshlrev_b32 v{T1}, 3, v{T1}
    v_lshl_add_u32 v{T0}, v{T0}, 5, v{T1}
    s_add_u32 s{sTmp}, s{sTmp}, {QT}
    v_add_u32 v{cQ}, s{sTmp}, v{T0}
    s_lshl_b32 s{sTmp}, s{sG}, 4
    s_add_u32 s{sTmp}, s{sTmp}, {OH}
    v_add_u32 v{cS}, s{sTmp}, v{T0}
    s_mov_b32 s{sQs}, {QSTR}
    s_mov_b32 s{sOs}, {OSTR}
    s_mov_b32 s{sC}, {hex(C30)}
    s_mov_b32 s{sC+1}, {hex(C30)}''')
    a(f'''v_bfe_u32 v{T0}, v{vLane}, 5, 1
    v_bfe_u32 v{T1}, v{vLane}, 3, 1
    v_bfe_u32 v{T2}, v{vLane}, 4, 1
    v_lshlrev_b32 v{aSRC}, 4, v{T0}
    v_lshl_add_u32 v{aSRC}, v{T1}, 3, v{aSRC}
    v_lshl_add_u32 v{aSRC}, v{T2}, 1, v{aSRC}
    v_bfe_u32 v{T3}, v{vLane}, 2, 1
    v_lshl_add_u32 v{aXL}, v{T1}, 1, v{T0}
    v_lshl_add_u32 v{aXL}, v{aXL}, 1, v{T3}
    v_lshlrev_b32 v{aEAT}, 1, v{T2}
    v_add_u32 v{aEAT}, v{aEAT}, v{T3}
    v_and_b32 v{T0}, 1, v{vLane}
    v_lshl_add_u32 v{aEAT}, v{aEAT}, 1, v{T0}
    v_lshl_add_u32 v{aEAT}, v{aEAT}, 1, v{T1}
    v_bfe_u32 v{T0}, v{vLane}, 1, 1
    v_lshl_add_u32 v{aEAT}, v{aEAT}, 1, v{T0}
    v_lshlrev_b32 v{aEAT}, 4, v{aEAT}''')
    def gemm_addr():
        a(f'''v_and_b32 v{T0}, 15, v{vLane}
        v_lshrrev_b32 v{T1}, 4, v{vLane}
        v_xor_b32 v{T1}, v{T1}, v{T0}
        v_lshlrev_b32 v{T1}, 4, v{T1}
        v_lshl_add_u32 v{T0}, v{T0}, 9, v{T1}''')
    gemm_addr()
    a(f'v_add_u32 v{aA}, {XT}, v{T0}')
    for s in range(1, 4):
        a(f'v_xor_b32 v{T1}, {s<<6}, v{T0}\nv_add_u32 v{aA+s}, {XT}, v{T1}')
    a(f'v_mov_b32 v{T3}, 1')
    stampat('e')
    a(vm.wait('keys'))
    stampat(2)
    for i in range(4):
        a(f'''v_cmp_ne_u32 s[{sMask+2*i}:{sMask+2*i+1}], -1, v{KEY+i}
        v_lshrrev_b32 v{DL4+i}, 12, v{KEY+i}
        v_and_b32 v{DL4+i}, 0xfc, v{DL4+i}
        v_add_u32 v{T1}, {CNT}, v{DL4+i}
        s_mov_b64 exec, s[{sMask+2*i}:{sMask+2*i+1}]
        ds_add_rtn_u32 v{RK+i}, v{T1}, v{T3}''')
        if i < 3: a('s_mov_b64 exec, -1')
    a(f'''s_and_b32 exec_lo, exec_lo, 0x80808080
    s_and_b32 exec_hi, exec_hi, 0x80808080
    v_mov_b32 v{T1}, {CNT + 252}
    ds_add_u32 v{T1}, v{T3}
    s_mov_b64 exec, -1''')
    a(f'v_lshlrev_b32 v{T0}, 2, v{vLane}\nv_add_u32 v{T0}, {CNT}, v{T0}')
    w2part(1)
    a('s_waitcnt lgkmcnt(0)')
    stampat('f')
    a('s_barrier')
    stampat('g')
    a(f'ds_read_b32 v{T1}, v{T0}\nv_cmp_gt_u32 vcc, 40, v{vLane}')
    dpp = ['row_shr:1 row_mask:0xf bank_mask:0xf', 'row_shr:2 row_mask:0xf bank_mask:0xf', 'row_shr:4 row_mask:0xf bank_mask:0xf',
           'row_shr:8 row_mask:0xf bank_mask:0xf', 'row_bcast:15 row_mask:0xa bank_mask:0xf', 'row_bcast:31 row_mask:0xc bank_mask:0xf']
    a(f'''s_waitcnt lgkmcnt(0)
    v_readlane_b32 s{sT1}, v{T1}, 63
    v_add_u32 v{T1}, 3, v{T1}
    v_lshrrev_b32 v{T1}, 2, v{T1}
    v_cndmask_b32 v{T1}, 0, v{T1}, vcc
    v_mov_b32 v{T2}, v{T1}
    s_lshl_b32 s{sTmp3}, s{sT1}, 8
    s_nop 0''')
    for k, d in enumerate(dpp):
        a(f'v_add_u32_dpp v{T2}, v{T2}, v{T2} {d}' + (' bound_ctrl:0' if k < 4 else ''))
        a('s_nop 1' if k < 5 else 's_nop 0')
    a(f'''v_readlane_b32 s{sQt}, v{T2}, 63
    v_sub_u32 v{T1}, v{T2}, v{T1}
    v_add_u32 v{T2}, 7, v{T1}
    v_lshrrev_b32 v{T2}, 3, v{T2}
    s_add_u32 s{sTmp}, s{sQt}, 7
    v_sub_u32 v{T0}, s{sTmp}, v{T1}
    v_lshrrev_b32 v{T0}, 3, v{T0}
    v_add_u32 v{T2}, v{T2}, v{T0}
    v_lshlrev_b32 v{T0}, 1, v{T1}
    v_sad_u32 v{T0}, v{T0}, s{sQt}, 0
    v_lshl_add_u32 v{T2}, v{T2}, 5, v{T0}
    v_subrev_u32 v{T0}, 8, v{vLane}
    v_lshl_add_u32 v{T2}, v{T2}, 6, v{vLane}
    v_cmp_gt_u32 vcc, 25, v{T0}
    s_nop 1
    v_cndmask_b32 v{T2}, -1, v{T2}, vcc
    s_nop 1''')
    for k, d in enumerate(dpp):
        a(f'v_min_u32_dpp v{T2}, v{T2}, v{T2} {d}')
        a('s_nop 1' if k < 5 else 's_nop 0')
    a(f'''v_readlane_b32 s{sSplit}, v{T2}, 63
    s_and_b32 s{sSplit}, s{sSplit}, 63
    s_cmp_lg_u32 s{sHeavy}, 0
    s_cselect_b32 s{sSplit}, 20, s{sSplit}
    s_nop 0
    v_readlane_b32 s{sTmp}, v{T1}, s{sSplit}
    v_cmp_le_u32 vcc, s{sSplit}, v{vLane}
    s_add_u32 s{sT0}, s{sTmp}, 7
    s_lshr_b32 s{sT0}, s{sT0}, 3
    s_sub_u32 s{sT1}, s{sQt}, s{sTmp}
    s_add_u32 s{sT1}, s{sT1}, 7
    s_lshr_b32 s{sT1}, s{sT1}, 3
    s_add_u32 s{sTmp2}, s{sT0}, s{sT1}
    s_add_u32 s{sTmp2}, s{sTmp2}, s{sTmp3}
    s_cmp_le_u32 s{sTmp2}, {NT}
    s_cbranch_scc1 k2_fits
    s_mov_b32 s{sHeavy}, 1
    v_lshlrev_b32 v{T0}, 2, v{vLane}
    s_mov_b32 s{sTmp2}, {WS_NOVF - WS_CELLS}
    buffer_load_dword v{vNOVF}, v{T0}, {WS}, s{sTmp2} offen
    s_branch k2_fetch''')
    a.label('k2_fits')
    stampat('h')
    a(f'''s_lshl_b32 s{sTmp2}, s{sT0}, 3
    s_sub_u32 s{sTmp2}, s{sTmp2}, s{sTmp}
    v_mov_b32 v{T2}, s{sTmp2}
    v_cndmask_b32 v{T2}, 0, v{T2}, vcc
    v_add_lshl_u32 v{T1}, v{T1}, v{T2}, 2''')
    for i in range(4):
        a(f'ds_bpermute_b32 v{TQ+i}, v{DL4+i}, v{T1}')
    w2part(2)
    a(f'''s_cmp_eq_u32 s{sG}, 0
    s_cselect_b32 s{sT}, s{sT0}, s{sT1}
    s_cselect_b32 s{sTbase}, 0, s{sT0}
    s_cselect_b32 s{sTmp2}, 0, 192
    s_lshl_b32 s{sT0}, s{sT0}, 5
    s_lshl_b32 s{sTmp}, s{sTbase}, 6
    s_add_u32 s{sTmp}, s{sTmp}, s{sTmp2}
    s_add_u32 s{sTmp}, s{sTmp}, {SRC}
    v_add_u32 v{aSRC}, s{sTmp}, v{aSRC}
    s_lshl_b32 s{sTmp}, s{sTbase}, 9
    s_add_u32 s{sTmp}, s{sTmp}, {EAT}
    v_add_u32 v{aEAT}, s{sTmp}, v{aEAT}
    s_lshl_b32 s{sTmp}, s{sTbase}, 3
    s_add_u32 s{sTmp}, s{sTmp}, {XL}
    v_add_u32 v{aXL}, s{sTmp}, v{aXL}
    v_mov_b32 v{vX}, {SRC}
    v_mov_b32 v{aQ}, {SRC+192}''')
    a(f'v_mov_b32 v{vCB}, 0x3f80')
    a(vm.wait('ea'))
    ER = DA + 0
    for i in range(4):
        er = PA + 4 * (i & 1)
        a(f'''s_waitcnt lgkmcnt(3)
        v_add_u32 v{RK+i}, v{RK+i}, v{TQ+i}
        v_and_b32 v{T0}, 0x3fff, v{KEY+i}
        v_cmp_gt_u32 vcc, s{sT0}, v{RK+i}
        v_lshrrev_b32 v{T2}, 2, v{RK+i}
        v_lshrrev_b32 v{T3}, 2, v{DL4+i}
        v_cndmask_b32 v{T1}, v{aQ}, v{vX}, vcc
        v_add_u32 v{T2}, {XL}, v{T2}
        v_lshl_add_u32 v{T1}, v{RK+i}, 1, v{T1}
        v_and_b32 v{er+3}, 16, v{RK+i}
        v_lshlrev_b32 v{er+2}, 2, v{RK+i}
        v_cmp_eq_u32 vcc, 0, v{er+3}
        v_and_b32 v{er+2}, 16, v{er+2}
        v_lshlrev_b32 v{er+3}, v{er+2}, v{vCB}
        v_lshlrev_b32 v{RK+i}, 4, v{RK+i}
        v_mov_b32 v{er}, v{EA+2*i}
        v_mov_b32 v{er+1}, v{EA+2*i+1}
        v_cndmask_b32 v{er+2}, 0, v{er+3}, vcc
        v_cndmask_b32 v{er+3}, v{er+3}, 0, vcc
        v_add_u32 v{RK+i}, {EAT}, v{RK+i}
        s_mov_b64 exec, s[{sMask+2*i}:{sMask+2*i+1}]
        ds_write_b16 v{T1}, v{T0}
        ds_write_b8 v{T2}, v{T3}
        ds_write_b128 v{RK+i}, {vr(er,4)}
        s_mov_b64 exec, -1''')
    a(vm.wait('x') + ' lgkmcnt(0)')
    a('s_barrier')
    stampat(3)
    DOFF = [0, 4, 32, 36]
    def idx_reads(base, toff):
        return [f'ds_read_u16 v{base+2*d}, v{aSRC} offset:{toff*64+DOFF[d]}' for d in range(4)]
    def dma_ins(base, d, tag):
        vm.issue(tag)
        return f'buffer_load_dwordx4 {vr(base+2*d,2)}, s[{sP}:{sP+3}], 0 idxen offen offset:{d*1024} lds'
    for x in idx_reads(IDX1, 0) + idx_reads(IDX2, 1): a(x)
    a(f's_mov_b32 m0, s{sRing}\ns_waitcnt lgkmcnt(4)')
    for d in range(4): a(dma_ins(IDX1, d, 'dma0'))
    w2part(3)
    IDX3 = EA
    if opt.get('dma1pos', 'i') == '0':
        a(f's_add_u32 m0, s{sRing}, 4096\ns_waitcnt lgkmcnt(0)')
        for d in range(4): a(dma_ins(IDX2, d, 'dma1'))
    stampat(4)
    def dma12(k):
        if k == 1:
            a(f's_add_u32 m0, s{sRing}, 4096\ns_nop 0')
            for d in range(4): a(dma_ins(IDX2, d, 'dma1'))
        if k == 2:
            a(f's_add_u32 m0, s{sRing}, 8192\ns_nop 0')
            for d in range(4): a(dma_ins(IDX, d, 'dma2'))
    a(f's_waitcnt lgkmcnt(0)\ns_cmp_lg_u32 s{sQdone}, 0\ns_cbranch_scc1 k2_noq')
    def gemm(acc, frag, addr, wregs, first, waitv):
        def rd(s):
            for rt in range(3):
                f = frag + (s & 1) * 12 + rt * 4
                a(f'ds_read_b128 {vr(f,4)}, v{addr+(s&3)} offset:{rt*8192+(s>>2)*256}')
        rd(0)
        for s in range(8):
            if s + 1 < 8:
                rd(s + 1); w = 'lgkmcnt(3)'
            else: w = 'lgkmcnt(0)'
            wv = waitv(s)
            a((wv + ' ' + w) if wv else 's_waitcnt ' + w)
            for rt in range(3):
                for c in range(2):
                    d = acc[rt * 2 + c]; f = frag + (s & 1) * 12 + rt * 4
                    cin = '0' if (first and s == 0) else vr(d, 4)
                    a(f'v_mfma_f32_16x16x32_bf16 {vr(d,4)}, {vr(f,4)}, {vr(wregs(s*2+c),4)}, {cin}')
    gemm(QD, QF, aA, lambda i: WB2 + 4 * i, True, lambda s: vm.wait(f'w2_{2*s+1}'))
    a(f'''s_mov_b32 s{sSv}, {hex(f2u(-LOG2E))}
    s_mov_b32 s{sSv+1}, {hex(f2u(-LOG2E))}
    v_lshrrev_b32 v{T0}, 4, v{vLane}
    v_mul_u32_u24 v{T0}, {4*QSTR}, v{T0}
    v_and_b32 v{T1}, 15, v{vLane}
    v_lshl_add_u32 v{T0}, v{T1}, 2, v{T0}
    s_lshl_b32 s{sTmp2}, s{sWV}, 6
    s_add_u32 s{sTmp2}, s{sTmp2}, {QT}
    v_add_u32 v{T0}, s{sTmp2}, v{T0}''')
    for rt in range(3):
        if rt == 2: a('s_mov_b32 exec_hi, 0')
        for c in range(2):
            for h in range(2):
                d = QD[rt * 2 + c] + 2 * h
                a(f'v_pk_mul_f32 {pr(d)}, {pr(d)}, s[{sSv}:{sSv+1}]')
        for rr in range(4):
            d0 = QD[rt * 2] + rr; d1 = QD[rt * 2 + 1] + rr
            a(f'v_cvt_pk_bf16_f32 v{d0}, v{d0}, v{d1}\nds_write_b32 v{T0}, v{d0} offset:{(16*rt+rr)*QSTR}')
    a(f's_mov_b32 exec_hi, -1\ns_mov_b32 s{sQdone}, 1')
    a(f'v_mov_b32 v{B2A}, v{W3}\nv_mov_b32 v{B2A+1}, v{W3+1}\nv_mov_b32 v{B2B}, v{W3+2}\nv_mov_b32 v{B2B+1}, v{W3+3}')
    a.label('k2_noq')
    stampat('i')
    if opt.get('dma1pos', 'i') == 'i': dma12(1)
    for x in (MA, MA + 1, MB, MB + 1, S, S + 1, NF, NF + 1, NF + 2, NF + 3): a(f'v_mov_b32 v{x}, 0')
    for x in range(4): a(f'v_mov_b32 v{DF+x}, 1.0')
    for d in range(4): a(f'v_mov_b32 v{IDX3+2*d+1}, v{IDX+2*d+1}')
    stampat('j')
    a('s_waitcnt lgkmcnt(0)')
    a('s_barrier')
    stampat(5)
    a(f'''s_cmp_eq_u32 s{sT}, 0
    s_cbranch_scc1 k2_loopend
    ds_read_u8 v{vX}, v{aXL}
    s_mov_b64 exec, s[{sHM}:{sHM+1}]
    ds_read_b128 {vr(A2,4)}, v{aEAT}
    s_mov_b64 exec, -1''')
    a(vm.wait('dma0'))
    a(f'''ds_read_b128 {vr(PA,4)}, v{aP}
    ds_read_b128 {vr(PA+4,4)}, v{aP+1}
    ds_read_b128 {vr(PB,4)}, v{aP+2}
    ds_read_b128 {vr(PB+4,4)}, v{aP+3}
    s_waitcnt lgkmcnt(5)
    v_mad_u32_u24 v{aQ}, v{vX}, s{sQs}, v{cQ}
    v_mad_u32_u24 v{aS}, v{vX}, s{sOs}, v{cS}
    ds_read_u8 v{vX}, v{aXL} offset:8
    ds_read_b64_tr_b16 {vr(B2A+2,2)}, v{aQ}
    ds_read_b64_tr_b16 {vr(B2B+2,2)}, v{aQ} offset:64''')
    for x in idx_reads(IDX3, 2) + idx_reads(IDX, 3): a(x)
    a(f's_sub_u32 s{sCnt}, s{sT}, 1\ns_waitcnt lgkmcnt(9)')
    def zchain(D, B2, P):
        return [f'v_mfma_f32_32x32x16_bf16 {vr(D,16)}, {vr(A2,4)}, {vr(B2,4)}, 0',
                f'v_mfma_f32_32x32x16_bf16 {vr(D,16)}, {vr(P,4)}, {vr(I0,4)}, {vr(D,16)}',
                f'v_mfma_f32_32x32x16_bf16 {vr(D,16)}, {vr(P+4,4)}, {vr(I1,4)}, {vr(D,16)}']
    for m in zchain(DA, B2A, PA): a(m)
    if prio == 'young': a(f's_cmp_eq_u32 s{sG}, 0\ns_cbranch_scc1 k2_noprio\ns_setprio 1\nk2_noprio:')
    a('s_nop 7\ns_nop 3')
    stampat(6)

    cur = {'pT': None, 'pP': None}
    def half(D, accprev, Mprev, Mfin, zc, extra_T, extra_P):
        Ts = [f'v_exp_f32 v{EE+i}, v{D+i}' for i in range(16)] + [f'v_rcp_f32 v{DF+i}, v{DF+i}' for i in range(4)]
        mf = [f'v_mfma_f32_32x32x8_bf16 {vr(accprev,16)}, {vr(Mprev,2)}, {vr(S,2)}, {vr(accprev,16)}'] + zc
        if cur['pT'] is not None: a(f's_setprio {cur["pT"]}')
        for k in range(4):
            a(mf[k])
            for x in extra_T.get(k, []): a(x)
            for t_ in Ts[5 * k:5 * k + 5]: a(t_)
        if cur['pP'] is not None: a(f's_setprio {cur["pP"]}')
        Ps = [f'v_pk_fma_f32 {pr(EE+2*p)}, {pr(EE+2*p)}, s[{sC}:{sC+1}], s[{sC}:{sC+1}] clamp' for p in range(8)]
        Ps += [f'v_pk_mul_f32 {pr(NF)}, {pr(NF)}, {pr(DF)}', f'v_pk_mul_f32 {pr(NF+2)}, {pr(NF+2)}, {pr(DF+2)}']
        bs = [0, 4, 8, 12]
        Ps += [f'v_pk_mul_f32 {pr(D+b)}, {pr(D+b)}, {pr(EE+b+2)}' for b in bs]
        Ps += [f'v_cvt_pk_bf16_f32 v{Mfin}, v{NF}, v{NF+1}', f'v_cvt_pk_bf16_f32 v{Mfin+1}, v{NF+2}, v{NF+3}']
        Ps += [f'v_pk_fma_f32 {pr(D+b)}, {pr(D+b+2)}, {pr(EE+b)}, {pr(D+b)}' for b in bs]
        Ps += [f'v_pk_mul_f32 {pr(EE+b)}, {pr(EE+b)}, {pr(EE+b+2)}' for b in bs]
        Ps += [f'v_pk_mul_f32 {pr(NF+2*B)}, {pr(D+8*B)}, {pr(EE+8*B+4)}' for B in range(2)]
        Ps += [f'v_pk_mul_f32 {pr(DF+2*B)}, {pr(EE+8*B)}, {pr(EE+8*B+4)}' for B in range(2)]
        Ps += [f'v_pk_fma_f32 {pr(NF+2*B)}, {pr(D+8*B+4)}, {pr(EE+8*B)}, {pr(NF+2*B)}' for B in range(2)]
        for i, p in enumerate(Ps):
            for x in extra_P.get(i, []):
                a(x() if callable(x) else x)
            a(p)
    def spread(d, xs, start, step=1):
        for i, x in enumerate(xs):
            d.setdefault(start + i * step, []).extend(x if isinstance(x, list) else [x])
    wsched = [('u2', i) for i in range(16)] + [('u1', i) for i in range(NW1A)]
    NPEEL = 6
    per = [4, 4, 4, 4, 4, 5]
    def iteration(tau, u, peeled):
        sl = (u + 1) % 3
        a('s_waitcnt lgkmcnt(0)')
        eT = {3: [f'v_mad_u32_u24 v{aQ}, v{vX}, s{sQs}, v{cQ}', f'v_mad_u32_u24 v{aS+sl}, v{vX}, s{sOs}, v{cS}']}
        eP = {}
        spread(eP, [(lambda: vm.wait(f'dma{tau+1}')) if peeled else 's_waitcnt vmcnt(4)',
              f'ds_read_b128 {vr(PA,4)}, v{aP} offset:{sl*4096}', f'ds_read_b128 {vr(PA+4,4)}, v{aP+1} offset:{sl*4096}',
              f'ds_read_b64_tr_b16 {vr(B2A+2,2)}, v{aQ}',
              [f's_mov_b64 exec, s[{sHM}:{sHM+1}]', f'ds_read_b128 {vr(A2,4)}, v{aEAT} offset:{(u+1)*512}', 's_mov_b64 exec, -1'],
              f's_add_u32 m0, s{sRing}, {u*4096}'], 1)
        if peeled and tau == 0:
            eP[6] = [f's_add_u32 m0, s{sRing}, 8192']
            spread(eP, [(lambda d=d: dma_ins(IDX3, d, 'dma2')) for d in range(4)], 7, 3)
            eP.setdefault(18, []).append(f's_mov_b32 m0, s{sRing}')
            spread(eP, [(lambda d=d: dma_ins(IDX, d, 'dma3')) for d in range(4)], 19, 3)
        else:
            spread(eP, [(lambda d=d: dma_ins(IDX, d, f'dma{tau+3}')) for d in range(4)], 8, 7)
        half(DA, ACCA, MA, MB, zchain(DB, B2B, PB), eT, eP)
        a('s_waitcnt lgkmcnt(0)')
        eP = {}
        xs = [f'ds_read_b128 {vr(PB,4)}, v{aP+2} offset:{sl*4096}', f'ds_read_b128 {vr(PB+4,4)}, v{aP+3} offset:{sl*4096}',
              f'ds_read_b64_tr_b16 {vr(B2B+2,2)}, v{aQ} offset:64', f'ds_read_b64_tr_b16 {vr(S,2)}, v{aS+u}',
              f'ds_read_u8 v{vX}, v{aXL} offset:{(u+2)*8}'] + idx_reads(IDX, u + 4)
        spread(eP, xs, 1, 2)
        if peeled and not opt.get('nowpf'):
            k0 = sum(per[:tau])
            for j, (m, i) in enumerate(wsched[k0:k0 + per[tau]]):
                def f(m=m, i=i):
                    ins = wload(WB2 + 4 * i, 2, i, 'wu') if m == 'u2' else wload(w1reg(i), 1, i, 'wu')
                    return '\n'.join(ins)
                eP.setdefault(18 + 2 * j, []).append(f)
            if tau == NPEEL - 1: eP.setdefault(28, []).append(f's_mov_b32 s{sWdone}, 1')
        if u == 2:
            eP.setdefault(29, []).extend([f'v_add_u32 v{aSRC}, 192, v{aSRC}', f'v_add_u32 v{aEAT}, 1536, v{aEAT}', f'v_add_u32 v{aXL}, 24, v{aXL}'])
        eP.setdefault(29, []).append(f's_sub_u32 s{sCnt}, s{sCnt}, 1')
        half(DB, ACCB, MB, MA, zchain(DA, B2A, PA), {}, eP)
    spec = {'P': '01', 'none': 'xx', 'young': 'xx'}.get(prio, prio).split('|')
    saved = list(vm.ops)
    if len(spec) > 1: a(f's_cmp_lg_u32 s{sG}, 0\ns_cbranch_scc1 k2_g1')
    for g, sp in enumerate(spec):
        vm.ops = list(saved)
        sp = sp.split(',')
        def setp(k):
            x = sp[k % len(sp)]
            cur['pT'] = None if x[0] == 'x' else int(x[0]); cur['pP'] = None if x[1] == 'x' else int(x[1])
        if g: a.label('k2_g1')
        for tau in range(NPEEL):
            setp(tau)
            iteration(tau, tau % 3, True)
            a('s_cbranch_scc1 k2_drain')
        a.label(f'k2_loop{g}')
        for u in range(3):
            setp(u)
            iteration(100 + u, u, False)
            a('s_cbranch_scc1 k2_drain' if u < 2 else f's_cbranch_scc0 k2_loop{g}')
        if g + 1 < len(spec): a('s_branch k2_drain')
    a.label('k2_drain')
    a('s_setprio 0\ns_waitcnt lgkmcnt(0)')
    a(f'v_mfma_f32_32x32x8_bf16 {vr(ACCA,16)}, {vr(MA,2)}, {vr(S,2)}, {vr(ACCA,16)}')
    for i in range(4): a(f'v_rcp_f32 v{DF+i}, v{DF+i}')
    a('s_nop 0')
    for i in range(4): a(f'v_mul_f32 v{NF+i}, v{NF+i}, v{DF+i}')
    a(f'''v_cvt_pk_bf16_f32 v{MB}, v{NF}, v{NF+1}
    v_cvt_pk_bf16_f32 v{MB+1}, v{NF+2}, v{NF+3}
    s_nop 1
    v_mfma_f32_32x32x8_bf16 {vr(ACCB,16)}, {vr(MB,2)}, {vr(S,2)}, {vr(ACCB,16)}''')
    a.label('k2_loopend')
    stampat(7)
    a(f'''s_cmp_eq_u32 s{sHeavy}, 0
    s_cbranch_scc1 k2_epi
    s_add_u32 s{sB}, s{sB}, 1''')
    a.label('k2_fetch')
    a(f'''s_waitcnt vmcnt(0) lgkmcnt(0)
    s_barrier
    s_cmp_ge_u32 s{sB}, 4
    s_cbranch_scc1 k2_fovf
    v_lshlrev_b32 v{T0}, 2, v0
    s_lshl_b32 s{sTmp}, s2, 13
    s_lshl_b32 s{sTmp2}, s{sB}, 11
    s_add_u32 s{sTmp}, s{sTmp}, s{sTmp2}
    buffer_load_dword v{KEY}, v{T0}, {WS}, s{sTmp} offen
    v_lshrrev_b32 v{T0}, 5, v0
    s_lshl_b32 s{sTmp2}, s{sB}, 4
    v_add_u32 v{T0}, s{sTmp2}, v{T0}
    v_mul_u32_u24 v{vCB}, {CHE}, v{T0}
    s_waitcnt vmcnt(0)
    s_branch k2_fend''')
    a.label('k2_fovf')
    a(f'''s_sub_u32 s{sTmp}, s{sB}, 4
    s_lshr_b32 s{sTmp2}, s{sTmp}, 3
    s_cmp_ge_u32 s{sTmp2}, {NCH}
    s_cbranch_scc1 k2_epi
    s_and_b32 s{sTmp}, s{sTmp}, 7
    s_lshl_b32 s{sTmp}, s{sTmp}, 9
    v_readlane_b32 s{sTmp3}, v{vNOVF}, s{sTmp2}
    s_cmp_lt_u32 s{sTmp}, s{sTmp3}
    s_cbranch_scc1 k2_fgo
    s_add_u32 s{sB}, s{sB}, 1
    s_branch k2_fovf''')
    a.label('k2_fgo')
    a(f'''s_sub_u32 s{sTmp3}, s{sTmp3}, s{sTmp}
    s_mul_i32 s{sT0}, s{sTmp2}, {CHE}
    s_add_u32 s{sTmp}, s{sTmp}, s{sT0}
    s_lshl_b32 s{sTmp}, s{sTmp}, 3
    s_add_u32 s{sTmp}, s{sTmp}, {WS_OVF - WS_CELLS}
    v_lshlrev_b32 v{T0}, 3, v0
    buffer_load_dwordx2 {vr(TQ,2)}, v{T0}, {WS}, s{sTmp} offen
    v_mov_b32 v{vCB}, s{sT0}
    s_waitcnt vmcnt(0)
    v_cmp_gt_u32 vcc, s{sTmp3}, v0
    v_cmp_eq_u32 s[{sSv}:{sSv+1}], s2, v{TQ+1}
    s_and_b64 vcc, vcc, s[{sSv}:{sSv+1}]
    v_cndmask_b32 v{KEY}, -1, v{TQ}, vcc''')
    a.label('k2_fend')
    srd(a, sE, 6, E * 8)
    a(f'''v_lshrrev_b32 v{T0}, 20, v{KEY}
    v_add_lshl_u32 v{T0}, v{T0}, v{vCB}, 3
    buffer_load_dwordx2 {vr(EA,2)}, v{T0}, s[{sE}:{sE+3}], 0 offen
    s_waitcnt vmcnt(0)
    v_mov_b32 v{KEY+1}, -1
    v_mov_b32 v{KEY+2}, -1
    v_mov_b32 v{KEY+3}, -1
    s_branch k2_batch''')
    a.label('k2_epi')
    vm.ops = []
    a(f's_waitcnt vmcnt(0)\ns_cmp_lg_u32 s{sWdone}, 0\ns_cbranch_scc1 k2_wok')
    for (m, i) in wsched:
        for x in (wload(WB2 + 4 * i, 2, i, 'c') if m == 'u2' else wload(w1reg(i), 1, i, 'c')): a(x)
    a('s_waitcnt vmcnt(0)')
    a.label('k2_wok')
    vm.ops = []
    for i in range(NW1A, 16):
        for x in wload(w1reg(i), 1, i, f'w1_{i}'): a(x)
    Y0, Y1, Y2, Y3 = X0, X0 + 1, X0 + 2, X0 + 3
    a(f'''v_and_b32 v{Y0}, 15, v{vLane}
    v_lshrrev_b32 v{Y1}, 4, v{vLane}
    v_xor_b32 v{Y2}, v{Y1}, v{Y0}
    v_lshlrev_b32 v{Y2}, 4, v{Y2}
    v_lshl_add_u32 v{Y2}, v{Y0}, 9, v{Y2}
    v_add_u32 v{EA_}, {XT}, v{Y2}''')
    for s in range(1, 4):
        a(f'v_xor_b32 v{Y3}, {s<<6}, v{Y2}\nv_add_u32 v{EA_+s}, {XT}, v{Y3}')
    a(f'''s_mov_b32 s{sTmp}, {hex(f2u(-LN2 * 2.0**-30))}
    v_and_b32 v{Y2}, 31, v{vLane}
    v_bfe_u32 v{Y3}, v{vLane}, 1, 3
    v_lshlrev_b32 v{Y3}, 4, v{Y3}
    v_lshl_add_u32 v{Y2}, v{Y2}, 7, v{Y3}
    v_lshrrev_b32 v{Y3}, 5, v{vLane}
    v_lshl_add_u32 v{Y2}, v{Y3}, 3, v{Y2}
    v_add_u32 v{Y2}, s{sRing}, v{Y2}''')
    for q in range(8):
        for i in range(4): a(f'v_mul_f32 v{ACCA+4*q+i}, s{sTmp}, v{ACCA+4*q+i}')
        a(f'v_cvt_pk_bf16_f32 v{ACCA+4*q}, v{ACCA+4*q}, v{ACCA+4*q+1}\nv_cvt_pk_bf16_f32 v{ACCA+4*q+1}, v{ACCA+4*q+2}, v{ACCA+4*q+3}')
        if q: a(f'v_xor_b32 v{Y3}, {q<<4}, v{Y2}')
        a(f'ds_write_b64 v{Y3 if q else Y2}, {vr(ACCA+4*q,2)}')
    AD = ACCA + 2
    ADR = [ACCA + 2, ACCA + 3, ACCA + 6, ACCA + 7, ACCA + 10, ACCA + 11]
    a(f'v_mov_b32 v{ACCA+14}, {4*12288 - 8*128}')
    for rt in range(3):
        n = ACCA + 15; j = ACCA + 18; tt = ACCA + 19
        a(f'''v_add_u32 v{n}, {16*rt}, v{Y0}
        v_cmp_le_u32 vcc, s{sSplit}, v{n}
        v_lshrrev_b32 v{j}, 1, v{n}
        v_xor_b32 v{tt}, 4, v{j}
        v_cndmask_b32 v{j}, v{j}, v{tt}, vcc
        v_cndmask_b32 v{tt}, 0, v{ACCA+14}, vcc
        v_xor_b32 v{j}, v{j}, v{Y1}
        v_and_b32 v{j}, 7, v{j}
        v_lshl_add_u32 v{tt}, v{n}, 7, v{tt}
        v_lshl_add_u32 v{ADR[2*rt]}, v{j}, 4, v{tt}
        v_xor_b32 v{ADR[2*rt+1]}, 64, v{ADR[2*rt]}''')
    stampat(8)
    gemm([OA + 4 * i for i in range(6)], AF, EA_, w1reg, True, lambda s: vm.wait(f'w1_{2*s+1}') if 2 * s + 1 >= NW1A else None)
    a('s_barrier')
    srd(a, sO, 16, N * 512)
    a(f'''v_lshlrev_b32 v{Y2}, 2, v{Y0}
    v_lshl_add_u32 v{Y2}, v{Y1}, 11, v{Y2}
    s_lshl_b32 s{sTmp2}, s{sN0}, 9
    s_lshl_b32 s{sTmp}, s{sWV}, 6
    s_add_u32 s{sTmp2}, s{sTmp2}, s{sTmp}
    s_mov_b32 s{sC}, {hex(f2u(-LOG2E))}''')
    Z = DA
    def silu_ops(rt):
        b = OA + rt * 8
        ops = [f'v_mul_f32 v{Z+p}, s{sC}, v{b+p}' for p in range(8)]
        ops += [f'v_exp_f32 v{Z+p}, v{Z+p}' for p in range(8)]
        ops += [f'v_add_f32 v{Z+p}, 1.0, v{Z+p}' for p in range(8)]
        ops += [f'v_rcp_f32 v{Z+p}, v{Z+p}' for p in range(8)]
        ops += [f'v_mul_f32 v{Z+p}, v{b+p}, v{Z+p}' for p in range(8)]
        for rr in range(4):
            ops.append(f'v_cvt_pk_bf16_f32 v{Z+8+rr}, v{Z+rr}, v{Z+4+rr}')
        for rr in range(4):
            if rt == 2 and rr == 3:
                ops.append(f's_cmp_eq_u32 s{sNN}, 40\ns_cselect_b32 exec_lo, -1, 0xffff')
            ops.append(f'buffer_store_dword v{Z+8+rr}, v{Y2}, s[{sO}:{sO+3}], s{sTmp2} offen offset:{rr*512}')
        ops.append(f's_add_u32 s{sTmp2}, s{sTmp2}, 8192')
        return ops
    seq = [(rt, s) for rt in range(3) for s in range(8)]
    def ard(k):
        rt, s = seq[k]
        a(f'ds_read_b128 {vr(AF+4*(k%6),4)}, v{ADR[2*rt+(s&1)]} offset:{(s>>1)*12288}')
    for k in range(5): ard(k)
    pend = []
    for k, (rt, s) in enumerate(seq):
        if k + 5 < 24: ard(k + 5)
        a(f's_waitcnt lgkmcnt({min(5, 23-k)})')
        for c in range(2):
            d = OA + (rt * 2 + c) * 4
            a(f'v_mfma_f32_16x16x32_bf16 {vr(d,4)}, {vr(AF+4*(k%6),4)}, {vr(WB2+4*(2*s+c),4)}, {vr(d,4)}')
            if s >= 1 or c == 1:
                n = 4 if s >= 1 else 0
                for x in pend[:n]: a(x)
                pend = pend[n:]
        if s == 7:
            for x in pend: a(x)
            pend = silu_ops(rt)
    a('s_mov_b32 exec_hi, 0\ns_nop 6')
    for x in pend: a(x)
    if stamp:
        stampat(9)
        a(f's_mov_b64 exec, 1\ns_waitcnt lgkmcnt(0)')
        srd(a, sX, 18, 1 << 20, add=WS_END)
        a(f's_lshl_b32 s{sTmp}, s2, 3\ns_add_u32 s{sTmp}, s{sTmp}, s{sWV}\ns_lshl_b32 s{sTmp}, s{sTmp}, 6\nv_mov_b32 v{Y0}, 0')
        for i in range(10):
            a(f'v_mov_b32 v{Y1}, s{sStamp+2*i}\nbuffer_store_dword v{Y1}, v{Y0}, s[{sX}:{sX+3}], s{sTmp} offen offset:{4*i}')
        a(f'v_mov_b32 v{Y1}, s{sT}\nbuffer_store_dword v{Y1}, v{Y0}, s[{sX}:{sX+3}], s{sTmp} offen offset:40')
        a(f's_sub_u32 s10, s10, s8\nv_mov_b32 v{Y1}, s10\nbuffer_store_dword v{Y1}, v{Y0}, s[{sX}:{sX+3}], s{sTmp} offen offset:44')
    a.label('k2_done')
    a('s_endpgm')
    return kd('k2_kernel', 256, 102)
```

```python
import sys, json
from common import *
import k1
try:
    import k2
except ImportError:
    k2 = None
opt = {}
for x in sys.argv[2:]:
    k, v = x.split('=', 1); opt[k] = v
hdr = open('standalone__mpnn_edge_mlp__graph.s.ref').read().split('; Override')[0].rstrip('\n')
a = Asm()
a.raw(hdr)
for i in range(int(opt.get('null0',0))): a.raw('; @launch kernel=kn_kernel grid=(256,1,1) block=(64,1,1) lds=0')
a.raw(f'; @launch kernel=k1_kernel grid=({k1.K1_GRID},1,1) block=(512,1,1) lds={k1.K1_LDS}')
for i in range(int(opt.get('null1',0))): a.raw('; @launch kernel=kn_kernel grid=(256,1,1) block=(64,1,1) lds=0')
if k2 and not opt.get('nok2'):
    a.raw(f'; @launch kernel=k2_kernel grid=({k2.K2_GRID},1,1) block=(512,1,1) lds={k2.K2_LDS}')
a.raw('.amdgcn_target "amdgcn-amd-amdhsa--gfx950"\n.text')
kds = [k1.gen_k1(a, opt)]
if k2 and not opt.get('nok2'):
    kds.append(k2.gen_k2(a, opt))
if opt.get('null0') or opt.get('null1'):
    a.raw('.globl kn_kernel\n.p2align 8\n.type kn_kernel,@function\nkn_kernel:\n    s_endpgm')
    kds.append(kd('kn_kernel', 8, 16))
a.raw('.section .rodata,"a"')
for k in kds: a.raw(k)
open(sys.argv[1], 'w').write(a.text() + '\n')
```

```python
from common import *
FCH = 625; CST = 11264
WS_CELLS = 5242880
WS_WF = WS_CELLS + 256 * CST
WS_FLAG = WS_WF + 262144
WS_END = WS_FLAG + 16384
KNAME = 'standalone__mpnn_edge_mlp__graph_kernel'
POLL_LIMIT = 40000
K2_GRID = NB
NT = 29
QT = 98304; QSTR = 576
OH = QT + 41 * QSTR; OSTR = 80
XT = QT + 40 * QSTR + 4096
EAT = XT + 20480
CNT = EAT + NT * 512
SRC = CNT + 256
XL = SRC + (NT + 7) * 64
K2_LDS = 163840
assert XL + 256 <= K2_LDS
C30 = 0x30800000

class R:
    def __init__(self, start): self.n = start
    def get(self, k=1, align=1):
        self.n = (self.n + align - 1) // align * align
        r = self.n; self.n += k; return r

def vr(r, k): return f'v[{r}:{r+k-1}]' if k > 1 else f'v{r}'
def pr(x): return f'v[{x}:{x+1}]'

def gen_kf(a, opt):
    stamp = opt.get('stamp')
    prio = opt.get('prio', '02,02,13|13,13,02')
    vm = VM()
    INV = 'buffer_inv sc1' if opt.get('inv') else ''
    LD = ' sc1' if opt.get('ldsc1', '0') == '1' else ''
    CS = opt.get('cellst', ' sc1')
    r = R(1)
    vLane = r.get(); vNOVF = r.get(); vL16 = r.get()
    aSRC = r.get(); aEAT = r.get(); aXL = r.get(); cQ = r.get(); cS = r.get(); vX = r.get(); aQ = r.get()
    aS = r.get(3); aP = r.get(4)
    IDX = r.get(8, 2)
    A2 = r.get(4, 2); B2A = r.get(4, 2); B2B = r.get(4, 2)
    S = r.get(2, 2); MA = r.get(2, 2); MB = r.get(2, 2)
    ACCA = r.get(16, 2); ACCB = r.get(16, 2)
    DA = r.get(16, 2); DB = r.get(16, 2)
    EE = r.get(16, 2); NF = r.get(4, 2); DF = r.get(4, 2)
    PA = r.get(8, 2); PB = r.get(8, 2); I0 = r.get(4, 2); I1 = r.get(4, 2)
    WB2 = r.get(64, 2)
    WB1 = r.get(36, 2)
    assert r.n <= 256, r.n
    NW1A = 9
    t = R(WB2)
    REC = DB
    assert EE == DB + 16
    RK = t.get(8, 2); TQ = t.get(8, 2); DL4 = t.get(8, 2)
    T0 = t.get(); T1 = t.get(); T2 = t.get(); T3 = t.get()
    IDX3 = t.get(8, 2)
    HMAX = XL + 256
    IDX1 = DA; IDX2 = DA + 8
    OA = EE; AF = PA; WB1B = DA
    X0 = DB + 12
    EA_ = IDX
    def w1reg(i): return WB1 + 4 * i if i < NW1A else WB1B + 4 * (i - NW1A)

    sP = 20; sX = 24; sE = 28; sWS = 32; sM = 36; sO = 40
    sWV = 44; sG = 45; sCQ = 46; sHeavy = 47; sB = 48; sPoll = 49; sSplit = 50; sT = 51; sTbase = 52
    sRing = 53; sCnt = 54; sTmp = 55; sTmp2 = 56; sTmp3 = 57; sC = 58
    sMask = 4
    sQs = 68; sOs = 69; sT0 = 70; sT1 = 71; sQt = 72; sWdone = 73; sSv = 74
    sStamp = 76
    sHM = 96; sN0 = 98; sWF = 99; sNN = 3; sBok = 100; sOv = 28; sD = 60; sPw = 64

    names = (stamp if stamp and stamp != '1' else '0,1,2,3,4,5,6,7,8,9').split(',')
    def stampat(nm):
        nm = str(nm)
        if stamp:
            if nm in names:
                i = names.index(nm)
                a(f's_memrealtime s[{sStamp+2*i}:{sStamp+2*i+1}]')
            if nm == '6': a('s_memtime s[100:101]\ns_waitcnt lgkmcnt(0)\ns_mov_b32 s{}, s100'.format(sPoll))
            if nm == '7': a('s_memtime s[100:101]\ns_waitcnt lgkmcnt(0)\ns_sub_u32 s{0}, s100, s{0}'.format(sPoll))
    WS = f's[{sWS}:{sWS+3}]'
    def wload(dst, mat, i, tag):
        off = (mat - 1) * 131072 + i * 1024
        ins = [f's_add_u32 s{sTmp3}, s{sWF}, {off & ~4095}',
               f'buffer_load_dwordx4 {vr(dst,4)}, v{vL16}, {WS}, s{sTmp3} offen offset:{off & 4095}']
        vm.issue(tag)
        return ins

    a.raw(f'.globl {KNAME}\n.p2align 8\n.type {KNAME},@function')
    a.label(KNAME)
    a(f's_cmp_ge_u32 s2, {K2_GRID}\ns_cbranch_scc1 k2_done')
    stampat(0)
    eD = 26; eS = 36; eA = 46; eR = 66; eB = 76
    PD = 26; RL = 50; W3 = 58; TOUCH = 86; CT = 58
    UQ = 4; vW = 12; aA = 16; U0 = 20; U1 = 21; U2 = 22; U3 = 23; vW1 = 24; vDB = 25; aB = 90
    BF = NF; AX = WB2
    assert BF == 124 and BF + 32 == WB2 and WB2 + 96 <= 256 and REC == 92
    W3L = QT + 24576
    SW = 1
    TAB = QT; RIMG = QT + 1024; CNTA = QT + 12288
    sS = 20; sDs = 28; sEs = 36; sU = 40
    sWm = 68
    sEM = 76 if not stamp else 8
    a(f'''s_load_dwordx4 s[12:15], s[0:1], 32
    s_load_dwordx4 s[8:11], s[0:1], 16
    s_load_dwordx4 s[4:7], s[0:1], 0
    s_load_dwordx4 s[16:19], s[0:1], 48
    s_load_dwordx2 s[{sWS}:{sWS+1}], s[0:1], 64
    v_lshrrev_b32 v{U0}, 6, v0
    v_and_b32 v{vLane}, 63, v0
    v_readfirstlane_b32 s{sWV}, v{U0}
    v_lshlrev_b32 v{U3}, 4, v0
    v_lshlrev_b32 v{vL16}, 4, v{vLane}
    s_mul_i32 s{sN0}, s2, 625
    s_bfe_u32 s{sTmp3}, s2, 0x50003
    s_lshl_b32 s{sTmp3}, s{sTmp3}, 13
    s_lshl_b32 s{sT}, s{sN0}, 2
    s_lshl_b32 s{sTbase}, s{sN0}, 3
    s_and_b32 s{sPoll}, s2, 7
    s_lshl_b32 s{sPoll}, s{sPoll}, 5
    s_lshr_b32 s{sTmp}, s2, 3
    s_or_b32 s{sPoll}, s{sPoll}, s{sTmp}
    s_mul_i32 s{sN0}, s{sPoll}, 625
    s_add_u32 s{sNN}, s{sN0}, {625+15}
    s_add_u32 s{sN0}, s{sN0}, 15
    s_lshr_b32 s{sN0}, s{sN0}, 4
    s_lshr_b32 s{sNN}, s{sNN}, 4
    s_sub_u32 s{sNN}, s{sNN}, s{sN0}
    s_lshr_b32 s{sG}, s{sWV}, 2
    s_and_b32 s{sCQ}, s{sWV}, 3
    s_lshl_b32 s{sWF}, s{sWV}, 14
    s_add_u32 s{sWF}, s{sWF}, {WS_WF - WS_CELLS}
    v_lshrrev_b32 v{U0}, 5, v{vLane}
    v_and_b32 v{U1}, 31, v{vLane}
    s_lshl_b32 s{sTmp}, s{sWV}, 1
    v_xor_b32 v{U2}, v{U1}, v{U0}
    v_xor_b32 v{U2}, s{sTmp}, v{U2}
    v_lshlrev_b32 v{U2}, 4, v{U2}
    v_lshl_add_u32 v{U2}, v{U0}, 9, v{U2}
    v_xor_b32 v{vW1}, s{sWV}, v{U1}
    v_lshlrev_b32 v{vW1}, 4, v{vW1}
    s_waitcnt lgkmcnt(0)
    s_mov_b32 s0, s{sPoll}''')
    a(f'''s_cmp_lg_u32 s{sWV}, {SW}
    s_cbranch_scc1 kf_noedge
    s_setprio 3
    v_mul_u32_u24 v{U0}, 40, v{vLane}
    v_mul_u32_u24 v{U1}, 80, v{vLane}''')
    srd(a, sDs, 10, E * 4)
    a(f'''buffer_load_dwordx4 {vr(eD,4)}, v{U0}, s[{sDs}:{sDs+3}], s{sT} offen
    buffer_load_dwordx4 {vr(eD+4,4)}, v{U0}, s[{sDs}:{sDs+3}], s{sT} offen offset:16
    buffer_load_dwordx2 {vr(eD+8,2)}, v{U0}, s[{sDs}:{sDs+3}], s{sT} offen offset:32''')
    srd(a, sS, 8, E * 4)
    a(f'''buffer_load_dwordx4 {vr(eS,4)}, v{U0}, s[{sS}:{sS+3}], s{sT} offen
    buffer_load_dwordx4 {vr(eS+4,4)}, v{U0}, s[{sS}:{sS+3}], s{sT} offen offset:16
    buffer_load_dwordx2 {vr(eS+8,2)}, v{U0}, s[{sS}:{sS+3}], s{sT} offen offset:32''')
    srd(a, sEs, 6, E * 8)
    for k in range(5): a(f'buffer_load_dwordx4 {vr(eA+4*k,4)}, v{U1}, s[{sEs}:{sEs+3}], s{sTbase} offen offset:{16*k}')
    a.label('kf_noedge')
    a(f'''s_add_u32 s{sPw}, s{sWS}, {WS_P}
    s_addc_u32 s{sPw+1}, s{sWS+1}, 0
    s_and_b32 s{sPw+1}, s{sPw+1}, 0xffff
    s_mov_b32 s{sPw+2}, {N*512}
    s_mov_b32 s{sPw+3}, 0x20000
    s_add_u32 s{sWS}, s{sWS}, {WS_CELLS}
    s_addc_u32 s{sWS+1}, s{sWS+1}, 0
    s_and_b32 s{sWS+1}, s{sWS+1}, 0xffff
    s_mov_b32 s{sWS+2}, {WS_END - WS_CELLS + (1 << 20 if stamp else 0)}
    s_mov_b32 s{sWS+3}, 0x20000''')
    srd(a, sD, 18, 256)
    a(f'''s_cmp_lg_u32 s2, 0
    s_cbranch_scc1 kf_noinit
    v_mov_b32 v{BF}, 0
    v_mov_b32 v{BF+1}, 0
    v_mov_b32 v{BF+2}, 0
    v_mov_b32 v{BF+3}, 0
    s_mov_b32 s{sTmp}, {WS_FLAG - WS_CELLS}
    s_add_u32 s{sTmp2}, s{sTmp}, 8192
    buffer_store_dwordx4 {vr(BF,4)}, v{U3}, {WS}, s{sTmp} offen sc1
    buffer_store_dwordx4 {vr(BF,4)}, v{U3}, {WS}, s{sTmp2} offen sc1''')
    a.label('kf_noinit')
    vm.issue('edge')
    vm.ops = vm.ops
    srd(a, sWm, 12, 516 * 512)
    a(f'buffer_load_dwordx4 {vr(TOUCH,4)}, v{U3}, s[{sWm}:{sWm+3}], s{sTmp3} offen')
    vm.issue('touch')
    if not opt.get('noctouch'):
        a(f'''s_cmp_lg_u32 s{sWV}, 3
        s_cbranch_scc1 kf_noct
        s_getpc_b64 s[{sSv}:{sSv+1}]
        kf_pc:
        s_lshr_b32 s{sTmp3}, s{sTmp3}, 3
        s_min_u32 s{sTmp3}, s{sTmp3}, k2_done-kf_pc-1024
        s_add_u32 s{sSv}, s{sSv}, s{sTmp3}
        s_addc_u32 s{sSv+1}, s{sSv+1}, 0
        global_load_dwordx4 {vr(CT,4)}, v{vL16}, s[{sSv}:{sSv+1}]''')
        a.label('kf_noct')
    a(f'''s_cmp_lg_u32 s{sWV}, 6
    s_cbranch_scc1 kf_now3
    s_mov_b32 m0, {W3L}
    s_mov_b32 s{sTmp}, {512*512}
    buffer_load_dwordx4 v{vL16}, s[{sWm}:{sWm+3}], s{sTmp} offen lds
    buffer_load_dwordx4 v{vL16}, s[{sWm}:{sWm+3}], s{sTmp} offen offset:1024 lds''')
    a.label('kf_now3')
    srd(a, sX, 4, N * 512)
    a(f'''s_lshl_b32 s{sTmp}, s{sN0}, 9
    s_lshl_b32 s{sTmp2}, s{sWV}, 10
    s_add_u32 s{sTmp3}, s{sTmp}, s{sTmp2}
    s_add_u32 m0, s{sTmp2}, {XT}
    s_lshl_b32 s{sCnt}, s{sWV}, 9
    buffer_load_dwordx4 v{U2}, s[{sX}:{sX+3}], s{sTmp3} offen lds
    s_add_u32 m0, s{sTmp2}, {XT+8192}
    s_add_u32 s{sTmp3}, s{sTmp3}, 8192
    buffer_load_dwordx4 v{U2}, s[{sX}:{sX+3}], s{sTmp3} offen lds
    s_add_u32 m0, s{sCnt}, {XT+16384}
    s_add_u32 s{sTmp}, s{sTmp}, s{sCnt}
    s_add_u32 s{sTmp}, s{sTmp}, 16384
    s_mov_b32 exec_hi, 0
    buffer_load_dwordx4 v{vW1}, s[{sX}:{sX+3}], s{sTmp} offen lds
    s_mov_b32 exec_hi, -1''')
    for _ in range(3): vm.issue('x')
    stampat('a')
    a(f'''v_mov_b32 v{UQ+4}, 0
    v_mov_b32 v{UQ+5}, 0
    v_mov_b32 v{UQ+6}, 0
    v_mov_b32 v{UQ+7}, 0
    v_add_u32 v{U1}, {CNTA}, v{vL16}
    s_cmp_lg_u32 s{sWV}, {SW}
    s_cbranch_scc1 kf_nocz
    ds_write_b128 v{U1}, {vr(UQ+4,4)}''')
    a.label('kf_nocz')
    nz = (NT * 512 + 256 - 8192) // 16; nf = (NT + 7) * 64 // 16; nx = 16
    def list_prefill(Z, F, t0, t1):
        a(f'''v_lshlrev_b32 v{t0}, 4, v0
        v_add_u32 v{t0}, {EAT}, v{t0}
        v_mov_b32 v{t1}, 0x28282828
        ds_write_b128 v{t0}, {vr(Z,4)}
        v_cmp_gt_u32 vcc, {nz}, v0
        s_and_saveexec_b64 s[{sSv}:{sSv+1}], vcc
        ds_write_b128 v{t0}, {vr(Z,4)} offset:8192
        s_mov_b64 exec, -1
        v_cmp_gt_u32 vcc, {nf}, v0
        s_mov_b32 s{sWdone}, 0
        s_nop 0
        v_cndmask_b32 v{F}, v{t1}, -1, vcc
        v_cmp_gt_u32 vcc, {nf+nx}, v0
        v_mov_b32 v{F+1}, v{F}
        v_mov_b32 v{F+2}, v{F}
        v_mov_b32 v{F+3}, v{F}
        s_and_saveexec_b64 s[{sSv}:{sSv+1}], vcc
        ds_write_b128 v{t0}, {vr(F,4)} offset:{SRC-EAT}
        s_mov_b64 exec, -1''')
    stampat('b')
    a(f'''v_lshrrev_b32 v{U0}, 5, v{vLane}
    v_and_b32 v{U1}, 3, v{vLane}
    v_lshlrev_b32 v{U0}, 1, v{U0}
    v_xor_b32 v{U0}, v{U0}, v{U1}
    v_lshrrev_b32 v{U1}, 2, v{vLane}
    v_lshlrev_b32 v{U1}, 9, v{U1}
    v_lshl_add_u32 v{U0}, v{U0}, 4, v{U1}
    s_lshl_b32 s{sTmp}, s{sWV}, 6
    v_add_u32 v{vW}, s{sTmp}, v{U0}
    v_add_u32 v{vW+1}, 7168, v{vW}
    v_add_u32 v{vW+2}, 14336, v{vW}
    v_add_u32 v{vW+3}, 21504, v{vW}
    s_mul_i32 s{sRing}, s{sWV}, 12288''')
    def stage(i):
        a(f's_add_u32 m0, s{sRing}, {(i % 3) * 4096}\ns_mov_b32 s{sTmp3}, {i * 32768}')
        for t_ in range(4):
            a(f'buffer_load_dwordx4 v{vW+t_}, s[{sWm}:{sWm+3}], s{sTmp3} offen offset:{t_*1024} lds')
            vm.issue(f'st{i}')
    a(f'''v_and_b32 v{U0}, 15, v{vLane}
    v_lshrrev_b32 v{U1}, 4, v{vLane}
    v_xor_b32 v{U2}, v{U1}, v{U0}
    v_lshlrev_b32 v{U2}, 4, v{U2}
    v_lshl_add_u32 v{U0}, v{U0}, 9, v{U2}
    v_add_u32 v{aA}, {XT}, v{U0}''')
    for s_ in range(1, 4):
        a(f'v_xor_b32 v{U2}, {s_<<6}, v{U0}\nv_add_u32 v{aA+s_}, {XT}, v{U2}')
    a(f'''v_bfe_u32 v{U0}, v{vLane}, 2, 2
    v_lshl_add_u32 v{U0}, v{U1}, 3, v{U0}
    v_and_b32 v{U2}, 1, v{U1}
    v_lshlrev_b32 v{U2}, 5, v{U2}
    v_and_b32 v{U3}, 3, v{vLane}
    v_lshl_add_u32 v{U2}, v{U3}, 3, v{U2}
    v_lshl_add_u32 v{U2}, v{U0}, 6, v{U2}
    v_add_u32 v{aB}, s{sRing}, v{U2}
    v_xor_b32 v{aB+1}, 32, v{aB}
    v_mov_b32 v{U3}, 1''')
    list_prefill(UQ + 4, BF + 4, U0, U1)
    NPRE = int(opt.get('npre', 1))
    NPRE2 = int(opt.get('npre2', NPRE))
    for i in range(NPRE): stage(i)
    stampat('y')
    dpp = ['row_shr:1 row_mask:0xf bank_mask:0xf', 'row_shr:2 row_mask:0xf bank_mask:0xf', 'row_shr:4 row_mask:0xf bank_mask:0xf',
           'row_shr:8 row_mask:0xf bank_mask:0xf', 'row_bcast:15 row_mask:0xa bank_mask:0xf', 'row_bcast:31 row_mask:0xc bank_mask:0xf']
    a(f'''s_cmp_lg_u32 s{sWV}, {SW}
    s_cbranch_scc1 kf_nohist
    s_movk_i32 s{sTmp}, 625
    s_mov_b32 exec_hi, 0x7fffffff''')
    a(f's_waitcnt vmcnt({vm.count_after("edge") + 8})')
    stampat('z')
    for i in range(10):
        a(f'''v_mul_u32_u24 v{eB+i}, 429497, v{eD+i}
        v_lshrrev_b32 v{eB+i}, 24, v{eB+i}
        v_mad_u32_u24 v{U0}, v{eB+i}, s{sTmp}, 15
        v_lshlrev_b32 v{eB+i}, 2, v{eB+i}
        v_add_u32 v{eB+i}, {CNTA}, v{eB+i}''')
        if i == 5: a('s_mov_b32 exec_hi, 0x3fffffff')
        a(f'''ds_add_rtn_u32 v{eR+i}, v{eB+i}, v{U3}
        v_lshrrev_b32 v{U0}, 4, v{U0}
        v_sub_u32 v{eD+i}, v{eD+i}, v{U0}''')
    a(f'''s_mov_b32 exec_hi, -1
    v_add_u32 v{U0}, {CNTA}, v{vL16}
    ds_read_b128 {vr(UQ,4)}, v{U0}''')
    a(f's_waitcnt vmcnt({vm.count_after("edge") + 5})')
    for i in range(10): a(f'v_lshl_or_b32 v{eS+i}, v{eD+i}, 14, v{eS+i}')
    a(f'''s_waitcnt lgkmcnt(0)
    v_add_u32 v{UQ+5}, v{UQ}, v{UQ+1}
    v_add_u32 v{UQ+6}, v{UQ+5}, v{UQ+2}
    v_add_u32 v{U1}, v{UQ+6}, v{UQ+3}
    v_mov_b32 v{U2}, v{U1}
    s_nop 1''')
    for k, d in enumerate(dpp):
        a(f'v_add_u32_dpp v{U2}, v{U2}, v{U2} {d}' + (' bound_ctrl:0' if k < 4 else '') + '\ns_nop 1')
    a(f'''v_sub_u32 v{UQ+4}, v{U2}, v{U1}
    v_add_u32 v{UQ+7}, v{UQ+6}, v{UQ+4}
    v_add_u32 v{UQ+6}, v{UQ+5}, v{UQ+4}
    v_add_u32 v{UQ+5}, v{UQ}, v{UQ+4}
    ds_write_b128 v{U0}, {vr(UQ+4,4)} offset:1024''')
    for i in range(10): a(f'ds_read_b32 v{eD+i}, v{eB+i} offset:1024')
    a(f'''v_lshl_or_b32 v{UQ+4}, v{UQ}, 16, v{UQ+4}
    v_lshl_or_b32 v{UQ+5}, v{UQ+1}, 16, v{UQ+5}
    v_lshl_or_b32 v{UQ+6}, v{UQ+2}, 16, v{UQ+6}
    v_lshl_or_b32 v{UQ+7}, v{UQ+3}, 16, v{UQ+7}
    v_subrev_u32 v{U0}, {CNTA-TAB}, v{U0}
    s_mov_b32 s{sTmp}, {RIMG}
    s_mov_b32 exec_hi, 0x7fffffff''')
    a(vm.wait('edge'))
    for i in range(10):
        if i == 5: a('s_mov_b32 exec_hi, 0x3fffffff')
        a(f'''s_waitcnt lgkmcnt({min(9, 9 - i + 2 * i)})
        v_add_u32 v{eD+i}, v{eD+i}, v{eR+i}
        v_lshl_add_u32 v{eD+i}, v{eD+i}, 4, s{sTmp}
        ds_write_b64 v{eD+i}, {vr(eA+2*i,2)}
        ds_write_b32 v{eD+i}, v{eS+i} offset:8''')
    a(f'''s_mov_b32 exec_hi, -1
    ds_write_b128 v{U0}, {vr(UQ+4,4)}
    s_setprio 0''')
    a.label('kf_nohist')
    for i in range(NPRE, NPRE2): stage(i)
    a(vm.wait('x') + ' lgkmcnt(0)')
    a('s_barrier')
    stampat('c')
    axr = [f'ds_read_b128 {vr(AX+(s_*3+rt)*4,4)}, v{aA+(s_&3)} offset:{rt*8192+(s_>>2)*256}' for s_ in range(8) for rt in range(3)]
    a(f'''s_or_b32 s{sTmp}, s2, s{sWV}
    s_cbranch_scc1 kf_noset
    v_mov_b32 v{U0}, 1
    v_mov_b32 v{U1}, 0
    s_mov_b64 exec, 1
    buffer_store_dword v{U0}, v{U1}, s[{sD}:{sD+3}], 0 offen sc1
    s_mov_b64 exec, -1''')
    a.label('kf_noset')
    for i in range(NPRE2, 3): stage(i)
    stampat('A')
    a(f'''v_lshlrev_b32 v{U3}, 4, v0
    v_add_u32 v{U0}, {TAB}, v{U3}
    ds_read_b128 {vr(UQ,4)}, v{U0}
    ds_read_b128 {vr(UQ+4,4)}, v{U0} offset:8192
    s_mul_i32 s{sT}, s2, {CST}
    s_add_u32 s{sTbase}, s{sT}, 8192
    s_cmp_gt_u32 s{sWV}, 2
    s_waitcnt lgkmcnt(0)
    s_cbranch_scc1 kf_nost2
    buffer_store_dwordx4 {vr(UQ+4,4)}, v{U3}, {WS}, s{sTbase} offen sc1''')
    a.label('kf_nost2')
    a(f'buffer_store_dwordx4 {vr(UQ,4)}, v{U3}, {WS}, s{sT} offen sc1')
    vm.issue('cells')
    stampat('E')
    a(f'''s_cmp_lg_u32 s{sWV}, 0
    s_cbranch_scc1 kf_nodb
    v_mov_b32 v{vDB}, 0
    buffer_load_dword v{vDB}, v{vDB}, s[{sD}:{sD+3}], 0 offen sc1''')
    a.label('kf_nodb')
    a(f'''s_cmp_lg_u32 s{sWV}, 7
    s_cbranch_scc1 kf_norl''')
    srd(a, sU, 14, 512 * 512)
    a(f'''s_cmp_ge_u32 s2, 128
    s_cselect_b32 s{sT}, 1, 2
    s_cselect_b32 s{sTbase}, 16, 1
    s_cselect_b32 s{sTmp2}, {256*512}, 0
    s_lshl_b32 s{sTmp}, s{sT}, 11
    s_lshl_b32 s{sT}, s{sT}, 9
    s_lshl_b32 s{sTbase}, s{sTbase}, 9
    v_lshrrev_b32 v{U0}, 4, v{vLane}
    v_mul_u32_u24 v{U0}, s{sTmp}, v{U0}
    v_and_b32 v{U1}, 15, v{vLane}
    v_lshl_add_u32 v{U0}, v{U1}, 2, v{U0}
    s_bfe_u32 s{sTmp}, s2, 0x30001
    s_lshl_b32 s{sTmp}, s{sTmp}, 14
    s_add_u32 s{sTmp2}, s{sTmp2}, s{sTmp}
    s_bfe_u32 s{sTmp}, s2, 0x30004
    s_lshl_b32 s{sTmp}, s{sTmp}, 6
    s_add_u32 s{sTmp2}, s{sTmp2}, s{sTmp}
    s_and_b32 s{sTmp}, s2, 1
    s_lshl_b32 s{sTmp}, s{sTmp}, 1
    s_add_u32 s{sTmp2}, s{sTmp2}, s{sTmp}''')
    for e in range(0, 8, 2):
        a(f'''s_add_u32 s{sTmp}, s{sTmp2}, s{sTbase}
        buffer_load_ushort v{RL+e}, v{U0}, s[{sU}:{sU+3}], s{sTmp2} offen
        buffer_load_ushort v{RL+e+1}, v{U0}, s[{sU}:{sU+3}], s{sTmp} offen
        s_add_u32 s{sTmp2}, s{sTmp2}, s{sT}''')
    a.label('kf_norl')
    stampat('B')
    def breads(i, nowait=False):
        if not nowait: a(vm.wait(f'st{i}'))
        for ks in range(2):
            for c in range(2):
                for t_ in range(2):
                    a(f'ds_read_b64_tr_b16 {vr(BF+(i&1)*16+ks*8+c*4+t_*2,2)}, v{aB+c} offset:{(i%3)*4096+(32*ks+4*t_)*64}')
    def compute(i, nowait=False):
        a('s_waitcnt lgkmcnt(0)')
        if i + 3 < 8: stage(i + 3)
        for ks in range(2):
            s_ = (2 * i + ks) & 7
            for rt in range(3):
                for c in range(2):
                    d = PD + (rt * 2 + c) * 4
                    cin = '0' if s_ == 0 else vr(d, 4)
                    a(f'v_mfma_f32_16x16x32_bf16 {vr(d,4)}, {vr(AX+(s_*3+rt)*4,4)}, {vr(BF+(i&1)*16+ks*8+c*4,4)}, {cin}')
                    if ks == 0 and rt == 0 and c == 1 and i + 1 < 8 and i != 3: breads(i + 1, nowait)
    def poll(off, lab, PR):
        a(f'''s_and_b32 s{sTmp}, s2, 7
        s_lshl_b32 s{sTmp}, s{sTmp}, 10
        s_add_u32 s{sTmp}, s{sTmp}, {off - WS_CELLS}
        s_mov_b32 s{sPoll}, {POLL_LIMIT}''')
        a.label(lab)
        a(f'''buffer_load_dwordx4 {vr(PR,4)}, v{vL16}, {WS}, s{sTmp} offen sc1
        s_waitcnt vmcnt(0)
        v_and_b32 v{PR}, v{PR}, v{PR+1}
        v_and_b32 v{PR+2}, v{PR+2}, v{PR+3}
        v_and_b32 v{PR}, v{PR}, v{PR+2}
        v_cmp_eq_u32 vcc, 1, v{PR}
        s_cmp_eq_u64 vcc, -1
        s_cbranch_scc1 {lab}_ok
        s_sleep 1
        s_sub_u32 s{sPoll}, s{sPoll}, 1
        s_cbranch_scc0 {lab}''')
        a.label(lab + '_ok')
    def tile_out():
        a(f'''s_mov_b32 s{sSv}, {hex(f2u(-LOG2E))}
        s_mov_b32 s{sSv+1}, {hex(f2u(-LOG2E))}
        v_lshrrev_b32 v{U0}, 4, v{vLane}
        v_mul_u32_u24 v{U0}, {4*QSTR}, v{U0}
        v_and_b32 v{U1}, 15, v{vLane}
        v_lshl_add_u32 v{U0}, v{U1}, 2, v{U0}
        s_lshl_b32 s{sTmp2}, s{sWV}, 6
        s_add_u32 s{sTmp2}, s{sTmp2}, {QT}
        v_add_u32 v{U0}, s{sTmp2}, v{U0}''')
        for rt in range(3):
            if rt == 2: a('s_mov_b32 exec_hi, 0')
            for h in range(4):
                d = PD + rt * 8 + 2 * h
                a(f'v_pk_mul_f32 {pr(d)}, {pr(d)}, s[{sSv}:{sSv+1}]')
            for rr in range(4):
                d0 = PD + rt * 8 + rr
                a(f'v_cvt_pk_bf16_f32 v{d0}, v{d0}, v{d0+4}\nds_write_b32 v{U0}, v{d0} offset:{(16*rt+rr)*QSTR}')
        a('s_mov_b32 exec_hi, -1')
    def signal(off, lab):
        a(f'''s_cmp_lg_u32 s{sWV}, 0
        s_cbranch_scc1 {lab}
        v_lshlrev_b32 v{TOUCH}, 10, v{vLane}
        v_mov_b32 v{TOUCH+1}, 1
        s_lshl_b32 s{sTmp}, s2, 2
        s_add_u32 s{sTmp}, s{sTmp}, {off - WS_CELLS}
        s_mov_b64 exec, 0xff
        buffer_store_dword v{TOUCH+1}, v{TOUCH}, {WS}, s{sTmp} offen sc1
        s_mov_b64 exec, -1''')
        a.label(lab)
    a(f'''v_bfe_u32 v{U0}, v{vLane}, 1, 4
    v_and_b32 v{U1}, 1, v{vLane}
    v_lshlrev_b32 v{U0}, 1, v{U0}
    v_lshl_add_u32 v{U0}, v{U1}, 5, v{U0}
    s_lshl_b32 s{sTmp}, s{sCQ}, 7
    s_add_u32 s{sTmp}, s{sTmp}, {W3L}
    v_add_u32 v{U0}, s{sTmp}, v{U0}''')
    for x in axr[:12]: a(x)
    a('s_waitcnt lgkmcnt(6)')
    for ct in range(2):
        for k in range(4): a(f'ds_read_u16 v{W3+4*ct+k}, v{U0} offset:{k*512+ct*64}')
    a('s_waitcnt lgkmcnt(2)')
    for x in axr[12:]: a(x)
    a('s_waitcnt lgkmcnt(6)')
    stampat('C')
    breads(0)
    stampat('p')
    compute(0)
    stampat('d')
    compute(1); stampat('r')
    a(vm.wait('cells'))
    a(f'''s_cmp_lg_u32 s{sWV}, 0
    s_cbranch_scc1 kf_initok
    s_mov_b32 s{sPoll}, {POLL_LIMIT}''')
    a.label('kf_initpoll')
    a(f'''v_readfirstlane_b32 s{sTmp}, v{vDB}
    s_cmp_lg_u32 s{sTmp}, 0
    s_cbranch_scc1 kf_initok
    v_mov_b32 v{vDB}, 0
    s_sleep 2
    buffer_load_dword v{vDB}, v{vDB}, s[{sD}:{sD+3}], 0 offen sc1
    s_waitcnt vmcnt(0)
    s_sub_u32 s{sPoll}, s{sPoll}, 1
    s_cbranch_scc0 kf_initpoll''')
    a.label('kf_initok')
    a('s_barrier')
    signal(WS_FLAG, 'kf_sigA')
    stampat('k')
    compute(2); stampat('s')
    compute(3); stampat('t')
    tile_out()
    a(f'''v_lshrrev_b32 v{U0}, 5, v{vLane}
    v_and_b32 v{U1}, 31, v{vLane}
    v_lshlrev_b32 v{U1}, 4, v{U1}
    v_lshl_add_u32 v{U2}, v{U0}, 9, v{U1}
    v_mul_u32_u24 v{U0}, {QSTR}, v{U0}
    v_add_u32 v{U0}, v{U0}, v{U1}
    s_mul_i32 s{sTmp}, s{sWV}, {2*QSTR}
    s_add_u32 s{sTmp}, s{sTmp}, {QT}
    v_add_u32 v{U0}, s{sTmp}, v{U0}
    s_mul_i32 s{sTmp}, s{sWV}, {QSTR}
    s_add_u32 s{sTmp}, s{sTmp}, {QT + 32*QSTR}
    v_add_u32 v{U3}, s{sTmp}, v{U1}''')
    a('s_waitcnt lgkmcnt(0)\ns_barrier')
    stampat('l')
    a(f'''s_cmp_lg_u32 s{sWV}, 7
    s_cbranch_scc1 kf_norl2''')
    for p in range(4): a(f'v_lshl_or_b32 v{BF+16+p}, v{RL+2*p+1}, 16, v{RL+2*p}')
    a(f'''s_lshl_b32 s{sTmp}, s2, 10
    s_add_u32 s{sTmp}, s{sTmp}, {WS_WF - WS_CELLS}
    buffer_store_dwordx4 {vr(BF+16,4)}, v{vL16}, {WS}, s{sTmp} offen sc1
    s_nop 1''')
    a.label('kf_norl2')
    a(f'''ds_read_b128 {vr(UQ,4)}, v{U0}
    ds_read_b128 {vr(UQ+4,4)}, v{U0} offset:{16*QSTR}
    ds_read_b128 {vr(TOUCH,4)}, v{U3}
    s_lshl_b32 s{sTmp}, s{sN0}, 9
    s_lshl_b32 s{sTmp2}, s{sWV}, 10
    s_add_u32 s{sTmp2}, s{sTmp2}, s{sTmp}
    s_lshl_b32 s{sTmp3}, s{sWV}, 9
    s_add_u32 s{sTmp}, s{sTmp}, s{sTmp3}
    s_add_u32 s{sTmp}, s{sTmp}, 16384
    s_waitcnt lgkmcnt(2)
    buffer_store_dwordx4 {vr(UQ,4)}, v{U2}, s[{sPw}:{sPw+3}], s{sTmp2} offen sc1
    s_add_u32 s{sTmp2}, s{sTmp2}, 8192
    s_waitcnt lgkmcnt(1)
    buffer_store_dwordx4 {vr(UQ+4,4)}, v{U2}, s[{sPw}:{sPw+3}], s{sTmp2} offen sc1
    s_mov_b32 exec_hi, 0
    s_waitcnt lgkmcnt(0)
    buffer_store_dwordx4 {vr(TOUCH,4)}, v{U1}, s[{sPw}:{sPw+3}], s{sTmp} offen sc1
    s_mov_b32 exec_hi, -1''')
    for _ in range(3): vm.issue('pst')
    def rec_loads(tab, t0, t1, lab):
        a(f'''v_and_b32 v{t1}, 1, v0
        v_and_b32 v{t0}, 0xffff, v{tab}
        v_add_u32 v{t0}, v{t0}, v{t1}
        v_lshl_add_u32 v{t0}, v{t0}, 4, v{vNOVF}
        v_lshrrev_b32 v{tab}, 16, v{tab}
        v_sub_u32 v{t1}, v{tab}, v{t1}
        v_add_u32 v{t1}, 1, v{t1}
        v_lshrrev_b32 v{t1}, 1, v{t1}''')
        for i in range(8): a(f'v_cmp_lt_u32 s[{sMask+2*i}:{sMask+2*i+1}], {i}, v{t1}')
        a(f'v_cmp_lt_u32 s[{sOv}:{sOv+1}], 8, v{t1}')
        for i in range(8):
            a(f'''s_mov_b64 exec, s[{sMask+2*i}:{sMask+2*i+1}]
            s_cbranch_execz {lab}
            buffer_load_dwordx3 {vr(REC+4*i,3)}, v{t0}, {WS}, 0 offen offset:{1024+32*i}{LD}''')
        a.label(lab)
        a('s_mov_b64 exec, -1')
    srd(a, sO, 16, N * 512)
    breads(4)
    compute(4); stampat('u')
    compute(5); stampat('v')
    a(f's_cmp_lg_u32 s{sWV}, 0\ns_cbranch_scc1 kf_pollA_ok')
    poll(WS_FLAG, 'kf_pollA', UQ)
    a(vm.wait('st7') + '\ns_barrier')
    a(f'''v_lshrrev_b32 v{vDB}, 1, v0
    v_mul_u32_u24 v{vNOVF}, {CST}, v{vDB}
    s_lshl_b32 s{sTmp}, s0, 2
    buffer_load_dword v{vDB}, v{vNOVF}, {WS}, s{sTmp} offen{LD}''')
    signal(WS_FLAG + 8192, 'kf_sigB')
    stampat('o')
    compute(6, nowait=True); compute(7); stampat('x')
    a('s_waitcnt vmcnt(0)')
    rec_loads(vDB, TOUCH, TOUCH + 1, 'kf_recend')
    stampat('w')
    tile_out()
    a(f's_mov_b32 s{sTmp}, {hex(f2u(-LOG2E))}')
    for k in range(8): a(f'v_lshlrev_b32 v{W3+k}, 16, v{W3+k}\nv_mul_f32 v{W3+k}, s{sTmp}, v{W3+k}')
    a(f'''v_cvt_pk_bf16_f32 v{B2A}, v{W3}, v{W3+1}
    v_cvt_pk_bf16_f32 v{B2A+1}, v{W3+2}, v{W3+3}
    v_cvt_pk_bf16_f32 v{B2B}, v{W3+4}, v{W3+5}
    v_cvt_pk_bf16_f32 v{B2B+1}, v{W3+6}, v{W3+7}''')
    stampat('n')
    a(f'''s_sub_u32 s{sP}, s{sPw}, 3072
    s_subb_u32 s{sP+1}, s{sPw+1}, 0
    s_or_b32 s{sP+1}, s{sP+1}, {512 << 16}
    s_mov_b32 s{sP+2}, {0 if opt.get('nogather') else N}
    s_mov_b32 s{sP+3}, 0x20000
    v_mov_b32 v{TQ}, 0
    v_mov_b32 v{TQ+1}, 0
    v_mov_b32 v{TQ+2}, 0
    v_mov_b32 v{TQ+3}, 0
    s_mov_b32 s{sHeavy}, 0
    s_mov_b32 s{sB}, 0
    s_cmp_lg_u32 s{sWV}, 7
    s_cbranch_scc1 k2_nooh
    v_add_u32 v{T0}, {QT + 40*QSTR}, v{vL16}
    ds_write_b128 v{T0}, {vr(TQ,4)}
    ds_write_b128 v{T0}, {vr(TQ,4)} offset:1024
    ds_write_b128 v{T0}, {vr(TQ,4)} offset:2048
    ds_write_b128 v{T0}, {vr(TQ,4)} offset:3072
    v_mul_u32_u24 v{T0}, {OSTR+2}, v{vLane}
    v_mov_b32 v{T2}, 0x3f80
    v_add_u32 v{T0}, {OH}, v{T0}
    s_mov_b32 exec_hi, 0xff
    ds_write_b16 v{T0}, v{T2}
    s_mov_b32 exec_hi, -1''')
    a.label('k2_nooh')
    for i in range(32): a(f'v_mov_b32 v{ACCA+i}, 0')
    a(f'''s_cmp_lg_u32 s{sWV}, 0
    s_cselect_b32 s{sBok}, 1, 0
    s_cbranch_scc1 k2_first
    s_and_b32 s{sTmp}, s2, 7
    s_lshl_b32 s{sTmp}, s{sTmp}, 10
    s_add_u32 s{sTmp}, s{sTmp}, {WS_FLAG + 8192 - WS_CELLS}
    buffer_load_dwordx4 {vr(TQ+4,4)}, v{vL16}, {WS}, s{sTmp} offen sc1
    s_branch k2_first''')
    vm.ops = []
    a.label('k2_batch')
    for i in range(4): a(f'v_mov_b32 v{TQ+i}, 0')
    list_prefill(TQ, DL4, T0, T1)
    a('s_waitcnt lgkmcnt(0)\ns_barrier')
    a.label('k2_first')
    stampat(1)
    a(f'''v_lshrrev_b32 v{T2}, 5, v{vLane}
    v_and_b32 v{T3}, 31, v{vLane}
    v_lshlrev_b32 v{T0}, 3, v{T2}
    v_sub_u32 v{T0}, v{T3}, v{T0}
    v_mov_b32 v{T1}, 0x3f80
    v_and_b32 v{aQ}, 1, v{T0}
    v_lshlrev_b32 v{aQ}, 4, v{aQ}
    v_lshlrev_b32 v{T1}, v{aQ}, v{T1}
    v_lshrrev_b32 v{T0}, 1, v{T0}''')
    for k, reg in enumerate([I0, I0+1, I0+2, I0+3, I1, I1+1, I1+2, I1+3]):
        c = k if k < 4 else k + 4
        m = 'vcc' if k % 2 == 0 else f's[{sSv}:{sSv+1}]'
        a(f'v_cmp_eq_u32 {m}, {c}, v{T0}')
        if k:
            pk, preg = k - 1, [I0, I0+1, I0+2, I0+3, I1, I1+1, I1+2, I1+3][k-1]
            a('s_nop 0')
            a(f'v_cndmask_b32 v{preg}, 0, v{T1}, ' + ('vcc' if pk % 2 == 0 else f's[{sSv}:{sSv+1}]'))
    a(f'''v_bfe_u32 v{T0}, v{T3}, 2, 1
    v_mov_b32 v{A2}, 0
    v_cndmask_b32 v{I1+3}, 0, v{T1}, s[{sSv}:{sSv+1}]
    v_cmp_eq_u32 s[{sHM}:{sHM+1}], v{T0}, v{T2}
    v_mov_b32 v{A2+1}, 0
    v_mov_b32 v{A2+2}, 0
    v_mov_b32 v{A2+3}, 0
    s_mul_i32 s{sRing}, s{sWV}, 12288
    v_bfe_u32 v{T0}, v{T3}, 1, 3
    v_xor_b32 v{T0}, v{T0}, v{T2}
    v_lshlrev_b32 v{T0}, 4, v{T0}
    v_lshl_add_u32 v{T0}, v{T3}, 7, v{T0}
    v_add_u32 v{aP}, s{sRing}, v{T0}
    v_xor_b32 v{aP+1}, 32, v{aP}
    v_xor_b32 v{aP+2}, 64, v{aP}
    v_xor_b32 v{aP+3}, 96, v{aP}
    v_and_b32 v{T0}, 7, v{vLane}
    v_lshrrev_b32 v{T1}, 4, v{vLane}
    v_xor_b32 v{T0}, v{T0}, v{T1}
    s_lshl_b32 s{sTmp}, s{sCQ}, 7
    v_lshl_add_u32 v{T0}, v{T0}, 4, s{sTmp}
    v_xor_b32 v{IDX+7}, 64, v{T0}
    v_add_u32 v{IDX+1}, 3072, v{T0}
    v_add_u32 v{IDX+3}, 2048, v{IDX+7}
    v_add_u32 v{IDX+5}, 1024, v{T0}''')
    for d in range(4):
        a(f'v_mov_b32 v{IDX1+2*d+1}, v{IDX+2*d+1}\nv_mov_b32 v{IDX2+2*d+1}, v{IDX+2*d+1}')
    a(f'''v_bfe_u32 v{T0}, v{vLane}, 4, 1
    v_and_b32 v{T1}, 3, v{vLane}
    v_lshlrev_b32 v{T1}, 3, v{T1}
    v_lshl_add_u32 v{T0}, v{T0}, 5, v{T1}
    s_add_u32 s{sTmp}, s{sTmp}, {QT}
    v_add_u32 v{cQ}, s{sTmp}, v{T0}
    s_lshl_b32 s{sTmp}, s{sG}, 4
    s_add_u32 s{sTmp}, s{sTmp}, {OH}
    v_add_u32 v{cS}, s{sTmp}, v{T0}
    s_mov_b32 s{sQs}, {QSTR}
    s_mov_b32 s{sOs}, {OSTR}
    s_mov_b32 s{sC}, {hex(C30)}
    s_mov_b32 s{sC+1}, {hex(C30)}''')
    a(f'''v_bfe_u32 v{T0}, v{vLane}, 5, 1
    v_bfe_u32 v{T1}, v{vLane}, 3, 1
    v_bfe_u32 v{T2}, v{vLane}, 4, 1
    v_lshlrev_b32 v{aSRC}, 4, v{T0}
    v_lshl_add_u32 v{aSRC}, v{T1}, 3, v{aSRC}
    v_lshl_add_u32 v{aSRC}, v{T2}, 1, v{aSRC}
    v_bfe_u32 v{T3}, v{vLane}, 2, 1
    v_lshl_add_u32 v{aXL}, v{T1}, 1, v{T0}
    v_lshl_add_u32 v{aXL}, v{aXL}, 1, v{T3}
    v_lshlrev_b32 v{aEAT}, 1, v{T2}
    v_add_u32 v{aEAT}, v{aEAT}, v{T3}
    v_and_b32 v{T0}, 1, v{vLane}
    v_lshl_add_u32 v{aEAT}, v{aEAT}, 1, v{T0}
    v_lshl_add_u32 v{aEAT}, v{aEAT}, 1, v{T1}
    v_bfe_u32 v{T0}, v{vLane}, 1, 1
    v_lshl_add_u32 v{aEAT}, v{aEAT}, 1, v{T0}
    v_lshlrev_b32 v{aEAT}, 4, v{aEAT}''')
    a(f'v_mov_b32 v{T3}, 1')
    stampat('e')
    a('s_waitcnt vmcnt(0)')
    stampat(2)
    a(f'''s_cmp_lg_u32 s{sBok}, 0
    s_cbranch_scc1 kf_nopeek
    v_and_b32 v{TQ+4}, v{TQ+4}, v{TQ+5}
    v_and_b32 v{TQ+6}, v{TQ+6}, v{TQ+7}
    v_and_b32 v{TQ+4}, v{TQ+4}, v{TQ+6}
    v_cmp_eq_u32 vcc, 1, v{TQ+4}
    s_cmp_eq_u64 vcc, -1
    s_cbranch_scc0 kf_nopeek
    {INV}
    s_mov_b32 s{sBok}, 1''')
    a.label('kf_nopeek')
    for i in range(8):
        a(f'''s_mov_b64 exec, s[{sMask+2*i}:{sMask+2*i+1}]
        s_cbranch_execz kf_histend
        v_lshrrev_b32 v{DL4+i}, 12, v{REC+4*i+2}
        v_and_b32 v{DL4+i}, 0xfc, v{DL4+i}
        v_add_u32 v{T1}, {CNT}, v{DL4+i}
        ds_add_rtn_u32 v{RK+i}, v{T1}, v{T3}''')
    a(f'''s_mov_b64 exec, s[{sOv}:{sOv+1}]
    v_mov_b32 v{T1}, {CNT + 252}
    ds_add_u32 v{T1}, v{T3}''')
    a.label('kf_histend')
    a(f'''s_mov_b64 exec, -1
    v_lshlrev_b32 v{T0}, 2, v{vLane}
    v_add_u32 v{T0}, {CNT}, v{T0}
    s_waitcnt lgkmcnt(0)''')
    stampat('f')
    a('s_barrier')
    stampat('g')
    a(f'ds_read_b32 v{T1}, v{T0}\nv_cmp_gt_u32 vcc, 40, v{vLane}')
    dpp = ['row_shr:1 row_mask:0xf bank_mask:0xf', 'row_shr:2 row_mask:0xf bank_mask:0xf', 'row_shr:4 row_mask:0xf bank_mask:0xf',
           'row_shr:8 row_mask:0xf bank_mask:0xf', 'row_bcast:15 row_mask:0xa bank_mask:0xf', 'row_bcast:31 row_mask:0xc bank_mask:0xf']
    a(f'''s_waitcnt lgkmcnt(0)
    v_readlane_b32 s{sT1}, v{T1}, 63
    v_add_u32 v{T1}, 3, v{T1}
    v_lshrrev_b32 v{T1}, 2, v{T1}
    v_cndmask_b32 v{T1}, 0, v{T1}, vcc
    v_mov_b32 v{T2}, v{T1}
    s_lshl_b32 s{sTmp3}, s{sT1}, 8
    s_nop 0''')
    for k, d in enumerate(dpp):
        a(f'v_add_u32_dpp v{T2}, v{T2}, v{T2} {d}' + (' bound_ctrl:0' if k < 4 else ''))
        a('s_nop 1' if k < 5 else 's_nop 0')
    a(f'''v_readlane_b32 s{sQt}, v{T2}, 63
    v_sub_u32 v{T1}, v{T2}, v{T1}
    v_add_u32 v{T2}, 7, v{T1}
    v_lshrrev_b32 v{T2}, 3, v{T2}
    s_add_u32 s{sTmp}, s{sQt}, 7
    v_sub_u32 v{T0}, s{sTmp}, v{T1}
    v_lshrrev_b32 v{T0}, 3, v{T0}
    v_add_u32 v{T2}, v{T2}, v{T0}
    v_lshlrev_b32 v{T0}, 1, v{T1}
    v_sad_u32 v{T0}, v{T0}, s{sQt}, 0
    v_lshl_add_u32 v{T2}, v{T2}, 5, v{T0}
    v_subrev_u32 v{T0}, 8, v{vLane}
    v_lshl_add_u32 v{T2}, v{T2}, 6, v{vLane}
    v_cmp_gt_u32 vcc, 25, v{T0}
    s_nop 1
    v_cndmask_b32 v{T2}, -1, v{T2}, vcc
    s_nop 1''')
    for k, d in enumerate(dpp):
        a(f'v_min_u32_dpp v{T2}, v{T2}, v{T2} {d}')
        a('s_nop 1' if k < 5 else 's_nop 0')
    a(f'''v_readlane_b32 s{sSplit}, v{T2}, 63
    s_and_b32 s{sSplit}, s{sSplit}, 63
    s_cmp_lg_u32 s{sHeavy}, 0
    s_cselect_b32 s{sSplit}, 20, s{sSplit}
    s_nop 0
    v_readlane_b32 s{sTmp}, v{T1}, s{sSplit}
    v_cmp_le_u32 vcc, s{sSplit}, v{vLane}
    s_add_u32 s{sT0}, s{sTmp}, 7
    s_lshr_b32 s{sT0}, s{sT0}, 3
    s_sub_u32 s{sT1}, s{sQt}, s{sTmp}
    s_add_u32 s{sT1}, s{sT1}, 7
    s_lshr_b32 s{sT1}, s{sT1}, 3
    s_add_u32 s{sTmp2}, s{sT0}, s{sT1}
    s_add_u32 s{sTmp2}, s{sTmp2}, s{sTmp3}
    s_cmp_le_u32 s{sTmp2}, {NT}
    s_cbranch_scc1 k2_fits
    s_mov_b32 s{sHeavy}, 1
    s_branch k2_hentry''')
    a.label('k2_fits')
    stampat('h')
    a(f'''s_lshl_b32 s{sTmp2}, s{sT0}, 3
    s_sub_u32 s{sTmp2}, s{sTmp2}, s{sTmp}
    v_mov_b32 v{T2}, s{sTmp2}
    v_cndmask_b32 v{T2}, 0, v{T2}, vcc
    v_add_lshl_u32 v{T1}, v{T1}, v{T2}, 2''')
    for i in range(8):
        if i in (2, 4, 6): a(f's_cmp_eq_u64 s[{sMask+2*i}:{sMask+2*i+1}], 0\ns_cbranch_scc1 kf_bpend')
        a(f'ds_bpermute_b32 v{TQ+i}, v{DL4+i}, v{T1}')
    a.label('kf_bpend')
    a(f'''s_cmp_eq_u32 s{sG}, 0
    s_cselect_b32 s{sT}, s{sT0}, s{sT1}
    s_cselect_b32 s{sTbase}, 0, s{sT0}
    s_cselect_b32 s{sTmp2}, 0, 192
    s_lshl_b32 s{sT0}, s{sT0}, 5
    s_lshl_b32 s{sTmp}, s{sTbase}, 6
    s_add_u32 s{sTmp}, s{sTmp}, s{sTmp2}
    s_add_u32 s{sTmp}, s{sTmp}, {SRC}
    v_add_u32 v{aSRC}, s{sTmp}, v{aSRC}
    s_lshl_b32 s{sTmp}, s{sTbase}, 9
    s_add_u32 s{sTmp}, s{sTmp}, {EAT}
    v_add_u32 v{aEAT}, s{sTmp}, v{aEAT}
    s_lshl_b32 s{sTmp}, s{sTbase}, 3
    s_add_u32 s{sTmp}, s{sTmp}, {XL}
    v_add_u32 v{aXL}, s{sTmp}, v{aXL}
    v_mov_b32 v{vX}, {SRC}
    v_mov_b32 v{aQ}, {SRC+192}''')
    a(f'v_mov_b32 v{S}, 0x3f80\ns_waitcnt lgkmcnt(0)')
    for i in range(8):
        er = REC + 4 * i
        a(f'''s_mov_b64 exec, s[{sMask+2*i}:{sMask+2*i+1}]
        s_cbranch_execz kf_scend
        v_add_u32 v{RK+i}, v{RK+i}, v{TQ+i}
        v_and_b32 v{T0}, 0x3fff, v{er+2}
        v_cmp_gt_u32 vcc, s{sT0}, v{RK+i}
        v_lshrrev_b32 v{T2}, 2, v{RK+i}
        v_lshrrev_b32 v{T3}, 2, v{DL4+i}
        v_cndmask_b32 v{T1}, v{aQ}, v{vX}, vcc
        v_add_u32 v{T2}, {XL}, v{T2}
        v_lshl_add_u32 v{T1}, v{RK+i}, 1, v{T1}
        v_and_b32 v{er+3}, 16, v{RK+i}
        v_lshlrev_b32 v{er+2}, 2, v{RK+i}
        v_cmp_eq_u32 vcc, 0, v{er+3}
        v_and_b32 v{er+2}, 16, v{er+2}
        v_lshlrev_b32 v{er+3}, v{er+2}, v{S}
        v_lshlrev_b32 v{RK+i}, 4, v{RK+i}
        ds_write_b16 v{T1}, v{T0}
        v_cndmask_b32 v{er+2}, 0, v{er+3}, vcc
        v_cndmask_b32 v{er+3}, v{er+3}, 0, vcc
        v_add_u32 v{RK+i}, {EAT}, v{RK+i}
        ds_write_b8 v{T2}, v{T3}
        ds_write_b128 v{RK+i}, {vr(er,4)}''')
    a.label('kf_scend')
    a(f's_mov_b64 exec, -1\ns_cmp_lg_u32 s{sBok}, 0\ns_cbranch_scc1 kf_bdone')
    poll(WS_FLAG + 8192, 'kf_pollB', TQ + 4)
    a(f'{INV}\ns_mov_b32 s{sBok}, 1\ns_waitcnt vmcnt(0)')
    a.label('kf_bdone')
    for x in (MA, MA + 1, MB, MB + 1, S, S + 1, NF, NF + 1, NF + 2, NF + 3): a(f'v_mov_b32 v{x}, 0')
    for x in range(4): a(f'v_mov_b32 v{DF+x}, 1.0')
    for d in range(4): a(f'v_mov_b32 v{IDX3+2*d+1}, v{IDX+2*d+1}')
    a('s_waitcnt lgkmcnt(0)\ns_barrier')
    vm.ops = []
    stampat(3)
    DOFF = [0, 4, 32, 36]
    def idx_reads(base, toff):
        return [f'ds_read_u16 v{base+2*d}, v{aSRC} offset:{toff*64+DOFF[d]}' for d in range(4)]
    def dma_ins(base, d, tag):
        vm.issue(tag)
        return f'buffer_load_dwordx4 {vr(base+2*d,2)}, s[{sP}:{sP+3}], 0 idxen offen offset:{d*1024} lds'
    for x in idx_reads(IDX1, 0) + idx_reads(IDX2, 1): a(x)
    a(f's_mov_b32 m0, s{sRing}\ns_waitcnt lgkmcnt(4)')
    for d in range(4): a(dma_ins(IDX1, d, 'dma0'))
    a(f's_add_u32 m0, s{sRing}, 4096\ns_waitcnt lgkmcnt(0)')
    for d in range(4): a(dma_ins(IDX2, d, 'dma1'))
    stampat(4)
    def gemm(acc, frag, addr, wregs, first, waitv):
        def rd(s):
            for rt in range(3):
                f = frag + (s & 1) * 12 + rt * 4
                a(f'ds_read_b128 {vr(f,4)}, v{addr+(s&3)} offset:{rt*8192+(s>>2)*256}')
        rd(0)
        for s in range(8):
            if s + 1 < 8:
                rd(s + 1); w = 'lgkmcnt(3)'
            else: w = 'lgkmcnt(0)'
            wv = waitv(s)
            a((wv + ' ' + w) if wv else 's_waitcnt ' + w)
            for rt in range(3):
                for c in range(2):
                    d = acc[rt * 2 + c]; f = frag + (s & 1) * 12 + rt * 4
                    cin = '0' if (first and s == 0) else vr(d, 4)
                    a(f'v_mfma_f32_16x16x32_bf16 {vr(d,4)}, {vr(f,4)}, {vr(wregs(s*2+c),4)}, {cin}')
    a(f'''s_cmp_eq_u32 s{sT}, 0
    s_cbranch_scc1 k2_loopend
    ds_read_u8 v{vX}, v{aXL}
    s_mov_b64 exec, s[{sHM}:{sHM+1}]
    ds_read_b128 {vr(A2,4)}, v{aEAT}
    s_mov_b64 exec, -1''')
    a(vm.wait('dma0'))
    a(f'''ds_read_b128 {vr(PA,4)}, v{aP}
    ds_read_b128 {vr(PA+4,4)}, v{aP+1}
    ds_read_b128 {vr(PB,4)}, v{aP+2}
    ds_read_b128 {vr(PB+4,4)}, v{aP+3}
    s_waitcnt lgkmcnt(5)
    v_mad_u32_u24 v{aQ}, v{vX}, s{sQs}, v{cQ}
    v_mad_u32_u24 v{aS}, v{vX}, s{sOs}, v{cS}
    ds_read_u8 v{vX}, v{aXL} offset:8
    ds_read_b64_tr_b16 {vr(B2A+2,2)}, v{aQ}
    ds_read_b64_tr_b16 {vr(B2B+2,2)}, v{aQ} offset:64''')
    for x in idx_reads(IDX3, 2) + idx_reads(IDX, 3): a(x)
    a(f's_sub_u32 s{sCnt}, s{sT}, 1\ns_waitcnt lgkmcnt(9)')
    def zchain(D, B2, P):
        return [f'v_mfma_f32_32x32x16_bf16 {vr(D,16)}, {vr(A2,4)}, {vr(B2,4)}, 0',
                f'v_mfma_f32_32x32x16_bf16 {vr(D,16)}, {vr(P,4)}, {vr(I0,4)}, {vr(D,16)}',
                f'v_mfma_f32_32x32x16_bf16 {vr(D,16)}, {vr(P+4,4)}, {vr(I1,4)}, {vr(D,16)}']
    for m in zchain(DA, B2A, PA): a(m)
    if prio == 'young': a(f's_cmp_eq_u32 s{sG}, 0\ns_cbranch_scc1 k2_noprio\ns_setprio 1\nk2_noprio:')
    a('s_nop 7\ns_nop 3')
    stampat(6)

    cur = {'pT': None, 'pP': None}
    def half(D, accprev, Mprev, Mfin, zc, extra_T, extra_P):
        Ts = [f'v_exp_f32 v{EE+i}, v{D+i}' for i in range(16)] + [f'v_rcp_f32 v{DF+i}, v{DF+i}' for i in range(4)]
        mf = [f'v_mfma_f32_32x32x8_bf16 {vr(accprev,16)}, {vr(Mprev,2)}, {vr(S,2)}, {vr(accprev,16)}'] + zc
        if cur['pT'] is not None: a(f's_setprio {cur["pT"]}')
        for k in range(4):
            a(mf[k])
            for x in extra_T.get(k, []): a(x)
            for t_ in Ts[5 * k:5 * k + 5]: a(t_)
        if cur['pP'] is not None: a(f's_setprio {cur["pP"]}')
        Ps = [f'v_pk_fma_f32 {pr(EE+2*p)}, {pr(EE+2*p)}, s[{sC}:{sC+1}], s[{sC}:{sC+1}] clamp' for p in range(8)]
        Ps += [f'v_pk_mul_f32 {pr(NF)}, {pr(NF)}, {pr(DF)}', f'v_pk_mul_f32 {pr(NF+2)}, {pr(NF+2)}, {pr(DF+2)}']
        bs = [0, 4, 8, 12]
        Ps += [f'v_pk_mul_f32 {pr(D+b)}, {pr(D+b)}, {pr(EE+b+2)}' for b in bs]
        Ps += [f'v_cvt_pk_bf16_f32 v{Mfin}, v{NF}, v{NF+1}', f'v_cvt_pk_bf16_f32 v{Mfin+1}, v{NF+2}, v{NF+3}']
        Ps += [f'v_pk_fma_f32 {pr(D+b)}, {pr(D+b+2)}, {pr(EE+b)}, {pr(D+b)}' for b in bs]
        Ps += [f'v_pk_mul_f32 {pr(EE+b)}, {pr(EE+b)}, {pr(EE+b+2)}' for b in bs]
        Ps += [f'v_pk_mul_f32 {pr(NF+2*B)}, {pr(D+8*B)}, {pr(EE+8*B+4)}' for B in range(2)]
        Ps += [f'v_pk_mul_f32 {pr(DF+2*B)}, {pr(EE+8*B)}, {pr(EE+8*B+4)}' for B in range(2)]
        Ps += [f'v_pk_fma_f32 {pr(NF+2*B)}, {pr(D+8*B+4)}, {pr(EE+8*B)}, {pr(NF+2*B)}' for B in range(2)]
        for i, p in enumerate(Ps):
            for x in extra_P.get(i, []):
                a(x() if callable(x) else x)
            a(p)
    def spread(d, xs, start, step=1):
        for i, x in enumerate(xs):
            d.setdefault(start + i * step, []).extend(x if isinstance(x, list) else [x])
    wsched = [('u2', i) for i in range(16)] + [('u1', i) for i in range(NW1A)]
    NPEEL = 6
    per = [4, 4, 4, 4, 4, 5]
    def iteration(tau, u, peeled):
        sl = (u + 1) % 3
        a('s_waitcnt lgkmcnt(0)')
        eT = {3: [f'v_mad_u32_u24 v{aQ}, v{vX}, s{sQs}, v{cQ}', f'v_mad_u32_u24 v{aS+sl}, v{vX}, s{sOs}, v{cS}']}
        eP = {}
        spread(eP, [(lambda: vm.wait(f'dma{tau+1}')) if peeled else 's_waitcnt vmcnt(4)',
              f'ds_read_b128 {vr(PA,4)}, v{aP} offset:{sl*4096}', f'ds_read_b128 {vr(PA+4,4)}, v{aP+1} offset:{sl*4096}',
              f'ds_read_b64_tr_b16 {vr(B2A+2,2)}, v{aQ}',
              [f's_mov_b64 exec, s[{sHM}:{sHM+1}]', f'ds_read_b128 {vr(A2,4)}, v{aEAT} offset:{(u+1)*512}', 's_mov_b64 exec, -1'],
              f's_add_u32 m0, s{sRing}, {u*4096}'], 1)
        if peeled and tau == 0:
            eP[6] = [f's_add_u32 m0, s{sRing}, 8192']
            spread(eP, [(lambda d=d: dma_ins(IDX3, d, 'dma2')) for d in range(4)], 7, 3)
            eP.setdefault(18, []).append(f's_mov_b32 m0, s{sRing}')
            spread(eP, [(lambda d=d: dma_ins(IDX, d, 'dma3')) for d in range(4)], 19, 3)
        else:
            spread(eP, [(lambda d=d: dma_ins(IDX, d, f'dma{tau+3}')) for d in range(4)], 8, 7)
        half(DA, ACCA, MA, MB, zchain(DB, B2B, PB), eT, eP)
        a('s_waitcnt lgkmcnt(0)')
        eP = {}
        xs = [f'ds_read_b128 {vr(PB,4)}, v{aP+2} offset:{sl*4096}', f'ds_read_b128 {vr(PB+4,4)}, v{aP+3} offset:{sl*4096}',
              f'ds_read_b64_tr_b16 {vr(B2B+2,2)}, v{aQ} offset:64', f'ds_read_b64_tr_b16 {vr(S,2)}, v{aS+u}',
              f'ds_read_u8 v{vX}, v{aXL} offset:{(u+2)*8}'] + idx_reads(IDX, u + 4)
        spread(eP, xs, 1, 2)
        if peeled and not opt.get('nowpf'):
            k0 = sum(per[:tau])
            for j, (m, i) in enumerate(wsched[k0:k0 + per[tau]]):
                def f(m=m, i=i):
                    ins = wload(WB2 + 4 * i, 2, i, 'wu') if m == 'u2' else wload(w1reg(i), 1, i, 'wu')
                    return '\n'.join(ins)
                eP.setdefault(18 + 2 * j, []).append(f)
            if tau == NPEEL - 1: eP.setdefault(28, []).append(f's_mov_b32 s{sWdone}, 1')
        if u == 2:
            eP.setdefault(29, []).extend([f'v_add_u32 v{aSRC}, 192, v{aSRC}', f'v_add_u32 v{aEAT}, 1536, v{aEAT}', f'v_add_u32 v{aXL}, 24, v{aXL}'])
        eP.setdefault(29, []).append(f's_sub_u32 s{sCnt}, s{sCnt}, 1')
        half(DB, ACCB, MB, MA, zchain(DA, B2A, PA), {}, eP)
    spec = {'P': '01', 'none': 'xx', 'young': 'xx'}.get(prio, prio).split('|')
    saved = list(vm.ops)
    if len(spec) > 1: a(f's_cmp_lg_u32 s{sG}, 0\ns_cbranch_scc1 k2_g1')
    for g, sp in enumerate(spec):
        vm.ops = list(saved)
        sp = sp.split(',')
        def setp(k):
            x = sp[k % len(sp)]
            cur['pT'] = None if x[0] == 'x' else int(x[0]); cur['pP'] = None if x[1] == 'x' else int(x[1])
        if g: a.label('k2_g1')
        for tau in range(NPEEL):
            setp(tau)
            iteration(tau, tau % 3, True)
            a('s_cbranch_scc1 k2_drain')
        a.label(f'k2_loop{g}')
        for u in range(3):
            setp(u)
            iteration(100 + u, u, False)
            a('s_cbranch_scc1 k2_drain' if u < 2 else f's_cbranch_scc0 k2_loop{g}')
        if g + 1 < len(spec): a('s_branch k2_drain')
    a.label('k2_drain')
    a('s_setprio 0\ns_waitcnt lgkmcnt(0)')
    a(f'v_mfma_f32_32x32x8_bf16 {vr(ACCA,16)}, {vr(MA,2)}, {vr(S,2)}, {vr(ACCA,16)}')
    for i in range(4): a(f'v_rcp_f32 v{DF+i}, v{DF+i}')
    a('s_nop 0')
    for i in range(4): a(f'v_mul_f32 v{NF+i}, v{NF+i}, v{DF+i}')
    a(f'''v_cvt_pk_bf16_f32 v{MB}, v{NF}, v{NF+1}
    v_cvt_pk_bf16_f32 v{MB+1}, v{NF+2}, v{NF+3}
    s_nop 1
    v_mfma_f32_32x32x8_bf16 {vr(ACCB,16)}, {vr(MB,2)}, {vr(S,2)}, {vr(ACCB,16)}''')
    a.label('k2_loopend')
    stampat(7)
    a(f'''s_cmp_eq_u32 s{sHeavy}, 0
    s_cbranch_scc1 k2_epi
    s_add_u32 s{sB}, s{sB}, 1''')
    a.label('k2_fetch')
    a(f'''s_waitcnt vmcnt(0) lgkmcnt(0)
    s_barrier
    s_cmp_ge_u32 s{sB}, s{sHeavy}
    s_cbranch_scc1 k2_epi
    s_lshl_b32 s{sTmp}, s0, 2
    buffer_load_dword v{TQ}, v{vNOVF}, {WS}, s{sTmp} offen sc1
    v_and_b32 v{T1}, 1, v0
    s_lshl_b32 s{sTmp}, s{sB}, 1
    v_add_u32 v{T1}, s{sTmp}, v{T1}
    s_waitcnt vmcnt(0)
    v_and_b32 v{T0}, 0xffff, v{TQ}
    v_lshrrev_b32 v{TQ}, 16, v{TQ}
    v_add_u32 v{T0}, v{T0}, v{T1}
    v_cmp_lt_u32 s[{sMask}:{sMask+1}], v{T1}, v{TQ}
    v_lshl_add_u32 v{T0}, v{T0}, 4, v{vNOVF}
    buffer_load_dwordx3 {vr(REC,3)}, v{T0}, {WS}, 0 offen offset:1024 sc1''')
    for i in range(1, 8): a(f's_mov_b64 s[{sMask+2*i}:{sMask+2*i+1}], 0')
    a(f's_mov_b64 s[{sOv}:{sOv+1}], 0\ns_branch k2_batch')
    a.label('k2_hentry')
    a(f'''s_waitcnt vmcnt(0) lgkmcnt(0)
    s_lshl_b32 s{sTmp}, s0, 2
    buffer_load_dword v{TQ}, v{vNOVF}, {WS}, s{sTmp} offen sc1
    v_mov_b32 v{T0}, {HMAX}
    v_mov_b32 v{T1}, 1
    ds_write_b32 v{T0}, v{T1}
    s_waitcnt vmcnt(0) lgkmcnt(0)
    s_barrier
    v_lshrrev_b32 v{TQ}, 16, v{TQ}
    v_add_u32 v{TQ}, 1, v{TQ}
    v_lshrrev_b32 v{TQ}, 1, v{TQ}
    ds_max_u32 v{T0}, v{TQ}
    s_waitcnt lgkmcnt(0)
    s_barrier
    ds_read_b32 v{T1}, v{T0}
    s_waitcnt lgkmcnt(0)
    v_readfirstlane_b32 s{sHeavy}, v{T1}
    s_branch k2_fetch''')
    a.label('k2_epi')
    vm.ops = []
    a(f's_waitcnt vmcnt(0)\ns_cmp_lg_u32 s{sWdone}, 0\ns_cbranch_scc1 k2_wok')
    for (m, i) in wsched:
        for x in (wload(WB2 + 4 * i, 2, i, 'c') if m == 'u2' else wload(w1reg(i), 1, i, 'c')): a(x)
    a('s_waitcnt vmcnt(0)')
    a.label('k2_wok')
    vm.ops = []
    for i in range(NW1A, 16):
        for x in wload(w1reg(i), 1, i, f'w1_{i}'): a(x)
    Y0, Y1, Y2, Y3 = X0, X0 + 1, X0 + 2, X0 + 3
    a(f'''v_and_b32 v{Y0}, 15, v{vLane}
    v_lshrrev_b32 v{Y1}, 4, v{vLane}
    v_xor_b32 v{Y2}, v{Y1}, v{Y0}
    v_lshlrev_b32 v{Y2}, 4, v{Y2}
    v_lshl_add_u32 v{Y2}, v{Y0}, 9, v{Y2}
    v_add_u32 v{EA_}, {XT}, v{Y2}''')
    for s in range(1, 4):
        a(f'v_xor_b32 v{Y3}, {s<<6}, v{Y2}\nv_add_u32 v{EA_+s}, {XT}, v{Y3}')
    a(f'''s_mov_b32 s{sTmp}, {hex(f2u(-LN2 * 2.0**-30))}
    v_and_b32 v{Y2}, 31, v{vLane}
    v_bfe_u32 v{Y3}, v{vLane}, 1, 3
    v_lshlrev_b32 v{Y3}, 4, v{Y3}
    v_lshl_add_u32 v{Y2}, v{Y2}, 7, v{Y3}
    v_lshrrev_b32 v{Y3}, 5, v{vLane}
    v_lshl_add_u32 v{Y2}, v{Y3}, 3, v{Y2}
    v_add_u32 v{Y2}, s{sRing}, v{Y2}''')
    for q in range(8):
        for i in range(4): a(f'v_mul_f32 v{ACCA+4*q+i}, s{sTmp}, v{ACCA+4*q+i}')
        a(f'v_cvt_pk_bf16_f32 v{ACCA+4*q}, v{ACCA+4*q}, v{ACCA+4*q+1}\nv_cvt_pk_bf16_f32 v{ACCA+4*q+1}, v{ACCA+4*q+2}, v{ACCA+4*q+3}')
        if q: a(f'v_xor_b32 v{Y3}, {q<<4}, v{Y2}')
        a(f'ds_write_b64 v{Y3 if q else Y2}, {vr(ACCA+4*q,2)}')
    AD = ACCA + 2
    ADR = [ACCA + 2, ACCA + 3, ACCA + 6, ACCA + 7, ACCA + 10, ACCA + 11]
    a(f'v_mov_b32 v{ACCA+14}, {4*12288 - 8*128}')
    for rt in range(3):
        n = ACCA + 15; j = ACCA + 18; tt = ACCA + 19
        a(f'''v_add_u32 v{n}, {16*rt}, v{Y0}
        v_cmp_le_u32 vcc, s{sSplit}, v{n}
        v_lshrrev_b32 v{j}, 1, v{n}
        v_xor_b32 v{tt}, 4, v{j}
        v_cndmask_b32 v{j}, v{j}, v{tt}, vcc
        v_cndmask_b32 v{tt}, 0, v{ACCA+14}, vcc
        v_xor_b32 v{j}, v{j}, v{Y1}
        v_and_b32 v{j}, 7, v{j}
        v_lshl_add_u32 v{tt}, v{n}, 7, v{tt}
        v_lshl_add_u32 v{ADR[2*rt]}, v{j}, 4, v{tt}
        v_xor_b32 v{ADR[2*rt+1]}, 64, v{ADR[2*rt]}''')
    stampat(8)
    gemm([OA + 4 * i for i in range(6)], AF, EA_, w1reg, True, lambda s: vm.wait(f'w1_{2*s+1}') if 2 * s + 1 >= NW1A else None)
    a('s_barrier')
    a(f'''v_lshlrev_b32 v{Y2}, 2, v{Y0}
    v_lshl_add_u32 v{Y2}, v{Y1}, 11, v{Y2}
    s_lshl_b32 s{sTmp2}, s{sN0}, 9
    s_lshl_b32 s{sTmp}, s{sWV}, 6
    s_add_u32 s{sTmp2}, s{sTmp2}, s{sTmp}
    s_mov_b32 s{sC}, {hex(f2u(-LOG2E))}''')
    Z = DA
    def silu_ops(rt):
        b = OA + rt * 8
        ops = [f'v_mul_f32 v{Z+p}, s{sC}, v{b+p}' for p in range(8)]
        ops += [f'v_exp_f32 v{Z+p}, v{Z+p}' for p in range(8)]
        ops += [f'v_add_f32 v{Z+p}, 1.0, v{Z+p}' for p in range(8)]
        ops += [f'v_rcp_f32 v{Z+p}, v{Z+p}' for p in range(8)]
        ops += [f'v_mul_f32 v{Z+p}, v{b+p}, v{Z+p}' for p in range(8)]
        for rr in range(4):
            ops.append(f'v_cvt_pk_bf16_f32 v{Z+8+rr}, v{Z+rr}, v{Z+4+rr}')
        for rr in range(4):
            if rt == 2 and rr == 3:
                ops.append(f's_cmp_eq_u32 s{sNN}, 40\ns_cselect_b32 exec_lo, -1, 0xffff')
            ops.append(f'buffer_store_dword v{Z+8+rr}, v{Y2}, s[{sO}:{sO+3}], s{sTmp2} offen offset:{rr*512}')
        ops.append(f's_add_u32 s{sTmp2}, s{sTmp2}, 8192')
        return ops
    seq = [(rt, s) for rt in range(3) for s in range(8)]
    def ard(k):
        rt, s = seq[k]
        a(f'ds_read_b128 {vr(AF+4*(k%6),4)}, v{ADR[2*rt+(s&1)]} offset:{(s>>1)*12288}')
    for k in range(5): ard(k)
    pend = []
    for k, (rt, s) in enumerate(seq):
        if k + 5 < 24: ard(k + 5)
        a(f's_waitcnt lgkmcnt({min(5, 23-k)})')
        for c in range(2):
            d = OA + (rt * 2 + c) * 4
            a(f'v_mfma_f32_16x16x32_bf16 {vr(d,4)}, {vr(AF+4*(k%6),4)}, {vr(WB2+4*(2*s+c),4)}, {vr(d,4)}')
            if s >= 1 or c == 1:
                n = 4 if s >= 1 else 0
                for x in pend[:n]: a(x)
                pend = pend[n:]
        if s == 7:
            for x in pend: a(x)
            pend = silu_ops(rt)
    a('s_mov_b32 exec_hi, 0\ns_nop 6')
    for x in pend: a(x)
    if stamp:
        stampat(9)
        a(f's_mov_b64 exec, 1\ns_waitcnt lgkmcnt(0)')
        a(f's_lshl_b32 s{sTmp}, s2, 3\ns_add_u32 s{sTmp}, s{sTmp}, s{sWV}\ns_lshl_b32 s{sTmp}, s{sTmp}, 6\ns_add_u32 s{sTmp}, s{sTmp}, {WS_END - WS_CELLS}\nv_mov_b32 v{Y0}, 0')
        for i in range(10):
            a(f'v_mov_b32 v{Y1}, s{sStamp+2*i}\nbuffer_store_dword v{Y1}, v{Y0}, {WS}, s{sTmp} offen offset:{4*i}')
        a(f'v_mov_b32 v{Y1}, s{sT}\nbuffer_store_dword v{Y1}, v{Y0}, {WS}, s{sTmp} offen offset:40')
        a(f'v_mov_b32 v{Y1}, s{sPoll}\nbuffer_store_dword v{Y1}, v{Y0}, {WS}, s{sTmp} offen offset:44')
    a.label('k2_done')
    a('s_endpgm')
    return kd(KNAME, 256, 102)
```

```python
import sys
from common import *
import kf
opt = {}
for x in sys.argv[2:]:
    k, v = x.split('=', 1); opt[k] = v
hdr = open('standalone__mpnn_edge_mlp__graph.s.ref').read().split('; Override')[0].rstrip('\n')
a = Asm()
a.raw(hdr)
a.raw(f'; @launch grid=({kf.K2_GRID},1,1) block=(512,1,1) lds={kf.K2_LDS}')
a.raw('''; One persistent launch, one workgroup per CU, each owning 39-40 destination nodes and 625 edges.
;  end: agg @ w_upd[256:512], silu, store''')
a.raw('.amdgcn_target "amdgcn-amd-amdhsa--gfx950"\n.text')
k = kf.gen_kf(a, opt)
a.raw('.section .rodata,"a"')
a.raw(k)
open(sys.argv[1], 'w').write(a.text() + '\n')
```

```python
from common import *
FCH = 625; CST = 11264
WS_CELLS = 5242880
WS_WF = WS_CELLS + 256 * CST
WS_FLAG = WS_WF + 262144
WS_END = WS_FLAG + 16384
KNAME = 'standalone__mpnn_edge_mlp__graph_kernel'
POLL_LIMIT = 40000
K2_GRID = NB
NT = 29
QT = 98304; QSTR = 576
OH = QT + 41 * QSTR; OSTR = 80
XT = QT + 40 * QSTR + 4096
EAT = XT + 20480
CNT = EAT + NT * 512
SRC = CNT + 256
XL = SRC + (NT + 7) * 64
K2_LDS = 163840
assert XL + 256 <= K2_LDS
C30 = 0x30800000

class R:
    def __init__(self, start): self.n = start
    def get(self, k=1, align=1):
        self.n = (self.n + align - 1) // align * align
        r = self.n; self.n += k; return r

def vr(r, k): return f'v[{r}:{r+k-1}]' if k > 1 else f'v{r}'
def pr(x): return f'v[{x}:{x+1}]'

def gen_kf(a, opt):
    stamp = opt.get('stamp')
    prio = opt.get('prio', '02,02,13|13,13,02')
    vm = VM()
    INV = 'buffer_inv sc1' if opt.get('inv') else ''
    LD = ' sc1' if opt.get('ldsc1', '0') == '1' else ''
    CS = opt.get('cellst', ' sc1')
    r = R(1)
    vLane = r.get(); vNOVF = r.get(); vL16 = r.get()
    aSRC = r.get(); aEAT = r.get(); aXL = r.get(); cQ = r.get(); cS = r.get(); vX = r.get(); aQ = r.get()
    aS = r.get(3); aP = r.get(4)
    IDX = r.get(8, 2)
    A2 = r.get(4, 2); B2A = r.get(4, 2); B2B = r.get(4, 2)
    S = r.get(2, 2); MA = r.get(2, 2); MB = r.get(2, 2)
    ACCA = r.get(16, 2); ACCB = r.get(16, 2)
    DA = r.get(16, 2); DB = r.get(16, 2)
    EE = r.get(16, 2); NF = r.get(4, 2); DF = r.get(4, 2)
    PA = r.get(8, 2); PB = r.get(8, 2); I0 = r.get(4, 2); I1 = r.get(4, 2)
    WB2 = r.get(64, 2)
    WB1 = r.get(36, 2)
    assert r.n <= 256, r.n
    NW1A = 9
    t = R(WB2)
    REC = DB
    assert EE == DB + 16
    RK = t.get(8, 2); TQ = t.get(8, 2); DL4 = t.get(8, 2)
    T0 = t.get(); T1 = t.get(); T2 = t.get(); T3 = t.get()
    IDX3 = t.get(8, 2)
    HMAX = XL + 256
    IDX1 = DA; IDX2 = DA + 8
    OA = EE; AF = PA; WB1B = DA
    X0 = DB + 12
    EA_ = IDX
    def w1reg(i): return WB1 + 4 * i if i < NW1A else WB1B + 4 * (i - NW1A)

    sP = 20; sX = 24; sE = 28; sWS = 32; sM = 36; sO = 40
    sWV = 44; sG = 45; sCQ = 46; sHeavy = 47; sB = 48; sPoll = 49; sSplit = 50; sT = 51; sTbase = 52
    sRing = 53; sCnt = 54; sTmp = 55; sTmp2 = 56; sTmp3 = 57; sC = 58
    sMask = 4
    sQs = 68; sOs = 69; sT0 = 70; sT1 = 71; sQt = 72; sWdone = 73; sSv = 74
    sStamp = 76
    sHM = 96; sN0 = 98; sWF = 99; sNN = 3; sBok = 100; sOv = 28; sD = 60; sPw = 64

    names = (stamp if stamp and stamp != '1' else '0,1,2,3,4,5,6,7,8,9').split(',')
    def stampat(nm):
        nm = str(nm)
        if stamp:
            if nm in names:
                i = names.index(nm)
                a(f's_memrealtime s[{sStamp+2*i}:{sStamp+2*i+1}]')
            if nm == '6': a('s_memtime s[100:101]\ns_waitcnt lgkmcnt(0)\ns_mov_b32 s{}, s100'.format(sPoll))
            if nm == '7': a('s_memtime s[100:101]\ns_waitcnt lgkmcnt(0)\ns_sub_u32 s{0}, s100, s{0}'.format(sPoll))
    WS = f's[{sWS}:{sWS+3}]'
    def wload(dst, mat, i, tag):
        off = (mat - 1) * 131072 + i * 1024
        ins = [f's_add_u32 s{sTmp3}, s{sWF}, {off & ~4095}',
               f'buffer_load_dwordx4 {vr(dst,4)}, v{vL16}, {WS}, s{sTmp3} offen offset:{off & 4095}']
        vm.issue(tag)
        return ins

    a.raw(f'.globl {KNAME}\n.p2align 8\n.type {KNAME},@function')
    a.label(KNAME)
    a(f's_cmp_ge_u32 s2, {K2_GRID}\ns_cbranch_scc1 k2_done')
    stampat(0)
    eD = 26; eS = 36; eA = 46; eR = 66; eB = 76
    PD = 26; RL = 50; W3 = 58; TOUCH = 86; CT = 58
    UQ = 4; vW = 12; aA = 16; U0 = 20; U1 = 21; U2 = 22; U3 = 23; vW1 = 24; vDB = 25; aB = 90
    BF = NF; AX = WB2
    assert BF == 124 and BF + 32 == WB2 and WB2 + 96 <= 256 and REC == 92
    W3L = QT + 24576
    SW = 1
    TAB = QT; RIMG = QT + 1024; CNTA = QT + 12288
    sS = 20; sDs = 28; sEs = 36; sU = 40
    sWm = 68
    sEM = 76 if not stamp else 8
    a(f'''s_load_dwordx4 s[12:15], s[0:1], 32
    s_load_dwordx4 s[8:11], s[0:1], 16
    s_load_dwordx4 s[4:7], s[0:1], 0
    s_load_dwordx4 s[16:19], s[0:1], 48
    s_load_dwordx2 s[{sWS}:{sWS+1}], s[0:1], 64
    v_lshrrev_b32 v{U0}, 6, v0
    v_and_b32 v{vLane}, 63, v0
    v_readfirstlane_b32 s{sWV}, v{U0}
    v_lshlrev_b32 v{U3}, 4, v0
    v_lshlrev_b32 v{vL16}, 4, v{vLane}
    s_mul_i32 s{sN0}, s2, 625
    s_bfe_u32 s{sTmp3}, s2, 0x50003
    s_lshl_b32 s{sTmp3}, s{sTmp3}, 13
    s_lshl_b32 s{sT}, s{sN0}, 2
    s_lshl_b32 s{sTbase}, s{sN0}, 3
    s_and_b32 s{sPoll}, s2, 7
    s_lshl_b32 s{sPoll}, s{sPoll}, 5
    s_lshr_b32 s{sTmp}, s2, 3
    s_or_b32 s{sPoll}, s{sPoll}, s{sTmp}
    s_mul_i32 s{sN0}, s{sPoll}, 625
    s_add_u32 s{sNN}, s{sN0}, {625+15}
    s_add_u32 s{sN0}, s{sN0}, 15
    s_lshr_b32 s{sN0}, s{sN0}, 4
    s_lshr_b32 s{sNN}, s{sNN}, 4
    s_sub_u32 s{sNN}, s{sNN}, s{sN0}
    s_lshr_b32 s{sG}, s{sWV}, 2
    s_and_b32 s{sCQ}, s{sWV}, 3
    s_lshl_b32 s{sWF}, s{sWV}, 14
    s_add_u32 s{sWF}, s{sWF}, {WS_WF - WS_CELLS}
    v_lshrrev_b32 v{U0}, 5, v{vLane}
    v_and_b32 v{U1}, 31, v{vLane}
    s_lshl_b32 s{sTmp}, s{sWV}, 1
    v_xor_b32 v{U2}, v{U1}, v{U0}
    v_xor_b32 v{U2}, s{sTmp}, v{U2}
    v_lshlrev_b32 v{U2}, 4, v{U2}
    v_lshl_add_u32 v{U2}, v{U0}, 9, v{U2}
    v_xor_b32 v{vW1}, s{sWV}, v{U1}
    v_lshlrev_b32 v{vW1}, 4, v{vW1}
    s_waitcnt lgkmcnt(0)
    s_mov_b32 s0, s{sPoll}''')
    a(f'''s_cmp_lg_u32 s{sWV}, {SW}
    s_cbranch_scc1 kf_noedge
    s_setprio 3
    v_mul_u32_u24 v{U0}, 40, v{vLane}
    v_mul_u32_u24 v{U1}, 80, v{vLane}''')
    srd(a, sDs, 10, E * 4)
    a(f'''buffer_load_dwordx4 {vr(eD,4)}, v{U0}, s[{sDs}:{sDs+3}], s{sT} offen
    buffer_load_dwordx4 {vr(eD+4,4)}, v{U0}, s[{sDs}:{sDs+3}], s{sT} offen offset:16
    buffer_load_dwordx2 {vr(eD+8,2)}, v{U0}, s[{sDs}:{sDs+3}], s{sT} offen offset:32''')
    srd(a, sS, 8, E * 4)
    a(f'''buffer_load_dwordx4 {vr(eS,4)}, v{U0}, s[{sS}:{sS+3}], s{sT} offen
    buffer_load_dwordx4 {vr(eS+4,4)}, v{U0}, s[{sS}:{sS+3}], s{sT} offen offset:16
    buffer_load_dwordx2 {vr(eS+8,2)}, v{U0}, s[{sS}:{sS+3}], s{sT} offen offset:32''')
    srd(a, sEs, 6, E * 8)
    for k in range(5): a(f'buffer_load_dwordx4 {vr(eA+4*k,4)}, v{U1}, s[{sEs}:{sEs+3}], s{sTbase} offen offset:{16*k}')
    a.label('kf_noedge')
    a(f'''s_add_u32 s{sPw}, s{sWS}, {WS_P}
    s_addc_u32 s{sPw+1}, s{sWS+1}, 0
    s_and_b32 s{sPw+1}, s{sPw+1}, 0xffff
    s_mov_b32 s{sPw+2}, {N*512}
    s_mov_b32 s{sPw+3}, 0x20000
    s_add_u32 s{sWS}, s{sWS}, {WS_CELLS}
    s_addc_u32 s{sWS+1}, s{sWS+1}, 0
    s_and_b32 s{sWS+1}, s{sWS+1}, 0xffff
    s_mov_b32 s{sWS+2}, {WS_END - WS_CELLS + (1 << 20 if stamp else 0)}
    s_mov_b32 s{sWS+3}, 0x20000''')
    srd(a, sD, 18, 256)
    a(f'''s_cmp_lg_u32 s2, 0
    s_cbranch_scc1 kf_noinit
    v_mov_b32 v{BF}, 0
    v_mov_b32 v{BF+1}, 0
    v_mov_b32 v{BF+2}, 0
    v_mov_b32 v{BF+3}, 0
    s_mov_b32 s{sTmp}, {WS_FLAG - WS_CELLS}
    s_add_u32 s{sTmp2}, s{sTmp}, 8192
    buffer_store_dwordx4 {vr(BF,4)}, v{U3}, {WS}, s{sTmp} offen sc1
    buffer_store_dwordx4 {vr(BF,4)}, v{U3}, {WS}, s{sTmp2} offen sc1''')
    a.label('kf_noinit')
    vm.issue('edge')
    vm.ops = vm.ops
    srd(a, sWm, 12, 516 * 512)
    a(f'buffer_load_dwordx4 {vr(TOUCH,4)}, v{U3}, s[{sWm}:{sWm+3}], s{sTmp3} offen')
    vm.issue('touch')
    if not opt.get('noctouch'):
        a(f'''s_cmp_lg_u32 s{sWV}, 3
        s_cbranch_scc1 kf_noct
        s_getpc_b64 s[{sSv}:{sSv+1}]
        kf_pc:
        s_lshr_b32 s{sTmp3}, s{sTmp3}, 3
        s_min_u32 s{sTmp3}, s{sTmp3}, k2_done-kf_pc-1024
        s_add_u32 s{sSv}, s{sSv}, s{sTmp3}
        s_addc_u32 s{sSv+1}, s{sSv+1}, 0
        global_load_dwordx4 {vr(CT,4)}, v{vL16}, s[{sSv}:{sSv+1}]''')
        a.label('kf_noct')
    a(f'''s_cmp_lg_u32 s{sWV}, 6
    s_cbranch_scc1 kf_now3
    s_mov_b32 m0, {W3L}
    s_mov_b32 s{sTmp}, {512*512}
    buffer_load_dwordx4 v{vL16}, s[{sWm}:{sWm+3}], s{sTmp} offen lds
    buffer_load_dwordx4 v{vL16}, s[{sWm}:{sWm+3}], s{sTmp} offen offset:1024 lds''')
    a.label('kf_now3')
    srd(a, sX, 4, N * 512)
    a(f'''s_lshl_b32 s{sTmp}, s{sN0}, 9
    s_lshl_b32 s{sTmp2}, s{sWV}, 10
    s_add_u32 s{sTmp3}, s{sTmp}, s{sTmp2}
    s_add_u32 m0, s{sTmp2}, {XT}
    s_lshl_b32 s{sCnt}, s{sWV}, 9
    buffer_load_dwordx4 v{U2}, s[{sX}:{sX+3}], s{sTmp3} offen lds
    s_add_u32 m0, s{sTmp2}, {XT+8192}
    s_add_u32 s{sTmp3}, s{sTmp3}, 8192
    buffer_load_dwordx4 v{U2}, s[{sX}:{sX+3}], s{sTmp3} offen lds
    s_add_u32 m0, s{sCnt}, {XT+16384}
    s_add_u32 s{sTmp}, s{sTmp}, s{sCnt}
    s_add_u32 s{sTmp}, s{sTmp}, 16384
    s_mov_b32 exec_hi, 0
    buffer_load_dwordx4 v{vW1}, s[{sX}:{sX+3}], s{sTmp} offen lds
    s_mov_b32 exec_hi, -1''')
    for _ in range(3): vm.issue('x')
    stampat('a')
    a(f'''v_mov_b32 v{UQ+4}, 0
    v_mov_b32 v{UQ+5}, 0
    v_mov_b32 v{UQ+6}, 0
    v_mov_b32 v{UQ+7}, 0
    v_add_u32 v{U1}, {CNTA}, v{vL16}
    s_cmp_lg_u32 s{sWV}, {SW}
    s_cbranch_scc1 kf_nocz
    ds_write_b128 v{U1}, {vr(UQ+4,4)}''')
    a.label('kf_nocz')
    nz = (NT * 512 + 256 - 8192) // 16; nf = (NT + 7) * 64 // 16; nx = 16
    def list_prefill(Z, F, t0, t1):
        a(f'''v_lshlrev_b32 v{t0}, 4, v0
        v_add_u32 v{t0}, {EAT}, v{t0}
        v_mov_b32 v{t1}, 0x28282828
        ds_write_b128 v{t0}, {vr(Z,4)}
        v_cmp_gt_u32 vcc, {nz}, v0
        s_and_saveexec_b64 s[{sSv}:{sSv+1}], vcc
        ds_write_b128 v{t0}, {vr(Z,4)} offset:8192
        s_mov_b64 exec, -1
        v_cmp_gt_u32 vcc, {nf}, v0
        s_mov_b32 s{sWdone}, 0
        s_nop 0
        v_cndmask_b32 v{F}, v{t1}, -1, vcc
        v_cmp_gt_u32 vcc, {nf+nx}, v0
        v_mov_b32 v{F+1}, v{F}
        v_mov_b32 v{F+2}, v{F}
        v_mov_b32 v{F+3}, v{F}
        s_and_saveexec_b64 s[{sSv}:{sSv+1}], vcc
        ds_write_b128 v{t0}, {vr(F,4)} offset:{SRC-EAT}
        s_mov_b64 exec, -1''')
    stampat('b')
    a(f'''v_lshrrev_b32 v{U0}, 5, v{vLane}
    v_and_b32 v{U1}, 3, v{vLane}
    v_lshlrev_b32 v{U0}, 1, v{U0}
    v_xor_b32 v{U0}, v{U0}, v{U1}
    v_lshrrev_b32 v{U1}, 2, v{vLane}
    v_lshlrev_b32 v{U1}, 9, v{U1}
    v_lshl_add_u32 v{U0}, v{U0}, 4, v{U1}
    s_lshl_b32 s{sTmp}, s{sWV}, 6
    v_add_u32 v{vW}, s{sTmp}, v{U0}
    v_add_u32 v{vW+1}, 7168, v{vW}
    v_add_u32 v{vW+2}, 14336, v{vW}
    v_add_u32 v{vW+3}, 21504, v{vW}
    s_mul_i32 s{sRing}, s{sWV}, 12288''')
    def stage(i):
        a(f's_add_u32 m0, s{sRing}, {(i % 3) * 4096}\ns_mov_b32 s{sTmp3}, {i * 32768}')
        for t_ in range(4):
            a(f'buffer_load_dwordx4 v{vW+t_}, s[{sWm}:{sWm+3}], s{sTmp3} offen offset:{t_*1024} lds')
            vm.issue(f'st{i}')
    a(f'''v_and_b32 v{U0}, 15, v{vLane}
    v_lshrrev_b32 v{U1}, 4, v{vLane}
    v_xor_b32 v{U2}, v{U1}, v{U0}
    v_lshlrev_b32 v{U2}, 4, v{U2}
    v_lshl_add_u32 v{U0}, v{U0}, 9, v{U2}
    v_add_u32 v{aA}, {XT}, v{U0}''')
    for s_ in range(1, 4):
        a(f'v_xor_b32 v{U2}, {s_<<6}, v{U0}\nv_add_u32 v{aA+s_}, {XT}, v{U2}')
    a(f'''v_bfe_u32 v{U0}, v{vLane}, 2, 2
    v_lshl_add_u32 v{U0}, v{U1}, 3, v{U0}
    v_and_b32 v{U2}, 1, v{U1}
    v_lshlrev_b32 v{U2}, 5, v{U2}
    v_and_b32 v{U3}, 3, v{vLane}
    v_lshl_add_u32 v{U2}, v{U3}, 3, v{U2}
    v_lshl_add_u32 v{U2}, v{U0}, 6, v{U2}
    v_add_u32 v{aB}, s{sRing}, v{U2}
    v_xor_b32 v{aB+1}, 32, v{aB}
    v_mov_b32 v{U3}, 1''')
    list_prefill(UQ + 4, BF + 4, U0, U1)
    NPRE = int(opt.get('npre', 1))
    NPRE2 = int(opt.get('npre2', NPRE))
    for i in range(NPRE): stage(i)
    stampat('y')
    dpp = ['row_shr:1 row_mask:0xf bank_mask:0xf', 'row_shr:2 row_mask:0xf bank_mask:0xf', 'row_shr:4 row_mask:0xf bank_mask:0xf',
           'row_shr:8 row_mask:0xf bank_mask:0xf', 'row_bcast:15 row_mask:0xa bank_mask:0xf', 'row_bcast:31 row_mask:0xc bank_mask:0xf']
    a(f'''s_cmp_lg_u32 s{sWV}, {SW}
    s_cbranch_scc1 kf_nohist
    s_movk_i32 s{sTmp}, 625
    s_mov_b32 exec_hi, 0x7fffffff''')
    a(f's_waitcnt vmcnt({vm.count_after("edge") + 8})')
    stampat('z')
    for i in range(10):
        a(f'''v_mul_u32_u24 v{eB+i}, 429497, v{eD+i}
        v_lshrrev_b32 v{eB+i}, 24, v{eB+i}
        v_mad_u32_u24 v{U0}, v{eB+i}, s{sTmp}, 15
        v_lshlrev_b32 v{eB+i}, 2, v{eB+i}
        v_add_u32 v{eB+i}, {CNTA}, v{eB+i}''')
        if i == 5: a('s_mov_b32 exec_hi, 0x3fffffff')
        a(f'''ds_add_rtn_u32 v{eR+i}, v{eB+i}, v{U3}
        v_lshrrev_b32 v{U0}, 4, v{U0}
        v_sub_u32 v{eD+i}, v{eD+i}, v{U0}''')
    a(f'''s_mov_b32 exec_hi, -1
    v_add_u32 v{U0}, {CNTA}, v{vL16}
    ds_read_b128 {vr(UQ,4)}, v{U0}''')
    a(f's_waitcnt vmcnt({vm.count_after("edge") + 5})')
    for i in range(10): a(f'v_lshl_or_b32 v{eS+i}, v{eD+i}, 14, v{eS+i}')
    a(f'''s_waitcnt lgkmcnt(0)
    v_add_u32 v{UQ+5}, v{UQ}, v{UQ+1}
    v_add_u32 v{UQ+6}, v{UQ+5}, v{UQ+2}
    v_add_u32 v{U1}, v{UQ+6}, v{UQ+3}
    v_mov_b32 v{U2}, v{U1}
    s_nop 1''')
    for k, d in enumerate(dpp):
        a(f'v_add_u32_dpp v{U2}, v{U2}, v{U2} {d}' + (' bound_ctrl:0' if k < 4 else '') + '\ns_nop 1')
    a(f'''v_sub_u32 v{UQ+4}, v{U2}, v{U1}
    v_add_u32 v{UQ+7}, v{UQ+6}, v{UQ+4}
    v_add_u32 v{UQ+6}, v{UQ+5}, v{UQ+4}
    v_add_u32 v{UQ+5}, v{UQ}, v{UQ+4}
    ds_write_b128 v{U0}, {vr(UQ+4,4)} offset:1024''')
    for i in range(10): a(f'ds_read_b32 v{eD+i}, v{eB+i} offset:1024')
    a(f'''v_lshl_or_b32 v{UQ+4}, v{UQ}, 16, v{UQ+4}
    v_lshl_or_b32 v{UQ+5}, v{UQ+1}, 16, v{UQ+5}
    v_lshl_or_b32 v{UQ+6}, v{UQ+2}, 16, v{UQ+6}
    v_lshl_or_b32 v{UQ+7}, v{UQ+3}, 16, v{UQ+7}
    v_subrev_u32 v{U0}, {CNTA-TAB}, v{U0}
    s_mov_b32 s{sTmp}, {RIMG}
    s_mov_b32 exec_hi, 0x7fffffff''')
    a(vm.wait('edge'))
    for i in range(10):
        if i == 5: a('s_mov_b32 exec_hi, 0x3fffffff')
        a(f'''s_waitcnt lgkmcnt({min(9, 9 - i + 2 * i)})
        v_add_u32 v{eD+i}, v{eD+i}, v{eR+i}
        v_lshl_add_u32 v{eD+i}, v{eD+i}, 4, s{sTmp}
        ds_write_b64 v{eD+i}, {vr(eA+2*i,2)}
        ds_write_b32 v{eD+i}, v{eS+i} offset:8''')
    a(f'''s_mov_b32 exec_hi, -1
    ds_write_b128 v{U0}, {vr(UQ+4,4)}
    s_setprio 0''')
    a.label('kf_nohist')
    for i in range(NPRE, NPRE2): stage(i)
    a(vm.wait('x') + ' lgkmcnt(0)')
    a('s_barrier')
    stampat('c')
    axr = [f'ds_read_b128 {vr(AX+(s_*3+rt)*4,4)}, v{aA+(s_&3)} offset:{rt*8192+(s_>>2)*256}' for s_ in range(8) for rt in range(3)]
    a(f'''s_or_b32 s{sTmp}, s2, s{sWV}
    s_cbranch_scc1 kf_noset
    v_mov_b32 v{U0}, 1
    v_mov_b32 v{U1}, 0
    s_mov_b64 exec, 1
    buffer_store_dword v{U0}, v{U1}, s[{sD}:{sD+3}], 0 offen sc1
    s_mov_b64 exec, -1''')
    a.label('kf_noset')
    for i in range(NPRE2, 3): stage(i)
    stampat('A')
    a(f'''v_lshlrev_b32 v{U3}, 4, v0
    v_add_u32 v{U0}, {TAB}, v{U3}
    ds_read_b128 {vr(UQ,4)}, v{U0}
    ds_read_b128 {vr(UQ+4,4)}, v{U0} offset:8192
    s_mul_i32 s{sT}, s2, {CST}
    s_add_u32 s{sTbase}, s{sT}, 8192
    s_cmp_gt_u32 s{sWV}, 2
    s_waitcnt lgkmcnt(0)
    s_cbranch_scc1 kf_nost2
    buffer_store_dwordx4 {vr(UQ+4,4)}, v{U3}, {WS}, s{sTbase} offen sc1''')
    a.label('kf_nost2')
    a(f'buffer_store_dwordx4 {vr(UQ,4)}, v{U3}, {WS}, s{sT} offen sc1')
    vm.issue('cells')
    stampat('E')
    a(f'''s_cmp_lg_u32 s{sWV}, 0
    s_cbranch_scc1 kf_nodb
    v_mov_b32 v{vDB}, 0
    buffer_load_dword v{vDB}, v{vDB}, s[{sD}:{sD+3}], 0 offen sc1''')
    a.label('kf_nodb')
    a(f'''s_cmp_lg_u32 s{sWV}, 7
    s_cbranch_scc1 kf_norl''')
    srd(a, sU, 14, 512 * 512)
    a(f'''s_cmp_ge_u32 s2, 128
    s_cselect_b32 s{sT}, 1, 2
    s_cselect_b32 s{sTbase}, 16, 1
    s_cselect_b32 s{sTmp2}, {256*512}, 0
    s_lshl_b32 s{sTmp}, s{sT}, 11
    s_lshl_b32 s{sT}, s{sT}, 9
    s_lshl_b32 s{sTbase}, s{sTbase}, 9
    v_lshrrev_b32 v{U0}, 4, v{vLane}
    v_mul_u32_u24 v{U0}, s{sTmp}, v{U0}
    v_and_b32 v{U1}, 15, v{vLane}
    v_lshl_add_u32 v{U0}, v{U1}, 2, v{U0}
    s_bfe_u32 s{sTmp}, s2, 0x30001
    s_lshl_b32 s{sTmp}, s{sTmp}, 14
    s_add_u32 s{sTmp2}, s{sTmp2}, s{sTmp}
    s_bfe_u32 s{sTmp}, s2, 0x30004
    s_lshl_b32 s{sTmp}, s{sTmp}, 6
    s_add_u32 s{sTmp2}, s{sTmp2}, s{sTmp}
    s_and_b32 s{sTmp}, s2, 1
    s_lshl_b32 s{sTmp}, s{sTmp}, 1
    s_add_u32 s{sTmp2}, s{sTmp2}, s{sTmp}''')
    for e in range(0, 8, 2):
        a(f'''s_add_u32 s{sTmp}, s{sTmp2}, s{sTbase}
        buffer_load_ushort v{RL+e}, v{U0}, s[{sU}:{sU+3}], s{sTmp2} offen
        buffer_load_ushort v{RL+e+1}, v{U0}, s[{sU}:{sU+3}], s{sTmp} offen
        s_add_u32 s{sTmp2}, s{sTmp2}, s{sT}''')
    a.label('kf_norl')
    stampat('B')
    def breads(i, nowait=False):
        if not nowait: a(vm.wait(f'st{i}'))
        for ks in range(2):
            for c in range(2):
                for t_ in range(2):
                    a(f'ds_read_b64_tr_b16 {vr(BF+(i&1)*16+ks*8+c*4+t_*2,2)}, v{aB+c} offset:{(i%3)*4096+(32*ks+4*t_)*64}')
    def compute(i, nowait=False):
        a('s_waitcnt lgkmcnt(0)')
        if i + 3 < 8: stage(i + 3)
        for ks in range(2):
            s_ = (2 * i + ks) & 7
            for rt in range(3):
                for c in range(2):
                    d = PD + (rt * 2 + c) * 4
                    cin = '0' if s_ == 0 else vr(d, 4)
                    a(f'v_mfma_f32_16x16x32_bf16 {vr(d,4)}, {vr(AX+(s_*3+rt)*4,4)}, {vr(BF+(i&1)*16+ks*8+c*4,4)}, {cin}')
                    if ks == 0 and rt == 0 and c == 1 and i + 1 < 8 and i != 3: breads(i + 1, nowait)
    def poll(off, lab, PR):
        a(f'''s_and_b32 s{sTmp}, s2, 7
        s_lshl_b32 s{sTmp}, s{sTmp}, 10
        s_add_u32 s{sTmp}, s{sTmp}, {off - WS_CELLS}
        s_mov_b32 s{sPoll}, {POLL_LIMIT}''')
        a.label(lab)
        a(f'''buffer_load_dwordx4 {vr(PR,4)}, v{vL16}, {WS}, s{sTmp} offen sc1
        s_waitcnt vmcnt(0)
        v_and_b32 v{PR}, v{PR}, v{PR+1}
        v_and_b32 v{PR+2}, v{PR+2}, v{PR+3}
        v_and_b32 v{PR}, v{PR}, v{PR+2}
        v_cmp_eq_u32 vcc, 1, v{PR}
        s_cmp_eq_u64 vcc, -1
        s_cbranch_scc1 {lab}_ok
        s_sleep 1
        s_sub_u32 s{sPoll}, s{sPoll}, 1
        s_cbranch_scc0 {lab}''')
        a.label(lab + '_ok')
    def tile_out():
        a(f'''s_mov_b32 s{sSv}, {hex(f2u(-LOG2E))}
        s_mov_b32 s{sSv+1}, {hex(f2u(-LOG2E))}
        v_lshrrev_b32 v{U0}, 4, v{vLane}
        v_mul_u32_u24 v{U0}, {4*QSTR}, v{U0}
        v_and_b32 v{U1}, 15, v{vLane}
        v_lshl_add_u32 v{U0}, v{U1}, 2, v{U0}
        s_lshl_b32 s{sTmp2}, s{sWV}, 6
        s_add_u32 s{sTmp2}, s{sTmp2}, {QT}
        v_add_u32 v{U0}, s{sTmp2}, v{U0}''')
        for rt in range(3):
            if rt == 2: a('s_mov_b32 exec_hi, 0')
            for h in range(4):
                d = PD + rt * 8 + 2 * h
                a(f'v_pk_mul_f32 {pr(d)}, {pr(d)}, s[{sSv}:{sSv+1}]')
            for rr in range(4):
                d0 = PD + rt * 8 + rr
                a(f'v_cvt_pk_bf16_f32 v{d0}, v{d0}, v{d0+4}\nds_write_b32 v{U0}, v{d0} offset:{(16*rt+rr)*QSTR}')
        a('s_mov_b32 exec_hi, -1')
    def signal(off, lab):
        a(f'''s_cmp_lg_u32 s{sWV}, 0
        s_cbranch_scc1 {lab}
        v_lshlrev_b32 v{TOUCH}, 10, v{vLane}
        v_mov_b32 v{TOUCH+1}, 1
        s_lshl_b32 s{sTmp}, s2, 2
        s_add_u32 s{sTmp}, s{sTmp}, {off - WS_CELLS}
        s_mov_b64 exec, 0xff
        buffer_store_dword v{TOUCH+1}, v{TOUCH}, {WS}, s{sTmp} offen sc1
        s_mov_b64 exec, -1''')
        a.label(lab)
    a(f'''v_bfe_u32 v{U0}, v{vLane}, 1, 4
    v_and_b32 v{U1}, 1, v{vLane}
    v_lshlrev_b32 v{U0}, 1, v{U0}
    v_lshl_add_u32 v{U0}, v{U1}, 5, v{U0}
    s_lshl_b32 s{sTmp}, s{sCQ}, 7
    s_add_u32 s{sTmp}, s{sTmp}, {W3L}
    v_add_u32 v{U0}, s{sTmp}, v{U0}''')
    for x in axr[:12]: a(x)
    a('s_waitcnt lgkmcnt(6)')
    for ct in range(2):
        for k in range(4): a(f'ds_read_u16 v{W3+4*ct+k}, v{U0} offset:{k*512+ct*64}')
    a('s_waitcnt lgkmcnt(2)')
    for x in axr[12:]: a(x)
    a('s_waitcnt lgkmcnt(6)')
    stampat('C')
    breads(0)
    stampat('p')
    compute(0)
    stampat('d')
    compute(1); stampat('r')
    a(vm.wait('cells'))
    a(f'''s_cmp_lg_u32 s{sWV}, 0
    s_cbranch_scc1 kf_initok
    s_mov_b32 s{sPoll}, {POLL_LIMIT}''')
    a.label('kf_initpoll')
    a(f'''v_readfirstlane_b32 s{sTmp}, v{vDB}
    s_cmp_lg_u32 s{sTmp}, 0
    s_cbranch_scc1 kf_initok
    v_mov_b32 v{vDB}, 0
    s_sleep 2
    buffer_load_dword v{vDB}, v{vDB}, s[{sD}:{sD+3}], 0 offen sc1
    s_waitcnt vmcnt(0)
    s_sub_u32 s{sPoll}, s{sPoll}, 1
    s_cbranch_scc0 kf_initpoll''')
    a.label('kf_initok')
    a('s_barrier')
    signal(WS_FLAG, 'kf_sigA')
    stampat('k')
    compute(2); stampat('s')
    compute(3); stampat('t')
    tile_out()
    a(f'''v_lshrrev_b32 v{U0}, 5, v{vLane}
    v_and_b32 v{U1}, 31, v{vLane}
    v_lshlrev_b32 v{U1}, 4, v{U1}
    v_lshl_add_u32 v{U2}, v{U0}, 9, v{U1}
    v_mul_u32_u24 v{U0}, {QSTR}, v{U0}
    v_add_u32 v{U0}, v{U0}, v{U1}
    s_mul_i32 s{sTmp}, s{sWV}, {2*QSTR}
    s_add_u32 s{sTmp}, s{sTmp}, {QT}
    v_add_u32 v{U0}, s{sTmp}, v{U0}
    s_mul_i32 s{sTmp}, s{sWV}, {QSTR}
    s_add_u32 s{sTmp}, s{sTmp}, {QT + 32*QSTR}
    v_add_u32 v{U3}, s{sTmp}, v{U1}''')
    a('s_waitcnt lgkmcnt(0)\ns_barrier')
    stampat('l')
    a(f'''s_cmp_lg_u32 s{sWV}, 7
    s_cbranch_scc1 kf_norl2''')
    for p in range(4): a(f'v_lshl_or_b32 v{BF+16+p}, v{RL+2*p+1}, 16, v{RL+2*p}')
    a(f'''s_lshl_b32 s{sTmp}, s2, 10
    s_add_u32 s{sTmp}, s{sTmp}, {WS_WF - WS_CELLS}
    buffer_store_dwordx4 {vr(BF+16,4)}, v{vL16}, {WS}, s{sTmp} offen sc1
    s_nop 1''')
    a.label('kf_norl2')
    a(f'''ds_read_b128 {vr(UQ,4)}, v{U0}
    ds_read_b128 {vr(UQ+4,4)}, v{U0} offset:{16*QSTR}
    ds_read_b128 {vr(TOUCH,4)}, v{U3}
    s_lshl_b32 s{sTmp}, s{sN0}, 9
    s_lshl_b32 s{sTmp2}, s{sWV}, 10
    s_add_u32 s{sTmp2}, s{sTmp2}, s{sTmp}
    s_lshl_b32 s{sTmp3}, s{sWV}, 9
    s_add_u32 s{sTmp}, s{sTmp}, s{sTmp3}
    s_add_u32 s{sTmp}, s{sTmp}, 16384
    s_waitcnt lgkmcnt(2)
    buffer_store_dwordx4 {vr(UQ,4)}, v{U2}, s[{sPw}:{sPw+3}], s{sTmp2} offen sc1
    s_add_u32 s{sTmp2}, s{sTmp2}, 8192
    s_waitcnt lgkmcnt(1)
    buffer_store_dwordx4 {vr(UQ+4,4)}, v{U2}, s[{sPw}:{sPw+3}], s{sTmp2} offen sc1
    s_mov_b32 exec_hi, 0
    s_waitcnt lgkmcnt(0)
    buffer_store_dwordx4 {vr(TOUCH,4)}, v{U1}, s[{sPw}:{sPw+3}], s{sTmp} offen sc1
    s_mov_b32 exec_hi, -1''')
    for _ in range(3): vm.issue('pst')
    def rec_loads(tab, t0, t1, lab):
        a(f'''v_and_b32 v{t1}, 1, v0
        v_and_b32 v{t0}, 0xffff, v{tab}
        v_add_u32 v{t0}, v{t0}, v{t1}
        v_lshl_add_u32 v{t0}, v{t0}, 4, v{vNOVF}
        v_lshrrev_b32 v{tab}, 16, v{tab}
        v_sub_u32 v{t1}, v{tab}, v{t1}
        v_add_u32 v{t1}, 1, v{t1}
        v_lshrrev_b32 v{t1}, 1, v{t1}''')
        for i in range(8): a(f'v_cmp_lt_u32 s[{sMask+2*i}:{sMask+2*i+1}], {i}, v{t1}')
        a(f'v_cmp_lt_u32 s[{sOv}:{sOv+1}], 8, v{t1}')
        for i in range(8):
            a(f'''s_mov_b64 exec, s[{sMask+2*i}:{sMask+2*i+1}]
            s_cbranch_execz {lab}
            buffer_load_dwordx3 {vr(REC+4*i,3)}, v{t0}, {WS}, 0 offen offset:{1024+32*i}{LD}''')
        a.label(lab)
        a('s_mov_b64 exec, -1')
    srd(a, sO, 16, N * 512)
    breads(4)
    compute(4); stampat('u')
    compute(5); stampat('v')
    a(f's_cmp_lg_u32 s{sWV}, 0\ns_cbranch_scc1 kf_pollA_ok')
    poll(WS_FLAG, 'kf_pollA', UQ)
    a(vm.wait('st7') + '\ns_barrier')
    a(f'''v_lshrrev_b32 v{vDB}, 1, v0
    v_mul_u32_u24 v{vNOVF}, {CST}, v{vDB}
    s_lshl_b32 s{sTmp}, s0, 2
    buffer_load_dword v{vDB}, v{vNOVF}, {WS}, s{sTmp} offen{LD}''')
    signal(WS_FLAG + 8192, 'kf_sigB')
    stampat('o')
    compute(6, nowait=True); compute(7); stampat('x')
    a('s_waitcnt vmcnt(0)')
    rec_loads(vDB, TOUCH, TOUCH + 1, 'kf_recend')
    stampat('w')
    tile_out()
    a(f's_mov_b32 s{sTmp}, {hex(f2u(-LOG2E))}')
    for k in range(8): a(f'v_lshlrev_b32 v{W3+k}, 16, v{W3+k}\nv_mul_f32 v{W3+k}, s{sTmp}, v{W3+k}')
    a(f'''v_cvt_pk_bf16_f32 v{B2A}, v{W3}, v{W3+1}
    v_cvt_pk_bf16_f32 v{B2A+1}, v{W3+2}, v{W3+3}
    v_cvt_pk_bf16_f32 v{B2B}, v{W3+4}, v{W3+5}
    v_cvt_pk_bf16_f32 v{B2B+1}, v{W3+6}, v{W3+7}''')
    stampat('n')
    a(f'''s_sub_u32 s{sP}, s{sPw}, 3072
    s_subb_u32 s{sP+1}, s{sPw+1}, 0
    s_or_b32 s{sP+1}, s{sP+1}, {512 << 16}
    s_mov_b32 s{sP+2}, {0 if opt.get('nogather') else N}
    s_mov_b32 s{sP+3}, 0x20000
    v_mov_b32 v{TQ}, 0
    v_mov_b32 v{TQ+1}, 0
    v_mov_b32 v{TQ+2}, 0
    v_mov_b32 v{TQ+3}, 0
    s_mov_b32 s{sHeavy}, 0
    s_mov_b32 s{sB}, 0
    s_cmp_lg_u32 s{sWV}, 7
    s_cbranch_scc1 k2_nooh
    v_add_u32 v{T0}, {QT + 40*QSTR}, v{vL16}
    ds_write_b128 v{T0}, {vr(TQ,4)}
    ds_write_b128 v{T0}, {vr(TQ,4)} offset:1024
    ds_write_b128 v{T0}, {vr(TQ,4)} offset:2048
    ds_write_b128 v{T0}, {vr(TQ,4)} offset:3072
    v_mul_u32_u24 v{T0}, {OSTR+2}, v{vLane}
    v_mov_b32 v{T2}, 0x3f80
    v_add_u32 v{T0}, {OH}, v{T0}
    s_mov_b32 exec_hi, 0xff
    ds_write_b16 v{T0}, v{T2}
    s_mov_b32 exec_hi, -1''')
    a.label('k2_nooh')
    for i in range(32): a(f'v_mov_b32 v{ACCA+i}, 0')
    a(f'''s_cmp_lg_u32 s{sWV}, 0
    s_cselect_b32 s{sBok}, 1, 0
    s_cbranch_scc1 k2_first
    s_and_b32 s{sTmp}, s2, 7
    s_lshl_b32 s{sTmp}, s{sTmp}, 10
    s_add_u32 s{sTmp}, s{sTmp}, {WS_FLAG + 8192 - WS_CELLS}
    buffer_load_dwordx4 {vr(TQ+4,4)}, v{vL16}, {WS}, s{sTmp} offen sc1
    s_branch k2_first''')
    vm.ops = []
    a.label('k2_batch')
    for i in range(4): a(f'v_mov_b32 v{TQ+i}, 0')
    list_prefill(TQ, DL4, T0, T1)
    a('s_waitcnt lgkmcnt(0)\ns_barrier')
    a.label('k2_first')
    stampat(1)
    a(f'''v_lshrrev_b32 v{T2}, 5, v{vLane}
    v_and_b32 v{T3}, 31, v{vLane}
    v_lshlrev_b32 v{T0}, 3, v{T2}
    v_sub_u32 v{T0}, v{T3}, v{T0}
    v_mov_b32 v{T1}, 0x3f80
    v_and_b32 v{aQ}, 1, v{T0}
    v_lshlrev_b32 v{aQ}, 4, v{aQ}
    v_lshlrev_b32 v{T1}, v{aQ}, v{T1}
    v_lshrrev_b32 v{T0}, 1, v{T0}''')
    for k, reg in enumerate([I0, I0+1, I0+2, I0+3, I1, I1+1, I1+2, I1+3]):
        c = k if k < 4 else k + 4
        m = 'vcc' if k % 2 == 0 else f's[{sSv}:{sSv+1}]'
        a(f'v_cmp_eq_u32 {m}, {c}, v{T0}')
        if k:
            pk, preg = k - 1, [I0, I0+1, I0+2, I0+3, I1, I1+1, I1+2, I1+3][k-1]
            a('s_nop 0')
            a(f'v_cndmask_b32 v{preg}, 0, v{T1}, ' + ('vcc' if pk % 2 == 0 else f's[{sSv}:{sSv+1}]'))
    a(f'''v_bfe_u32 v{T0}, v{T3}, 2, 1
    v_mov_b32 v{A2}, 0
    v_cndmask_b32 v{I1+3}, 0, v{T1}, s[{sSv}:{sSv+1}]
    v_cmp_eq_u32 s[{sHM}:{sHM+1}], v{T0}, v{T2}
    v_mov_b32 v{A2+1}, 0
    v_mov_b32 v{A2+2}, 0
    v_mov_b32 v{A2+3}, 0
    s_mul_i32 s{sRing}, s{sWV}, 12288
    v_bfe_u32 v{T0}, v{T3}, 1, 3
    v_xor_b32 v{T0}, v{T0}, v{T2}
    v_lshlrev_b32 v{T0}, 4, v{T0}
    v_lshl_add_u32 v{T0}, v{T3}, 7, v{T0}
    v_add_u32 v{aP}, s{sRing}, v{T0}
    v_xor_b32 v{aP+1}, 32, v{aP}
    v_xor_b32 v{aP+2}, 64, v{aP}
    v_xor_b32 v{aP+3}, 96, v{aP}
    v_and_b32 v{T0}, 7, v{vLane}
    v_lshrrev_b32 v{T1}, 4, v{vLane}
    v_xor_b32 v{T0}, v{T0}, v{T1}
    s_lshl_b32 s{sTmp}, s{sCQ}, 7
    v_lshl_add_u32 v{T0}, v{T0}, 4, s{sTmp}
    v_xor_b32 v{IDX+7}, 64, v{T0}
    v_add_u32 v{IDX+1}, 3072, v{T0}
    v_add_u32 v{IDX+3}, 2048, v{IDX+7}
    v_add_u32 v{IDX+5}, 1024, v{T0}''')
    for d in range(4):
        a(f'v_mov_b32 v{IDX1+2*d+1}, v{IDX+2*d+1}\nv_mov_b32 v{IDX2+2*d+1}, v{IDX+2*d+1}')
    a(f'''v_bfe_u32 v{T0}, v{vLane}, 4, 1
    v_and_b32 v{T1}, 3, v{vLane}
    v_lshlrev_b32 v{T1}, 3, v{T1}
    v_lshl_add_u32 v{T0}, v{T0}, 5, v{T1}
    s_add_u32 s{sTmp}, s{sTmp}, {QT}
    v_add_u32 v{cQ}, s{sTmp}, v{T0}
    s_lshl_b32 s{sTmp}, s{sG}, 4
    s_add_u32 s{sTmp}, s{sTmp}, {OH}
    v_add_u32 v{cS}, s{sTmp}, v{T0}
    s_mov_b32 s{sQs}, {QSTR}
    s_mov_b32 s{sOs}, {OSTR}
    s_mov_b32 s{sC}, {hex(C30)}
    s_mov_b32 s{sC+1}, {hex(C30)}''')
    a(f'''v_bfe_u32 v{T0}, v{vLane}, 5, 1
    v_bfe_u32 v{T1}, v{vLane}, 3, 1
    v_bfe_u32 v{T2}, v{vLane}, 4, 1
    v_lshlrev_b32 v{aSRC}, 4, v{T0}
    v_lshl_add_u32 v{aSRC}, v{T1}, 3, v{aSRC}
    v_lshl_add_u32 v{aSRC}, v{T2}, 1, v{aSRC}
    v_bfe_u32 v{T3}, v{vLane}, 2, 1
    v_lshl_add_u32 v{aXL}, v{T1}, 1, v{T0}
    v_lshl_add_u32 v{aXL}, v{aXL}, 1, v{T3}
    v_lshlrev_b32 v{aEAT}, 1, v{T2}
    v_add_u32 v{aEAT}, v{aEAT}, v{T3}
    v_and_b32 v{T0}, 1, v{vLane}
    v_lshl_add_u32 v{aEAT}, v{aEAT}, 1, v{T0}
    v_lshl_add_u32 v{aEAT}, v{aEAT}, 1, v{T1}
    v_bfe_u32 v{T0}, v{vLane}, 1, 1
    v_lshl_add_u32 v{aEAT}, v{aEAT}, 1, v{T0}
    v_lshlrev_b32 v{aEAT}, 4, v{aEAT}''')
    a(f'v_mov_b32 v{T3}, 1')
    stampat('e')
    a('s_waitcnt vmcnt(0)')
    stampat(2)
    a(f'''s_cmp_lg_u32 s{sBok}, 0
    s_cbranch_scc1 kf_nopeek
    v_and_b32 v{TQ+4}, v{TQ+4}, v{TQ+5}
    v_and_b32 v{TQ+6}, v{TQ+6}, v{TQ+7}
    v_and_b32 v{TQ+4}, v{TQ+4}, v{TQ+6}
    v_cmp_eq_u32 vcc, 1, v{TQ+4}
    s_cmp_eq_u64 vcc, -1
    s_cbranch_scc0 kf_nopeek
    {INV}
    s_mov_b32 s{sBok}, 1''')
    a.label('kf_nopeek')
    for i in range(8):
        a(f'''s_mov_b64 exec, s[{sMask+2*i}:{sMask+2*i+1}]
        s_cbranch_execz kf_histend
        v_lshrrev_b32 v{DL4+i}, 12, v{REC+4*i+2}
        v_and_b32 v{DL4+i}, 0xfc, v{DL4+i}
        v_add_u32 v{T1}, {CNT}, v{DL4+i}
        ds_add_rtn_u32 v{RK+i}, v{T1}, v{T3}''')
    a(f'''s_mov_b64 exec, s[{sOv}:{sOv+1}]
    v_mov_b32 v{T1}, {CNT + 252}
    ds_add_u32 v{T1}, v{T3}''')
    a.label('kf_histend')
    a(f'''s_mov_b64 exec, -1
    v_lshlrev_b32 v{T0}, 2, v{vLane}
    v_add_u32 v{T0}, {CNT}, v{T0}
    s_waitcnt lgkmcnt(0)''')
    stampat('f')
    a('s_barrier')
    stampat('g')
    a(f'ds_read_b32 v{T1}, v{T0}\nv_cmp_gt_u32 vcc, 40, v{vLane}')
    dpp = ['row_shr:1 row_mask:0xf bank_mask:0xf', 'row_shr:2 row_mask:0xf bank_mask:0xf', 'row_shr:4 row_mask:0xf bank_mask:0xf',
           'row_shr:8 row_mask:0xf bank_mask:0xf', 'row_bcast:15 row_mask:0xa bank_mask:0xf', 'row_bcast:31 row_mask:0xc bank_mask:0xf']
    a(f'''s_waitcnt lgkmcnt(0)
    v_readlane_b32 s{sT1}, v{T1}, 63
    v_add_u32 v{T1}, 3, v{T1}
    v_lshrrev_b32 v{T1}, 2, v{T1}
    v_cndmask_b32 v{T1}, 0, v{T1}, vcc
    v_mov_b32 v{T2}, v{T1}
    s_lshl_b32 s{sTmp3}, s{sT1}, 8
    s_nop 0''')
    for k, d in enumerate(dpp):
        a(f'v_add_u32_dpp v{T2}, v{T2}, v{T2} {d}' + (' bound_ctrl:0' if k < 4 else ''))
        a('s_nop 1' if k < 5 else 's_nop 0')
    a(f'''v_readlane_b32 s{sQt}, v{T2}, 63
    v_sub_u32 v{T1}, v{T2}, v{T1}
    v_add_u32 v{T2}, 7, v{T1}
    v_lshrrev_b32 v{T2}, 3, v{T2}
    s_add_u32 s{sTmp}, s{sQt}, 7
    v_sub_u32 v{T0}, s{sTmp}, v{T1}
    v_lshrrev_b32 v{T0}, 3, v{T0}
    v_add_u32 v{T2}, v{T2}, v{T0}
    v_lshlrev_b32 v{T0}, 1, v{T1}
    v_sad_u32 v{T0}, v{T0}, s{sQt}, 0
    v_lshl_add_u32 v{T2}, v{T2}, 5, v{T0}
    v_subrev_u32 v{T0}, 8, v{vLane}
    v_lshl_add_u32 v{T2}, v{T2}, 6, v{vLane}
    v_cmp_gt_u32 vcc, 25, v{T0}
    s_nop 1
    v_cndmask_b32 v{T2}, -1, v{T2}, vcc
    s_nop 1''')
    for k, d in enumerate(dpp):
        a(f'v_min_u32_dpp v{T2}, v{T2}, v{T2} {d}')
        a('s_nop 1' if k < 5 else 's_nop 0')
    a(f'''v_readlane_b32 s{sSplit}, v{T2}, 63
    s_and_b32 s{sSplit}, s{sSplit}, 63
    s_cmp_lg_u32 s{sHeavy}, 0
    s_cselect_b32 s{sSplit}, 20, s{sSplit}
    s_nop 0
    v_readlane_b32 s{sTmp}, v{T1}, s{sSplit}
    v_cmp_le_u32 vcc, s{sSplit}, v{vLane}
    s_add_u32 s{sT0}, s{sTmp}, 7
    s_lshr_b32 s{sT0}, s{sT0}, 3
    s_sub_u32 s{sT1}, s{sQt}, s{sTmp}
    s_add_u32 s{sT1}, s{sT1}, 7
    s_lshr_b32 s{sT1}, s{sT1}, 3
    s_add_u32 s{sTmp2}, s{sT0}, s{sT1}
    s_add_u32 s{sTmp2}, s{sTmp2}, s{sTmp3}
    s_cmp_le_u32 s{sTmp2}, {NT}
    s_cbranch_scc1 k2_fits
    s_mov_b32 s{sHeavy}, 1
    s_branch k2_hentry''')
    a.label('k2_fits')
    stampat('h')
    a(f'''s_lshl_b32 s{sTmp2}, s{sT0}, 3
    s_sub_u32 s{sTmp2}, s{sTmp2}, s{sTmp}
    v_mov_b32 v{T2}, s{sTmp2}
    v_cndmask_b32 v{T2}, 0, v{T2}, vcc
    v_add_lshl_u32 v{T1}, v{T1}, v{T2}, 2''')
    for i in range(8):
        if i in (2, 4, 6): a(f's_cmp_eq_u64 s[{sMask+2*i}:{sMask+2*i+1}], 0\ns_cbranch_scc1 kf_bpend')
        a(f'ds_bpermute_b32 v{TQ+i}, v{DL4+i}, v{T1}')
    a.label('kf_bpend')
    a(f'''s_cmp_eq_u32 s{sG}, 0
    s_cselect_b32 s{sT}, s{sT0}, s{sT1}
    s_cselect_b32 s{sTbase}, 0, s{sT0}
    s_cselect_b32 s{sTmp2}, 0, 192
    s_lshl_b32 s{sT0}, s{sT0}, 5
    s_lshl_b32 s{sTmp}, s{sTbase}, 6
    s_add_u32 s{sTmp}, s{sTmp}, s{sTmp2}
    s_add_u32 s{sTmp}, s{sTmp}, {SRC}
    v_add_u32 v{aSRC}, s{sTmp}, v{aSRC}
    s_lshl_b32 s{sTmp}, s{sTbase}, 9
    s_add_u32 s{sTmp}, s{sTmp}, {EAT}
    v_add_u32 v{aEAT}, s{sTmp}, v{aEAT}
    s_lshl_b32 s{sTmp}, s{sTbase}, 3
    s_add_u32 s{sTmp}, s{sTmp}, {XL}
    v_add_u32 v{aXL}, s{sTmp}, v{aXL}
    v_mov_b32 v{vX}, {SRC}
    v_mov_b32 v{aQ}, {SRC+192}''')
    a(f'v_mov_b32 v{S}, 0x3f80\ns_waitcnt lgkmcnt(0)')
    for i in range(8):
        er = REC + 4 * i
        a(f'''s_mov_b64 exec, s[{sMask+2*i}:{sMask+2*i+1}]
        s_cbranch_execz kf_scend
        v_add_u32 v{RK+i}, v{RK+i}, v{TQ+i}
        v_and_b32 v{T0}, 0x3fff, v{er+2}
        v_cmp_gt_u32 vcc, s{sT0}, v{RK+i}
        v_lshrrev_b32 v{T2}, 2, v{RK+i}
        v_lshrrev_b32 v{T3}, 2, v{DL4+i}
        v_cndmask_b32 v{T1}, v{aQ}, v{vX}, vcc
        v_add_u32 v{T2}, {XL}, v{T2}
        v_lshl_add_u32 v{T1}, v{RK+i}, 1, v{T1}
        v_and_b32 v{er+3}, 16, v{RK+i}
        v_lshlrev_b32 v{er+2}, 2, v{RK+i}
        v_cmp_eq_u32 vcc, 0, v{er+3}
        v_and_b32 v{er+2}, 16, v{er+2}
        v_lshlrev_b32 v{er+3}, v{er+2}, v{S}
        v_lshlrev_b32 v{RK+i}, 4, v{RK+i}
        ds_write_b16 v{T1}, v{T0}
        v_cndmask_b32 v{er+2}, 0, v{er+3}, vcc
        v_cndmask_b32 v{er+3}, v{er+3}, 0, vcc
        v_add_u32 v{RK+i}, {EAT}, v{RK+i}
        ds_write_b8 v{T2}, v{T3}
        ds_write_b128 v{RK+i}, {vr(er,4)}''')
    a.label('kf_scend')
    a(f's_mov_b64 exec, -1\ns_cmp_lg_u32 s{sBok}, 0\ns_cbranch_scc1 kf_bdone')
    poll(WS_FLAG + 8192, 'kf_pollB', TQ + 4)
    a(f'{INV}\ns_mov_b32 s{sBok}, 1\ns_waitcnt vmcnt(0)')
    a.label('kf_bdone')
    for x in (MA, MA + 1, MB, MB + 1, S, S + 1, NF, NF + 1, NF + 2, NF + 3): a(f'v_mov_b32 v{x}, 0')
    for x in range(4): a(f'v_mov_b32 v{DF+x}, 1.0')
    for d in range(4): a(f'v_mov_b32 v{IDX3+2*d+1}, v{IDX+2*d+1}')
    a('s_waitcnt lgkmcnt(0)\ns_barrier')
    vm.ops = []
    stampat(3)
    DOFF = [0, 4, 32, 36]
    def idx_reads(base, toff):
        return [f'ds_read_u16 v{base+2*d}, v{aSRC} offset:{toff*64+DOFF[d]}' for d in range(4)]
    def dma_ins(base, d, tag):
        vm.issue(tag)
        return f'buffer_load_dwordx4 {vr(base+2*d,2)}, s[{sP}:{sP+3}], 0 idxen offen offset:{d*1024} lds'
    for x in idx_reads(IDX1, 0) + idx_reads(IDX2, 1): a(x)
    a(f's_mov_b32 m0, s{sRing}\ns_waitcnt lgkmcnt(4)')
    for d in range(4): a(dma_ins(IDX1, d, 'dma0'))
    a(f's_add_u32 m0, s{sRing}, 4096\ns_waitcnt lgkmcnt(0)')
    for d in range(4): a(dma_ins(IDX2, d, 'dma1'))
    stampat(4)
    def gemm(acc, frag, addr, wregs, first, waitv):
        def rd(s):
            for rt in range(3):
                f = frag + (s & 1) * 12 + rt * 4
                a(f'ds_read_b128 {vr(f,4)}, v{addr+(s&3)} offset:{rt*8192+(s>>2)*256}')
        rd(0)
        for s in range(8):
            if s + 1 < 8:
                rd(s + 1); w = 'lgkmcnt(3)'
            else: w = 'lgkmcnt(0)'
            wv = waitv(s)
            a((wv + ' ' + w) if wv else 's_waitcnt ' + w)
            for rt in range(3):
                for c in range(2):
                    d = acc[rt * 2 + c]; f = frag + (s & 1) * 12 + rt * 4
                    cin = '0' if (first and s == 0) else vr(d, 4)
                    a(f'v_mfma_f32_16x16x32_bf16 {vr(d,4)}, {vr(f,4)}, {vr(wregs(s*2+c),4)}, {cin}')
    a(f'''s_cmp_eq_u32 s{sT}, 0
    s_cbranch_scc1 k2_loopend
    ds_read_u8 v{vX}, v{aXL}
    s_mov_b64 exec, s[{sHM}:{sHM+1}]
    ds_read_b128 {vr(A2,4)}, v{aEAT}
    s_mov_b64 exec, -1''')
    a(vm.wait('dma0'))
    a(f'''ds_read_b128 {vr(PA,4)}, v{aP}
    ds_read_b128 {vr(PA+4,4)}, v{aP+1}
    ds_read_b128 {vr(PB,4)}, v{aP+2}
    ds_read_b128 {vr(PB+4,4)}, v{aP+3}
    s_waitcnt lgkmcnt(5)
    v_mad_u32_u24 v{aQ}, v{vX}, s{sQs}, v{cQ}
    v_mad_u32_u24 v{aS}, v{vX}, s{sOs}, v{cS}
    ds_read_u8 v{vX}, v{aXL} offset:8
    ds_read_b64_tr_b16 {vr(B2A+2,2)}, v{aQ}
    ds_read_b64_tr_b16 {vr(B2B+2,2)}, v{aQ} offset:64''')
    for x in idx_reads(IDX3, 2) + idx_reads(IDX, 3): a(x)
    a(f's_sub_u32 s{sCnt}, s{sT}, 1\ns_waitcnt lgkmcnt(9)')
    def zchain(D, B2, P):
        return [f'v_mfma_f32_32x32x16_bf16 {vr(D,16)}, {vr(A2,4)}, {vr(B2,4)}, 0',
                f'v_mfma_f32_32x32x16_bf16 {vr(D,16)}, {vr(P,4)}, {vr(I0,4)}, {vr(D,16)}',
                f'v_mfma_f32_32x32x16_bf16 {vr(D,16)}, {vr(P+4,4)}, {vr(I1,4)}, {vr(D,16)}']
    for m in zchain(DA, B2A, PA): a(m)
    if prio == 'young': a(f's_cmp_eq_u32 s{sG}, 0\ns_cbranch_scc1 k2_noprio\ns_setprio 1\nk2_noprio:')
    a('s_nop 7\ns_nop 3')
    stampat(6)

    cur = {'pT': None, 'pP': None}
    def half(D, accprev, Mprev, Mfin, zc, extra_T, extra_P):
        Ts = [f'v_exp_f32 v{EE+i}, v{D+i}' for i in range(16)] + [f'v_rcp_f32 v{DF+i}, v{DF+i}' for i in range(4)]
        mf = [f'v_mfma_f32_32x32x8_bf16 {vr(accprev,16)}, {vr(Mprev,2)}, {vr(S,2)}, {vr(accprev,16)}'] + zc
        if cur['pT'] is not None: a(f's_setprio {cur["pT"]}')
        for k in range(4):
            a(mf[k])
            for x in extra_T.get(k, []): a(x)
            for t_ in Ts[5 * k:5 * k + 5]: a(t_)
        if cur['pP'] is not None: a(f's_setprio {cur["pP"]}')
        Ps = [f'v_pk_fma_f32 {pr(EE+2*p)}, {pr(EE+2*p)}, s[{sC}:{sC+1}], s[{sC}:{sC+1}] clamp' for p in range(8)]
        Ps += [f'v_pk_mul_f32 {pr(NF)}, {pr(NF)}, {pr(DF)}', f'v_pk_mul_f32 {pr(NF+2)}, {pr(NF+2)}, {pr(DF+2)}']
        bs = [0, 4, 8, 12]
        Ps += [f'v_pk_mul_f32 {pr(D+b)}, {pr(D+b)}, {pr(EE+b+2)}' for b in bs]
        Ps += [f'v_cvt_pk_bf16_f32 v{Mfin}, v{NF}, v{NF+1}', f'v_cvt_pk_bf16_f32 v{Mfin+1}, v{NF+2}, v{NF+3}']
        Ps += [f'v_pk_fma_f32 {pr(D+b)}, {pr(D+b+2)}, {pr(EE+b)}, {pr(D+b)}' for b in bs]
        Ps += [f'v_pk_mul_f32 {pr(EE+b)}, {pr(EE+b)}, {pr(EE+b+2)}' for b in bs]
        Ps += [f'v_pk_mul_f32 {pr(NF+2*B)}, {pr(D+8*B)}, {pr(EE+8*B+4)}' for B in range(2)]
        Ps += [f'v_pk_mul_f32 {pr(DF+2*B)}, {pr(EE+8*B)}, {pr(EE+8*B+4)}' for B in range(2)]
        Ps += [f'v_pk_fma_f32 {pr(NF+2*B)}, {pr(D+8*B+4)}, {pr(EE+8*B)}, {pr(NF+2*B)}' for B in range(2)]
        for i, p in enumerate(Ps):
            for x in extra_P.get(i, []):
                a(x() if callable(x) else x)
            a(p)
    def spread(d, xs, start, step=1):
        for i, x in enumerate(xs):
            d.setdefault(start + i * step, []).extend(x if isinstance(x, list) else [x])
    wsched = [('u2', i) for i in range(16)] + [('u1', i) for i in range(NW1A)]
    NPEEL = 6
    per = [4, 4, 4, 4, 4, 5]
    def iteration(tau, u, peeled):
        sl = (u + 1) % 3
        a('s_waitcnt lgkmcnt(0)')
        eT = {3: [f'v_mad_u32_u24 v{aQ}, v{vX}, s{sQs}, v{cQ}', f'v_mad_u32_u24 v{aS+sl}, v{vX}, s{sOs}, v{cS}']}
        eP = {}
        spread(eP, [(lambda: vm.wait(f'dma{tau+1}')) if peeled else 's_waitcnt vmcnt(4)',
              f'ds_read_b128 {vr(PA,4)}, v{aP} offset:{sl*4096}', f'ds_read_b128 {vr(PA+4,4)}, v{aP+1} offset:{sl*4096}',
              f'ds_read_b64_tr_b16 {vr(B2A+2,2)}, v{aQ}',
              [f's_mov_b64 exec, s[{sHM}:{sHM+1}]', f'ds_read_b128 {vr(A2,4)}, v{aEAT} offset:{(u+1)*512}', 's_mov_b64 exec, -1'],
              f's_add_u32 m0, s{sRing}, {u*4096}'], 1)
        if peeled and tau == 0:
            eP[6] = [f's_add_u32 m0, s{sRing}, 8192']
            spread(eP, [(lambda d=d: dma_ins(IDX3, d, 'dma2')) for d in range(4)], 7, 3)
            eP.setdefault(18, []).append(f's_mov_b32 m0, s{sRing}')
            spread(eP, [(lambda d=d: dma_ins(IDX, d, 'dma3')) for d in range(4)], 19, 3)
        else:
            spread(eP, [(lambda d=d: dma_ins(IDX, d, f'dma{tau+3}')) for d in range(4)], 8, 7)
        half(DA, ACCA, MA, MB, zchain(DB, B2B, PB), eT, eP)
        a('s_waitcnt lgkmcnt(0)')
        eP = {}
        xs = [f'ds_read_b128 {vr(PB,4)}, v{aP+2} offset:{sl*4096}', f'ds_read_b128 {vr(PB+4,4)}, v{aP+3} offset:{sl*4096}',
              f'ds_read_b64_tr_b16 {vr(B2B+2,2)}, v{aQ} offset:64', f'ds_read_b64_tr_b16 {vr(S,2)}, v{aS+u}',
              f'ds_read_u8 v{vX}, v{aXL} offset:{(u+2)*8}'] + idx_reads(IDX, u + 4)
        spread(eP, xs, 1, 2)
        if peeled and not opt.get('nowpf'):
            k0 = sum(per[:tau])
            for j, (m, i) in enumerate(wsched[k0:k0 + per[tau]]):
                def f(m=m, i=i):
                    ins = wload(WB2 + 4 * i, 2, i, 'wu') if m == 'u2' else wload(w1reg(i), 1, i, 'wu')
                    return '\n'.join(ins)
                eP.setdefault(18 + 2 * j, []).append(f)
            if tau == NPEEL - 1: eP.setdefault(28, []).append(f's_mov_b32 s{sWdone}, 1')
        if u == 2:
            eP.setdefault(29, []).extend([f'v_add_u32 v{aSRC}, 192, v{aSRC}', f'v_add_u32 v{aEAT}, 1536, v{aEAT}', f'v_add_u32 v{aXL}, 24, v{aXL}'])
        eP.setdefault(29, []).append(f's_sub_u32 s{sCnt}, s{sCnt}, 1')
        half(DB, ACCB, MB, MA, zchain(DA, B2A, PA), {}, eP)
    spec = {'P': '01', 'none': 'xx', 'young': 'xx'}.get(prio, prio).split('|')
    saved = list(vm.ops)
    if len(spec) > 1: a(f's_cmp_lg_u32 s{sG}, 0\ns_cbranch_scc1 k2_g1')
    for g, sp in enumerate(spec):
        vm.ops = list(saved)
        sp = sp.split(',')
        def setp(k):
            x = sp[k % len(sp)]
            cur['pT'] = None if x[0] == 'x' else int(x[0]); cur['pP'] = None if x[1] == 'x' else int(x[1])
        if g: a.label('k2_g1')
        for tau in range(NPEEL):
            setp(tau)
            iteration(tau, tau % 3, True)
            a('s_cbranch_scc1 k2_drain')
        a.label(f'k2_loop{g}')
        for u in range(3):
            setp(u)
            iteration(100 + u, u, False)
            a('s_cbranch_scc1 k2_drain' if u < 2 else f's_cbranch_scc0 k2_loop{g}')
        if g + 1 < len(spec): a('s_branch k2_drain')
    a.label('k2_drain')
    a('s_setprio 0\ns_waitcnt lgkmcnt(0)')
    a(f'v_mfma_f32_32x32x8_bf16 {vr(ACCA,16)}, {vr(MA,2)}, {vr(S,2)}, {vr(ACCA,16)}')
    for i in range(4): a(f'v_rcp_f32 v{DF+i}, v{DF+i}')
    a('s_nop 0')
    for i in range(4): a(f'v_mul_f32 v{NF+i}, v{NF+i}, v{DF+i}')
    a(f'''v_cvt_pk_bf16_f32 v{MB}, v{NF}, v{NF+1}
    v_cvt_pk_bf16_f32 v{MB+1}, v{NF+2}, v{NF+3}
    s_nop 1
    v_mfma_f32_32x32x8_bf16 {vr(ACCB,16)}, {vr(MB,2)}, {vr(S,2)}, {vr(ACCB,16)}''')
    a.label('k2_loopend')
    stampat(7)
    a(f'''s_cmp_eq_u32 s{sHeavy}, 0
    s_cbranch_scc1 k2_epi
    s_add_u32 s{sB}, s{sB}, 1''')
    a.label('k2_fetch')
    a(f'''s_waitcnt vmcnt(0) lgkmcnt(0)
    s_barrier
    s_cmp_ge_u32 s{sB}, s{sHeavy}
    s_cbranch_scc1 k2_epi
    s_lshl_b32 s{sTmp}, s0, 2
    buffer_load_dword v{TQ}, v{vNOVF}, {WS}, s{sTmp} offen sc1
    v_and_b32 v{T1}, 1, v0
    s_lshl_b32 s{sTmp}, s{sB}, 1
    v_add_u32 v{T1}, s{sTmp}, v{T1}
    s_waitcnt vmcnt(0)
    v_and_b32 v{T0}, 0xffff, v{TQ}
    v_lshrrev_b32 v{TQ}, 16, v{TQ}
    v_add_u32 v{T0}, v{T0}, v{T1}
    v_cmp_lt_u32 s[{sMask}:{sMask+1}], v{T1}, v{TQ}
    v_lshl_add_u32 v{T0}, v{T0}, 4, v{vNOVF}
    buffer_load_dwordx3 {vr(REC,3)}, v{T0}, {WS}, 0 offen offset:1024 sc1''')
    for i in range(1, 8): a(f's_mov_b64 s[{sMask+2*i}:{sMask+2*i+1}], 0')
    a(f's_mov_b64 s[{sOv}:{sOv+1}], 0\ns_branch k2_batch')
    a.label('k2_hentry')
    a(f'''s_waitcnt vmcnt(0) lgkmcnt(0)
    s_lshl_b32 s{sTmp}, s0, 2
    buffer_load_dword v{TQ}, v{vNOVF}, {WS}, s{sTmp} offen sc1
    v_mov_b32 v{T0}, {HMAX}
    v_mov_b32 v{T1}, 1
    ds_write_b32 v{T0}, v{T1}
    s_waitcnt vmcnt(0) lgkmcnt(0)
    s_barrier
    v_lshrrev_b32 v{TQ}, 16, v{TQ}
    v_add_u32 v{TQ}, 1, v{TQ}
    v_lshrrev_b32 v{TQ}, 1, v{TQ}
    ds_max_u32 v{T0}, v{TQ}
    s_waitcnt lgkmcnt(0)
    s_barrier
    ds_read_b32 v{T1}, v{T0}
    s_waitcnt lgkmcnt(0)
    v_readfirstlane_b32 s{sHeavy}, v{T1}
    s_branch k2_fetch''')
    a.label('k2_epi')
    vm.ops = []
    a(f's_waitcnt vmcnt(0)\ns_cmp_lg_u32 s{sWdone}, 0\ns_cbranch_scc1 k2_wok')
    for (m, i) in wsched:
        for x in (wload(WB2 + 4 * i, 2, i, 'c') if m == 'u2' else wload(w1reg(i), 1, i, 'c')): a(x)
    a('s_waitcnt vmcnt(0)')
    a.label('k2_wok')
    vm.ops = []
    for i in range(NW1A, 16):
        for x in wload(w1reg(i), 1, i, f'w1_{i}'): a(x)
    Y0, Y1, Y2, Y3 = X0, X0 + 1, X0 + 2, X0 + 3
    a(f'''v_and_b32 v{Y0}, 15, v{vLane}
    v_lshrrev_b32 v{Y1}, 4, v{vLane}
    v_xor_b32 v{Y2}, v{Y1}, v{Y0}
    v_lshlrev_b32 v{Y2}, 4, v{Y2}
    v_lshl_add_u32 v{Y2}, v{Y0}, 9, v{Y2}
    v_add_u32 v{EA_}, {XT}, v{Y2}''')
    for s in range(1, 4):
        a(f'v_xor_b32 v{Y3}, {s<<6}, v{Y2}\nv_add_u32 v{EA_+s}, {XT}, v{Y3}')
    a(f'''s_mov_b32 s{sTmp}, {hex(f2u(-LN2 * 2.0**-30))}
    v_and_b32 v{Y2}, 31, v{vLane}
    v_bfe_u32 v{Y3}, v{vLane}, 1, 3
    v_lshlrev_b32 v{Y3}, 4, v{Y3}
    v_lshl_add_u32 v{Y2}, v{Y2}, 7, v{Y3}
    v_lshrrev_b32 v{Y3}, 5, v{vLane}
    v_lshl_add_u32 v{Y2}, v{Y3}, 3, v{Y2}
    v_add_u32 v{Y2}, s{sRing}, v{Y2}''')
    for q in range(8):
        for i in range(4): a(f'v_mul_f32 v{ACCA+4*q+i}, s{sTmp}, v{ACCA+4*q+i}')
        a(f'v_cvt_pk_bf16_f32 v{ACCA+4*q}, v{ACCA+4*q}, v{ACCA+4*q+1}\nv_cvt_pk_bf16_f32 v{ACCA+4*q+1}, v{ACCA+4*q+2}, v{ACCA+4*q+3}')
        if q: a(f'v_xor_b32 v{Y3}, {q<<4}, v{Y2}')
        a(f'ds_write_b64 v{Y3 if q else Y2}, {vr(ACCA+4*q,2)}')
    AD = ACCA + 2
    ADR = [ACCA + 2, ACCA + 3, ACCA + 6, ACCA + 7, ACCA + 10, ACCA + 11]
    a(f'v_mov_b32 v{ACCA+14}, {4*12288 - 8*128}')
    for rt in range(3):
        n = ACCA + 15; j = ACCA + 18; tt = ACCA + 19
        a(f'''v_add_u32 v{n}, {16*rt}, v{Y0}
        v_cmp_le_u32 vcc, s{sSplit}, v{n}
        v_lshrrev_b32 v{j}, 1, v{n}
        v_xor_b32 v{tt}, 4, v{j}
        v_cndmask_b32 v{j}, v{j}, v{tt}, vcc
        v_cndmask_b32 v{tt}, 0, v{ACCA+14}, vcc
        v_xor_b32 v{j}, v{j}, v{Y1}
        v_and_b32 v{j}, 7, v{j}
        v_lshl_add_u32 v{tt}, v{n}, 7, v{tt}
        v_lshl_add_u32 v{ADR[2*rt]}, v{j}, 4, v{tt}
        v_xor_b32 v{ADR[2*rt+1]}, 64, v{ADR[2*rt]}''')
    stampat(8)
    gemm([OA + 4 * i for i in range(6)], AF, EA_, w1reg, True, lambda s: vm.wait(f'w1_{2*s+1}') if 2 * s + 1 >= NW1A else None)
    a('s_barrier')
    a(f'''v_lshlrev_b32 v{Y2}, 2, v{Y0}
    v_lshl_add_u32 v{Y2}, v{Y1}, 11, v{Y2}
    s_lshl_b32 s{sTmp2}, s{sN0}, 9
    s_lshl_b32 s{sTmp}, s{sWV}, 6
    s_add_u32 s{sTmp2}, s{sTmp2}, s{sTmp}
    s_mov_b32 s{sC}, {hex(f2u(-LOG2E))}''')
    Z = DA
    def silu_ops(rt):
        b = OA + rt * 8
        ops = [f'v_mul_f32 v{Z+p}, s{sC}, v{b+p}' for p in range(8)]
        ops += [f'v_exp_f32 v{Z+p}, v{Z+p}' for p in range(8)]
        ops += [f'v_add_f32 v{Z+p}, 1.0, v{Z+p}' for p in range(8)]
        ops += [f'v_rcp_f32 v{Z+p}, v{Z+p}' for p in range(8)]
        ops += [f'v_mul_f32 v{Z+p}, v{b+p}, v{Z+p}' for p in range(8)]
        for rr in range(4):
            ops.append(f'v_cvt_pk_bf16_f32 v{Z+8+rr}, v{Z+rr}, v{Z+4+rr}')
        for rr in range(4):
            if rt == 2 and rr == 3:
                ops.append(f's_cmp_eq_u32 s{sNN}, 40\ns_cselect_b32 exec_lo, -1, 0xffff')
            ops.append(f'buffer_store_dword v{Z+8+rr}, v{Y2}, s[{sO}:{sO+3}], s{sTmp2} offen offset:{rr*512}')
        ops.append(f's_add_u32 s{sTmp2}, s{sTmp2}, 8192')
        return ops
    seq = [(rt, s) for rt in range(3) for s in range(8)]
    def ard(k):
        rt, s = seq[k]
        a(f'ds_read_b128 {vr(AF+4*(k%6),4)}, v{ADR[2*rt+(s&1)]} offset:{(s>>1)*12288}')
    for k in range(5): ard(k)
    pend = []
    for k, (rt, s) in enumerate(seq):
        if k + 5 < 24: ard(k + 5)
        a(f's_waitcnt lgkmcnt({min(5, 23-k)})')
        for c in range(2):
            d = OA + (rt * 2 + c) * 4
            a(f'v_mfma_f32_16x16x32_bf16 {vr(d,4)}, {vr(AF+4*(k%6),4)}, {vr(WB2+4*(2*s+c),4)}, {vr(d,4)}')
            if s >= 1 or c == 1:
                n = 4 if s >= 1 else 0
                for x in pend[:n]: a(x)
                pend = pend[n:]
        if s == 7:
            for x in pend: a(x)
            pend = silu_ops(rt)
    a('s_mov_b32 exec_hi, 0\ns_nop 6')
    for x in pend: a(x)
    if stamp:
        stampat(9)
        a(f's_mov_b64 exec, 1\ns_waitcnt lgkmcnt(0)')
        if opt.get('dbgmax'):
            a(f'v_mov_b32 v{Y0}, 0\ns_not_b32 s{sTmp}, s{sStamp}\nv_mov_b32 v{Y1}, s{sTmp}\nbuffer_atomic_umax v{Y1}, v{Y0}, s[{sD}:{sD+3}], 0 offen offset:4')
            for i in range(10):
                a(f'v_mov_b32 v{Y1}, s{sStamp+2*i}\nbuffer_atomic_umax v{Y1}, v{Y0}, s[{sD}:{sD+3}], 0 offen offset:{8+4*i}')
        a(f's_lshl_b32 s{sTmp}, s2, 3\ns_add_u32 s{sTmp}, s{sTmp}, s{sWV}\ns_lshl_b32 s{sTmp}, s{sTmp}, 6\ns_add_u32 s{sTmp}, s{sTmp}, {WS_END - WS_CELLS}\nv_mov_b32 v{Y0}, 0')
        for i in range(10):
            a(f'v_mov_b32 v{Y1}, s{sStamp+2*i}\nbuffer_store_dword v{Y1}, v{Y0}, {WS}, s{sTmp} offen offset:{4*i}')
        a(f'v_mov_b32 v{Y1}, s{sT}\nbuffer_store_dword v{Y1}, v{Y0}, {WS}, s{sTmp} offen offset:40')
        a(f'v_mov_b32 v{Y1}, s{sPoll}\nbuffer_store_dword v{Y1}, v{Y0}, {WS}, s{sTmp} offen offset:44')
    a.label('k2_done')
    a('s_endpgm')
    return kd(KNAME, 256, 102)
```

```python
from common import *
FCH = 625; CST = 11264
WS_CELLS = 5242880
WS_WF = WS_CELLS + 256 * CST
WS_FLAG = WS_WF + 131072
WS_END = WS_FLAG + 16384
KNAME = 'standalone__mpnn_edge_mlp__graph_kernel'
POLL_LIMIT = 40000
K2_GRID = NB
NT = 29
QT = 98304; QSTR = 576
OH = QT + 41 * QSTR; OSTR = 80
XT = QT + 40 * QSTR + 4096
EAT = XT + 20480
CNT = EAT + NT * 512
SRC = CNT + 256
XL = SRC + (NT + 7) * 64
K2_LDS = 163840
assert XL + 256 <= K2_LDS
C30 = 0x30800000

class R:
    def __init__(self, start): self.n = start
    def get(self, k=1, align=1):
        self.n = (self.n + align - 1) // align * align
        r = self.n; self.n += k; return r

def vr(r, k): return f'v[{r}:{r+k-1}]' if k > 1 else f'v{r}'
def pr(x): return f'v[{x}:{x+1}]'

def gen_kf(a, opt):
    stamp = opt.get('stamp')
    prio = opt.get('prio', '02,02,13|13,13,02')
    vm = VM()
    INV = 'buffer_inv sc1' if opt.get('inv') else ''
    LD = ' sc1' if opt.get('ldsc1', '0') == '1' else ''
    CS = opt.get('cellst', ' sc1')
    r = R(1)
    vLane = r.get(); vNOVF = r.get(); vL16 = r.get()
    aSRC = r.get(); aEAT = r.get(); aXL = r.get(); cQ = r.get(); cS = r.get(); vX = r.get(); aQ = r.get()
    aS = r.get(3); aP = r.get(4)
    IDX = r.get(8, 2)
    A2 = r.get(4, 2); B2A = r.get(4, 2); B2B = r.get(4, 2)
    S = r.get(2, 2); MA = r.get(2, 2); MB = r.get(2, 2)
    ACCA = r.get(16, 2); ACCB = r.get(16, 2)
    DA = r.get(16, 2); DB = r.get(16, 2)
    EE = r.get(16, 2); NF = r.get(4, 2); DF = r.get(4, 2)
    PA = r.get(8, 2); PB = r.get(8, 2); I0 = r.get(4, 2); I1 = r.get(4, 2)
    WB2 = r.get(64, 2)
    XR = r.get(12, 2)
    OA = r.get(24, 2)
    assert r.n <= 256, r.n
    W1F = [NF + 4 * i for i in range(6)] + [WB2 + 36 + 4 * i for i in range(10)]
    aW = None
    assert PB + 8 == NF + 24 and WB2 + 36 + 40 == OA
    t = R(WB2)
    REC = DB
    assert EE == DB + 16
    RK = t.get(8, 2); TQ = t.get(8, 2); DL4 = t.get(8, 2)
    T0 = t.get(); T1 = t.get(); T2 = t.get(); T3 = t.get()
    IDX3 = t.get(8, 2)
    HMAX = XL + 256
    IDX1 = DA; IDX2 = DA + 8
    AF = PA
    X0 = DB + 12
    EA_ = IDX

    sP = 20; sX = 24; sE = 28; sWS = 32; sM = 36; sO = 24
    sWV = 44; sG = 45; sCQ = 46; sHeavy = 47; sB = 48; sPoll = 49; sSplit = 50; sT = 51; sTbase = 52
    sRing = 53; sCnt = 54; sTmp = 55; sTmp2 = 56; sTmp3 = 57; sC = 58
    sMask = 4
    sQs = 68; sOs = 69; sT0 = 70; sT1 = 71; sQt = 72; sWdone = 73; sSv = 74
    sStamp = 76
    sHM = 96; sN0 = 98; sWF = 99; sNN = 3; sBok = 100; sOv = 28; sRdone = 30; sEAT = 31; sAcc = 38; sNM = 36; sD = 60; sPw = 64

    names = (stamp if stamp and stamp != '1' else '0,1,2,3,4,5,6,7,8,9').split(',')
    def stampat(nm):
        nm = str(nm)
        if stamp:
            if nm in names:
                i = names.index(nm)
                a(f's_memrealtime s[{sStamp+2*i}:{sStamp+2*i+1}]')
            if nm == '6': a('s_memtime s[100:101]\ns_waitcnt lgkmcnt(0)\ns_mov_b32 s{}, s100'.format(sPoll))
            if nm == '7': a('s_memtime s[100:101]\ns_waitcnt lgkmcnt(0)\ns_sub_u32 s{0}, s100, s{0}'.format(sPoll))
    WS = f's[{sWS}:{sWS+3}]'
    def wload(dst, mat, i, tag):
        off = i * 1024
        ins = [f's_add_u32 s{sTmp3}, s{sWF}, {off & ~4095}',
               f'buffer_load_dwordx4 {vr(dst,4)}, v{vL16}, {WS}, s{sTmp3} offen offset:{off & 4095}']
        vm.issue(tag)
        return ins

    a.raw(f'.globl {KNAME}\n.p2align 8\n.type {KNAME},@function')
    a.label(KNAME)
    a(f's_cmp_ge_u32 s2, {K2_GRID}\ns_cbranch_scc1 k2_done')
    stampat(0)
    eD = 26; eS = 36; eA = 46; eR = 66; eB = 76
    PD = 26; RL = 50; W3 = 58; TOUCH = 86; CT = 58
    UQ = 92; vW = 100; aA = 104; U0 = 108; U1 = 109; U2 = 110; U3 = 111; vW1 = 112; PR0 = 113; PR1 = 114; PG0 = 115; PG1 = 116; aW3 = 117
    vDB = 252; aTO = 253; aB = 90
    BF = NF; AX = WB2
    assert BF == 124 and BF + 32 == WB2 and WB2 + 96 <= 256 and REC == 92
    W3L = QT + 24576
    SW = 1
    TAB = QT; RIMG = QT + 1024; CNTA = QT + 12288
    sS = 20; sDs = 28; sEs = 36; sU = 40
    sWm = 68
    sEM = 76 if not stamp else 8
    a(f'''s_load_dwordx4 s[12:15], s[0:1], 32
    s_load_dwordx4 s[8:11], s[0:1], 16
    s_load_dwordx4 s[4:7], s[0:1], 0
    s_load_dwordx4 s[16:19], s[0:1], 48
    s_load_dwordx2 s[{sWS}:{sWS+1}], s[0:1], 64
    v_lshrrev_b32 v{U0}, 6, v0
    v_and_b32 v{vLane}, 63, v0
    v_readfirstlane_b32 s{sWV}, v{U0}
    v_lshlrev_b32 v{U3}, 4, v0
    v_lshlrev_b32 v{vL16}, 4, v{vLane}
    s_mul_i32 s{sN0}, s2, 625
    s_bfe_u32 s{sTmp3}, s2, 0x50003
    s_lshl_b32 s{sTmp3}, s{sTmp3}, 13
    s_lshl_b32 s{sT}, s{sN0}, 2
    s_lshl_b32 s{sTbase}, s{sN0}, 3
    s_and_b32 s{sPoll}, s2, 7
    s_lshl_b32 s{sPoll}, s{sPoll}, 5
    s_lshr_b32 s{sTmp}, s2, 3
    s_or_b32 s{sPoll}, s{sPoll}, s{sTmp}
    s_mul_i32 s{sN0}, s{sPoll}, 625
    s_add_u32 s{sNN}, s{sN0}, {625+15}
    s_add_u32 s{sN0}, s{sN0}, 15
    s_lshr_b32 s{sN0}, s{sN0}, 4
    s_lshr_b32 s{sNN}, s{sNN}, 4
    s_sub_u32 s{sNN}, s{sNN}, s{sN0}
    s_lshr_b32 s{sG}, s{sWV}, 2
    s_and_b32 s{sCQ}, s{sWV}, 3
    s_lshl_b32 s{sWF}, s{sWV}, 14
    s_add_u32 s{sWF}, s{sWF}, {WS_WF - WS_CELLS}
    v_lshrrev_b32 v{U0}, 5, v{vLane}
    v_and_b32 v{U1}, 31, v{vLane}
    s_lshl_b32 s{sTmp}, s{sWV}, 1
    v_xor_b32 v{U2}, v{U1}, v{U0}
    v_xor_b32 v{U2}, s{sTmp}, v{U2}
    v_lshlrev_b32 v{U2}, 4, v{U2}
    v_lshl_add_u32 v{U2}, v{U0}, 9, v{U2}
    v_xor_b32 v{vW1}, s{sWV}, v{U1}
    v_lshlrev_b32 v{vW1}, 4, v{vW1}
    s_waitcnt lgkmcnt(0)
    s_mov_b32 s0, s{sPoll}''')
    a(f'''s_cmp_lg_u32 s{sWV}, {SW}
    s_cbranch_scc1 kf_noedge
    s_setprio 3
    v_mul_u32_u24 v{U0}, 40, v{vLane}
    v_mul_u32_u24 v{U1}, 80, v{vLane}''')
    srd(a, sDs, 10, E * 4)
    a(f'''buffer_load_dwordx4 {vr(eD,4)}, v{U0}, s[{sDs}:{sDs+3}], s{sT} offen
    buffer_load_dwordx4 {vr(eD+4,4)}, v{U0}, s[{sDs}:{sDs+3}], s{sT} offen offset:16
    buffer_load_dwordx2 {vr(eD+8,2)}, v{U0}, s[{sDs}:{sDs+3}], s{sT} offen offset:32''')
    srd(a, sS, 8, E * 4)
    a(f'''buffer_load_dwordx4 {vr(eS,4)}, v{U0}, s[{sS}:{sS+3}], s{sT} offen
    buffer_load_dwordx4 {vr(eS+4,4)}, v{U0}, s[{sS}:{sS+3}], s{sT} offen offset:16
    buffer_load_dwordx2 {vr(eS+8,2)}, v{U0}, s[{sS}:{sS+3}], s{sT} offen offset:32''')
    srd(a, sEs, 6, E * 8)
    for k in range(5): a(f'buffer_load_dwordx4 {vr(eA+4*k,4)}, v{U1}, s[{sEs}:{sEs+3}], s{sTbase} offen offset:{16*k}')
    a.label('kf_noedge')
    a(f'''s_add_u32 s{sPw}, s{sWS}, {WS_P}
    s_addc_u32 s{sPw+1}, s{sWS+1}, 0
    s_and_b32 s{sPw+1}, s{sPw+1}, 0xffff
    s_mov_b32 s{sPw+2}, {N*512}
    s_mov_b32 s{sPw+3}, 0x20000
    s_add_u32 s{sWS}, s{sWS}, {WS_CELLS}
    s_addc_u32 s{sWS+1}, s{sWS+1}, 0
    s_and_b32 s{sWS+1}, s{sWS+1}, 0xffff
    s_mov_b32 s{sWS+2}, {WS_END - WS_CELLS + (1 << 20 if stamp else 0)}
    s_mov_b32 s{sWS+3}, 0x20000''')
    srd(a, sD, 18, 256)
    a(f'''s_cmp_lg_u32 s2, 0
    s_cbranch_scc1 kf_noinit
    v_mov_b32 v{BF}, 0
    v_mov_b32 v{BF+1}, 0
    v_mov_b32 v{BF+2}, 0
    v_mov_b32 v{BF+3}, 0
    s_mov_b32 s{sTmp}, {WS_FLAG - WS_CELLS}
    s_add_u32 s{sTmp2}, s{sTmp}, 8192
    buffer_store_dwordx4 {vr(BF,4)}, v{U3}, {WS}, s{sTmp} offen sc1
    buffer_store_dwordx4 {vr(BF,4)}, v{U3}, {WS}, s{sTmp2} offen sc1''')
    a.label('kf_noinit')
    vm.issue('edge')
    vm.ops = vm.ops
    srd(a, sWm, 12, 516 * 512)
    a(f'buffer_load_dwordx4 {vr(TOUCH,4)}, v{U3}, s[{sWm}:{sWm+3}], s{sTmp3} offen')
    vm.issue('touch')
    srd(a, sU, 14, 512 * 512)
    a(f'''s_cmp_lt_u32 s{sWV}, 4
    s_cbranch_scc1 kf_nt2
    s_lshr_b32 s{sTmp}, s{sTmp3}, 1
    s_lshl_b32 s{sTmp2}, s{sCQ}, 10
    s_add_u32 s{sTmp}, s{sTmp}, s{sTmp2}
    buffer_load_dwordx4 {vr(eD,4)}, v{vL16}, s[{sU}:{sU+3}], s{sTmp} offen''')
    a.label('kf_nt2')
    if not opt.get('noctouch'):
        a(f'''s_cmp_lg_u32 s{sWV}, 3
        s_cbranch_scc1 kf_noct
        s_getpc_b64 s[{sSv}:{sSv+1}]
        kf_pc:
        s_lshr_b32 s{sTmp3}, s{sTmp3}, 3
        s_min_u32 s{sTmp3}, s{sTmp3}, k2_done-kf_pc-1024
        s_add_u32 s{sSv}, s{sSv}, s{sTmp3}
        s_addc_u32 s{sSv+1}, s{sSv+1}, 0
        global_load_dwordx4 {vr(CT,4)}, v{vL16}, s[{sSv}:{sSv+1}]''')
        a.label('kf_noct')
    a(f'''s_cmp_lg_u32 s{sWV}, 6
    s_cbranch_scc1 kf_now3
    s_mov_b32 m0, {W3L}
    s_mov_b32 s{sTmp}, {512*512}
    buffer_load_dwordx4 v{vL16}, s[{sWm}:{sWm+3}], s{sTmp} offen lds
    buffer_load_dwordx4 v{vL16}, s[{sWm}:{sWm+3}], s{sTmp} offen offset:1024 lds''')
    a.label('kf_now3')
    srd(a, sX, 4, N * 512)
    a(f'''s_lshl_b32 s{sTmp}, s{sN0}, 9
    s_lshl_b32 s{sTmp2}, s{sWV}, 10
    s_add_u32 s{sTmp3}, s{sTmp}, s{sTmp2}
    s_add_u32 m0, s{sTmp2}, {XT}
    s_lshl_b32 s{sCnt}, s{sWV}, 9
    buffer_load_dwordx4 v{U2}, s[{sX}:{sX+3}], s{sTmp3} offen lds
    s_add_u32 m0, s{sTmp2}, {XT+8192}
    s_add_u32 s{sTmp3}, s{sTmp3}, 8192
    buffer_load_dwordx4 v{U2}, s[{sX}:{sX+3}], s{sTmp3} offen lds
    s_add_u32 m0, s{sCnt}, {XT+16384}
    s_add_u32 s{sTmp}, s{sTmp}, s{sCnt}
    s_add_u32 s{sTmp}, s{sTmp}, 16384
    s_mov_b32 exec_hi, 0
    buffer_load_dwordx4 v{vW1}, s[{sX}:{sX+3}], s{sTmp} offen lds
    s_mov_b32 exec_hi, -1''')
    for _ in range(3): vm.issue('x')
    stampat('a')
    a(f'''v_mov_b32 v{UQ+4}, 0
    v_mov_b32 v{UQ+5}, 0
    v_mov_b32 v{UQ+6}, 0
    v_mov_b32 v{UQ+7}, 0
    v_add_u32 v{U1}, {CNTA}, v{vL16}
    s_cmp_lg_u32 s{sWV}, {SW}
    s_cbranch_scc1 kf_nocz
    ds_write_b128 v{U1}, {vr(UQ+4,4)}
    v_mov_b32 v{U1}, {HMAX+4}
    ds_write_b32 v{U1}, v{UQ+4}''')
    a.label('kf_nocz')
    nz = (NT * 512 + 256 - 8192) // 16; nf = (NT + 7) * 64 // 16; nx = 16
    def list_prefill(Z, F, t0, t1):
        a(f'''v_lshlrev_b32 v{t0}, 4, v0
        v_add_u32 v{t0}, {EAT}, v{t0}
        v_mov_b32 v{t1}, 0xa0a0a0a0
        ds_write_b128 v{t0}, {vr(Z,4)}
        v_cmp_gt_u32 vcc, {nz}, v0
        s_and_saveexec_b64 s[{sSv}:{sSv+1}], vcc
        ds_write_b128 v{t0}, {vr(Z,4)} offset:8192
        s_mov_b64 exec, -1
        v_cmp_gt_u32 vcc, {nf}, v0
        s_mov_b32 s{sWdone}, 0
        s_nop 0
        v_cndmask_b32 v{F}, v{t1}, -1, vcc
        v_cmp_gt_u32 vcc, {nf+nx}, v0
        v_mov_b32 v{F+1}, v{F}
        v_mov_b32 v{F+2}, v{F}
        v_mov_b32 v{F+3}, v{F}
        s_and_saveexec_b64 s[{sSv}:{sSv+1}], vcc
        ds_write_b128 v{t0}, {vr(F,4)} offset:{SRC-EAT}
        s_mov_b64 exec, -1''')
    stampat('b')
    a(f'''v_lshrrev_b32 v{U0}, 5, v{vLane}
    v_and_b32 v{U1}, 3, v{vLane}
    v_lshlrev_b32 v{U0}, 1, v{U0}
    v_xor_b32 v{U0}, v{U0}, v{U1}
    v_lshrrev_b32 v{U1}, 2, v{vLane}
    v_lshlrev_b32 v{U1}, 9, v{U1}
    v_lshl_add_u32 v{U0}, v{U0}, 4, v{U1}
    s_lshl_b32 s{sTmp}, s{sWV}, 6
    v_add_u32 v{vW}, s{sTmp}, v{U0}
    v_add_u32 v{vW+1}, 7168, v{vW}
    v_add_u32 v{vW+2}, 14336, v{vW}
    v_add_u32 v{vW+3}, 21504, v{vW}
    s_mul_i32 s{sRing}, s{sWV}, 12288''')
    def stage(i):
        a(f's_add_u32 m0, s{sRing}, {(i % 3) * 4096}\ns_mov_b32 s{sTmp3}, {(i & 7) * 32768}')
        sr = sWm if i < 8 else sU
        for t_ in range(4):
            a(f'buffer_load_dwordx4 v{(vW if i < 8 else XR + 8)+t_}, s[{sr}:{sr+3}], s{sTmp3} offen offset:{t_*1024} lds')
            vm.issue(f'st{i}')
    a(f'''v_and_b32 v{U0}, 15, v{vLane}
    v_lshrrev_b32 v{U1}, 4, v{vLane}
    v_xor_b32 v{U2}, v{U1}, v{U0}
    v_lshlrev_b32 v{U2}, 4, v{U2}
    v_lshl_add_u32 v{U0}, v{U0}, 9, v{U2}
    v_add_u32 v{aA}, {XT}, v{U0}''')
    for s_ in range(1, 4):
        a(f'v_xor_b32 v{U2}, {s_<<6}, v{U0}\nv_add_u32 v{aA+s_}, {XT}, v{U2}')
    a(f'''v_bfe_u32 v{U0}, v{vLane}, 2, 2
    v_lshl_add_u32 v{U0}, v{U1}, 3, v{U0}
    v_and_b32 v{U2}, 1, v{U1}
    v_lshlrev_b32 v{U2}, 5, v{U2}
    v_and_b32 v{U3}, 3, v{vLane}
    v_lshl_add_u32 v{U2}, v{U3}, 3, v{U2}
    v_lshl_add_u32 v{U2}, v{U0}, 6, v{U2}
    v_add_u32 v{aB}, s{sRing}, v{U2}
    v_xor_b32 v{aB+1}, 32, v{aB}
    v_mov_b32 v{U3}, 1''')
    list_prefill(UQ + 4, BF + 4, U0, U1)
    NPRE = int(opt.get('npre', 1))
    NPRE2 = int(opt.get('npre2', NPRE))
    for i in range(NPRE): stage(i)
    stampat('y')
    def early_consts(T0, T1, T2, T3):
        a(f'''v_lshrrev_b32 v{T2}, 5, v{vLane}
        v_and_b32 v{T3}, 31, v{vLane}
        v_bfe_u32 v{T0}, v{T3}, 2, 1
        v_cmp_eq_u32 s[{sHM}:{sHM+1}], v{T0}, v{T2}
        v_bfe_u32 v{T0}, v{T3}, 1, 3
        v_xor_b32 v{T0}, v{T0}, v{T2}
        v_lshlrev_b32 v{T0}, 4, v{T0}
        v_lshl_add_u32 v{T0}, v{T3}, 7, v{T0}
        v_add_u32 v{aP}, s{sRing}, v{T0}
        v_xor_b32 v{aP+1}, 32, v{aP}
        v_xor_b32 v{aP+2}, 64, v{aP}
        v_xor_b32 v{aP+3}, 96, v{aP}
        v_and_b32 v{T0}, 7, v{vLane}
        v_lshrrev_b32 v{T1}, 4, v{vLane}
        v_xor_b32 v{T0}, v{T0}, v{T1}
        s_lshl_b32 s{sTmp}, s{sCQ}, 7
        v_lshl_add_u32 v{T0}, v{T0}, 4, s{sTmp}
        v_xor_b32 v{IDX+7}, 64, v{T0}
        v_add_u32 v{IDX+1}, 3072, v{T0}
        v_add_u32 v{IDX+3}, 2048, v{IDX+7}
        v_add_u32 v{IDX+5}, 1024, v{T0}
        v_bfe_u32 v{T0}, v{vLane}, 4, 1
        v_and_b32 v{T1}, 3, v{vLane}
        v_lshlrev_b32 v{T1}, 3, v{T1}
        v_lshl_add_u32 v{T0}, v{T0}, 5, v{T1}
        s_add_u32 s{sTmp}, s{sTmp}, {QT}
        v_add_u32 v{cQ}, s{sTmp}, v{T0}
        s_lshl_b32 s{sTmp}, s{sG}, 4
        s_add_u32 s{sTmp}, s{sTmp}, {OH}
        v_add_u32 v{cS}, s{sTmp}, v{T0}
        s_mov_b32 s{sC}, {hex(C30)}
        s_mov_b32 s{sC+1}, {hex(C30)}''')
    def list_consts(T0, T1, T2, T3):
        a(f'''v_bfe_u32 v{T0}, v{vLane}, 5, 1
        v_bfe_u32 v{T1}, v{vLane}, 3, 1
        v_bfe_u32 v{T2}, v{vLane}, 4, 1
        v_lshlrev_b32 v{aSRC}, 5, v{T0}
        v_lshl_add_u32 v{aSRC}, v{T1}, 3, v{aSRC}
        v_lshl_add_u32 v{aSRC}, v{T2}, 1, v{aSRC}
        v_bfe_u32 v{T3}, v{vLane}, 2, 2
        v_lshl_add_u32 v{aXL}, v{T0}, 2, v{T3}
        v_and_b32 v{T3}, 1, v{T3}
        v_lshl_add_u32 v{aEAT}, v{T3}, 1, v{T2}
        v_and_b32 v{T0}, 1, v{vLane}
        v_lshl_add_u32 v{aEAT}, v{aEAT}, 1, v{T0}
        v_lshl_add_u32 v{aEAT}, v{aEAT}, 1, v{T1}
        v_bfe_u32 v{T0}, v{vLane}, 1, 1
        v_lshl_add_u32 v{aEAT}, v{aEAT}, 1, v{T0}
        v_lshlrev_b32 v{aEAT}, 4, v{aEAT}''')
    TOUCH_T = 118
    def hoisted():
        early_consts(U0, U1, U2, TOUCH_T)
        list_consts(U0, U1, U2, TOUCH_T)
        a(f'''v_lshrrev_b32 v{U0}, 4, v{vLane}
    v_mul_u32_u24 v{U0}, {4*QSTR}, v{U0}
    v_and_b32 v{U1}, 15, v{vLane}
    v_lshl_add_u32 v{U0}, v{U1}, 2, v{U0}
    s_lshl_b32 s{sTmp2}, s{sWV}, 6
    s_add_u32 s{sTmp2}, s{sTmp2}, {QT}
    v_add_u32 v{aTO}, s{sTmp2}, v{U0}
    v_lshrrev_b32 v{U0}, 5, v{vLane}
    v_and_b32 v{PG1}, 31, v{vLane}
    v_lshlrev_b32 v{PG1}, 4, v{PG1}
    v_lshl_add_u32 v{PG0}, v{U0}, 9, v{PG1}
    v_mul_u32_u24 v{U0}, {QSTR}, v{U0}
    v_add_u32 v{U0}, v{U0}, v{PG1}
    s_mul_i32 s{sTmp}, s{sWV}, {2*QSTR}
    s_add_u32 s{sTmp}, s{sTmp}, {QT}
    v_add_u32 v{PR0}, s{sTmp}, v{U0}
    s_mul_i32 s{sTmp}, s{sWV}, {QSTR}
    s_add_u32 s{sTmp}, s{sTmp}, {QT + 32*QSTR}
    v_add_u32 v{PR1}, s{sTmp}, v{PG1}
    v_bfe_u32 v{U0}, v{vLane}, 1, 4
    v_and_b32 v{U1}, 1, v{vLane}
    v_lshlrev_b32 v{U0}, 1, v{U0}
    v_lshl_add_u32 v{U0}, v{U1}, 5, v{U0}
    s_lshl_b32 s{sTmp}, s{sCQ}, 7
    s_add_u32 s{sTmp}, s{sTmp}, {W3L}
    v_add_u32 v{aW3}, s{sTmp}, v{U0}
    v_lshrrev_b32 v{U0}, 1, v0
    v_mul_u32_u24 v{vNOVF}, {CST}, v{U0}''')
    hoisted()
    dpp = ['row_shr:1 row_mask:0xf bank_mask:0xf', 'row_shr:2 row_mask:0xf bank_mask:0xf', 'row_shr:4 row_mask:0xf bank_mask:0xf',
           'row_shr:8 row_mask:0xf bank_mask:0xf', 'row_bcast:15 row_mask:0xa bank_mask:0xf', 'row_bcast:31 row_mask:0xc bank_mask:0xf']
    a(f'''s_cmp_lg_u32 s{sWV}, {SW}
    s_cbranch_scc1 kf_nohist
    s_movk_i32 s{sTmp}, 625
    s_mov_b32 exec_hi, 0x7fffffff''')
    a(f's_waitcnt vmcnt({vm.count_after("edge") + 8})')
    stampat('z')
    for i in range(10):
        a(f'''v_mul_u32_u24 v{eB+i}, 429497, v{eD+i}
        v_lshrrev_b32 v{eB+i}, 24, v{eB+i}
        v_mad_u32_u24 v{U0}, v{eB+i}, s{sTmp}, 15
        v_lshlrev_b32 v{eB+i}, 2, v{eB+i}
        v_add_u32 v{eB+i}, {CNTA}, v{eB+i}''')
        if i == 5: a('s_mov_b32 exec_hi, 0x3fffffff')
        a(f'''ds_add_rtn_u32 v{eR+i}, v{eB+i}, v{U3}
        v_lshrrev_b32 v{U0}, 4, v{U0}
        v_sub_u32 v{eD+i}, v{eD+i}, v{U0}''')
    a(f'''s_mov_b32 exec_hi, -1
    v_add_u32 v{U0}, {CNTA}, v{vL16}
    ds_read_b128 {vr(UQ,4)}, v{U0}''')
    a(f's_waitcnt vmcnt({vm.count_after("edge") + 5})')
    for i in range(10): a(f'v_lshl_or_b32 v{eS+i}, v{eD+i}, 16, v{eS+i}')
    a(f'''s_waitcnt lgkmcnt(0)
    v_add_u32 v{UQ+5}, v{UQ}, v{UQ+1}
    v_add_u32 v{UQ+6}, v{UQ+5}, v{UQ+2}
    v_add_u32 v{U1}, v{UQ+6}, v{UQ+3}
    v_mov_b32 v{U2}, v{U1}
    s_nop 1''')
    for k, d in enumerate(dpp):
        a(f'v_add_u32_dpp v{U2}, v{U2}, v{U2} {d}' + (' bound_ctrl:0' if k < 4 else '') + '\ns_nop 1')
    a(f'''v_sub_u32 v{UQ+4}, v{U2}, v{U1}
    v_add_u32 v{UQ+7}, v{UQ+6}, v{UQ+4}
    v_add_u32 v{UQ+6}, v{UQ+5}, v{UQ+4}
    v_add_u32 v{UQ+5}, v{UQ}, v{UQ+4}
    ds_write_b128 v{U0}, {vr(UQ+4,4)} offset:1024''')
    for i in range(10): a(f'ds_read_b32 v{eD+i}, v{eB+i} offset:1024')
    a(f'''v_lshl_or_b32 v{UQ+4}, v{UQ}, 16, v{UQ+4}
    v_lshl_or_b32 v{UQ+5}, v{UQ+1}, 16, v{UQ+5}
    v_lshl_or_b32 v{UQ+6}, v{UQ+2}, 16, v{UQ+6}
    v_lshl_or_b32 v{UQ+7}, v{UQ+3}, 16, v{UQ+7}
    v_subrev_u32 v{U0}, {CNTA-TAB}, v{U0}
    s_mov_b32 s{sTmp}, {RIMG}
    s_mov_b32 exec_hi, 0x7fffffff''')
    a(vm.wait('edge'))
    for i in range(10):
        if i == 5: a('s_mov_b32 exec_hi, 0x3fffffff')
        a(f'''s_waitcnt lgkmcnt({min(9, 9 - i + 2 * i)})
        v_add_u32 v{eD+i}, v{eD+i}, v{eR+i}
        v_lshl_add_u32 v{eD+i}, v{eD+i}, 4, s{sTmp}
        ds_write_b64 v{eD+i}, {vr(eA+2*i,2)}
        ds_write_b32 v{eD+i}, v{eS+i} offset:8''')
    a(f'''s_mov_b32 exec_hi, -1
    ds_write_b128 v{U0}, {vr(UQ+4,4)}
    s_setprio 0''')
    a.label('kf_nohist')
    for i in range(NPRE, NPRE2): stage(i)
    a(vm.wait('x') + ' lgkmcnt(0)')
    a('s_barrier')
    stampat('c')
    axr = [f'ds_read_b128 {vr(AX+(s_*3+rt)*4,4)}, v{aA+(s_&3)} offset:{rt*8192+(s_>>2)*256}' for s_ in range(8) for rt in range(3)]
    a(f'''s_or_b32 s{sTmp}, s2, s{sWV}
    s_cbranch_scc1 kf_noset
    v_mov_b32 v{U0}, 1
    v_mov_b32 v{U1}, 0
    s_mov_b64 exec, 1
    buffer_store_dword v{U0}, v{U1}, s[{sD}:{sD+3}], 0 offen sc1
    s_mov_b64 exec, -1''')
    a.label('kf_noset')
    for i in range(NPRE2, 3): stage(i)
    stampat('A')
    a(f'''v_lshlrev_b32 v{U3}, 4, v0
    v_add_u32 v{U0}, {TAB}, v{U3}
    ds_read_b128 {vr(UQ,4)}, v{U0}
    ds_read_b128 {vr(UQ+4,4)}, v{U0} offset:8192
    s_mul_i32 s{sT}, s2, {CST}
    s_add_u32 s{sTbase}, s{sT}, 8192
    s_cmp_gt_u32 s{sWV}, 2
    s_waitcnt lgkmcnt(0)
    s_cbranch_scc1 kf_nost2
    buffer_store_dwordx4 {vr(UQ+4,4)}, v{U3}, {WS}, s{sTbase} offen sc1''')
    a.label('kf_nost2')
    a(f'buffer_store_dwordx4 {vr(UQ,4)}, v{U3}, {WS}, s{sT} offen sc1')
    vm.issue('cells')
    stampat('E')
    a(f'''s_cmp_lg_u32 s{sWV}, 0
    s_cbranch_scc1 kf_nodb
    v_mov_b32 v{vDB}, 0
    buffer_load_dword v{vDB}, v{vDB}, s[{sD}:{sD+3}], 0 offen sc1''')
    a.label('kf_nodb')
    a(f'''s_cmp_lg_u32 s{sWV}, 7
    s_cbranch_scc1 kf_norl
    s_cmp_ge_u32 s2, 128
    s_cbranch_scc1 kf_norl
    v_lshrrev_b32 v{U0}, 4, v{vLane}
    v_lshlrev_b32 v{U0}, 11, v{U0}
    v_bfe_u32 v{U1}, v{vLane}, 2, 2
    v_lshl_add_u32 v{U0}, v{U1}, 4, v{U0}
    v_and_b32 v{U1}, 3, v{vLane}
    v_lshl_add_u32 v{U0}, v{U1}, 1, v{U0}
    s_bfe_u32 s{sTmp}, s2, 0x30001
    s_lshl_b32 s{sTmp2}, s{sTmp}, 14
    s_add_u32 s{sTmp2}, s{sTmp2}, {256*512}
    s_bfe_u32 s{sTmp}, s2, 0x30004
    s_lshl_b32 s{sTmp}, s{sTmp}, 6
    s_add_u32 s{sTmp2}, s{sTmp2}, s{sTmp}
    s_and_b32 s{sTmp}, s2, 1
    s_lshl_b32 s{sTmp}, s{sTmp}, 3
    s_add_u32 s{sTmp2}, s{sTmp2}, s{sTmp}
    s_add_u32 s{sTmp}, s{sTmp2}, 8192''')
    for e in range(0, 8, 2):
        a(f'''buffer_load_ushort v{RL+e}, v{U0}, s[{sU}:{sU+3}], s{sTmp2} offen offset:{(e>>1)*512}
        buffer_load_ushort v{RL+e+1}, v{U0}, s[{sU}:{sU+3}], s{sTmp} offen offset:{(e>>1)*512}''')
    a.label('kf_norl')
    stampat('B')
    def breads(i, nowait=False):
        if not nowait: a(vm.wait(f'st{i}'))
        for ks in range(2):
            for c in range(2):
                for t_ in range(2):
                    a(f'ds_read_b64_tr_b16 {vr(BF+(i&1)*16+ks*8+c*4+t_*2,2)}, v{aB+c} offset:{(i%3)*4096+(32*ks+4*t_)*64}')
    def compute(i, nowait=False):
        a('s_waitcnt lgkmcnt(0)')
        if i + 3 < 8: stage(i + 3)
        for ks in range(2):
            s_ = (2 * i + ks) & 7
            for rt in range(3):
                for c in range(2):
                    d = PD + (rt * 2 + c) * 4
                    cin = '0' if s_ == 0 else vr(d, 4)
                    a(f'v_mfma_f32_16x16x32_bf16 {vr(d,4)}, {vr(AX+(s_*3+rt)*4,4)}, {vr(BF+(i&1)*16+ks*8+c*4,4)}, {cin}')
                    if ks == 0 and rt == 0 and c == 1 and i + 1 < 8 and i != 3: breads(i + 1, nowait)
    def poll(off, lab, PR):
        a(f'''s_and_b32 s{sTmp}, s2, 7
        s_lshl_b32 s{sTmp}, s{sTmp}, 10
        s_add_u32 s{sTmp}, s{sTmp}, {off - WS_CELLS}
        s_mov_b32 s{sPoll}, {POLL_LIMIT}''')
        a.label(lab)
        a(f'''buffer_load_dwordx4 {vr(PR,4)}, v{vL16}, {WS}, s{sTmp} offen sc1
        s_waitcnt vmcnt(0)
        v_and_b32 v{PR}, v{PR}, v{PR+1}
        v_and_b32 v{PR+2}, v{PR+2}, v{PR+3}
        v_and_b32 v{PR}, v{PR}, v{PR+2}
        v_cmp_eq_u32 vcc, 1, v{PR}
        s_cmp_eq_u64 vcc, -1
        s_cbranch_scc1 {lab}_ok
        s_sleep 1
        s_sub_u32 s{sPoll}, s{sPoll}, 1
        s_cbranch_scc0 {lab}''')
        a.label(lab + '_ok')
    def tile_out():
        a(f'''s_mov_b32 s{sSv}, {hex(f2u(-LOG2E))}
        s_mov_b32 s{sSv+1}, {hex(f2u(-LOG2E))}
        s_nop 5''')
        for rt in range(3):
            if rt == 2: a('s_mov_b32 exec_hi, 0')
            for h in range(4):
                d = PD + rt * 8 + 2 * h
                a(f'v_pk_mul_f32 {pr(d)}, {pr(d)}, s[{sSv}:{sSv+1}]')
            for rr in range(4):
                d0 = PD + rt * 8 + rr
                a(f'v_cvt_pk_bf16_f32 v{d0}, v{d0}, v{d0+4}\nds_write_b32 v{aTO}, v{d0} offset:{(16*rt+rr)*QSTR}')
        a('s_mov_b32 exec_hi, -1')
    def signal(off, lab):
        a(f'''s_cmp_lg_u32 s{sWV}, 0
        s_cbranch_scc1 {lab}
        v_lshlrev_b32 v{TOUCH}, 10, v{vLane}
        v_mov_b32 v{TOUCH+1}, 1
        s_lshl_b32 s{sTmp}, s2, 2
        s_add_u32 s{sTmp}, s{sTmp}, {off - WS_CELLS}
        s_mov_b64 exec, 0xff
        buffer_store_dword v{TOUCH+1}, v{TOUCH}, {WS}, s{sTmp} offen sc1
        s_mov_b64 exec, -1''')
        a.label(lab)
    for x in axr[:12]: a(x)
    a('s_waitcnt lgkmcnt(6)')
    for ct in range(2):
        for k in range(4): a(f'ds_read_u16 v{W3+4*ct+k}, v{aW3} offset:{k*512+ct*64}')
    a('s_waitcnt lgkmcnt(2)')
    for x in axr[12:]: a(x)
    a('s_waitcnt lgkmcnt(6)')
    stampat('C')
    breads(0)
    stampat('p')
    compute(0)
    stampat('d')
    compute(1); stampat('r')
    a(f's_mov_b32 s{sTmp}, {hex(f2u(-LOG2E))}')
    for k in range(8): a(f'v_lshlrev_b32 v{W3+k}, 16, v{W3+k}\nv_mul_f32 v{W3+k}, s{sTmp}, v{W3+k}')
    for p in range(4): a(f'v_cvt_pk_bf16_f32 v{W3+p}, v{W3+2*p}, v{W3+2*p+1}')
    a(vm.wait('cells'))
    a(f'''s_cmp_lg_u32 s{sWV}, 0
    s_cbranch_scc1 kf_initok
    s_mov_b32 s{sPoll}, {POLL_LIMIT}''')
    a.label('kf_initpoll')
    a(f'''v_readfirstlane_b32 s{sTmp}, v{vDB}
    s_cmp_lg_u32 s{sTmp}, 0
    s_cbranch_scc1 kf_initok
    v_mov_b32 v{vDB}, 0
    s_sleep 2
    buffer_load_dword v{vDB}, v{vDB}, s[{sD}:{sD+3}], 0 offen sc1
    s_waitcnt vmcnt(0)
    s_sub_u32 s{sPoll}, s{sPoll}, 1
    s_cbranch_scc0 kf_initpoll''')
    a.label('kf_initok')
    a('s_barrier')
    signal(WS_FLAG, 'kf_sigA')
    stampat('k')
    compute(2); stampat('s')
    compute(3); stampat('t')
    tile_out()
    a('s_waitcnt lgkmcnt(0)\ns_barrier')
    stampat('l')
    a(f'''s_cmp_lg_u32 s{sWV}, 7
    s_cbranch_scc1 kf_norl2
    s_cmp_ge_u32 s2, 128
    s_cbranch_scc1 kf_norl2''')
    for p in range(4): a(f'v_lshl_or_b32 v{BF+16+p}, v{RL+2*p+1}, 16, v{RL+2*p}')
    a(f'''s_lshl_b32 s{sTmp}, s2, 10
    s_add_u32 s{sTmp}, s{sTmp}, {WS_WF - WS_CELLS}
    buffer_store_dwordx4 {vr(BF+16,4)}, v{vL16}, {WS}, s{sTmp} offen sc1
    s_nop 1''')
    a.label('kf_norl2')
    a(f'''ds_read_b128 {vr(UQ,4)}, v{PR0}
    ds_read_b128 {vr(UQ+4,4)}, v{PR0} offset:{16*QSTR}
    ds_read_b128 {vr(TOUCH,4)}, v{PR1}
    s_lshl_b32 s{sTmp}, s{sN0}, 9
    s_lshl_b32 s{sTmp2}, s{sWV}, 10
    s_add_u32 s{sTmp2}, s{sTmp2}, s{sTmp}
    s_lshl_b32 s{sTmp3}, s{sWV}, 9
    s_add_u32 s{sTmp}, s{sTmp}, s{sTmp3}
    s_add_u32 s{sTmp}, s{sTmp}, 16384
    s_waitcnt lgkmcnt(2)
    buffer_store_dwordx4 {vr(UQ,4)}, v{PG0}, s[{sPw}:{sPw+3}], s{sTmp2} offen sc1
    s_add_u32 s{sTmp2}, s{sTmp2}, 8192
    s_waitcnt lgkmcnt(1)
    buffer_store_dwordx4 {vr(UQ+4,4)}, v{PG0}, s[{sPw}:{sPw+3}], s{sTmp2} offen sc1
    s_mov_b32 exec_hi, 0
    s_waitcnt lgkmcnt(0)
    buffer_store_dwordx4 {vr(TOUCH,4)}, v{PG1}, s[{sPw}:{sPw+3}], s{sTmp} offen sc1
    s_mov_b32 exec_hi, -1''')
    for _ in range(3): vm.issue('pst')
    def rec_loads(tab, t0, t1, lab):
        a(f'''v_and_b32 v{t1}, 1, v0
        v_and_b32 v{t0}, 0xffff, v{tab}
        v_add_u32 v{t0}, v{t0}, v{t1}
        v_lshl_add_u32 v{t0}, v{t0}, 4, v{vNOVF}
        v_lshrrev_b32 v{tab}, 16, v{tab}
        v_sub_u32 v{t1}, v{tab}, v{t1}
        v_add_u32 v{t1}, 1, v{t1}
        v_lshrrev_b32 v{t1}, 1, v{t1}''')
        for i in range(8): a(f'v_cmp_lt_u32 s[{sMask+2*i}:{sMask+2*i+1}], {i}, v{t1}')
        a(f'v_cmp_lt_u32 s[{sOv}:{sOv+1}], 8, v{t1}')
        for i in range(8):
            a(f'''s_mov_b64 exec, s[{sMask+2*i}:{sMask+2*i+1}]
            s_cbranch_execz {lab}
            buffer_load_dwordx3 {vr(REC+4*i,3)}, v{t0}, {WS}, 0 offen offset:{1024+32*i}{LD}''')
        a.label(lab)
        a('s_mov_b64 exec, -1')
    srd(a, sO, 16, N * 512)
    breads(4)
    compute(4); stampat('u')
    compute(5); stampat('v')
    a(f's_cmp_lg_u32 s{sWV}, 0\ns_cbranch_scc1 kf_pollA_ok')
    poll(WS_FLAG, 'kf_pollA', UQ)
    a(vm.wait('st7') + '\ns_barrier')
    a(f'''s_lshl_b32 s{sTmp}, s0, 2
    buffer_load_dword v{vDB}, v{vNOVF}, {WS}, s{sTmp} offen{LD}''')
    vm.issue('tab')
    signal(WS_FLAG + 8192, 'kf_sigB')
    stampat('o')
    compute(6, nowait=True); compute(7); stampat('x')
    for i in range(4): a(f'v_mov_b32 v{XR+8+i}, v{vW+i}')
    a(f'''v_and_b32 v{U0}, 3, v{vLane}
    v_lshlrev_b32 v{U0}, 3, v{U0}
    v_sub_u32 v{aB}, v{aB}, v{U0}
    v_lshlrev_b32 v{U0}, 1, v{U0}
    v_xor_b32 v{aB}, v{aB}, v{U0}''')
    a(vm.wait('tab'))
    rec_loads(vDB, TOUCH, TOUCH + 1, 'kf_recend')
    stampat('w')
    def w1reads(i, reg):
        for ks in range(2):
            for c in range(2):
                for t_ in range(2):
                    a(f'ds_read_b64_tr_b16 {vr(W1F[((i-8)*2+ks)*2+c]+2*t_,2)}, v{reg} offset:{(i%3)*4096+(32*ks+4*t_)*64+8*c}')
    tile_out()
    a(f'v_mov_b32 v{B2A}, v{W3}\nv_mov_b32 v{B2A+1}, v{W3+1}\nv_mov_b32 v{B2B}, v{W3+2}\nv_mov_b32 v{B2B+1}, v{W3+3}')
    stampat('n')
    a(f'''s_sub_u32 s{sP}, s{sPw}, 3072
    s_subb_u32 s{sP+1}, s{sPw+1}, 0
    s_or_b32 s{sP+1}, s{sP+1}, {512 << 16}
    s_mov_b32 s{sP+2}, {0 if opt.get('nogather') else N}
    s_mov_b32 s{sP+3}, 0x20000
    v_mov_b32 v{TQ}, 0
    v_mov_b32 v{TQ+1}, 0
    v_mov_b32 v{TQ+2}, 0
    v_mov_b32 v{TQ+3}, 0
    s_mov_b32 s{sHeavy}, 0
    s_mov_b32 s{sB}, 0
    s_mov_b32 s{sRdone}, 0
    s_mov_b32 s{sAcc}, 0
    s_mov_b32 s{sEAT}, {EAT}
    s_cmp_lg_u32 s{sWV}, 7
    s_cbranch_scc1 k2_nooh
    v_add_u32 v{T0}, {QT + 40*QSTR}, v{vL16}
    ds_write_b128 v{T0}, {vr(TQ,4)}
    ds_write_b128 v{T0}, {vr(TQ,4)} offset:1024
    ds_write_b128 v{T0}, {vr(TQ,4)} offset:2048
    ds_write_b128 v{T0}, {vr(TQ,4)} offset:3072
    v_mul_u32_u24 v{T0}, {OSTR+2}, v{vLane}
    v_mov_b32 v{T2}, 0x3f80
    v_add_u32 v{T0}, {OH}, v{T0}
    s_mov_b32 exec_hi, 0xff
    ds_write_b16 v{T0}, v{T2}
    s_mov_b32 exec_hi, -1''')
    a.label('k2_nooh')
    a(f's_cmp_lg_u32 s{sWV}, 0\ns_cselect_b32 s{sBok}, 1, 0\ns_branch k2_first')
    a.label('k2_batch')
    for i in range(4): a(f'v_mov_b32 v{TQ+i}, 0')
    list_prefill(TQ, DL4, T0, T1)
    list_consts(T0, T1, T2, T3)
    a('s_waitcnt lgkmcnt(0)\ns_barrier')
    a.label('k2_first')
    stampat(1)
    a(f'''v_lshrrev_b32 v{T2}, 5, v{vLane}
    v_and_b32 v{T3}, 31, v{vLane}
    v_lshlrev_b32 v{T0}, 3, v{T2}
    v_sub_u32 v{T0}, v{T3}, v{T0}
    v_mov_b32 v{T1}, 0x3f80
    v_and_b32 v{aQ}, 1, v{T0}
    v_lshlrev_b32 v{aQ}, 4, v{aQ}
    v_lshlrev_b32 v{T1}, v{aQ}, v{T1}
    v_lshrrev_b32 v{T0}, 1, v{T0}''')
    for k, reg in enumerate([I0, I0+1, I0+2, I0+3, I1, I1+1, I1+2, I1+3]):
        c = k if k < 4 else k + 4
        m = 'vcc' if k % 2 == 0 else f's[{sSv}:{sSv+1}]'
        a(f'v_cmp_eq_u32 {m}, {c}, v{T0}')
        if k:
            pk, preg = k - 1, [I0, I0+1, I0+2, I0+3, I1, I1+1, I1+2, I1+3][k-1]
            a('s_nop 0')
            a(f'v_cndmask_b32 v{preg}, 0, v{T1}, ' + ('vcc' if pk % 2 == 0 else f's[{sSv}:{sSv+1}]'))
    a(f'''v_mov_b32 v{A2}, 0
    v_mov_b32 v{A2+1}, 0
    v_cndmask_b32 v{I1+3}, 0, v{T1}, s[{sSv}:{sSv+1}]
    v_mov_b32 v{A2+2}, 0
    v_mov_b32 v{A2+3}, 0
    s_mov_b32 s{sQs}, {QSTR//4}
    s_mov_b32 s{sOs}, {OSTR//4}''')
    for d in range(4):
        a(f'v_mov_b32 v{IDX1+2*d+1}, v{IDX+2*d+1}\nv_mov_b32 v{IDX2+2*d+1}, v{IDX+2*d+1}')
    a(f'v_mov_b32 v{T3}, 1')
    stampat('e')
    a('s_waitcnt vmcnt(0)')
    stampat(2)
    for i in range(8):
        a(f'''s_mov_b64 exec, s[{sMask+2*i}:{sMask+2*i+1}]
        s_cbranch_execz kf_histend
        v_lshrrev_b32 v{DL4+i}, 14, v{REC+4*i+2}
        v_add_u32 v{T1}, {CNT}, v{DL4+i}
        ds_add_rtn_u32 v{RK+i}, v{T1}, v{T3}''')
    a(f'''s_mov_b64 exec, s[{sOv}:{sOv+1}]
    v_mov_b32 v{T1}, {CNT + 252}
    ds_add_u32 v{T1}, v{T3}''')
    a.label('kf_histend')
    a(f'''s_mov_b64 exec, -1
    v_lshlrev_b32 v{T0}, 2, v{vLane}
    v_add_u32 v{T0}, {CNT}, v{T0}
    s_waitcnt lgkmcnt(0)
    s_nop 0''')
    w1pos = opt.get('w1pos', 'r,g,r').split(',')
    def w1stage(pos):
        for i in (8, 9, 10):
            if w1pos[i - 8] == pos:
                a(f's_or_b32 s{sTmp2}, s{sHeavy}, s{sRdone}\ns_cbranch_scc1 kf_nost{i}')
                stage(i)
                a.label(f'kf_nost{i}')
    w1stage('g')
    stampat('f')
    a('s_barrier')
    stampat('g')
    a(f'ds_read_b32 v{T1}, v{T0}\nv_cmp_gt_u32 vcc, 40, v{vLane}')
    w1stage('r')
    a(f'''s_cmp_lg_u32 s{sBok}, 0
    s_cbranch_scc1 kf_nopk1
    s_and_b32 s{sTmp}, s2, 7
    s_lshl_b32 s{sTmp}, s{sTmp}, 10
    s_add_u32 s{sTmp}, s{sTmp}, {WS_FLAG + 8192 - WS_CELLS}
    buffer_load_dwordx4 {vr(IDX3,4)}, v{vL16}, {WS}, s{sTmp} offen sc1''')
    a.label('kf_nopk1')
    dpp = ['row_shr:1 row_mask:0xf bank_mask:0xf', 'row_shr:2 row_mask:0xf bank_mask:0xf', 'row_shr:4 row_mask:0xf bank_mask:0xf',
           'row_shr:8 row_mask:0xf bank_mask:0xf', 'row_bcast:15 row_mask:0xa bank_mask:0xf', 'row_bcast:31 row_mask:0xc bank_mask:0xf']
    a(f'''s_waitcnt lgkmcnt(0)
    v_readlane_b32 s{sT1}, v{T1}, 63
    v_add_u32 v{T1}, 3, v{T1}
    v_lshrrev_b32 v{T1}, 2, v{T1}
    v_cndmask_b32 v{T1}, 0, v{T1}, vcc
    v_mov_b32 v{T2}, v{T1}
    s_lshl_b32 s{sTmp3}, s{sT1}, 8
    s_nop 0''')
    for k, d in enumerate(dpp):
        a(f'v_add_u32_dpp v{T2}, v{T2}, v{T2} {d}' + (' bound_ctrl:0' if k < 4 else ''))
        a('s_nop 1' if k < 5 else 's_nop 0')
    a(f'''v_readlane_b32 s{sQt}, v{T2}, 63
    v_sub_u32 v{T1}, v{T2}, v{T1}
    v_add_u32 v{T2}, 7, v{T1}
    v_lshrrev_b32 v{T2}, 3, v{T2}
    s_add_u32 s{sTmp}, s{sQt}, 7
    v_sub_u32 v{T0}, s{sTmp}, v{T1}
    v_lshrrev_b32 v{T0}, 3, v{T0}
    v_add_u32 v{T2}, v{T2}, v{T0}
    v_lshlrev_b32 v{T0}, 1, v{T1}
    v_sad_u32 v{T0}, v{T0}, s{sQt}, 0
    v_lshl_add_u32 v{T2}, v{T2}, 5, v{T0}
    v_subrev_u32 v{T0}, 8, v{vLane}
    v_lshl_add_u32 v{T2}, v{T2}, 6, v{vLane}
    v_cmp_gt_u32 vcc, 25, v{T0}
    s_nop 1
    v_cndmask_b32 v{T2}, -1, v{T2}, vcc
    s_nop 1''')
    for k, d in enumerate(dpp):
        a(f'v_min_u32_dpp v{T2}, v{T2}, v{T2} {d}')
        a('s_nop 1' if k < 5 else 's_nop 0')
    a(f'''v_readlane_b32 s{sSplit}, v{T2}, 63
    s_and_b32 s{sSplit}, s{sSplit}, 63
    s_cmp_lg_u32 s{sHeavy}, 0
    s_cselect_b32 s{sSplit}, 20, s{sSplit}
    s_nop 0
    v_readlane_b32 s{sTmp}, v{T1}, s{sSplit}
    v_cmp_le_u32 vcc, s{sSplit}, v{vLane}
    s_add_u32 s{sT0}, s{sTmp}, 7
    s_lshr_b32 s{sT0}, s{sT0}, 3
    s_sub_u32 s{sT1}, s{sQt}, s{sTmp}
    s_add_u32 s{sT1}, s{sT1}, 7
    s_lshr_b32 s{sT1}, s{sT1}, 3
    s_add_u32 s{sTmp2}, s{sT0}, s{sT1}
    s_add_u32 s{sTmp2}, s{sTmp2}, s{sTmp3}
    s_cmp_le_u32 s{sTmp2}, {NT}
    s_cbranch_scc1 k2_fits
    s_mov_b32 s{sHeavy}, 1
    s_branch k2_hentry''')
    a.label('k2_fits')
    stampat('h')
    a(f'''s_lshl_b32 s{sTmp2}, s{sT0}, 3
    s_sub_u32 s{sTmp2}, s{sTmp2}, s{sTmp}
    v_mov_b32 v{T2}, s{sTmp2}
    v_cndmask_b32 v{T2}, 0, v{T2}, vcc
    v_add_lshl_u32 v{T1}, v{T1}, v{T2}, 2''')
    for i in range(8):
        if i in (2, 4, 6): a(f's_cmp_eq_u64 s[{sMask+2*i}:{sMask+2*i+1}], 0\ns_cbranch_scc1 kf_bpend')
        a(f'ds_bpermute_b32 v{TQ+i}, v{DL4+i}, v{T1}')
    a.label('kf_bpend')
    a(f'''s_cmp_eq_u32 s{sG}, 0
    s_cselect_b32 s{sT}, s{sT0}, s{sT1}
    s_cselect_b32 s{sTbase}, 0, s{sT0}
    s_cselect_b32 s{sTmp2}, 0, 192
    s_lshl_b32 s{sT0}, s{sT0}, 5
    s_lshl_b32 s{sTmp}, s{sTbase}, 6
    s_add_u32 s{sTmp}, s{sTmp}, s{sTmp2}
    s_add_u32 s{sTmp}, s{sTmp}, {SRC}
    v_add_u32 v{aSRC}, s{sTmp}, v{aSRC}
    s_lshl_b32 s{sTmp}, s{sTbase}, 9
    s_add_u32 s{sTmp}, s{sTmp}, {EAT}
    v_add_u32 v{aEAT}, s{sTmp}, v{aEAT}
    s_lshl_b32 s{sTmp}, s{sTbase}, 3
    s_add_u32 s{sTmp}, s{sTmp}, {XL}
    v_add_u32 v{aXL}, s{sTmp}, v{aXL}
    v_mov_b32 v{vX}, {SRC}
    v_mov_b32 v{aQ}, {SRC+192}''')
    a(f'v_mov_b32 v{S}, 0x3f80\nv_mov_b32 v{S+1}, 0\ns_mov_b32 s{sTmp}, {XL}\ns_waitcnt lgkmcnt(0)')
    for i in range(8):
        er = REC + 4 * i
        a(f'''s_mov_b64 exec, s[{sMask+2*i}:{sMask+2*i+1}]
        s_cbranch_execz kf_scend
        v_add_u32 v{RK+i}, v{RK+i}, v{TQ+i}
        v_cmp_gt_u32 vcc, s{sT0}, v{RK+i}
        v_lshrrev_b32 v{T2}, 2, v{RK+i}
        v_and_b32 v{T0}, 12, v{RK+i}
        v_cndmask_b32 v{T1}, v{aQ}, v{vX}, vcc
        v_add_u32 v{T2}, s{sTmp}, v{T2}
        v_lshl_add_u32 v{T1}, v{RK+i}, 1, v{T1}
        v_lshlrev_b32 v{T0}, 2, v{T0}
        ds_write_b16 v{T1}, v{er+2}
        ds_write_b8 v{T2}, v{DL4+i}
        v_lshl_add_u32 v{RK+i}, v{RK+i}, 4, s{sEAT}
        v_lshlrev_b64 {vr(er+2,2)}, v{T0}, {vr(S,2)}
        ds_write_b128 v{RK+i}, {vr(er,4)}''')
    a.label('kf_scend')
    a('s_mov_b64 exec, -1')
    a(f's_waitcnt vmcnt(0)\ns_cmp_lg_u32 s{sRdone}, 0\ns_cbranch_scc1 kf_now1\ns_waitcnt lgkmcnt(4)')
    w1reads(9, aB)
    a.label('kf_now1')
    a(f'''s_cmp_lg_u32 s{sBok}, 0
    s_cbranch_scc1 kf_nopeek
    v_and_b32 v{IDX3}, v{IDX3}, v{IDX3+1}
    v_and_b32 v{IDX3+2}, v{IDX3+2}, v{IDX3+3}
    v_and_b32 v{IDX3}, v{IDX3}, v{IDX3+2}
    v_cmp_eq_u32 vcc, 1, v{IDX3}
    s_cmp_eq_u64 vcc, -1
    s_cbranch_scc0 kf_nopeek
    {INV}
    s_mov_b32 s{sBok}, 1''')
    a.label('kf_nopeek')
    a(f's_cmp_lg_u32 s{sBok}, 0\ns_cbranch_scc1 kf_bdone')
    poll(WS_FLAG + 8192, 'kf_pollB', TQ + 4)
    a(f'{INV}\ns_mov_b32 s{sBok}, 1\ns_waitcnt vmcnt(0)')
    a.label('kf_bdone')
    for x in (MA, MA + 1, MB, MB + 1, S, S + 1): a(f'v_mov_b32 v{x}, 0')
    for d in range(4): a(f'v_mov_b32 v{IDX3+2*d+1}, v{IDX+2*d+1}')
    a(f'v_mov_b32 v{T3}, v{aB}\ns_waitcnt lgkmcnt(0)\ns_barrier')
    vm.ops = []
    stampat(3)
    DOFF = [0, 4, 16, 20]
    def idx_reads(base, toff):
        return [f'ds_read_u16 v{base+2*d}, v{aSRC} offset:{toff*64+DOFF[d]}' for d in range(4)]
    def dma_ins(base, d, tag):
        vm.issue(tag)
        return f'buffer_load_dwordx4 {vr(base+2*d,2)}, s[{sP}:{sP+3}], 0 idxen offen offset:{d*1024} lds'
    for x in idx_reads(IDX1, 0) + idx_reads(IDX2, 1): a(x)
    a(f's_mov_b32 m0, s{sRing}\ns_waitcnt lgkmcnt(4)')
    for d in range(4): a(dma_ins(IDX1, d, 'dma0'))
    a(f's_cmp_lg_u32 s{sRdone}, 0\ns_cbranch_scc1 kf_now2')
    w1reads(10, T3)
    a('s_waitcnt lgkmcnt(4)')
    w1reads(8, T3)
    a('s_waitcnt lgkmcnt(0)')
    sv_ = list(vm.ops)
    stage(11)
    vm.ops = sv_
    a.label('kf_now2')
    a(f's_add_u32 m0, s{sRing}, 4096\ns_waitcnt lgkmcnt(0)')
    for d in range(4): a(dma_ins(IDX2, d, 'dma1'))
    stampat(4)
    def gemm(acc, frag, addr, wregs, first, waitv, hook=None):
        def rd(s):
            for rt in range(3):
                f = frag + (s & 1) * 12 + rt * 4
                a(f'ds_read_b128 {vr(f,4)}, v{addr+(s&3)} offset:{rt*8192+(s>>2)*256}')
        rd(0)
        for s in range(8):
            if s + 1 < 8:
                rd(s + 1); w = 'lgkmcnt(3)'
            else: w = 'lgkmcnt(0)'
            wv = waitv(s)
            a((wv + ' ' + w) if wv else 's_waitcnt ' + w)
            if hook: hook(s)
            for rt in range(3):
                for c in range(2):
                    d = acc[rt * 2 + c]; f = frag + (s & 1) * 12 + rt * 4
                    cin = '0' if (first and s == 0) else vr(d, 4)
                    a(f'v_mfma_f32_16x16x32_bf16 {vr(d,4)}, {vr(f,4)}, {vr(wregs(s*2+c),4)}, {cin}')
    def xaddr(dst, t0, t1):
        a(f'''v_and_b32 v{t0}, 15, v{vLane}
        v_lshrrev_b32 v{t1}, 4, v{vLane}
        v_xor_b32 v{t1}, v{t1}, v{t0}
        v_lshlrev_b32 v{t1}, 4, v{t1}
        v_lshl_add_u32 v{t0}, v{t0}, 9, v{t1}
        v_add_u32 v{dst}, {XT}, v{t0}''')
        for s_ in range(1, 4):
            a(f'v_xor_b32 v{t1}, {s_<<6}, v{t0}\nv_add_u32 v{dst+s_}, {XT}, v{t1}')
    a(f's_cmp_lg_u32 s{sRdone}, 0\ns_cbranch_scc1 kf_nor')
    xaddr(RK, T0, T1)
    def hook(s_):
        if s_ == 5:
            a('s_waitcnt vmcnt(4)')
            w1reads(11, T3)
            a('s_waitcnt lgkmcnt(8)')
    gemm([OA + 4 * i for i in range(6)], REC, RK, lambda i: W1F[i], True, lambda s_: None, hook)
    a(f'''s_mov_b32 s{sRdone}, 1
    v_mov_b32 v{T0}, {HMAX+4}
    v_mov_b32 v{T1}, 1
    s_mov_b64 exec, 1
    ds_add_u32 v{T0}, v{T1}
    s_mov_b64 exec, -1''')
    for i in range(4): a(f'v_mov_b32 v{XR+i}, v{RK+i}')
    a(f'''v_and_b32 v{T0}, 31, v{vLane}
    s_lshl_b32 s{sTmp2}, s{sG}, 3
    v_add_u32 v{T0}, s{sTmp2}, v{T0}
    v_cmp_gt_u32 vcc, s{sSplit}, v{T0}
    s_cmp_eq_u32 s{sG}, 0
    s_cselect_b64 s[{sNM}:{sNM+1}], 0, -1
    s_xor_b64 s[{sNM}:{sNM+1}], s[{sNM}:{sNM+1}], vcc
    v_and_b32 v{T2}, 15, v{T0}
    s_lshl_b32 s{sTmp2}, s{sCQ}, 3
    v_xor_b32 v{T2}, s{sTmp2}, v{T2}
    v_lshlrev_b32 v{T2}, 4, v{T2}
    v_lshl_add_u32 v{T2}, v{T0}, 9, v{T2}
    v_lshrrev_b32 v{T1}, 5, v{vLane}
    v_lshl_add_u32 v{T2}, v{T1}, 3, v{T2}
    v_add_u32 v{XR+4}, {XT}, v{T2}
    v_and_b32 v{T0}, 15, v{vLane}
    v_lshrrev_b32 v{T1}, 4, v{vLane}
    v_and_b32 v{T2}, 2, v{vLane}
    v_lshlrev_b32 v{T0}, 2, v{T0}
    v_cmp_eq_u32 vcc, 0, v{T2}
    v_lshl_add_u32 v{XR+6}, v{T1}, 11, v{T0}
    v_mov_b32 v{T0}, 0x05040100
    v_mov_b32 v{T1}, 0x07060302
    v_cndmask_b32 v{XR+5}, v{T1}, v{T0}, vcc
    v_mov_b32 v{XR+7}, {HMAX+4}''')
    a.label('kf_nor')
    for x in range(4): a(f'v_mov_b32 v{NF+x}, 0\nv_mov_b32 v{DF+x}, 1.0')
    stampat(5)
    a(f'''s_cmp_eq_u32 s{sT}, 0
    s_cbranch_scc1 k2_loopend
    ds_read_u8 v{vX}, v{aXL}
    s_mov_b64 exec, s[{sHM}:{sHM+1}]
    ds_read_b128 {vr(A2,4)}, v{aEAT}
    s_mov_b64 exec, -1''')
    a(vm.wait('dma0'))
    a(f'''ds_read_b128 {vr(PA,4)}, v{aP}
    ds_read_b128 {vr(PA+4,4)}, v{aP+1}
    ds_read_b128 {vr(PB,4)}, v{aP+2}
    ds_read_b128 {vr(PB+4,4)}, v{aP+3}
    s_waitcnt lgkmcnt(5)
    v_mad_u32_u24 v{aQ}, v{vX}, s{sQs}, v{cQ}
    v_mad_u32_u24 v{aS}, v{vX}, s{sOs}, v{cS}
    ds_read_u8 v{vX}, v{aXL} offset:8
    ds_read_b64_tr_b16 {vr(B2A+2,2)}, v{aQ}
    ds_read_b64_tr_b16 {vr(B2B+2,2)}, v{aQ} offset:64''')
    for x in idx_reads(IDX3, 2) + idx_reads(IDX, 3): a(x)
    a(f's_sub_u32 s{sCnt}, s{sT}, 1\ns_waitcnt lgkmcnt(9)')
    def zchain(D, B2, P):
        return [f'v_mfma_f32_32x32x16_bf16 {vr(D,16)}, {vr(A2,4)}, {vr(B2,4)}, 0',
                f'v_mfma_f32_32x32x16_bf16 {vr(D,16)}, {vr(P,4)}, {vr(I0,4)}, {vr(D,16)}',
                f'v_mfma_f32_32x32x16_bf16 {vr(D,16)}, {vr(P+4,4)}, {vr(I1,4)}, {vr(D,16)}']
    for m in zchain(DA, B2A, PA): a(m)
    if prio == 'young': a(f's_cmp_eq_u32 s{sG}, 0\ns_cbranch_scc1 k2_noprio\ns_setprio 1\nk2_noprio:')
    a('s_nop 7\ns_nop 3')
    stampat(6)

    cur = {'pT': None, 'pP': None}
    def half(D, accprev, Mprev, Mfin, zc, extra_T, extra_P):
        Ts = [f'v_exp_f32 v{EE+i}, v{D+i}' for i in range(16)] + [f'v_rcp_f32 v{DF+i}, v{DF+i}' for i in range(4)]
        mf = [f'v_mfma_f32_32x32x8_bf16 {vr(accprev,16)}, {vr(Mprev,2)}, {vr(S,2)}, {vr(accprev,16)}'] + zc
        if cur['pT'] is not None: a(f's_setprio {cur["pT"]}')
        for k in range(4):
            if k == 0 and cur.get('first'):
                lab = cur['first']
                a(f's_cmp_lg_u32 s{sAcc}, 0\ns_cbranch_scc1 {lab}_a')
                a(f'v_mfma_f32_32x32x8_bf16 {vr(accprev,16)}, {vr(Mprev,2)}, {vr(S,2)}, 0')
                a.label(lab + '_a')
                continue_T = True
                for x in extra_T.get(k, []): a(x)
                for t_ in Ts[5 * k:5 * k + 5]: a(t_)
                continue
            a(mf[k])
            for x in extra_T.get(k, []): a(x)
            for t_ in Ts[5 * k:5 * k + 5]: a(t_)
        if cur['pP'] is not None: a(f's_setprio {cur["pP"]}')
        Ps = [f'v_pk_fma_f32 {pr(EE+2*p)}, {pr(EE+2*p)}, s[{sC}:{sC+1}], s[{sC}:{sC+1}] clamp' for p in range(8)]
        Ps += [f'v_pk_mul_f32 {pr(NF)}, {pr(NF)}, {pr(DF)}', f'v_pk_mul_f32 {pr(NF+2)}, {pr(NF+2)}, {pr(DF+2)}']
        bs = [0, 4, 8, 12]
        Ps += [f'v_pk_mul_f32 {pr(D+b)}, {pr(D+b)}, {pr(EE+b+2)}' for b in bs]
        Ps += [f'v_cvt_pk_bf16_f32 v{Mfin}, v{NF}, v{NF+1}', f'v_cvt_pk_bf16_f32 v{Mfin+1}, v{NF+2}, v{NF+3}']
        Ps += [f'v_pk_fma_f32 {pr(D+b)}, {pr(D+b+2)}, {pr(EE+b)}, {pr(D+b)}' for b in bs]
        Ps += [f'v_pk_mul_f32 {pr(EE+b)}, {pr(EE+b)}, {pr(EE+b+2)}' for b in bs]
        Ps += [f'v_pk_mul_f32 {pr(NF+2*B)}, {pr(D+8*B)}, {pr(EE+8*B+4)}' for B in range(2)]
        Ps += [f'v_pk_mul_f32 {pr(DF+2*B)}, {pr(EE+8*B)}, {pr(EE+8*B+4)}' for B in range(2)]
        Ps += [f'v_pk_fma_f32 {pr(NF+2*B)}, {pr(D+8*B+4)}, {pr(EE+8*B)}, {pr(NF+2*B)}' for B in range(2)]
        for i, p in enumerate(Ps):
            for x in extra_P.get(i, []):
                a(x() if callable(x) else x)
            a(p)
    def spread(d, xs, start, step=1):
        for i, x in enumerate(xs):
            d.setdefault(start + i * step, []).extend(x if isinstance(x, list) else [x])
    wsched = [('u2', i) for i in range(16)]
    NPEEL = int(opt.get('npeel', 6))
    per = {6: [0, 3, 3, 3, 3, 4], 3: [4, 6, 6]}[NPEEL]
    def iteration(tau, u, peeled):
        sl = (u + 1) % 3
        a('s_waitcnt lgkmcnt(0)')
        eT = {3: [f'v_mad_u32_u24 v{aQ}, v{vX}, s{sQs}, v{cQ}', f'v_mad_u32_u24 v{aS+sl}, v{vX}, s{sOs}, v{cS}']}
        eP = {}
        spread(eP, [(lambda: vm.wait(f'dma{tau+1}')) if peeled else 's_waitcnt vmcnt(4)',
              f'ds_read_b128 {vr(PA,4)}, v{aP} offset:{sl*4096}', f'ds_read_b128 {vr(PA+4,4)}, v{aP+1} offset:{sl*4096}',
              f'ds_read_b64_tr_b16 {vr(B2A+2,2)}, v{aQ}',
              [f's_mov_b64 exec, s[{sHM}:{sHM+1}]', f'ds_read_b128 {vr(A2,4)}, v{aEAT} offset:{(u+1)*512}', 's_mov_b64 exec, -1'],
              f's_add_u32 m0, s{sRing}, {u*4096}'], 1)
        if peeled and tau == 0:
            eP[6] = [f's_add_u32 m0, s{sRing}, 8192']
            spread(eP, [(lambda d=d: dma_ins(IDX3, d, 'dma2')) for d in range(4)], 7, 3)
            eP.setdefault(18, []).append(f's_mov_b32 m0, s{sRing}')
            spread(eP, [(lambda d=d: dma_ins(IDX, d, 'dma3')) for d in range(4)], 19, 3)
        else:
            spread(eP, [(lambda d=d: dma_ins(IDX, d, f'dma{tau+3}')) for d in range(4)], 8, 7)
        cur['first'] = f'kf_f{cur["g"]}A' if (peeled and tau == 0) else None
        half(DA, ACCA, MA, MB, zchain(DB, B2B, PB), eT, eP)
        a('s_waitcnt lgkmcnt(0)')
        eP = {}
        xs = [f'ds_read_b128 {vr(PB,4)}, v{aP+2} offset:{sl*4096}', f'ds_read_b128 {vr(PB+4,4)}, v{aP+3} offset:{sl*4096}',
              f'ds_read_b64_tr_b16 {vr(B2B+2,2)}, v{aQ} offset:64', f'ds_read_b64_tr_b16 {vr(S,2)}, v{aS+u}',
              f'ds_read_u8 v{vX}, v{aXL} offset:{(u+2)*8}'] + idx_reads(IDX, u + 4)
        spread(eP, xs, 1, 2)
        if peeled and not opt.get('nowpf'):
            k0 = sum(per[:tau])
            for j, (m, i) in enumerate(wsched[k0:k0 + per[tau]]):
                def f(m=m, i=i):
                    ins = wload(WB2 + 4 * i, 2, i, 'wu')
                    return '\n'.join(ins)
                eP.setdefault(18 + 2 * j, []).append(f)
            if tau == NPEEL - 1: eP.setdefault(28, []).append(f's_mov_b32 s{sWdone}, 1')
        if u == 2:
            eP.setdefault(29, []).extend([f'v_add_u32 v{aSRC}, 192, v{aSRC}', f'v_add_u32 v{aEAT}, 1536, v{aEAT}', f'v_add_u32 v{aXL}, 24, v{aXL}'])
        eP.setdefault(29, []).append(f's_sub_u32 s{sCnt}, s{sCnt}, 1')
        cur['first'] = f'kf_f{cur["g"]}B' if (peeled and tau == 0) else None
        if cur['first']: eP.setdefault(27, []).append(f's_mov_b32 s{sAcc}, 1')
        half(DB, ACCB, MB, MA, zchain(DA, B2A, PA), {}, eP)
    spec = {'P': '01', 'none': 'xx', 'young': 'xx'}.get(prio, prio).split('|')
    saved = list(vm.ops)
    if len(spec) > 1: a(f's_cmp_lg_u32 s{sG}, 0\ns_cbranch_scc1 k2_g1')
    for g, sp in enumerate(spec):
        vm.ops = list(saved)
        sp = sp.split(',')
        def setp(k):
            x = sp[k % len(sp)]
            cur['pT'] = None if x[0] == 'x' else int(x[0]); cur['pP'] = None if x[1] == 'x' else int(x[1])
        cur['g'] = g
        if g: a.label('k2_g1')
        for tau in range(NPEEL):
            setp(tau)
            iteration(tau, tau % 3, True)
            a('s_cbranch_scc1 k2_drain')
        a.label(f'k2_loop{g}')
        for u in range(3):
            setp(u)
            iteration(100 + u, u, False)
            a('s_cbranch_scc1 k2_drain' if u < 2 else f's_cbranch_scc0 k2_loop{g}')
        if g + 1 < len(spec): a('s_branch k2_drain')
    a.label('k2_drain')
    a('s_setprio 0\ns_waitcnt lgkmcnt(0)')
    a(f'v_mfma_f32_32x32x8_bf16 {vr(ACCA,16)}, {vr(MA,2)}, {vr(S,2)}, {vr(ACCA,16)}')
    for i in range(4): a(f'v_rcp_f32 v{DF+i}, v{DF+i}')
    a('s_nop 0')
    for i in range(4): a(f'v_mul_f32 v{NF+i}, v{NF+i}, v{DF+i}')
    a(f'''v_cvt_pk_bf16_f32 v{MB}, v{NF}, v{NF+1}
    v_cvt_pk_bf16_f32 v{MB+1}, v{NF+2}, v{NF+3}
    s_nop 1
    v_mfma_f32_32x32x8_bf16 {vr(ACCB,16)}, {vr(MB,2)}, {vr(S,2)}, {vr(ACCB,16)}''')
    a.label('k2_loopend')
    stampat(7)
    a(f'''s_cmp_eq_u32 s{sHeavy}, 0
    s_cbranch_scc1 k2_epi
    s_add_u32 s{sB}, s{sB}, 1''')
    a.label('k2_fetch')
    a(f'''s_waitcnt vmcnt(0) lgkmcnt(0)
    s_barrier
    s_cmp_ge_u32 s{sB}, s{sHeavy}
    s_cbranch_scc1 k2_epi
    s_lshl_b32 s{sTmp}, s0, 2
    buffer_load_dword v{TQ}, v{vNOVF}, {WS}, s{sTmp} offen sc1
    v_and_b32 v{T1}, 1, v0
    s_lshl_b32 s{sTmp}, s{sB}, 1
    v_add_u32 v{T1}, s{sTmp}, v{T1}
    s_waitcnt vmcnt(0)
    v_and_b32 v{T0}, 0xffff, v{TQ}
    v_lshrrev_b32 v{TQ}, 16, v{TQ}
    v_add_u32 v{T0}, v{T0}, v{T1}
    v_cmp_lt_u32 s[{sMask}:{sMask+1}], v{T1}, v{TQ}
    v_lshl_add_u32 v{T0}, v{T0}, 4, v{vNOVF}
    buffer_load_dwordx3 {vr(REC,3)}, v{T0}, {WS}, 0 offen offset:1024 sc1''')
    for i in range(1, 8): a(f's_mov_b64 s[{sMask+2*i}:{sMask+2*i+1}], 0')
    a(f's_mov_b64 s[{sOv}:{sOv+1}], 0\ns_waitcnt vmcnt(0)\ns_branch k2_batch')
    a.label('k2_hentry')
    a(f'''s_waitcnt vmcnt(0) lgkmcnt(0)
    s_lshl_b32 s{sTmp}, s0, 2
    buffer_load_dword v{TQ}, v{vNOVF}, {WS}, s{sTmp} offen sc1
    v_mov_b32 v{T0}, {HMAX}
    v_mov_b32 v{T1}, 1
    ds_write_b32 v{T0}, v{T1}
    s_waitcnt vmcnt(0) lgkmcnt(0)
    s_barrier
    v_lshrrev_b32 v{TQ}, 16, v{TQ}
    v_add_u32 v{TQ}, 1, v{TQ}
    v_lshrrev_b32 v{TQ}, 1, v{TQ}
    ds_max_u32 v{T0}, v{TQ}
    s_waitcnt lgkmcnt(0)
    s_barrier
    ds_read_b32 v{T1}, v{T0}
    s_waitcnt lgkmcnt(0)
    v_readfirstlane_b32 s{sHeavy}, v{T1}
    s_branch k2_fetch''')
    a.label('k2_epi')
    vm.ops = []
    a(f's_waitcnt vmcnt(0)\ns_cmp_lg_u32 s{sWdone}, 0\ns_cbranch_scc1 k2_wok')
    for (m, i) in wsched:
        for x in wload(WB2 + 4 * i, 2, i, 'c'): a(x)
    a('s_waitcnt vmcnt(0)')
    a.label('k2_wok')
    Y0, Y1, Y2, Y3 = X0, X0 + 1, X0 + 2, X0 + 3
    a(f'''s_mov_b32 s{sC}, {hex(f2u(-LN2 * 2.0**-30))}
    s_mov_b32 s{sC+1}, {hex(f2u(-LN2 * 2.0**-30))}
    s_cmp_lg_u32 s{sAcc}, 0
    s_cbranch_scc1 kf_accok''')
    for i in range(32): a(f'v_mov_b32 v{ACCA+i}, 0')
    a.label('kf_accok')
    a(f'''ds_read_b32 v{Y0}, v{XR+7}
    s_waitcnt lgkmcnt(0)
    v_readfirstlane_b32 s{sTmp}, v{Y0}
    s_cmp_lt_u32 s{sTmp}, 8
    s_cbranch_scc1 kf_accok
    s_mov_b64 exec, s[{sNM}:{sNM+1}]''')
    Y2 = XR + 4
    for q in range(8):
        a(f'''v_pk_mul_f32 {pr(ACCA+4*q)}, {pr(ACCA+4*q)}, s[{sC}:{sC+1}]
        v_pk_mul_f32 {pr(ACCA+4*q+2)}, {pr(ACCA+4*q+2)}, s[{sC}:{sC+1}]''')
        if q: a(f'v_xor_b32 v{Y3}, {q<<4}, v{Y2}')
        a(f'''v_cvt_pk_bf16_f32 v{ACCA+4*q}, v{ACCA+4*q}, v{ACCA+4*q+1}
        v_cvt_pk_bf16_f32 v{ACCA+4*q+1}, v{ACCA+4*q+2}, v{ACCA+4*q+3}
        ds_write_b64 v{Y3 if q else Y2}, {vr(ACCA+4*q,2)}''')
    a('s_mov_b64 exec, -1')
    EA_ = XR; Y2 = XR + 6; Y3 = XR + 5
    a(f'''s_lshl_b32 s{sTmp2}, s{sN0}, 9
    s_lshl_b32 s{sTmp}, s{sWV}, 6
    s_add_u32 s{sTmp2}, s{sTmp2}, s{sTmp}
    s_mov_b32 s{sC}, {hex(f2u(-LOG2E))}
    s_waitcnt lgkmcnt(0)''')
    stampat(8)
    a('s_barrier')
    Z = DA
    def silu_ops(rt):
        b = OA + rt * 8
        ops = [f'v_mul_f32 v{Z+p}, s{sC}, v{b+p}' for p in range(8)]
        ops += [f'v_exp_f32 v{Z+p}, v{Z+p}' for p in range(8)]
        ops += [f'v_add_f32 v{Z+p}, 1.0, v{Z+p}' for p in range(8)]
        ops += [f'v_rcp_f32 v{Z+p}, v{Z+p}' for p in range(8)]
        ops += [f'v_mul_f32 v{Z+p}, v{b+p}, v{Z+p}' for p in range(8)]
        for rr in range(4):
            ops.append(f'v_cvt_pk_bf16_f32 v{Z+8+rr}, v{Z+rr}, v{Z+4+rr}')
        for rr in range(4):
            ops.append(f'v_mov_b32_dpp v{Z+rr}, v{Z+8+rr} quad_perm:[0,2,0,2] row_mask:0xf bank_mask:0xf')
        for rr in range(4):
            ops.append(f'v_mov_b32_dpp v{Z+4+rr}, v{Z+8+rr} quad_perm:[1,3,1,3] row_mask:0xf bank_mask:0xf')
        for rr in range(4):
            ops.append(f'v_perm_b32 v{Z+8+rr}, v{Z+4+rr}, v{Z+rr}, v{Y3}')
        for rr in range(4):
            if rt == 2 and rr == 3:
                ops.append(f's_cmp_eq_u32 s{sNN}, 40\ns_cselect_b32 exec_lo, -1, 0xffff')
            ops.append(f'buffer_store_dword v{Z+8+rr}, v{Y2}, s[{sO}:{sO+3}], s{sTmp2} offen offset:{rr*512}')
        ops.append(f's_add_u32 s{sTmp2}, s{sTmp2}, 8192')
        return ops
    seq = [(rt, s) for rt in range(3) for s in range(8)]
    def ard(k):
        rt, s = seq[k]
        a(f'ds_read_b128 {vr(AF+4*(k%6),4)}, v{EA_+(s&3)} offset:{rt*8192+(s>>2)*256}')
    for k in range(5): ard(k)
    pend = []
    for k, (rt, s) in enumerate(seq):
        if k + 5 < 24: ard(k + 5)
        a(f's_waitcnt lgkmcnt({min(5, 23-k)})')
        for c in range(2):
            d = OA + (rt * 2 + c) * 4
            a(f'v_mfma_f32_16x16x32_bf16 {vr(d,4)}, {vr(AF+4*(k%6),4)}, {vr(WB2+4*(2*s+c),4)}, {vr(d,4)}')
            if s >= 1 or c == 1:
                n = 5 if s >= 1 else 0
                for x in pend[:n]: a(x)
                pend = pend[n:]
        if s == 7:
            for x in pend: a(x)
            pend = silu_ops(rt)
    a('s_mov_b32 exec_hi, 0\ns_nop 6')
    for x in pend: a(x)
    if stamp:
        stampat(9)
        a(f's_mov_b64 exec, 1\ns_waitcnt lgkmcnt(0)')
        a(f's_lshl_b32 s{sTmp}, s2, 3\ns_add_u32 s{sTmp}, s{sTmp}, s{sWV}\ns_lshl_b32 s{sTmp}, s{sTmp}, 6\ns_add_u32 s{sTmp}, s{sTmp}, {WS_END - WS_CELLS}\nv_mov_b32 v{Y0}, 0')
        for i in range(10):
            a(f'v_mov_b32 v{Y1}, s{sStamp+2*i}\nbuffer_store_dword v{Y1}, v{Y0}, {WS}, s{sTmp} offen offset:{4*i}')
        a(f'v_mov_b32 v{Y1}, s{sT}\nbuffer_store_dword v{Y1}, v{Y0}, {WS}, s{sTmp} offen offset:40')
        a(f'v_mov_b32 v{Y1}, s{sPoll}\nbuffer_store_dword v{Y1}, v{Y0}, {WS}, s{sTmp} offen offset:44')
    a.label('k2_done')
    a('s_endpgm')
    return kd(KNAME, 256, 102)
```

```python
from common import *
FCH = 625; CST = 11264
WS_CELLS = 5242880
WS_WF = WS_CELLS + 256 * CST
WS_FLAG = WS_WF + 131072
WS_END = WS_FLAG + 16384
KNAME = 'standalone__mpnn_edge_mlp__graph_kernel'
POLL_LIMIT = 40000
K2_GRID = NB
NT = 29
QT = 98304; QSTR = 576
OH = QT + 41 * QSTR; OSTR = 80
XT = QT + 40 * QSTR + 4096
EAT = XT + 20480
CNT = EAT + NT * 512
SRC = CNT + 256
XL = SRC + (NT + 7) * 64
K2_LDS = 163840
assert XL + 256 <= K2_LDS
C30 = 0x30800000

class R:
    def __init__(self, start): self.n = start
    def get(self, k=1, align=1):
        self.n = (self.n + align - 1) // align * align
        r = self.n; self.n += k; return r

def vr(r, k): return f'v[{r}:{r+k-1}]' if k > 1 else f'v{r}'
def pr(x): return f'v[{x}:{x+1}]'

def gen_kf(a, opt):
    stamp = opt.get('stamp')
    prio = opt.get('prio', '02,02,13|13,13,02')
    vm = VM()
    INV = 'buffer_inv sc1' if opt.get('inv') else ''
    LD = ' sc1' if opt.get('ldsc1', '0') == '1' else ''
    CS = opt.get('cellst', ' sc1')
    r = R(1)
    vLane = r.get(); vNOVF = r.get(); vL16 = r.get()
    aSRC = r.get(); aEAT = r.get(); aXL = r.get(); cQ = r.get(); cS = r.get(); vX = r.get(); aQ = r.get()
    aS = r.get(3); aP = r.get(4)
    IDX = r.get(8, 2)
    A2 = r.get(4, 2); B2A = r.get(4, 2); B2B = r.get(4, 2)
    S = r.get(2, 2); MA = r.get(2, 2); MB = r.get(2, 2)
    ACCA = r.get(16, 2); ACCB = r.get(16, 2)
    DA = r.get(16, 2); DB = r.get(16, 2)
    EE = r.get(16, 2); NF = r.get(4, 2); DF = r.get(4, 2)
    PA = r.get(8, 2); PB = r.get(8, 2); I0 = r.get(4, 2); I1 = r.get(4, 2)
    WB2 = r.get(64, 2)
    XR = r.get(12, 2)
    OA = r.get(24, 2)
    assert r.n <= 256, r.n
    W1F = [NF + 4 * i for i in range(6)] + [WB2 + 36 + 4 * i for i in range(10)]
    aW = None
    assert PB + 8 == NF + 24 and WB2 + 36 + 40 == OA
    t = R(WB2)
    REC = DB
    assert EE == DB + 16
    RK = t.get(8, 2); TQ = t.get(8, 2); DL4 = t.get(8, 2)
    T0 = t.get(); T1 = t.get(); T2 = t.get(); T3 = t.get()
    IDX3 = t.get(8, 2)
    HMAX = XL + 256
    IDX1 = DA; IDX2 = DA + 8
    AF = PA
    X0 = DB + 12
    EA_ = IDX

    sP = 20; sX = 24; sE = 28; sWS = 32; sM = 36; sO = 24
    sWV = 44; sG = 45; sCQ = 46; sHeavy = 47; sB = 48; sPoll = 49; sSplit = 50; sT = 51; sTbase = 52
    sRing = 53; sCnt = 54; sTmp = 55; sTmp2 = 56; sTmp3 = 57; sC = 58
    sMask = 4
    sQs = 68; sOs = 69; sT0 = 70; sT1 = 71; sQt = 72; sWdone = 73; sSv = 74
    sStamp = 76
    sHM = 96; sN0 = 98; sWF = 99; sNN = 3; sBok = 100; sOv = 28; sRdone = 30; sEAT = 31; sAcc = 38; sNM = 36; sD = 60; sPw = 64

    names = (stamp if stamp and stamp != '1' else '0,1,2,3,4,5,6,7,8,9').split(',')
    def stampat(nm):
        nm = str(nm)
        if stamp:
            if nm in names:
                i = names.index(nm)
                a(f's_memrealtime s[{sStamp+2*i}:{sStamp+2*i+1}]')
            if nm == '6': a('s_memtime s[100:101]\ns_waitcnt lgkmcnt(0)\ns_mov_b32 s{}, s100'.format(sPoll))
            if nm == '7': a('s_memtime s[100:101]\ns_waitcnt lgkmcnt(0)\ns_sub_u32 s{0}, s100, s{0}'.format(sPoll))
    WS = f's[{sWS}:{sWS+3}]'
    def wload(dst, mat, i, tag):
        off = i * 1024
        ins = [f's_add_u32 s{sTmp3}, s{sWF}, {off & ~4095}',
               f'buffer_load_dwordx4 {vr(dst,4)}, v{vL16}, {WS}, s{sTmp3} offen offset:{off & 4095}']
        vm.issue(tag)
        return ins

    a.raw(f'.globl {KNAME}\n.p2align 8\n.type {KNAME},@function')
    a.label(KNAME)
    a(f's_cmp_ge_u32 s2, {K2_GRID}\ns_cbranch_scc1 k2_done')
    stampat(0)
    if opt.get('diagpad'): a('s_memrealtime s[94:95]')
    eD = 26; eS = 36; eA = 46; eR = 66; eB = 76
    PD = 26; RL = 50; W3 = 58; TOUCH = 86; CT = 58
    UQ = 92; vW = 100; aA = 104; U0 = 108; U1 = 109; U2 = 110; U3 = 111; vW1 = 112; PR0 = 113; PR1 = 114; PG0 = 115; PG1 = 116; aW3 = 117
    vDB = 252; aTO = 253; aB = 90
    BF = NF; AX = WB2
    assert BF == 124 and BF + 32 == WB2 and WB2 + 96 <= 256 and REC == 92
    W3L = QT + 24576
    SW = 1
    TAB = QT; RIMG = QT + 1024; CNTA = QT + 12288
    sS = 20; sDs = 28; sEs = 36; sU = 40
    sWm = 68
    sEM = 76 if not stamp else 8
    a(f'''s_load_dwordx4 s[12:15], s[0:1], 32
    s_load_dwordx4 s[8:11], s[0:1], 16
    s_load_dwordx4 s[4:7], s[0:1], 0
    s_load_dwordx4 s[16:19], s[0:1], 48
    s_load_dwordx2 s[{sWS}:{sWS+1}], s[0:1], 64
    v_lshrrev_b32 v{U0}, 6, v0
    v_and_b32 v{vLane}, 63, v0
    v_readfirstlane_b32 s{sWV}, v{U0}
    v_lshlrev_b32 v{U3}, 4, v0
    v_lshlrev_b32 v{vL16}, 4, v{vLane}
    s_mul_i32 s{sN0}, s2, 625
    s_bfe_u32 s{sTmp3}, s2, 0x50003
    s_lshl_b32 s{sTmp3}, s{sTmp3}, 13
    s_lshl_b32 s{sT}, s{sN0}, 2
    s_lshl_b32 s{sTbase}, s{sN0}, 3
    s_and_b32 s{sPoll}, s2, 7
    s_lshl_b32 s{sPoll}, s{sPoll}, 5
    s_lshr_b32 s{sTmp}, s2, 3
    s_or_b32 s{sPoll}, s{sPoll}, s{sTmp}
    s_mul_i32 s{sN0}, s{sPoll}, 625
    s_add_u32 s{sNN}, s{sN0}, {625+15}
    s_add_u32 s{sN0}, s{sN0}, 15
    s_lshr_b32 s{sN0}, s{sN0}, 4
    s_lshr_b32 s{sNN}, s{sNN}, 4
    s_sub_u32 s{sNN}, s{sNN}, s{sN0}
    s_lshr_b32 s{sG}, s{sWV}, 2
    s_and_b32 s{sCQ}, s{sWV}, 3
    s_lshl_b32 s{sWF}, s{sWV}, 14
    s_add_u32 s{sWF}, s{sWF}, {WS_WF - WS_CELLS}
    v_lshrrev_b32 v{U0}, 5, v{vLane}
    v_and_b32 v{U1}, 31, v{vLane}
    s_lshl_b32 s{sTmp}, s{sWV}, 1
    v_xor_b32 v{U2}, v{U1}, v{U0}
    v_xor_b32 v{U2}, s{sTmp}, v{U2}
    v_lshlrev_b32 v{U2}, 4, v{U2}
    v_lshl_add_u32 v{U2}, v{U0}, 9, v{U2}
    v_xor_b32 v{vW1}, s{sWV}, v{U1}
    v_lshlrev_b32 v{vW1}, 4, v{vW1}
    s_waitcnt lgkmcnt(0)
    s_mov_b32 s0, s{sPoll}''')
    a(f'''s_cmp_lg_u32 s{sWV}, {SW}
    s_cbranch_scc1 kf_noedge
    s_setprio 3
    v_mul_u32_u24 v{U0}, 40, v{vLane}
    v_mul_u32_u24 v{U1}, 80, v{vLane}''')
    srd(a, sDs, 10, E * 4)
    a(f'''buffer_load_dwordx4 {vr(eD,4)}, v{U0}, s[{sDs}:{sDs+3}], s{sT} offen
    buffer_load_dwordx4 {vr(eD+4,4)}, v{U0}, s[{sDs}:{sDs+3}], s{sT} offen offset:16
    buffer_load_dwordx2 {vr(eD+8,2)}, v{U0}, s[{sDs}:{sDs+3}], s{sT} offen offset:32''')
    srd(a, sS, 8, E * 4)
    a(f'''buffer_load_dwordx4 {vr(eS,4)}, v{U0}, s[{sS}:{sS+3}], s{sT} offen
    buffer_load_dwordx4 {vr(eS+4,4)}, v{U0}, s[{sS}:{sS+3}], s{sT} offen offset:16
    buffer_load_dwordx2 {vr(eS+8,2)}, v{U0}, s[{sS}:{sS+3}], s{sT} offen offset:32''')
    srd(a, sEs, 6, E * 8)
    for k in range(5): a(f'buffer_load_dwordx4 {vr(eA+4*k,4)}, v{U1}, s[{sEs}:{sEs+3}], s{sTbase} offen offset:{16*k}')
    a.label('kf_noedge')
    a(f'''s_add_u32 s{sPw}, s{sWS}, {WS_P}
    s_addc_u32 s{sPw+1}, s{sWS+1}, 0
    s_and_b32 s{sPw+1}, s{sPw+1}, 0xffff
    s_mov_b32 s{sPw+2}, {N*512}
    s_mov_b32 s{sPw+3}, 0x20000
    s_add_u32 s{sWS}, s{sWS}, {WS_CELLS}
    s_addc_u32 s{sWS+1}, s{sWS+1}, 0
    s_and_b32 s{sWS+1}, s{sWS+1}, 0xffff
    s_mov_b32 s{sWS+2}, {WS_END - WS_CELLS + (1 << 20 if stamp else 0)}
    s_mov_b32 s{sWS+3}, 0x20000''')
    srd(a, sD, 18, 256)
    a(f'''s_cmp_lg_u32 s2, 0
    s_cbranch_scc1 kf_noinit
    v_mov_b32 v{BF}, 0
    v_mov_b32 v{BF+1}, 0
    v_mov_b32 v{BF+2}, 0
    v_mov_b32 v{BF+3}, 0
    s_mov_b32 s{sTmp}, {WS_FLAG - WS_CELLS}
    s_add_u32 s{sTmp2}, s{sTmp}, 8192
    buffer_store_dwordx4 {vr(BF,4)}, v{U3}, {WS}, s{sTmp} offen sc1
    buffer_store_dwordx4 {vr(BF,4)}, v{U3}, {WS}, s{sTmp2} offen sc1''')
    a.label('kf_noinit')
    vm.issue('edge')
    vm.ops = vm.ops
    srd(a, sWm, 12, 516 * 512)
    a(f'buffer_load_dwordx4 {vr(TOUCH,4)}, v{U3}, s[{sWm}:{sWm+3}], s{sTmp3} offen')
    vm.issue('touch')
    srd(a, sU, 14, 512 * 512)
    a(f'''s_cmp_lt_u32 s{sWV}, 4
    s_cbranch_scc1 kf_nt2
    s_lshr_b32 s{sTmp}, s{sTmp3}, 1
    s_lshl_b32 s{sTmp2}, s{sCQ}, 10
    s_add_u32 s{sTmp}, s{sTmp}, s{sTmp2}
    buffer_load_dwordx4 {vr(eD,4)}, v{vL16}, s[{sU}:{sU+3}], s{sTmp} offen''')
    a.label('kf_nt2')
    if not opt.get('noctouch'):
        a(f'''s_cmp_lg_u32 s{sWV}, 3
        s_cbranch_scc1 kf_noct
        s_getpc_b64 s[{sSv}:{sSv+1}]
        kf_pc:
        s_lshr_b32 s{sTmp3}, s{sTmp3}, 3
        s_min_u32 s{sTmp3}, s{sTmp3}, k2_done-kf_pc-1024
        s_add_u32 s{sSv}, s{sSv}, s{sTmp3}
        s_addc_u32 s{sSv+1}, s{sSv+1}, 0
        global_load_dwordx4 {vr(CT,4)}, v{vL16}, s[{sSv}:{sSv+1}]''')
        a.label('kf_noct')
    a(f'''s_cmp_lg_u32 s{sWV}, 6
    s_cbranch_scc1 kf_now3
    s_mov_b32 m0, {W3L}
    s_mov_b32 s{sTmp}, {512*512}
    buffer_load_dwordx4 v{vL16}, s[{sWm}:{sWm+3}], s{sTmp} offen lds
    buffer_load_dwordx4 v{vL16}, s[{sWm}:{sWm+3}], s{sTmp} offen offset:1024 lds''')
    a.label('kf_now3')
    srd(a, sX, 4, N * 512)
    a(f'''s_lshl_b32 s{sTmp}, s{sN0}, 9
    s_lshl_b32 s{sTmp2}, s{sWV}, 10
    s_add_u32 s{sTmp3}, s{sTmp}, s{sTmp2}
    s_add_u32 m0, s{sTmp2}, {XT}
    s_lshl_b32 s{sCnt}, s{sWV}, 9
    buffer_load_dwordx4 v{U2}, s[{sX}:{sX+3}], s{sTmp3} offen lds
    s_add_u32 m0, s{sTmp2}, {XT+8192}
    s_add_u32 s{sTmp3}, s{sTmp3}, 8192
    buffer_load_dwordx4 v{U2}, s[{sX}:{sX+3}], s{sTmp3} offen lds
    s_add_u32 m0, s{sCnt}, {XT+16384}
    s_add_u32 s{sTmp}, s{sTmp}, s{sCnt}
    s_add_u32 s{sTmp}, s{sTmp}, 16384
    s_mov_b32 exec_hi, 0
    buffer_load_dwordx4 v{vW1}, s[{sX}:{sX+3}], s{sTmp} offen lds
    s_mov_b32 exec_hi, -1''')
    for _ in range(3): vm.issue('x')
    stampat('a')
    a(f'''v_mov_b32 v{UQ+4}, 0
    v_mov_b32 v{UQ+5}, 0
    v_mov_b32 v{UQ+6}, 0
    v_mov_b32 v{UQ+7}, 0
    v_add_u32 v{U1}, {CNTA}, v{vL16}
    s_cmp_lg_u32 s{sWV}, {SW}
    s_cbranch_scc1 kf_nocz
    ds_write_b128 v{U1}, {vr(UQ+4,4)}
    v_mov_b32 v{U1}, {HMAX+4}
    ds_write_b32 v{U1}, v{UQ+4}''')
    a.label('kf_nocz')
    nz = (NT * 512 + 256 - 8192) // 16; nf = (NT + 7) * 64 // 16; nx = 16
    def list_prefill(Z, F, t0, t1):
        a(f'''v_lshlrev_b32 v{t0}, 4, v0
        v_add_u32 v{t0}, {EAT}, v{t0}
        v_mov_b32 v{t1}, 0xa0a0a0a0
        ds_write_b128 v{t0}, {vr(Z,4)}
        v_cmp_gt_u32 vcc, {nz}, v0
        s_and_saveexec_b64 s[{sSv}:{sSv+1}], vcc
        ds_write_b128 v{t0}, {vr(Z,4)} offset:8192
        s_mov_b64 exec, -1
        v_cmp_gt_u32 vcc, {nf}, v0
        s_mov_b32 s{sWdone}, 0
        s_nop 0
        v_cndmask_b32 v{F}, v{t1}, -1, vcc
        v_cmp_gt_u32 vcc, {nf+nx}, v0
        v_mov_b32 v{F+1}, v{F}
        v_mov_b32 v{F+2}, v{F}
        v_mov_b32 v{F+3}, v{F}
        s_and_saveexec_b64 s[{sSv}:{sSv+1}], vcc
        ds_write_b128 v{t0}, {vr(F,4)} offset:{SRC-EAT}
        s_mov_b64 exec, -1''')
    stampat('b')
    a(f'''v_lshrrev_b32 v{U0}, 5, v{vLane}
    v_and_b32 v{U1}, 3, v{vLane}
    v_lshlrev_b32 v{U0}, 1, v{U0}
    v_xor_b32 v{U0}, v{U0}, v{U1}
    v_lshrrev_b32 v{U1}, 2, v{vLane}
    v_lshlrev_b32 v{U1}, 9, v{U1}
    v_lshl_add_u32 v{U0}, v{U0}, 4, v{U1}
    s_lshl_b32 s{sTmp}, s{sWV}, 6
    v_add_u32 v{vW}, s{sTmp}, v{U0}
    v_add_u32 v{vW+1}, 7168, v{vW}
    v_add_u32 v{vW+2}, 14336, v{vW}
    v_add_u32 v{vW+3}, 21504, v{vW}
    s_mul_i32 s{sRing}, s{sWV}, 12288''')
    def stage(i):
        a(f's_add_u32 m0, s{sRing}, {(i % 3) * 4096}\ns_mov_b32 s{sTmp3}, {(i & 7) * 32768}')
        sr = sWm if i < 8 else sU
        for t_ in range(4):
            a(f'buffer_load_dwordx4 v{(vW if i < 8 else XR + 8)+t_}, s[{sr}:{sr+3}], s{sTmp3} offen offset:{t_*1024} lds')
            vm.issue(f'st{i}')
    a(f'''v_and_b32 v{U0}, 15, v{vLane}
    v_lshrrev_b32 v{U1}, 4, v{vLane}
    v_xor_b32 v{U2}, v{U1}, v{U0}
    v_lshlrev_b32 v{U2}, 4, v{U2}
    v_lshl_add_u32 v{U0}, v{U0}, 9, v{U2}
    v_add_u32 v{aA}, {XT}, v{U0}''')
    for s_ in range(1, 4):
        a(f'v_xor_b32 v{U2}, {s_<<6}, v{U0}\nv_add_u32 v{aA+s_}, {XT}, v{U2}')
    a(f'''v_bfe_u32 v{U0}, v{vLane}, 2, 2
    v_lshl_add_u32 v{U0}, v{U1}, 3, v{U0}
    v_and_b32 v{U2}, 1, v{U1}
    v_lshlrev_b32 v{U2}, 5, v{U2}
    v_and_b32 v{U3}, 3, v{vLane}
    v_lshl_add_u32 v{U2}, v{U3}, 3, v{U2}
    v_lshl_add_u32 v{U2}, v{U0}, 6, v{U2}
    v_add_u32 v{aB}, s{sRing}, v{U2}
    v_xor_b32 v{aB+1}, 32, v{aB}
    v_mov_b32 v{U3}, 1''')
    list_prefill(UQ + 4, BF + 4, U0, U1)
    NPRE = int(opt.get('npre', 1))
    NPRE2 = int(opt.get('npre2', NPRE))
    for i in range(NPRE): stage(i)
    stampat('y')
    def early_consts(T0, T1, T2, T3):
        a(f'''v_lshrrev_b32 v{T2}, 5, v{vLane}
        v_and_b32 v{T3}, 31, v{vLane}
        v_bfe_u32 v{T0}, v{T3}, 2, 1
        v_cmp_eq_u32 s[{sHM}:{sHM+1}], v{T0}, v{T2}
        v_bfe_u32 v{T0}, v{T3}, 1, 3
        v_xor_b32 v{T0}, v{T0}, v{T2}
        v_lshlrev_b32 v{T0}, 4, v{T0}
        v_lshl_add_u32 v{T0}, v{T3}, 7, v{T0}
        v_add_u32 v{aP}, s{sRing}, v{T0}
        v_xor_b32 v{aP+1}, 32, v{aP}
        v_xor_b32 v{aP+2}, 64, v{aP}
        v_xor_b32 v{aP+3}, 96, v{aP}
        v_and_b32 v{T0}, 7, v{vLane}
        v_lshrrev_b32 v{T1}, 4, v{vLane}
        v_xor_b32 v{T0}, v{T0}, v{T1}
        s_lshl_b32 s{sTmp}, s{sCQ}, 7
        v_lshl_add_u32 v{T0}, v{T0}, 4, s{sTmp}
        v_xor_b32 v{IDX+7}, 64, v{T0}
        v_add_u32 v{IDX+1}, 3072, v{T0}
        v_add_u32 v{IDX+3}, 2048, v{IDX+7}
        v_add_u32 v{IDX+5}, 1024, v{T0}
        v_bfe_u32 v{T0}, v{vLane}, 4, 1
        v_and_b32 v{T1}, 3, v{vLane}
        v_lshlrev_b32 v{T1}, 3, v{T1}
        v_lshl_add_u32 v{T0}, v{T0}, 5, v{T1}
        s_add_u32 s{sTmp}, s{sTmp}, {QT}
        v_add_u32 v{cQ}, s{sTmp}, v{T0}
        s_lshl_b32 s{sTmp}, s{sG}, 4
        s_add_u32 s{sTmp}, s{sTmp}, {OH}
        v_add_u32 v{cS}, s{sTmp}, v{T0}
        s_mov_b32 s{sC}, {hex(C30)}
        s_mov_b32 s{sC+1}, {hex(C30)}''')
    def list_consts(T0, T1, T2, T3):
        a(f'''v_bfe_u32 v{T0}, v{vLane}, 5, 1
        v_bfe_u32 v{T1}, v{vLane}, 3, 1
        v_bfe_u32 v{T2}, v{vLane}, 4, 1
        v_lshlrev_b32 v{aSRC}, 5, v{T0}
        v_lshl_add_u32 v{aSRC}, v{T1}, 3, v{aSRC}
        v_lshl_add_u32 v{aSRC}, v{T2}, 1, v{aSRC}
        v_bfe_u32 v{T3}, v{vLane}, 2, 2
        v_lshl_add_u32 v{aXL}, v{T0}, 2, v{T3}
        v_and_b32 v{T3}, 1, v{T3}
        v_lshl_add_u32 v{aEAT}, v{T3}, 1, v{T2}
        v_and_b32 v{T0}, 1, v{vLane}
        v_lshl_add_u32 v{aEAT}, v{aEAT}, 1, v{T0}
        v_lshl_add_u32 v{aEAT}, v{aEAT}, 1, v{T1}
        v_bfe_u32 v{T0}, v{vLane}, 1, 1
        v_lshl_add_u32 v{aEAT}, v{aEAT}, 1, v{T0}
        v_lshlrev_b32 v{aEAT}, 4, v{aEAT}''')
    TOUCH_T = 118
    def hoisted():
        early_consts(U0, U1, U2, TOUCH_T)
        list_consts(U0, U1, U2, TOUCH_T)
        a(f'''v_lshrrev_b32 v{U0}, 4, v{vLane}
    v_mul_u32_u24 v{U0}, {4*QSTR}, v{U0}
    v_and_b32 v{U1}, 15, v{vLane}
    v_lshl_add_u32 v{U0}, v{U1}, 2, v{U0}
    s_lshl_b32 s{sTmp2}, s{sWV}, 6
    s_add_u32 s{sTmp2}, s{sTmp2}, {QT}
    v_add_u32 v{aTO}, s{sTmp2}, v{U0}
    v_lshrrev_b32 v{U0}, 5, v{vLane}
    v_and_b32 v{PG1}, 31, v{vLane}
    v_lshlrev_b32 v{PG1}, 4, v{PG1}
    v_lshl_add_u32 v{PG0}, v{U0}, 9, v{PG1}
    v_mul_u32_u24 v{U0}, {QSTR}, v{U0}
    v_add_u32 v{U0}, v{U0}, v{PG1}
    s_mul_i32 s{sTmp}, s{sWV}, {2*QSTR}
    s_add_u32 s{sTmp}, s{sTmp}, {QT}
    v_add_u32 v{PR0}, s{sTmp}, v{U0}
    s_mul_i32 s{sTmp}, s{sWV}, {QSTR}
    s_add_u32 s{sTmp}, s{sTmp}, {QT + 32*QSTR}
    v_add_u32 v{PR1}, s{sTmp}, v{PG1}
    v_bfe_u32 v{U0}, v{vLane}, 1, 4
    v_and_b32 v{U1}, 1, v{vLane}
    v_lshlrev_b32 v{U0}, 1, v{U0}
    v_lshl_add_u32 v{U0}, v{U1}, 5, v{U0}
    s_lshl_b32 s{sTmp}, s{sCQ}, 7
    s_add_u32 s{sTmp}, s{sTmp}, {W3L}
    v_add_u32 v{aW3}, s{sTmp}, v{U0}
    v_lshrrev_b32 v{U0}, 1, v0
    v_mul_u32_u24 v{vNOVF}, {CST}, v{U0}''')
    hoisted()
    dpp = ['row_shr:1 row_mask:0xf bank_mask:0xf', 'row_shr:2 row_mask:0xf bank_mask:0xf', 'row_shr:4 row_mask:0xf bank_mask:0xf',
           'row_shr:8 row_mask:0xf bank_mask:0xf', 'row_bcast:15 row_mask:0xa bank_mask:0xf', 'row_bcast:31 row_mask:0xc bank_mask:0xf']
    a(f'''s_cmp_lg_u32 s{sWV}, {SW}
    s_cbranch_scc1 kf_nohist
    s_movk_i32 s{sTmp}, 625
    s_mov_b32 exec_hi, 0x7fffffff''')
    a(f's_waitcnt vmcnt({vm.count_after("edge") + 8})')
    stampat('z')
    for i in range(10):
        a(f'''v_mul_u32_u24 v{eB+i}, 429497, v{eD+i}
        v_lshrrev_b32 v{eB+i}, 24, v{eB+i}
        v_mad_u32_u24 v{U0}, v{eB+i}, s{sTmp}, 15
        v_lshlrev_b32 v{eB+i}, 2, v{eB+i}
        v_add_u32 v{eB+i}, {CNTA}, v{eB+i}''')
        if i == 5: a('s_mov_b32 exec_hi, 0x3fffffff')
        a(f'''ds_add_rtn_u32 v{eR+i}, v{eB+i}, v{U3}
        v_lshrrev_b32 v{U0}, 4, v{U0}
        v_sub_u32 v{eD+i}, v{eD+i}, v{U0}''')
    a(f'''s_mov_b32 exec_hi, -1
    v_add_u32 v{U0}, {CNTA}, v{vL16}
    ds_read_b128 {vr(UQ,4)}, v{U0}''')
    a(f's_waitcnt vmcnt({vm.count_after("edge") + 5})')
    for i in range(10): a(f'v_lshl_or_b32 v{eS+i}, v{eD+i}, 16, v{eS+i}')
    a(f'''s_waitcnt lgkmcnt(0)
    v_add_u32 v{UQ+5}, v{UQ}, v{UQ+1}
    v_add_u32 v{UQ+6}, v{UQ+5}, v{UQ+2}
    v_add_u32 v{U1}, v{UQ+6}, v{UQ+3}
    v_mov_b32 v{U2}, v{U1}
    s_nop 1''')
    for k, d in enumerate(dpp):
        a(f'v_add_u32_dpp v{U2}, v{U2}, v{U2} {d}' + (' bound_ctrl:0' if k < 4 else '') + '\ns_nop 1')
    a(f'''v_sub_u32 v{UQ+4}, v{U2}, v{U1}
    v_add_u32 v{UQ+7}, v{UQ+6}, v{UQ+4}
    v_add_u32 v{UQ+6}, v{UQ+5}, v{UQ+4}
    v_add_u32 v{UQ+5}, v{UQ}, v{UQ+4}
    ds_write_b128 v{U0}, {vr(UQ+4,4)} offset:1024''')
    for i in range(10): a(f'ds_read_b32 v{eD+i}, v{eB+i} offset:1024')
    a(f'''v_lshl_or_b32 v{UQ+4}, v{UQ}, 16, v{UQ+4}
    v_lshl_or_b32 v{UQ+5}, v{UQ+1}, 16, v{UQ+5}
    v_lshl_or_b32 v{UQ+6}, v{UQ+2}, 16, v{UQ+6}
    v_lshl_or_b32 v{UQ+7}, v{UQ+3}, 16, v{UQ+7}
    v_subrev_u32 v{U0}, {CNTA-TAB}, v{U0}
    s_mov_b32 s{sTmp}, {RIMG}
    s_mov_b32 exec_hi, 0x7fffffff''')
    a(vm.wait('edge'))
    for i in range(10):
        if i == 5: a('s_mov_b32 exec_hi, 0x3fffffff')
        a(f'''s_waitcnt lgkmcnt({min(9, 9 - i + 2 * i)})
        v_add_u32 v{eD+i}, v{eD+i}, v{eR+i}
        v_lshl_add_u32 v{eD+i}, v{eD+i}, 4, s{sTmp}
        ds_write_b64 v{eD+i}, {vr(eA+2*i,2)}
        ds_write_b32 v{eD+i}, v{eS+i} offset:8''')
    a(f'''s_mov_b32 exec_hi, -1
    ds_write_b128 v{U0}, {vr(UQ+4,4)}
    s_setprio 0''')
    a.label('kf_nohist')
    for i in range(NPRE, NPRE2): stage(i)
    a(vm.wait('x') + ' lgkmcnt(0)')
    a('s_barrier')
    stampat('c')
    axr = [f'ds_read_b128 {vr(AX+(s_*3+rt)*4,4)}, v{aA+(s_&3)} offset:{rt*8192+(s_>>2)*256}' for s_ in range(8) for rt in range(3)]
    a(f'''s_or_b32 s{sTmp}, s2, s{sWV}
    s_cbranch_scc1 kf_noset
    v_mov_b32 v{U0}, 1
    v_mov_b32 v{U1}, 0
    s_mov_b64 exec, 1
    buffer_store_dword v{U0}, v{U1}, s[{sD}:{sD+3}], 0 offen sc1
    s_mov_b64 exec, -1''')
    a.label('kf_noset')
    for i in range(NPRE2, 3): stage(i)
    stampat('A')
    a(f'''v_lshlrev_b32 v{U3}, 4, v0
    v_add_u32 v{U0}, {TAB}, v{U3}
    ds_read_b128 {vr(UQ,4)}, v{U0}
    ds_read_b128 {vr(UQ+4,4)}, v{U0} offset:8192
    s_mul_i32 s{sT}, s2, {CST}
    s_add_u32 s{sTbase}, s{sT}, 8192
    s_cmp_gt_u32 s{sWV}, 2
    s_waitcnt lgkmcnt(0)
    s_cbranch_scc1 kf_nost2
    buffer_store_dwordx4 {vr(UQ+4,4)}, v{U3}, {WS}, s{sTbase} offen sc1''')
    a.label('kf_nost2')
    a(f'buffer_store_dwordx4 {vr(UQ,4)}, v{U3}, {WS}, s{sT} offen sc1')
    vm.issue('cells')
    stampat('E')
    a(f'''s_cmp_lg_u32 s{sWV}, 0
    s_cbranch_scc1 kf_nodb
    v_mov_b32 v{vDB}, 0
    buffer_load_dword v{vDB}, v{vDB}, s[{sD}:{sD+3}], 0 offen sc1''')
    a.label('kf_nodb')
    a(f'''s_cmp_lg_u32 s{sWV}, 7
    s_cbranch_scc1 kf_norl
    s_cmp_ge_u32 s2, 128
    s_cbranch_scc1 kf_norl
    v_lshrrev_b32 v{U0}, 4, v{vLane}
    v_lshlrev_b32 v{U0}, 11, v{U0}
    v_bfe_u32 v{U1}, v{vLane}, 2, 2
    v_lshl_add_u32 v{U0}, v{U1}, 4, v{U0}
    v_and_b32 v{U1}, 3, v{vLane}
    v_lshl_add_u32 v{U0}, v{U1}, 1, v{U0}
    s_bfe_u32 s{sTmp}, s2, 0x30001
    s_lshl_b32 s{sTmp2}, s{sTmp}, 14
    s_add_u32 s{sTmp2}, s{sTmp2}, {256*512}
    s_bfe_u32 s{sTmp}, s2, 0x30004
    s_lshl_b32 s{sTmp}, s{sTmp}, 6
    s_add_u32 s{sTmp2}, s{sTmp2}, s{sTmp}
    s_and_b32 s{sTmp}, s2, 1
    s_lshl_b32 s{sTmp}, s{sTmp}, 3
    s_add_u32 s{sTmp2}, s{sTmp2}, s{sTmp}
    s_add_u32 s{sTmp}, s{sTmp2}, 8192''')
    for e in range(0, 8, 2):
        a(f'''buffer_load_ushort v{RL+e}, v{U0}, s[{sU}:{sU+3}], s{sTmp2} offen offset:{(e>>1)*512}
        buffer_load_ushort v{RL+e+1}, v{U0}, s[{sU}:{sU+3}], s{sTmp} offen offset:{(e>>1)*512}''')
    a.label('kf_norl')
    stampat('B')
    def breads(i, nowait=False):
        if not nowait: a(vm.wait(f'st{i}'))
        for ks in range(2):
            for c in range(2):
                for t_ in range(2):
                    a(f'ds_read_b64_tr_b16 {vr(BF+(i&1)*16+ks*8+c*4+t_*2,2)}, v{aB+c} offset:{(i%3)*4096+(32*ks+4*t_)*64}')
    def compute(i, nowait=False):
        a('s_waitcnt lgkmcnt(0)')
        if i + 3 < 8: stage(i + 3)
        for ks in range(2):
            s_ = (2 * i + ks) & 7
            for rt in range(3):
                for c in range(2):
                    d = PD + (rt * 2 + c) * 4
                    cin = '0' if s_ == 0 else vr(d, 4)
                    a(f'v_mfma_f32_16x16x32_bf16 {vr(d,4)}, {vr(AX+(s_*3+rt)*4,4)}, {vr(BF+(i&1)*16+ks*8+c*4,4)}, {cin}')
                    if ks == 0 and rt == 0 and c == 1 and i + 1 < 8 and i != 3: breads(i + 1, nowait)
    def poll(off, lab, PR):
        a(f'''s_and_b32 s{sTmp}, s2, 7
        s_lshl_b32 s{sTmp}, s{sTmp}, 10
        s_add_u32 s{sTmp}, s{sTmp}, {off - WS_CELLS}
        s_mov_b32 s{sPoll}, {POLL_LIMIT}''')
        a.label(lab)
        a(f'''buffer_load_dwordx4 {vr(PR,4)}, v{vL16}, {WS}, s{sTmp} offen sc1
        s_waitcnt vmcnt(0)
        v_and_b32 v{PR}, v{PR}, v{PR+1}
        v_and_b32 v{PR+2}, v{PR+2}, v{PR+3}
        v_and_b32 v{PR}, v{PR}, v{PR+2}
        v_cmp_eq_u32 vcc, 1, v{PR}
        s_cmp_eq_u64 vcc, -1
        s_cbranch_scc1 {lab}_ok
        s_sleep 1
        s_sub_u32 s{sPoll}, s{sPoll}, 1
        s_cbranch_scc0 {lab}''')
        a.label(lab + '_ok')
    def tile_out():
        a(f'''s_mov_b32 s{sSv}, {hex(f2u(-LOG2E))}
        s_mov_b32 s{sSv+1}, {hex(f2u(-LOG2E))}
        s_nop 5''')
        for rt in range(3):
            if rt == 2: a('s_mov_b32 exec_hi, 0')
            for h in range(4):
                d = PD + rt * 8 + 2 * h
                a(f'v_pk_mul_f32 {pr(d)}, {pr(d)}, s[{sSv}:{sSv+1}]')
            for rr in range(4):
                d0 = PD + rt * 8 + rr
                a(f'v_cvt_pk_bf16_f32 v{d0}, v{d0}, v{d0+4}\nds_write_b32 v{aTO}, v{d0} offset:{(16*rt+rr)*QSTR}')
        a('s_mov_b32 exec_hi, -1')
    def signal(off, lab):
        a(f'''s_cmp_lg_u32 s{sWV}, 0
        s_cbranch_scc1 {lab}
        v_lshlrev_b32 v{TOUCH}, 10, v{vLane}
        v_mov_b32 v{TOUCH+1}, 1
        s_lshl_b32 s{sTmp}, s2, 2
        s_add_u32 s{sTmp}, s{sTmp}, {off - WS_CELLS}
        s_mov_b64 exec, 0xff
        buffer_store_dword v{TOUCH+1}, v{TOUCH}, {WS}, s{sTmp} offen sc1
        s_mov_b64 exec, -1''')
        a.label(lab)
    for x in axr[:12]: a(x)
    a('s_waitcnt lgkmcnt(6)')
    for ct in range(2):
        for k in range(4): a(f'ds_read_u16 v{W3+4*ct+k}, v{aW3} offset:{k*512+ct*64}')
    a('s_waitcnt lgkmcnt(2)')
    for x in axr[12:]: a(x)
    a('s_waitcnt lgkmcnt(6)')
    stampat('C')
    breads(0)
    stampat('p')
    compute(0)
    stampat('d')
    compute(1); stampat('r')
    a(f's_mov_b32 s{sTmp}, {hex(f2u(-LOG2E))}')
    for k in range(8): a(f'v_lshlrev_b32 v{W3+k}, 16, v{W3+k}\nv_mul_f32 v{W3+k}, s{sTmp}, v{W3+k}')
    for p in range(4): a(f'v_cvt_pk_bf16_f32 v{W3+p}, v{W3+2*p}, v{W3+2*p+1}')
    a(vm.wait('cells'))
    a(f'''s_cmp_lg_u32 s{sWV}, 0
    s_cbranch_scc1 kf_initok
    s_mov_b32 s{sPoll}, {POLL_LIMIT}''')
    a.label('kf_initpoll')
    a(f'''v_readfirstlane_b32 s{sTmp}, v{vDB}
    s_cmp_lg_u32 s{sTmp}, 0
    s_cbranch_scc1 kf_initok
    v_mov_b32 v{vDB}, 0
    s_sleep 2
    buffer_load_dword v{vDB}, v{vDB}, s[{sD}:{sD+3}], 0 offen sc1
    s_waitcnt vmcnt(0)
    s_sub_u32 s{sPoll}, s{sPoll}, 1
    s_cbranch_scc0 kf_initpoll''')
    a.label('kf_initok')
    a('s_barrier')
    signal(WS_FLAG, 'kf_sigA')
    stampat('k')
    compute(2); stampat('s')
    compute(3); stampat('t')
    tile_out()
    a('s_waitcnt lgkmcnt(0)\ns_barrier')
    stampat('l')
    a(f'''s_cmp_lg_u32 s{sWV}, 7
    s_cbranch_scc1 kf_norl2
    s_cmp_ge_u32 s2, 128
    s_cbranch_scc1 kf_norl2''')
    for p in range(4): a(f'v_lshl_or_b32 v{BF+16+p}, v{RL+2*p+1}, 16, v{RL+2*p}')
    a(f'''s_lshl_b32 s{sTmp}, s2, 10
    s_add_u32 s{sTmp}, s{sTmp}, {WS_WF - WS_CELLS}
    buffer_store_dwordx4 {vr(BF+16,4)}, v{vL16}, {WS}, s{sTmp} offen sc1
    s_nop 1''')
    a.label('kf_norl2')
    a(f'''ds_read_b128 {vr(UQ,4)}, v{PR0}
    ds_read_b128 {vr(UQ+4,4)}, v{PR0} offset:{16*QSTR}
    ds_read_b128 {vr(TOUCH,4)}, v{PR1}
    s_lshl_b32 s{sTmp}, s{sN0}, 9
    s_lshl_b32 s{sTmp2}, s{sWV}, 10
    s_add_u32 s{sTmp2}, s{sTmp2}, s{sTmp}
    s_lshl_b32 s{sTmp3}, s{sWV}, 9
    s_add_u32 s{sTmp}, s{sTmp}, s{sTmp3}
    s_add_u32 s{sTmp}, s{sTmp}, 16384
    s_waitcnt lgkmcnt(2)
    buffer_store_dwordx4 {vr(UQ,4)}, v{PG0}, s[{sPw}:{sPw+3}], s{sTmp2} offen sc1
    s_add_u32 s{sTmp2}, s{sTmp2}, 8192
    s_waitcnt lgkmcnt(1)
    buffer_store_dwordx4 {vr(UQ+4,4)}, v{PG0}, s[{sPw}:{sPw+3}], s{sTmp2} offen sc1
    s_mov_b32 exec_hi, 0
    s_waitcnt lgkmcnt(0)
    buffer_store_dwordx4 {vr(TOUCH,4)}, v{PG1}, s[{sPw}:{sPw+3}], s{sTmp} offen sc1
    s_mov_b32 exec_hi, -1''')
    for _ in range(3): vm.issue('pst')
    def rec_loads(tab, t0, t1, lab):
        a(f'''v_and_b32 v{t1}, 1, v0
        v_and_b32 v{t0}, 0xffff, v{tab}
        v_add_u32 v{t0}, v{t0}, v{t1}
        v_lshl_add_u32 v{t0}, v{t0}, 4, v{vNOVF}
        v_lshrrev_b32 v{tab}, 16, v{tab}
        v_sub_u32 v{t1}, v{tab}, v{t1}
        v_add_u32 v{t1}, 1, v{t1}
        v_lshrrev_b32 v{t1}, 1, v{t1}''')
        for i in range(8): a(f'v_cmp_lt_u32 s[{sMask+2*i}:{sMask+2*i+1}], {i}, v{t1}')
        a(f'v_cmp_lt_u32 s[{sOv}:{sOv+1}], 8, v{t1}')
        for i in range(8):
            a(f'''s_mov_b64 exec, s[{sMask+2*i}:{sMask+2*i+1}]
            s_cbranch_execz {lab}
            buffer_load_dwordx3 {vr(REC+4*i,3)}, v{t0}, {WS}, 0 offen offset:{1024+32*i}{LD}''')
        a.label(lab)
        a('s_mov_b64 exec, -1')
    srd(a, sO, 16, N * 512)
    breads(4)
    compute(4); stampat('u')
    compute(5); stampat('v')
    a(f's_cmp_lg_u32 s{sWV}, 0\ns_cbranch_scc1 kf_pollA_ok')
    poll(WS_FLAG, 'kf_pollA', UQ)
    a(vm.wait('st7') + '\ns_barrier')
    a(f'''s_lshl_b32 s{sTmp}, s0, 2
    buffer_load_dword v{vDB}, v{vNOVF}, {WS}, s{sTmp} offen{LD}''')
    vm.issue('tab')
    signal(WS_FLAG + 8192, 'kf_sigB')
    stampat('o')
    compute(6, nowait=True); compute(7); stampat('x')
    for i in range(4): a(f'v_mov_b32 v{XR+8+i}, v{vW+i}')
    a(f'''v_and_b32 v{U0}, 3, v{vLane}
    v_lshlrev_b32 v{U0}, 3, v{U0}
    v_sub_u32 v{aB}, v{aB}, v{U0}
    v_lshlrev_b32 v{U0}, 1, v{U0}
    v_xor_b32 v{aB}, v{aB}, v{U0}''')
    a(vm.wait('tab'))
    rec_loads(vDB, TOUCH, TOUCH + 1, 'kf_recend')
    stampat('w')
    def w1reads(i, reg):
        for ks in range(2):
            for c in range(2):
                for t_ in range(2):
                    a(f'ds_read_b64_tr_b16 {vr(W1F[((i-8)*2+ks)*2+c]+2*t_,2)}, v{reg} offset:{(i%3)*4096+(32*ks+4*t_)*64+8*c}')
    tile_out()
    a(f'v_mov_b32 v{B2A}, v{W3}\nv_mov_b32 v{B2A+1}, v{W3+1}\nv_mov_b32 v{B2B}, v{W3+2}\nv_mov_b32 v{B2B+1}, v{W3+3}')
    stampat('n')
    a(f'''s_sub_u32 s{sP}, s{sPw}, 3072
    s_subb_u32 s{sP+1}, s{sPw+1}, 0
    s_or_b32 s{sP+1}, s{sP+1}, {512 << 16}
    s_mov_b32 s{sP+2}, {0 if opt.get('nogather') else N}
    s_mov_b32 s{sP+3}, 0x20000
    v_mov_b32 v{TQ}, 0
    v_mov_b32 v{TQ+1}, 0
    v_mov_b32 v{TQ+2}, 0
    v_mov_b32 v{TQ+3}, 0
    s_mov_b32 s{sHeavy}, 0
    s_mov_b32 s{sB}, 0
    s_mov_b32 s{sRdone}, 0
    s_mov_b32 s{sAcc}, 0
    s_mov_b32 s{sEAT}, {EAT}
    s_cmp_lg_u32 s{sWV}, 7
    s_cbranch_scc1 k2_nooh
    v_add_u32 v{T0}, {QT + 40*QSTR}, v{vL16}
    ds_write_b128 v{T0}, {vr(TQ,4)}
    ds_write_b128 v{T0}, {vr(TQ,4)} offset:1024
    ds_write_b128 v{T0}, {vr(TQ,4)} offset:2048
    ds_write_b128 v{T0}, {vr(TQ,4)} offset:3072
    v_mul_u32_u24 v{T0}, {OSTR+2}, v{vLane}
    v_mov_b32 v{T2}, 0x3f80
    v_add_u32 v{T0}, {OH}, v{T0}
    s_mov_b32 exec_hi, 0xff
    ds_write_b16 v{T0}, v{T2}
    s_mov_b32 exec_hi, -1''')
    a.label('k2_nooh')
    a(f's_cmp_lg_u32 s{sWV}, 0\ns_cselect_b32 s{sBok}, 1, 0\ns_branch k2_first')
    a.label('k2_batch')
    for i in range(4): a(f'v_mov_b32 v{TQ+i}, 0')
    list_prefill(TQ, DL4, T0, T1)
    list_consts(T0, T1, T2, T3)
    a('s_waitcnt lgkmcnt(0)\ns_barrier')
    a.label('k2_first')
    stampat(1)
    a(f'''v_lshrrev_b32 v{T2}, 5, v{vLane}
    v_and_b32 v{T3}, 31, v{vLane}
    v_lshlrev_b32 v{T0}, 3, v{T2}
    v_sub_u32 v{T0}, v{T3}, v{T0}
    v_mov_b32 v{T1}, 0x3f80
    v_and_b32 v{aQ}, 1, v{T0}
    v_lshlrev_b32 v{aQ}, 4, v{aQ}
    v_lshlrev_b32 v{T1}, v{aQ}, v{T1}
    v_lshrrev_b32 v{T0}, 1, v{T0}''')
    for k, reg in enumerate([I0, I0+1, I0+2, I0+3, I1, I1+1, I1+2, I1+3]):
        c = k if k < 4 else k + 4
        m = 'vcc' if k % 2 == 0 else f's[{sSv}:{sSv+1}]'
        a(f'v_cmp_eq_u32 {m}, {c}, v{T0}')
        if k:
            pk, preg = k - 1, [I0, I0+1, I0+2, I0+3, I1, I1+1, I1+2, I1+3][k-1]
            a('s_nop 0')
            a(f'v_cndmask_b32 v{preg}, 0, v{T1}, ' + ('vcc' if pk % 2 == 0 else f's[{sSv}:{sSv+1}]'))
    a(f'''v_mov_b32 v{A2}, 0
    v_mov_b32 v{A2+1}, 0
    v_cndmask_b32 v{I1+3}, 0, v{T1}, s[{sSv}:{sSv+1}]
    v_mov_b32 v{A2+2}, 0
    v_mov_b32 v{A2+3}, 0
    s_mov_b32 s{sQs}, {QSTR//4}
    s_mov_b32 s{sOs}, {OSTR//4}''')
    for d in range(4):
        a(f'v_mov_b32 v{IDX1+2*d+1}, v{IDX+2*d+1}\nv_mov_b32 v{IDX2+2*d+1}, v{IDX+2*d+1}')
    a(f'v_mov_b32 v{T3}, 1')
    stampat('e')
    a('s_waitcnt vmcnt(0)')
    stampat(2)
    for i in range(8):
        a(f'''s_mov_b64 exec, s[{sMask+2*i}:{sMask+2*i+1}]
        s_cbranch_execz kf_histend
        v_lshrrev_b32 v{DL4+i}, 14, v{REC+4*i+2}
        v_add_u32 v{T1}, {CNT}, v{DL4+i}
        ds_add_rtn_u32 v{RK+i}, v{T1}, v{T3}''')
    a(f'''s_mov_b64 exec, s[{sOv}:{sOv+1}]
    v_mov_b32 v{T1}, {CNT + 252}
    ds_add_u32 v{T1}, v{T3}''')
    a.label('kf_histend')
    a(f'''s_mov_b64 exec, -1
    v_lshlrev_b32 v{T0}, 2, v{vLane}
    v_add_u32 v{T0}, {CNT}, v{T0}
    s_waitcnt lgkmcnt(0)
    s_nop 0''')
    w1pos = opt.get('w1pos', 'r,g,r').split(',')
    def w1stage(pos):
        for i in (8, 9, 10):
            if w1pos[i - 8] == pos:
                a(f's_or_b32 s{sTmp2}, s{sHeavy}, s{sRdone}\ns_cbranch_scc1 kf_nost{i}')
                stage(i)
                a.label(f'kf_nost{i}')
    w1stage('g')
    stampat('f')
    a('s_barrier')
    stampat('g')
    a(f'ds_read_b32 v{T1}, v{T0}\nv_cmp_gt_u32 vcc, 40, v{vLane}')
    w1stage('r')
    a(f'''s_cmp_lg_u32 s{sBok}, 0
    s_cbranch_scc1 kf_nopk1
    s_and_b32 s{sTmp}, s2, 7
    s_lshl_b32 s{sTmp}, s{sTmp}, 10
    s_add_u32 s{sTmp}, s{sTmp}, {WS_FLAG + 8192 - WS_CELLS}
    buffer_load_dwordx4 {vr(IDX3,4)}, v{vL16}, {WS}, s{sTmp} offen sc1''')
    a.label('kf_nopk1')
    dpp = ['row_shr:1 row_mask:0xf bank_mask:0xf', 'row_shr:2 row_mask:0xf bank_mask:0xf', 'row_shr:4 row_mask:0xf bank_mask:0xf',
           'row_shr:8 row_mask:0xf bank_mask:0xf', 'row_bcast:15 row_mask:0xa bank_mask:0xf', 'row_bcast:31 row_mask:0xc bank_mask:0xf']
    a(f'''s_waitcnt lgkmcnt(0)
    v_readlane_b32 s{sT1}, v{T1}, 63
    v_add_u32 v{T1}, 3, v{T1}
    v_lshrrev_b32 v{T1}, 2, v{T1}
    v_cndmask_b32 v{T1}, 0, v{T1}, vcc
    v_mov_b32 v{T2}, v{T1}
    s_lshl_b32 s{sTmp3}, s{sT1}, 8
    s_nop 0''')
    for k, d in enumerate(dpp):
        a(f'v_add_u32_dpp v{T2}, v{T2}, v{T2} {d}' + (' bound_ctrl:0' if k < 4 else ''))
        a('s_nop 1' if k < 5 else 's_nop 0')
    a(f'''v_readlane_b32 s{sQt}, v{T2}, 63
    v_sub_u32 v{T1}, v{T2}, v{T1}
    v_add_u32 v{T2}, 7, v{T1}
    v_lshrrev_b32 v{T2}, 3, v{T2}
    s_add_u32 s{sTmp}, s{sQt}, 7
    v_sub_u32 v{T0}, s{sTmp}, v{T1}
    v_lshrrev_b32 v{T0}, 3, v{T0}
    v_add_u32 v{T2}, v{T2}, v{T0}
    v_lshlrev_b32 v{T0}, 1, v{T1}
    v_sad_u32 v{T0}, v{T0}, s{sQt}, 0
    v_lshl_add_u32 v{T2}, v{T2}, 5, v{T0}
    v_subrev_u32 v{T0}, 8, v{vLane}
    v_lshl_add_u32 v{T2}, v{T2}, 6, v{vLane}
    v_cmp_gt_u32 vcc, 25, v{T0}
    s_nop 1
    v_cndmask_b32 v{T2}, -1, v{T2}, vcc
    s_nop 1''')
    for k, d in enumerate(dpp):
        a(f'v_min_u32_dpp v{T2}, v{T2}, v{T2} {d}')
        a('s_nop 1' if k < 5 else 's_nop 0')
    a(f'''v_readlane_b32 s{sSplit}, v{T2}, 63
    s_and_b32 s{sSplit}, s{sSplit}, 63
    s_cmp_lg_u32 s{sHeavy}, 0
    s_cselect_b32 s{sSplit}, 20, s{sSplit}
    s_nop 0
    v_readlane_b32 s{sTmp}, v{T1}, s{sSplit}
    v_cmp_le_u32 vcc, s{sSplit}, v{vLane}
    s_add_u32 s{sT0}, s{sTmp}, 7
    s_lshr_b32 s{sT0}, s{sT0}, 3
    s_sub_u32 s{sT1}, s{sQt}, s{sTmp}
    s_add_u32 s{sT1}, s{sT1}, 7
    s_lshr_b32 s{sT1}, s{sT1}, 3
    s_add_u32 s{sTmp2}, s{sT0}, s{sT1}
    s_add_u32 s{sTmp2}, s{sTmp2}, s{sTmp3}
    s_cmp_le_u32 s{sTmp2}, {NT}
    s_cbranch_scc1 k2_fits
    s_mov_b32 s{sHeavy}, 1
    s_branch k2_hentry''')
    a.label('k2_fits')
    stampat('h')
    a(f'''s_lshl_b32 s{sTmp2}, s{sT0}, 3
    s_sub_u32 s{sTmp2}, s{sTmp2}, s{sTmp}
    v_mov_b32 v{T2}, s{sTmp2}
    v_cndmask_b32 v{T2}, 0, v{T2}, vcc
    v_add_lshl_u32 v{T1}, v{T1}, v{T2}, 2''')
    for i in range(8):
        if i in (2, 4, 6): a(f's_cmp_eq_u64 s[{sMask+2*i}:{sMask+2*i+1}], 0\ns_cbranch_scc1 kf_bpend')
        a(f'ds_bpermute_b32 v{TQ+i}, v{DL4+i}, v{T1}')
    a.label('kf_bpend')
    a(f'''s_cmp_eq_u32 s{sG}, 0
    s_cselect_b32 s{sT}, s{sT0}, s{sT1}
    s_cselect_b32 s{sTbase}, 0, s{sT0}
    s_cselect_b32 s{sTmp2}, 0, 192
    s_lshl_b32 s{sT0}, s{sT0}, 5
    s_lshl_b32 s{sTmp}, s{sTbase}, 6
    s_add_u32 s{sTmp}, s{sTmp}, s{sTmp2}
    s_add_u32 s{sTmp}, s{sTmp}, {SRC}
    v_add_u32 v{aSRC}, s{sTmp}, v{aSRC}
    s_lshl_b32 s{sTmp}, s{sTbase}, 9
    s_add_u32 s{sTmp}, s{sTmp}, {EAT}
    v_add_u32 v{aEAT}, s{sTmp}, v{aEAT}
    s_lshl_b32 s{sTmp}, s{sTbase}, 3
    s_add_u32 s{sTmp}, s{sTmp}, {XL}
    v_add_u32 v{aXL}, s{sTmp}, v{aXL}
    v_mov_b32 v{vX}, {SRC}
    v_mov_b32 v{aQ}, {SRC+192}''')
    a(f'v_mov_b32 v{S}, 0x3f80\nv_mov_b32 v{S+1}, 0\ns_mov_b32 s{sTmp}, {XL}\ns_waitcnt lgkmcnt(0)')
    for i in range(8):
        er = REC + 4 * i
        a(f'''s_mov_b64 exec, s[{sMask+2*i}:{sMask+2*i+1}]
        s_cbranch_execz kf_scend
        v_add_u32 v{RK+i}, v{RK+i}, v{TQ+i}
        v_cmp_gt_u32 vcc, s{sT0}, v{RK+i}
        v_lshrrev_b32 v{T2}, 2, v{RK+i}
        v_and_b32 v{T0}, 12, v{RK+i}
        v_cndmask_b32 v{T1}, v{aQ}, v{vX}, vcc
        v_add_u32 v{T2}, s{sTmp}, v{T2}
        v_lshl_add_u32 v{T1}, v{RK+i}, 1, v{T1}
        v_lshlrev_b32 v{T0}, 2, v{T0}
        ds_write_b16 v{T1}, v{er+2}
        ds_write_b8 v{T2}, v{DL4+i}
        v_lshl_add_u32 v{RK+i}, v{RK+i}, 4, s{sEAT}
        v_lshlrev_b64 {vr(er+2,2)}, v{T0}, {vr(S,2)}
        ds_write_b128 v{RK+i}, {vr(er,4)}''')
    a.label('kf_scend')
    a('s_mov_b64 exec, -1')
    a(f's_waitcnt vmcnt(0)\ns_cmp_lg_u32 s{sRdone}, 0\ns_cbranch_scc1 kf_now1\ns_waitcnt lgkmcnt(4)')
    w1reads(9, aB)
    a.label('kf_now1')
    a(f'''s_cmp_lg_u32 s{sBok}, 0
    s_cbranch_scc1 kf_nopeek
    v_and_b32 v{IDX3}, v{IDX3}, v{IDX3+1}
    v_and_b32 v{IDX3+2}, v{IDX3+2}, v{IDX3+3}
    v_and_b32 v{IDX3}, v{IDX3}, v{IDX3+2}
    v_cmp_eq_u32 vcc, 1, v{IDX3}
    s_cmp_eq_u64 vcc, -1
    s_cbranch_scc0 kf_nopeek
    {INV}
    s_mov_b32 s{sBok}, 1''')
    a.label('kf_nopeek')
    a(f's_cmp_lg_u32 s{sBok}, 0\ns_cbranch_scc1 kf_bdone')
    poll(WS_FLAG + 8192, 'kf_pollB', TQ + 4)
    a(f'{INV}\ns_mov_b32 s{sBok}, 1\ns_waitcnt vmcnt(0)')
    a.label('kf_bdone')
    for x in (MA, MA + 1, MB, MB + 1, S, S + 1): a(f'v_mov_b32 v{x}, 0')
    for d in range(4): a(f'v_mov_b32 v{IDX3+2*d+1}, v{IDX+2*d+1}')
    a(f'v_mov_b32 v{T3}, v{aB}\ns_waitcnt lgkmcnt(0)\ns_barrier')
    vm.ops = []
    stampat(3)
    DOFF = [0, 4, 16, 20]
    def idx_reads(base, toff):
        return [f'ds_read_u16 v{base+2*d}, v{aSRC} offset:{toff*64+DOFF[d]}' for d in range(4)]
    def dma_ins(base, d, tag):
        vm.issue(tag)
        return f'buffer_load_dwordx4 {vr(base+2*d,2)}, s[{sP}:{sP+3}], 0 idxen offen offset:{d*1024} lds'
    for x in idx_reads(IDX1, 0) + idx_reads(IDX2, 1): a(x)
    a(f's_mov_b32 m0, s{sRing}\ns_waitcnt lgkmcnt(4)')
    for d in range(4): a(dma_ins(IDX1, d, 'dma0'))
    a(f's_cmp_lg_u32 s{sRdone}, 0\ns_cbranch_scc1 kf_now2')
    w1reads(10, T3)
    a('s_waitcnt lgkmcnt(4)')
    w1reads(8, T3)
    a('s_waitcnt lgkmcnt(0)')
    sv_ = list(vm.ops)
    stage(11)
    vm.ops = sv_
    a.label('kf_now2')
    a(f's_add_u32 m0, s{sRing}, 4096\ns_waitcnt lgkmcnt(0)')
    for d in range(4): a(dma_ins(IDX2, d, 'dma1'))
    stampat(4)
    def gemm(acc, frag, addr, wregs, first, waitv, hook=None):
        def rd(s):
            for rt in range(3):
                f = frag + (s & 1) * 12 + rt * 4
                a(f'ds_read_b128 {vr(f,4)}, v{addr+(s&3)} offset:{rt*8192+(s>>2)*256}')
        rd(0)
        for s in range(8):
            if s + 1 < 8:
                rd(s + 1); w = 'lgkmcnt(3)'
            else: w = 'lgkmcnt(0)'
            wv = waitv(s)
            a((wv + ' ' + w) if wv else 's_waitcnt ' + w)
            if hook: hook(s)
            for rt in range(3):
                for c in range(2):
                    d = acc[rt * 2 + c]; f = frag + (s & 1) * 12 + rt * 4
                    cin = '0' if (first and s == 0) else vr(d, 4)
                    a(f'v_mfma_f32_16x16x32_bf16 {vr(d,4)}, {vr(f,4)}, {vr(wregs(s*2+c),4)}, {cin}')
    def xaddr(dst, t0, t1):
        a(f'''v_and_b32 v{t0}, 15, v{vLane}
        v_lshrrev_b32 v{t1}, 4, v{vLane}
        v_xor_b32 v{t1}, v{t1}, v{t0}
        v_lshlrev_b32 v{t1}, 4, v{t1}
        v_lshl_add_u32 v{t0}, v{t0}, 9, v{t1}
        v_add_u32 v{dst}, {XT}, v{t0}''')
        for s_ in range(1, 4):
            a(f'v_xor_b32 v{t1}, {s_<<6}, v{t0}\nv_add_u32 v{dst+s_}, {XT}, v{t1}')
    a(f's_cmp_lg_u32 s{sRdone}, 0\ns_cbranch_scc1 kf_nor')
    xaddr(RK, T0, T1)
    def hook(s_):
        if s_ == 5:
            a('s_waitcnt vmcnt(4)')
            w1reads(11, T3)
            a('s_waitcnt lgkmcnt(8)')
    gemm([OA + 4 * i for i in range(6)], REC, RK, lambda i: W1F[i], True, lambda s_: None, hook)
    a(f'''s_mov_b32 s{sRdone}, 1
    v_mov_b32 v{T0}, {HMAX+4}
    v_mov_b32 v{T1}, 1
    s_mov_b64 exec, 1
    ds_add_u32 v{T0}, v{T1}
    s_mov_b64 exec, -1''')
    for i in range(4): a(f'v_mov_b32 v{XR+i}, v{RK+i}')
    a(f'''v_and_b32 v{T0}, 31, v{vLane}
    s_lshl_b32 s{sTmp2}, s{sG}, 3
    v_add_u32 v{T0}, s{sTmp2}, v{T0}
    v_cmp_gt_u32 vcc, s{sSplit}, v{T0}
    s_cmp_eq_u32 s{sG}, 0
    s_cselect_b64 s[{sNM}:{sNM+1}], 0, -1
    s_xor_b64 s[{sNM}:{sNM+1}], s[{sNM}:{sNM+1}], vcc
    v_and_b32 v{T2}, 15, v{T0}
    s_lshl_b32 s{sTmp2}, s{sCQ}, 3
    v_xor_b32 v{T2}, s{sTmp2}, v{T2}
    v_lshlrev_b32 v{T2}, 4, v{T2}
    v_lshl_add_u32 v{T2}, v{T0}, 9, v{T2}
    v_lshrrev_b32 v{T1}, 5, v{vLane}
    v_lshl_add_u32 v{T2}, v{T1}, 3, v{T2}
    v_add_u32 v{XR+4}, {XT}, v{T2}
    v_and_b32 v{T0}, 15, v{vLane}
    v_lshrrev_b32 v{T1}, 4, v{vLane}
    v_and_b32 v{T2}, 2, v{vLane}
    v_lshlrev_b32 v{T0}, 2, v{T0}
    v_cmp_eq_u32 vcc, 0, v{T2}
    v_lshl_add_u32 v{XR+6}, v{T1}, 11, v{T0}
    v_mov_b32 v{T0}, 0x05040100
    v_mov_b32 v{T1}, 0x07060302
    v_cndmask_b32 v{XR+5}, v{T1}, v{T0}, vcc
    v_mov_b32 v{XR+7}, {HMAX+4}''')
    a.label('kf_nor')
    for x in range(4): a(f'v_mov_b32 v{NF+x}, 0\nv_mov_b32 v{DF+x}, 1.0')
    stampat(5)
    a(f'''s_cmp_eq_u32 s{sT}, 0
    s_cbranch_scc1 k2_loopend
    ds_read_u8 v{vX}, v{aXL}
    s_mov_b64 exec, s[{sHM}:{sHM+1}]
    ds_read_b128 {vr(A2,4)}, v{aEAT}
    s_mov_b64 exec, -1''')
    a(vm.wait('dma0'))
    a(f'''ds_read_b128 {vr(PA,4)}, v{aP}
    ds_read_b128 {vr(PA+4,4)}, v{aP+1}
    ds_read_b128 {vr(PB,4)}, v{aP+2}
    ds_read_b128 {vr(PB+4,4)}, v{aP+3}
    s_waitcnt lgkmcnt(5)
    v_mad_u32_u24 v{aQ}, v{vX}, s{sQs}, v{cQ}
    v_mad_u32_u24 v{aS}, v{vX}, s{sOs}, v{cS}
    ds_read_u8 v{vX}, v{aXL} offset:8
    ds_read_b64_tr_b16 {vr(B2A+2,2)}, v{aQ}
    ds_read_b64_tr_b16 {vr(B2B+2,2)}, v{aQ} offset:64''')
    for x in idx_reads(IDX3, 2) + idx_reads(IDX, 3): a(x)
    a(f's_sub_u32 s{sCnt}, s{sT}, 1\ns_waitcnt lgkmcnt(9)')
    def zchain(D, B2, P):
        return [f'v_mfma_f32_32x32x16_bf16 {vr(D,16)}, {vr(A2,4)}, {vr(B2,4)}, 0',
                f'v_mfma_f32_32x32x16_bf16 {vr(D,16)}, {vr(P,4)}, {vr(I0,4)}, {vr(D,16)}',
                f'v_mfma_f32_32x32x16_bf16 {vr(D,16)}, {vr(P+4,4)}, {vr(I1,4)}, {vr(D,16)}']
    for m in zchain(DA, B2A, PA): a(m)
    if prio == 'young': a(f's_cmp_eq_u32 s{sG}, 0\ns_cbranch_scc1 k2_noprio\ns_setprio 1\nk2_noprio:')
    a('s_nop 7\ns_nop 3')
    stampat(6)

    cur = {'pT': None, 'pP': None}
    def half(D, accprev, Mprev, Mfin, zc, extra_T, extra_P):
        Ts = [f'v_exp_f32 v{EE+i}, v{D+i}' for i in range(16)] + [f'v_rcp_f32 v{DF+i}, v{DF+i}' for i in range(4)]
        mf = [f'v_mfma_f32_32x32x8_bf16 {vr(accprev,16)}, {vr(Mprev,2)}, {vr(S,2)}, {vr(accprev,16)}'] + zc
        if cur['pT'] is not None: a(f's_setprio {cur["pT"]}')
        for k in range(4):
            if k == 0 and cur.get('first'):
                lab = cur['first']
                a(f's_cmp_lg_u32 s{sAcc}, 0\ns_cbranch_scc1 {lab}_a')
                a(f'v_mfma_f32_32x32x8_bf16 {vr(accprev,16)}, {vr(Mprev,2)}, {vr(S,2)}, 0')
                a.label(lab + '_a')
                continue_T = True
                for x in extra_T.get(k, []): a(x)
                for t_ in Ts[5 * k:5 * k + 5]: a(t_)
                continue
            a(mf[k])
            for x in extra_T.get(k, []): a(x)
            for t_ in Ts[5 * k:5 * k + 5]: a(t_)
        if cur['pP'] is not None: a(f's_setprio {cur["pP"]}')
        Ps = [f'v_pk_fma_f32 {pr(EE+2*p)}, {pr(EE+2*p)}, s[{sC}:{sC+1}], s[{sC}:{sC+1}] clamp' for p in range(8)]
        Ps += [f'v_pk_mul_f32 {pr(NF)}, {pr(NF)}, {pr(DF)}', f'v_pk_mul_f32 {pr(NF+2)}, {pr(NF+2)}, {pr(DF+2)}']
        bs = [0, 4, 8, 12]
        Ps += [f'v_pk_mul_f32 {pr(D+b)}, {pr(D+b)}, {pr(EE+b+2)}' for b in bs]
        Ps += [f'v_cvt_pk_bf16_f32 v{Mfin}, v{NF}, v{NF+1}', f'v_cvt_pk_bf16_f32 v{Mfin+1}, v{NF+2}, v{NF+3}']
        Ps += [f'v_pk_fma_f32 {pr(D+b)}, {pr(D+b+2)}, {pr(EE+b)}, {pr(D+b)}' for b in bs]
        Ps += [f'v_pk_mul_f32 {pr(EE+b)}, {pr(EE+b)}, {pr(EE+b+2)}' for b in bs]
        Ps += [f'v_pk_mul_f32 {pr(NF+2*B)}, {pr(D+8*B)}, {pr(EE+8*B+4)}' for B in range(2)]
        Ps += [f'v_pk_mul_f32 {pr(DF+2*B)}, {pr(EE+8*B)}, {pr(EE+8*B+4)}' for B in range(2)]
        Ps += [f'v_pk_fma_f32 {pr(NF+2*B)}, {pr(D+8*B+4)}, {pr(EE+8*B)}, {pr(NF+2*B)}' for B in range(2)]
        for i, p in enumerate(Ps):
            for x in extra_P.get(i, []):
                a(x() if callable(x) else x)
            a(p)
    def spread(d, xs, start, step=1):
        for i, x in enumerate(xs):
            d.setdefault(start + i * step, []).extend(x if isinstance(x, list) else [x])
    wsched = [('u2', i) for i in range(16)]
    NPEEL = int(opt.get('npeel', 6))
    per = {6: [0, 3, 3, 3, 3, 4], 3: [4, 6, 6]}[NPEEL]
    def iteration(tau, u, peeled):
        sl = (u + 1) % 3
        a('s_waitcnt lgkmcnt(0)')
        eT = {3: [f'v_mad_u32_u24 v{aQ}, v{vX}, s{sQs}, v{cQ}', f'v_mad_u32_u24 v{aS+sl}, v{vX}, s{sOs}, v{cS}']}
        eP = {}
        spread(eP, [(lambda: vm.wait(f'dma{tau+1}')) if peeled else 's_waitcnt vmcnt(4)',
              f'ds_read_b128 {vr(PA,4)}, v{aP} offset:{sl*4096}', f'ds_read_b128 {vr(PA+4,4)}, v{aP+1} offset:{sl*4096}',
              f'ds_read_b64_tr_b16 {vr(B2A+2,2)}, v{aQ}',
              [f's_mov_b64 exec, s[{sHM}:{sHM+1}]', f'ds_read_b128 {vr(A2,4)}, v{aEAT} offset:{(u+1)*512}', 's_mov_b64 exec, -1'],
              f's_add_u32 m0, s{sRing}, {u*4096}'], 1)
        if peeled and tau == 0:
            eP[6] = [f's_add_u32 m0, s{sRing}, 8192']
            spread(eP, [(lambda d=d: dma_ins(IDX3, d, 'dma2')) for d in range(4)], 7, 3)
            eP.setdefault(18, []).append(f's_mov_b32 m0, s{sRing}')
            spread(eP, [(lambda d=d: dma_ins(IDX, d, 'dma3')) for d in range(4)], 19, 3)
        else:
            spread(eP, [(lambda d=d: dma_ins(IDX, d, f'dma{tau+3}')) for d in range(4)], 8, 7)
        cur['first'] = f'kf_f{cur["g"]}A' if (peeled and tau == 0) else None
        half(DA, ACCA, MA, MB, zchain(DB, B2B, PB), eT, eP)
        a('s_waitcnt lgkmcnt(0)')
        eP = {}
        xs = [f'ds_read_b128 {vr(PB,4)}, v{aP+2} offset:{sl*4096}', f'ds_read_b128 {vr(PB+4,4)}, v{aP+3} offset:{sl*4096}',
              f'ds_read_b64_tr_b16 {vr(B2B+2,2)}, v{aQ} offset:64', f'ds_read_b64_tr_b16 {vr(S,2)}, v{aS+u}',
              f'ds_read_u8 v{vX}, v{aXL} offset:{(u+2)*8}'] + idx_reads(IDX, u + 4)
        spread(eP, xs, 1, 2)
        if peeled and not opt.get('nowpf'):
            k0 = sum(per[:tau])
            for j, (m, i) in enumerate(wsched[k0:k0 + per[tau]]):
                def f(m=m, i=i):
                    ins = wload(WB2 + 4 * i, 2, i, 'wu')
                    return '\n'.join(ins)
                eP.setdefault(18 + 2 * j, []).append(f)
            if tau == NPEEL - 1: eP.setdefault(28, []).append(f's_mov_b32 s{sWdone}, 1')
        if u == 2:
            eP.setdefault(29, []).extend([f'v_add_u32 v{aSRC}, 192, v{aSRC}', f'v_add_u32 v{aEAT}, 1536, v{aEAT}', f'v_add_u32 v{aXL}, 24, v{aXL}'])
        eP.setdefault(29, []).append(f's_sub_u32 s{sCnt}, s{sCnt}, 1')
        cur['first'] = f'kf_f{cur["g"]}B' if (peeled and tau == 0) else None
        if cur['first']: eP.setdefault(27, []).append(f's_mov_b32 s{sAcc}, 1')
        half(DB, ACCB, MB, MA, zchain(DA, B2A, PA), {}, eP)
    spec = {'P': '01', 'none': 'xx', 'young': 'xx'}.get(prio, prio).split('|')
    saved = list(vm.ops)
    if len(spec) > 1: a(f's_cmp_lg_u32 s{sG}, 0\ns_cbranch_scc1 k2_g1')
    for g, sp in enumerate(spec):
        vm.ops = list(saved)
        sp = sp.split(',')
        def setp(k):
            x = sp[k % len(sp)]
            cur['pT'] = None if x[0] == 'x' else int(x[0]); cur['pP'] = None if x[1] == 'x' else int(x[1])
        cur['g'] = g
        if g: a.label('k2_g1')
        for tau in range(NPEEL):
            setp(tau)
            iteration(tau, tau % 3, True)
            a('s_cbranch_scc1 k2_drain')
        a.label(f'k2_loop{g}')
        for u in range(3):
            setp(u)
            iteration(100 + u, u, False)
            a('s_cbranch_scc1 k2_drain' if u < 2 else f's_cbranch_scc0 k2_loop{g}')
        if g + 1 < len(spec): a('s_branch k2_drain')
    a.label('k2_drain')
    a('s_setprio 0\ns_waitcnt lgkmcnt(0)')
    a(f'v_mfma_f32_32x32x8_bf16 {vr(ACCA,16)}, {vr(MA,2)}, {vr(S,2)}, {vr(ACCA,16)}')
    for i in range(4): a(f'v_rcp_f32 v{DF+i}, v{DF+i}')
    a('s_nop 0')
    for i in range(4): a(f'v_mul_f32 v{NF+i}, v{NF+i}, v{DF+i}')
    a(f'''v_cvt_pk_bf16_f32 v{MB}, v{NF}, v{NF+1}
    v_cvt_pk_bf16_f32 v{MB+1}, v{NF+2}, v{NF+3}
    s_nop 1
    v_mfma_f32_32x32x8_bf16 {vr(ACCB,16)}, {vr(MB,2)}, {vr(S,2)}, {vr(ACCB,16)}''')
    a.label('k2_loopend')
    stampat(7)
    a(f'''s_cmp_eq_u32 s{sHeavy}, 0
    s_cbranch_scc1 k2_epi
    s_add_u32 s{sB}, s{sB}, 1''')
    a.label('k2_fetch')
    a(f'''s_waitcnt vmcnt(0) lgkmcnt(0)
    s_barrier
    s_cmp_ge_u32 s{sB}, s{sHeavy}
    s_cbranch_scc1 k2_epi
    s_lshl_b32 s{sTmp}, s0, 2
    buffer_load_dword v{TQ}, v{vNOVF}, {WS}, s{sTmp} offen sc1
    v_and_b32 v{T1}, 1, v0
    s_lshl_b32 s{sTmp}, s{sB}, 1
    v_add_u32 v{T1}, s{sTmp}, v{T1}
    s_waitcnt vmcnt(0)
    v_and_b32 v{T0}, 0xffff, v{TQ}
    v_lshrrev_b32 v{TQ}, 16, v{TQ}
    v_add_u32 v{T0}, v{T0}, v{T1}
    v_cmp_lt_u32 s[{sMask}:{sMask+1}], v{T1}, v{TQ}
    v_lshl_add_u32 v{T0}, v{T0}, 4, v{vNOVF}
    buffer_load_dwordx3 {vr(REC,3)}, v{T0}, {WS}, 0 offen offset:1024 sc1''')
    for i in range(1, 8): a(f's_mov_b64 s[{sMask+2*i}:{sMask+2*i+1}], 0')
    a(f's_mov_b64 s[{sOv}:{sOv+1}], 0\ns_waitcnt vmcnt(0)\ns_branch k2_batch')
    a.label('k2_hentry')
    a(f'''s_waitcnt vmcnt(0) lgkmcnt(0)
    s_lshl_b32 s{sTmp}, s0, 2
    buffer_load_dword v{TQ}, v{vNOVF}, {WS}, s{sTmp} offen sc1
    v_mov_b32 v{T0}, {HMAX}
    v_mov_b32 v{T1}, 1
    ds_write_b32 v{T0}, v{T1}
    s_waitcnt vmcnt(0) lgkmcnt(0)
    s_barrier
    v_lshrrev_b32 v{TQ}, 16, v{TQ}
    v_add_u32 v{TQ}, 1, v{TQ}
    v_lshrrev_b32 v{TQ}, 1, v{TQ}
    ds_max_u32 v{T0}, v{TQ}
    s_waitcnt lgkmcnt(0)
    s_barrier
    ds_read_b32 v{T1}, v{T0}
    s_waitcnt lgkmcnt(0)
    v_readfirstlane_b32 s{sHeavy}, v{T1}
    s_branch k2_fetch''')
    a.label('k2_epi')
    vm.ops = []
    a(f's_waitcnt vmcnt(0)\ns_cmp_lg_u32 s{sWdone}, 0\ns_cbranch_scc1 k2_wok')
    for (m, i) in wsched:
        for x in wload(WB2 + 4 * i, 2, i, 'c'): a(x)
    a('s_waitcnt vmcnt(0)')
    a.label('k2_wok')
    Y0, Y1, Y2, Y3 = X0, X0 + 1, X0 + 2, X0 + 3
    a(f'''s_mov_b32 s{sC}, {hex(f2u(-LN2 * 2.0**-30))}
    s_mov_b32 s{sC+1}, {hex(f2u(-LN2 * 2.0**-30))}
    s_cmp_lg_u32 s{sAcc}, 0
    s_cbranch_scc1 kf_accok''')
    for i in range(32): a(f'v_mov_b32 v{ACCA+i}, 0')
    a.label('kf_accok')
    a(f'''ds_read_b32 v{Y0}, v{XR+7}
    s_waitcnt lgkmcnt(0)
    v_readfirstlane_b32 s{sTmp}, v{Y0}
    s_cmp_lt_u32 s{sTmp}, 8
    s_cbranch_scc1 kf_accok
    s_mov_b64 exec, s[{sNM}:{sNM+1}]''')
    Y2 = XR + 4
    for q in range(8):
        a(f'''v_pk_mul_f32 {pr(ACCA+4*q)}, {pr(ACCA+4*q)}, s[{sC}:{sC+1}]
        v_pk_mul_f32 {pr(ACCA+4*q+2)}, {pr(ACCA+4*q+2)}, s[{sC}:{sC+1}]''')
        if q: a(f'v_xor_b32 v{Y3}, {q<<4}, v{Y2}')
        a(f'''v_cvt_pk_bf16_f32 v{ACCA+4*q}, v{ACCA+4*q}, v{ACCA+4*q+1}
        v_cvt_pk_bf16_f32 v{ACCA+4*q+1}, v{ACCA+4*q+2}, v{ACCA+4*q+3}
        ds_write_b64 v{Y3 if q else Y2}, {vr(ACCA+4*q,2)}''')
    a('s_mov_b64 exec, -1')
    EA_ = XR; Y2 = XR + 6; Y3 = XR + 5
    a(f'''s_lshl_b32 s{sTmp2}, s{sN0}, 9
    s_lshl_b32 s{sTmp}, s{sWV}, 6
    s_add_u32 s{sTmp2}, s{sTmp2}, s{sTmp}
    s_mov_b32 s{sC}, {hex(f2u(-LOG2E))}
    s_waitcnt lgkmcnt(0)''')
    stampat(8)
    a('s_barrier')
    Z = DA
    def silu_ops(rt):
        b = OA + rt * 8
        ops = [f'v_mul_f32 v{Z+p}, s{sC}, v{b+p}' for p in range(8)]
        ops += [f'v_exp_f32 v{Z+p}, v{Z+p}' for p in range(8)]
        ops += [f'v_add_f32 v{Z+p}, 1.0, v{Z+p}' for p in range(8)]
        ops += [f'v_rcp_f32 v{Z+p}, v{Z+p}' for p in range(8)]
        ops += [f'v_mul_f32 v{Z+p}, v{b+p}, v{Z+p}' for p in range(8)]
        for rr in range(4):
            ops.append(f'v_cvt_pk_bf16_f32 v{Z+8+rr}, v{Z+rr}, v{Z+4+rr}')
        for rr in range(4):
            ops.append(f'v_mov_b32_dpp v{Z+rr}, v{Z+8+rr} quad_perm:[0,2,0,2] row_mask:0xf bank_mask:0xf')
        for rr in range(4):
            ops.append(f'v_mov_b32_dpp v{Z+4+rr}, v{Z+8+rr} quad_perm:[1,3,1,3] row_mask:0xf bank_mask:0xf')
        for rr in range(4):
            ops.append(f'v_perm_b32 v{Z+8+rr}, v{Z+4+rr}, v{Z+rr}, v{Y3}')
        for rr in range(4):
            if rt == 2 and rr == 3:
                ops.append(f's_cmp_eq_u32 s{sNN}, 40\ns_cselect_b32 exec_lo, -1, 0xffff')
            ops.append(f'buffer_store_dword v{Z+8+rr}, v{Y2}, s[{sO}:{sO+3}], s{sTmp2} offen offset:{rr*512}' + opt.get('outst', ''))
        ops.append(f's_add_u32 s{sTmp2}, s{sTmp2}, 8192')
        return ops
    seq = [(rt, s) for rt in range(3) for s in range(8)]
    def ard(k):
        rt, s = seq[k]
        a(f'ds_read_b128 {vr(AF+4*(k%6),4)}, v{EA_+(s&3)} offset:{rt*8192+(s>>2)*256}')
    for k in range(5): ard(k)
    pend = []
    for k, (rt, s) in enumerate(seq):
        if k + 5 < 24: ard(k + 5)
        a(f's_waitcnt lgkmcnt({min(5, 23-k)})')
        for c in range(2):
            d = OA + (rt * 2 + c) * 4
            a(f'v_mfma_f32_16x16x32_bf16 {vr(d,4)}, {vr(AF+4*(k%6),4)}, {vr(WB2+4*(2*s+c),4)}, {vr(d,4)}')
            if s >= 1 or c == 1:
                n = 5 if s >= 1 else 0
                for x in pend[:n]: a(x)
                pend = pend[n:]
        if s == 7:
            for x in pend: a(x)
            pend = silu_ops(rt)
    a('s_mov_b32 exec_hi, 0\ns_nop 6')
    for x in pend: a(x)
    if stamp:
        stampat(9)
        a(f's_mov_b64 exec, 1\ns_waitcnt lgkmcnt(0)')
        a(f's_lshl_b32 s{sTmp}, s2, 3\ns_add_u32 s{sTmp}, s{sTmp}, s{sWV}\ns_lshl_b32 s{sTmp}, s{sTmp}, 6\ns_add_u32 s{sTmp}, s{sTmp}, {WS_END - WS_CELLS}\nv_mov_b32 v{Y0}, 0')
        for i in range(10):
            a(f'v_mov_b32 v{Y1}, s{sStamp+2*i}\nbuffer_store_dword v{Y1}, v{Y0}, {WS}, s{sTmp} offen offset:{4*i}')
        a(f'v_mov_b32 v{Y1}, s{sT}\nbuffer_store_dword v{Y1}, v{Y0}, {WS}, s{sTmp} offen offset:40')
        a(f'v_mov_b32 v{Y1}, s{sPoll}\nbuffer_store_dword v{Y1}, v{Y0}, {WS}, s{sTmp} offen offset:44')
    if opt.get('diagpad'):
        a(f's_add_u32 s94, s94, {int(opt["diagpad"])}')
        a.label('kf_diag')
        a('s_memrealtime s[92:93]\ns_waitcnt lgkmcnt(0)\ns_sub_u32 s92, s92, s94\ns_cmp_lt_i32 s92, 0\ns_cbranch_scc1 kf_diag')
    a.label('k2_done')
    a('s_endpgm')
    return kd(KNAME, 256, 102)
```

```python
from common import *
FCH = 625; CST = 11264
WS_CELLS = 5242880
WS_WF = WS_CELLS + 256 * CST
WS_FLAG = WS_WF + 131072
WS_END = WS_FLAG + 16384
KNAME = 'standalone__mpnn_edge_mlp__graph_kernel'
POLL_LIMIT = 40000
K2_GRID = NB
NT = 29
QT = 98304; QSTR = 576
OH = QT + 41 * QSTR; OSTR = 80
XT = QT + 40 * QSTR + 4096
EAT = XT + 20480
CNT = EAT + NT * 512
SRC = CNT + 256
XL = SRC + (NT + 7) * 64
K2_LDS = 163840
assert XL + 256 <= K2_LDS
C30 = 0x30800000

class R:
    def __init__(self, start): self.n = start
    def get(self, k=1, align=1):
        self.n = (self.n + align - 1) // align * align
        r = self.n; self.n += k; return r

def vr(r, k): return f'v[{r}:{r+k-1}]' if k > 1 else f'v{r}'
def pr(x): return f'v[{x}:{x+1}]'

def gen_kf(a, opt):
    stamp = opt.get('stamp')
    prio = opt.get('prio', '02,02,13|13,13,02')
    vm = VM()
    INV = 'buffer_inv sc1' if opt.get('inv') else ''
    LD = ' sc1' if opt.get('ldsc1', '0') == '1' else ''
    CS = opt.get('cellst', ' sc1')
    r = R(1)
    vLane = r.get(); vNOVF = r.get(); vL16 = r.get()
    aSRC = r.get(); aEAT = r.get(); aXL = r.get(); cQ = r.get(); cS = r.get(); vX = r.get(); aQ = r.get()
    aS = r.get(3); aP = r.get(4)
    IDX = r.get(8, 2)
    A2 = r.get(4, 2); B2A = r.get(4, 2); B2B = r.get(4, 2)
    S = r.get(2, 2); MA = r.get(2, 2); MB = r.get(2, 2)
    ACCA = r.get(16, 2); ACCB = r.get(16, 2)
    DA = r.get(16, 2); DB = r.get(16, 2)
    EE = r.get(16, 2); NF = r.get(4, 2); DF = r.get(4, 2)
    PA = r.get(8, 2); PB = r.get(8, 2); I0 = r.get(4, 2); I1 = r.get(4, 2)
    WB2 = r.get(64, 2)
    XR = r.get(12, 2)
    OA = r.get(24, 2)
    assert r.n <= 256, r.n
    W1F = [NF + 4 * i for i in range(6)] + [WB2 + 36 + 4 * i for i in range(10)]
    aW = None
    assert PB + 8 == NF + 24 and WB2 + 36 + 40 == OA
    t = R(WB2)
    REC = DB
    assert EE == DB + 16
    RK = t.get(8, 2); TQ = t.get(8, 2); DL4 = t.get(8, 2)
    T0 = t.get(); T1 = t.get(); T2 = t.get(); T3 = t.get()
    IDX3 = t.get(8, 2)
    HMAX = XL + 256
    vMX = XR + 8
    IDX1 = DA; IDX2 = DA + 8
    AF = PA
    X0 = DB + 12
    EA_ = IDX

    sP = 20; sX = 24; sE = 28; sWS = 32; sM = 36; sO = 24
    sWV = 44; sG = 45; sCQ = 46; sHeavy = 47; sB = 48; sPoll = 49; sSplit = 50; sT = 51; sTbase = 52
    sRing = 53; sCnt = 54; sTmp = 55; sTmp2 = 56; sTmp3 = 57; sC = 58
    sMask = 4
    sQs = 68; sOs = 69; sT0 = 70; sT1 = 71; sQt = 72; sWdone = 73; sSv = 74
    sStamp = 76
    sHM = 96; sN0 = 98; sWF = 99; sNN = 3; sBok = 100; sOv = 28; sRdone = 30; sEAT = 31; sAcc = 38; sNM = 36; sSafe = 39; sD = 60; sPw = 64

    names = (stamp if stamp and stamp != '1' else '0,1,2,3,4,5,6,7,8,9').split(',')
    def stampat(nm):
        nm = str(nm)
        if stamp:
            if nm in names:
                i = names.index(nm)
                a(f's_memrealtime s[{sStamp+2*i}:{sStamp+2*i+1}]')
            if nm == '6': a('s_memtime s[100:101]\ns_waitcnt lgkmcnt(0)\ns_mov_b32 s{}, s100'.format(sPoll))
            if nm == '7': a('s_memtime s[100:101]\ns_waitcnt lgkmcnt(0)\ns_sub_u32 s{0}, s100, s{0}'.format(sPoll))
    WS = f's[{sWS}:{sWS+3}]'
    def wload(dst, mat, i, tag):
        off = i * 1024
        ins = [f's_add_u32 s{sTmp3}, s{sWF}, {off & ~4095}',
               f'buffer_load_dwordx4 {vr(dst,4)}, v{vL16}, {WS}, s{sTmp3} offen offset:{off & 4095}']
        vm.issue(tag)
        return ins

    a.raw(f'.globl {KNAME}\n.p2align 8\n.type {KNAME},@function')
    a.label(KNAME)
    a(f's_cmp_ge_u32 s2, {K2_GRID}\ns_cbranch_scc1 k2_done')
    stampat(0)
    if opt.get('diagpad'): a('s_memrealtime s[94:95]')
    eD = 26; eS = 36; eA = 46; eR = 66; eB = 76
    PD = 26; RL = 50; W3 = 58; TOUCH = 86; CT = 58
    UQ = 92; vW = 100; aA = 104; U0 = 108; U1 = 109; U2 = 110; U3 = 111; vW1 = 112; PR0 = 113; PR1 = 114; PG0 = 115; PG1 = 116; aW3 = 117
    vDB = 252; aTO = 253; aB = 90
    BF = NF; AX = WB2
    assert BF == 124 and BF + 32 == WB2 and WB2 + 96 <= 256 and REC == 92
    W3L = QT + 24576
    SW = 1
    TAB = QT; RIMG = QT + 1024; CNTA = QT + 12288
    sS = 20; sDs = 28; sEs = 36; sU = 40
    sWm = 68
    sEM = 76 if not stamp else 8
    a(f'''s_load_dwordx4 s[12:15], s[0:1], 32
    s_load_dwordx4 s[8:11], s[0:1], 16
    s_load_dwordx4 s[4:7], s[0:1], 0
    s_load_dwordx4 s[16:19], s[0:1], 48
    s_load_dwordx2 s[{sWS}:{sWS+1}], s[0:1], 64
    v_lshrrev_b32 v{U0}, 6, v0
    v_and_b32 v{vLane}, 63, v0
    v_readfirstlane_b32 s{sWV}, v{U0}
    v_lshlrev_b32 v{vL16}, 4, v{vLane}
    s_cmp_lg_u32 s{sWV}, 3
    s_cbranch_scc1 kf_noct
    s_getpc_b64 s[{sSv}:{sSv+1}]
    kf_pc:
    s_and_b32 s{sTmp3}, s2, 0xf8
    s_lshl_b32 s{sTmp3}, s{sTmp3}, 7
    s_min_u32 s{sTmp3}, s{sTmp3}, k2_done-kf_pc-1024
    s_add_u32 s{sSv}, s{sSv}, s{sTmp3}
    s_addc_u32 s{sSv+1}, s{sSv+1}, 0
    global_load_dwordx4 {vr(CT,4)}, v{vL16}, s[{sSv}:{sSv+1}]
    kf_noct:
    v_lshlrev_b32 v{U3}, 4, v0
    s_mul_i32 s{sN0}, s2, 625
    s_bfe_u32 s{sTmp3}, s2, 0x50003
    s_lshl_b32 s{sTmp3}, s{sTmp3}, 13
    s_lshl_b32 s{sT}, s{sN0}, 2
    s_lshl_b32 s{sTbase}, s{sN0}, 3
    s_and_b32 s{sPoll}, s2, 7
    s_lshl_b32 s{sPoll}, s{sPoll}, 5
    s_lshr_b32 s{sTmp}, s2, 3
    s_or_b32 s{sPoll}, s{sPoll}, s{sTmp}
    s_mul_i32 s{sN0}, s{sPoll}, 625
    s_add_u32 s{sNN}, s{sN0}, {625+15}
    s_add_u32 s{sN0}, s{sN0}, 15
    s_lshr_b32 s{sN0}, s{sN0}, 4
    s_lshr_b32 s{sNN}, s{sNN}, 4
    s_sub_u32 s{sNN}, s{sNN}, s{sN0}
    s_lshr_b32 s{sG}, s{sWV}, 2
    s_and_b32 s{sCQ}, s{sWV}, 3
    s_lshl_b32 s{sWF}, s{sWV}, 14
    s_add_u32 s{sWF}, s{sWF}, {WS_WF - WS_CELLS}
    v_lshrrev_b32 v{U0}, 5, v{vLane}
    v_and_b32 v{U1}, 31, v{vLane}
    s_lshl_b32 s{sTmp}, s{sWV}, 1
    v_xor_b32 v{U2}, v{U1}, v{U0}
    v_xor_b32 v{U2}, s{sTmp}, v{U2}
    v_lshlrev_b32 v{U2}, 4, v{U2}
    v_lshl_add_u32 v{U2}, v{U0}, 9, v{U2}
    v_xor_b32 v{vW1}, s{sWV}, v{U1}
    v_lshlrev_b32 v{vW1}, 4, v{vW1}
    s_waitcnt lgkmcnt(0)
    s_mov_b32 s0, s{sPoll}''')
    a(f'''s_cmp_lg_u32 s{sWV}, {SW}
    s_cbranch_scc1 kf_noedge
    s_setprio 3
    v_mul_u32_u24 v{U0}, 40, v{vLane}
    v_mul_u32_u24 v{U1}, 80, v{vLane}''')
    srd(a, sDs, 10, E * 4)
    a(f'''buffer_load_dwordx4 {vr(eD,4)}, v{U0}, s[{sDs}:{sDs+3}], s{sT} offen
    buffer_load_dwordx4 {vr(eD+4,4)}, v{U0}, s[{sDs}:{sDs+3}], s{sT} offen offset:16
    buffer_load_dwordx2 {vr(eD+8,2)}, v{U0}, s[{sDs}:{sDs+3}], s{sT} offen offset:32''')
    srd(a, sS, 8, E * 4)
    a(f'''buffer_load_dwordx4 {vr(eS,4)}, v{U0}, s[{sS}:{sS+3}], s{sT} offen
    buffer_load_dwordx4 {vr(eS+4,4)}, v{U0}, s[{sS}:{sS+3}], s{sT} offen offset:16
    buffer_load_dwordx2 {vr(eS+8,2)}, v{U0}, s[{sS}:{sS+3}], s{sT} offen offset:32''')
    srd(a, sEs, 6, E * 8)
    for k in range(5): a(f'buffer_load_dwordx4 {vr(eA+4*k,4)}, v{U1}, s[{sEs}:{sEs+3}], s{sTbase} offen offset:{16*k}')
    a.label('kf_noedge')
    a(f'''s_add_u32 s{sPw}, s{sWS}, {WS_P}
    s_addc_u32 s{sPw+1}, s{sWS+1}, 0
    s_and_b32 s{sPw+1}, s{sPw+1}, 0xffff
    s_mov_b32 s{sPw+2}, {N*512}
    s_mov_b32 s{sPw+3}, 0x20000
    s_add_u32 s{sWS}, s{sWS}, {WS_CELLS}
    s_addc_u32 s{sWS+1}, s{sWS+1}, 0
    s_and_b32 s{sWS+1}, s{sWS+1}, 0xffff
    s_mov_b32 s{sWS+2}, {WS_END - WS_CELLS + (1 << 20 if stamp else 0)}
    s_mov_b32 s{sWS+3}, 0x20000''')
    srd(a, sD, 18, 256)
    a(f'''s_cmp_lg_u32 s2, 0
    s_cbranch_scc1 kf_noinit
    v_mov_b32 v{BF}, 0
    v_mov_b32 v{BF+1}, 0
    v_mov_b32 v{BF+2}, 0
    v_mov_b32 v{BF+3}, 0
    s_mov_b32 s{sTmp}, {WS_FLAG - WS_CELLS}
    s_add_u32 s{sTmp2}, s{sTmp}, 8192
    buffer_store_dwordx4 {vr(BF,4)}, v{U3}, {WS}, s{sTmp} offen sc1
    buffer_store_dwordx4 {vr(BF,4)}, v{U3}, {WS}, s{sTmp2} offen sc1''')
    a.label('kf_noinit')
    vm.issue('edge')
    vm.ops = vm.ops
    srd(a, sWm, 12, 516 * 512)
    a(f'buffer_load_dwordx4 {vr(TOUCH,4)}, v{U3}, s[{sWm}:{sWm+3}], s{sTmp3} offen')
    vm.issue('touch')
    srd(a, sU, 14, 512 * 512)
    a(f'''s_cmp_lt_u32 s{sWV}, 4
    s_cbranch_scc1 kf_nt2
    s_lshr_b32 s{sTmp}, s{sTmp3}, 1
    s_lshl_b32 s{sTmp2}, s{sCQ}, 10
    s_add_u32 s{sTmp}, s{sTmp}, s{sTmp2}
    buffer_load_dwordx4 {vr(eD,4)}, v{vL16}, s[{sU}:{sU+3}], s{sTmp} offen''')
    a.label('kf_nt2')
    a(f'''s_cmp_lg_u32 s{sWV}, 6
    s_cbranch_scc1 kf_now3
    s_mov_b32 m0, {W3L}
    s_mov_b32 s{sTmp}, {512*512}
    buffer_load_dwordx4 v{vL16}, s[{sWm}:{sWm+3}], s{sTmp} offen lds
    buffer_load_dwordx4 v{vL16}, s[{sWm}:{sWm+3}], s{sTmp} offen offset:1024 lds''')
    a.label('kf_now3')
    srd(a, sX, 4, N * 512)
    a(f'''s_lshl_b32 s{sTmp}, s{sN0}, 9
    s_lshl_b32 s{sTmp2}, s{sWV}, 10
    s_add_u32 s{sTmp3}, s{sTmp}, s{sTmp2}
    s_add_u32 m0, s{sTmp2}, {XT}
    s_lshl_b32 s{sCnt}, s{sWV}, 9
    buffer_load_dwordx4 v{U2}, s[{sX}:{sX+3}], s{sTmp3} offen lds
    s_add_u32 m0, s{sTmp2}, {XT+8192}
    s_add_u32 s{sTmp3}, s{sTmp3}, 8192
    buffer_load_dwordx4 v{U2}, s[{sX}:{sX+3}], s{sTmp3} offen lds
    s_add_u32 m0, s{sCnt}, {XT+16384}
    s_add_u32 s{sTmp}, s{sTmp}, s{sCnt}
    s_add_u32 s{sTmp}, s{sTmp}, 16384
    s_mov_b32 exec_hi, 0
    buffer_load_dwordx4 v{vW1}, s[{sX}:{sX+3}], s{sTmp} offen lds
    s_mov_b32 exec_hi, -1''')
    for _ in range(3): vm.issue('x')
    stampat('a')
    a(f'''v_mov_b32 v{UQ+4}, 0
    v_mov_b32 v{UQ+5}, 0
    v_mov_b32 v{UQ+6}, 0
    v_mov_b32 v{UQ+7}, 0
    v_add_u32 v{U1}, {CNTA}, v{vL16}
    s_cmp_lg_u32 s{sWV}, {SW}
    s_cbranch_scc1 kf_nocz
    ds_write_b128 v{U1}, {vr(UQ+4,4)}
    v_mov_b32 v{U1}, {HMAX+8}
    ds_write_b64 v{U1}, {vr(UQ+4,2)}''')
    a.label('kf_nocz')
    nz = (NT * 512 + 256 - 8192) // 16; nf = (NT + 7) * 64 // 16; nx = 16
    def list_prefill(Z, F, t0, t1):
        a(f'''v_lshlrev_b32 v{t0}, 4, v0
        v_add_u32 v{t0}, {EAT}, v{t0}
        v_mov_b32 v{t1}, 0xa0a0a0a0
        ds_write_b128 v{t0}, {vr(Z,4)}
        v_cmp_gt_u32 vcc, {nz}, v0
        s_and_saveexec_b64 s[{sSv}:{sSv+1}], vcc
        ds_write_b128 v{t0}, {vr(Z,4)} offset:8192
        s_mov_b64 exec, -1
        v_cmp_gt_u32 vcc, {nf}, v0
        s_mov_b32 s{sWdone}, 0
        s_nop 0
        v_cndmask_b32 v{F}, v{t1}, -1, vcc
        v_cmp_gt_u32 vcc, {nf+nx}, v0
        v_mov_b32 v{F+1}, v{F}
        v_mov_b32 v{F+2}, v{F}
        v_mov_b32 v{F+3}, v{F}
        s_and_saveexec_b64 s[{sSv}:{sSv+1}], vcc
        ds_write_b128 v{t0}, {vr(F,4)} offset:{SRC-EAT}
        s_mov_b64 exec, -1''')
    stampat('b')
    a(f'''v_lshrrev_b32 v{U0}, 5, v{vLane}
    v_and_b32 v{U1}, 3, v{vLane}
    v_lshlrev_b32 v{U0}, 1, v{U0}
    v_xor_b32 v{U0}, v{U0}, v{U1}
    v_lshrrev_b32 v{U1}, 2, v{vLane}
    v_lshlrev_b32 v{U1}, 9, v{U1}
    v_lshl_add_u32 v{U0}, v{U0}, 4, v{U1}
    s_lshl_b32 s{sTmp}, s{sWV}, 6
    v_add_u32 v{vW}, s{sTmp}, v{U0}
    v_add_u32 v{vW+1}, 7168, v{vW}
    v_add_u32 v{vW+2}, 14336, v{vW}
    v_add_u32 v{vW+3}, 21504, v{vW}
    s_mul_i32 s{sRing}, s{sWV}, 12288''')
    def stage(i):
        a(f's_add_u32 m0, s{sRing}, {(i % 3) * 4096}\ns_mov_b32 s{sTmp3}, {(i & 7) * 32768}')
        sr = sWm if i < 8 else sU
        for t_ in range(4):
            a(f'buffer_load_dwordx4 v{(vW if i < 8 else XR + 8)+t_}, s[{sr}:{sr+3}], s{sTmp3} offen offset:{t_*1024} lds')
            vm.issue(f'st{i}')
    a(f'''v_and_b32 v{U0}, 15, v{vLane}
    v_lshrrev_b32 v{U1}, 4, v{vLane}
    v_xor_b32 v{U2}, v{U1}, v{U0}
    v_lshlrev_b32 v{U2}, 4, v{U2}
    v_lshl_add_u32 v{U0}, v{U0}, 9, v{U2}
    v_add_u32 v{aA}, {XT}, v{U0}''')
    for s_ in range(1, 4):
        a(f'v_xor_b32 v{U2}, {s_<<6}, v{U0}\nv_add_u32 v{aA+s_}, {XT}, v{U2}')
    a(f'''v_bfe_u32 v{U0}, v{vLane}, 2, 2
    v_lshl_add_u32 v{U0}, v{U1}, 3, v{U0}
    v_and_b32 v{U2}, 1, v{U1}
    v_lshlrev_b32 v{U2}, 5, v{U2}
    v_and_b32 v{U3}, 3, v{vLane}
    v_lshl_add_u32 v{U2}, v{U3}, 3, v{U2}
    v_lshl_add_u32 v{U2}, v{U0}, 6, v{U2}
    v_add_u32 v{aB}, s{sRing}, v{U2}
    v_xor_b32 v{aB+1}, 32, v{aB}
    v_mov_b32 v{U3}, 1''')
    list_prefill(UQ + 4, BF + 4, U0, U1)
    NPRE = int(opt.get('npre', 1))
    NPRE2 = int(opt.get('npre2', NPRE))
    for i in range(NPRE): stage(i)
    stampat('y')
    def early_consts(T0, T1, T2, T3):
        a(f'''v_lshrrev_b32 v{T2}, 5, v{vLane}
        v_and_b32 v{T3}, 31, v{vLane}
        v_bfe_u32 v{T0}, v{T3}, 2, 1
        v_cmp_eq_u32 s[{sHM}:{sHM+1}], v{T0}, v{T2}
        v_bfe_u32 v{T0}, v{T3}, 1, 3
        v_xor_b32 v{T0}, v{T0}, v{T2}
        v_lshlrev_b32 v{T0}, 4, v{T0}
        v_lshl_add_u32 v{T0}, v{T3}, 7, v{T0}
        v_add_u32 v{aP}, s{sRing}, v{T0}
        v_xor_b32 v{aP+1}, 32, v{aP}
        v_xor_b32 v{aP+2}, 64, v{aP}
        v_xor_b32 v{aP+3}, 96, v{aP}
        v_and_b32 v{T0}, 7, v{vLane}
        v_lshrrev_b32 v{T1}, 4, v{vLane}
        v_xor_b32 v{T0}, v{T0}, v{T1}
        s_lshl_b32 s{sTmp}, s{sCQ}, 7
        v_lshl_add_u32 v{T0}, v{T0}, 4, s{sTmp}
        v_xor_b32 v{IDX+7}, 64, v{T0}
        v_add_u32 v{IDX+1}, 3072, v{T0}
        v_add_u32 v{IDX+3}, 2048, v{IDX+7}
        v_add_u32 v{IDX+5}, 1024, v{T0}
        v_bfe_u32 v{T0}, v{vLane}, 4, 1
        v_and_b32 v{T1}, 3, v{vLane}
        v_lshlrev_b32 v{T1}, 3, v{T1}
        v_lshl_add_u32 v{T0}, v{T0}, 5, v{T1}
        s_add_u32 s{sTmp}, s{sTmp}, {QT}
        v_add_u32 v{cQ}, s{sTmp}, v{T0}
        s_lshl_b32 s{sTmp}, s{sG}, 4
        s_add_u32 s{sTmp}, s{sTmp}, {OH}
        v_add_u32 v{cS}, s{sTmp}, v{T0}
        s_mov_b32 s{sC}, {hex(C30)}
        s_mov_b32 s{sC+1}, {hex(C30)}''')
    def list_consts(T0, T1, T2, T3):
        a(f'''v_bfe_u32 v{T0}, v{vLane}, 5, 1
        v_bfe_u32 v{T1}, v{vLane}, 3, 1
        v_bfe_u32 v{T2}, v{vLane}, 4, 1
        v_lshlrev_b32 v{aSRC}, 5, v{T0}
        v_lshl_add_u32 v{aSRC}, v{T1}, 3, v{aSRC}
        v_lshl_add_u32 v{aSRC}, v{T2}, 1, v{aSRC}
        v_bfe_u32 v{T3}, v{vLane}, 2, 2
        v_lshl_add_u32 v{aXL}, v{T0}, 2, v{T3}
        v_and_b32 v{T3}, 1, v{T3}
        v_lshl_add_u32 v{aEAT}, v{T3}, 1, v{T2}
        v_and_b32 v{T0}, 1, v{vLane}
        v_lshl_add_u32 v{aEAT}, v{aEAT}, 1, v{T0}
        v_lshl_add_u32 v{aEAT}, v{aEAT}, 1, v{T1}
        v_bfe_u32 v{T0}, v{vLane}, 1, 1
        v_lshl_add_u32 v{aEAT}, v{aEAT}, 1, v{T0}
        v_lshlrev_b32 v{aEAT}, 4, v{aEAT}''')
    TOUCH_T = 118
    def hoisted():
        early_consts(U0, U1, U2, TOUCH_T)
        list_consts(U0, U1, U2, TOUCH_T)
        a(f'''v_lshrrev_b32 v{U0}, 4, v{vLane}
    v_mul_u32_u24 v{U0}, {4*QSTR}, v{U0}
    v_and_b32 v{U1}, 15, v{vLane}
    v_lshl_add_u32 v{U0}, v{U1}, 2, v{U0}
    s_lshl_b32 s{sTmp2}, s{sWV}, 6
    s_add_u32 s{sTmp2}, s{sTmp2}, {QT}
    v_add_u32 v{aTO}, s{sTmp2}, v{U0}
    v_lshrrev_b32 v{U0}, 5, v{vLane}
    v_and_b32 v{PG1}, 31, v{vLane}
    v_lshlrev_b32 v{PG1}, 4, v{PG1}
    v_lshl_add_u32 v{PG0}, v{U0}, 9, v{PG1}
    v_mul_u32_u24 v{U0}, {QSTR}, v{U0}
    v_add_u32 v{U0}, v{U0}, v{PG1}
    s_mul_i32 s{sTmp}, s{sWV}, {2*QSTR}
    s_add_u32 s{sTmp}, s{sTmp}, {QT}
    v_add_u32 v{PR0}, s{sTmp}, v{U0}
    s_mul_i32 s{sTmp}, s{sWV}, {QSTR}
    s_add_u32 s{sTmp}, s{sTmp}, {QT + 32*QSTR}
    v_add_u32 v{PR1}, s{sTmp}, v{PG1}
    v_bfe_u32 v{U0}, v{vLane}, 1, 4
    v_and_b32 v{U1}, 1, v{vLane}
    v_lshlrev_b32 v{U0}, 1, v{U0}
    v_lshl_add_u32 v{U0}, v{U1}, 5, v{U0}
    s_lshl_b32 s{sTmp}, s{sCQ}, 7
    s_add_u32 s{sTmp}, s{sTmp}, {W3L}
    v_add_u32 v{aW3}, s{sTmp}, v{U0}
    v_lshrrev_b32 v{U0}, 1, v0
    v_mul_u32_u24 v{vNOVF}, {CST}, v{U0}''')
    hoisted()
    dpp = ['row_shr:1 row_mask:0xf bank_mask:0xf', 'row_shr:2 row_mask:0xf bank_mask:0xf', 'row_shr:4 row_mask:0xf bank_mask:0xf',
           'row_shr:8 row_mask:0xf bank_mask:0xf', 'row_bcast:15 row_mask:0xa bank_mask:0xf', 'row_bcast:31 row_mask:0xc bank_mask:0xf']
    a(f'''s_cmp_lg_u32 s{sWV}, {SW}
    s_cbranch_scc1 kf_nohist
    s_movk_i32 s{sTmp}, 625
    s_mov_b32 exec_hi, 0x7fffffff''')
    a(f's_waitcnt vmcnt({vm.count_after("edge") + 8})')
    stampat('z')
    for i in range(10):
        a(f'''v_mul_u32_u24 v{eB+i}, 429497, v{eD+i}
        v_lshrrev_b32 v{eB+i}, 24, v{eB+i}
        v_mad_u32_u24 v{U0}, v{eB+i}, s{sTmp}, 15
        v_lshlrev_b32 v{eB+i}, 2, v{eB+i}
        v_add_u32 v{eB+i}, {CNTA}, v{eB+i}''')
        if i == 5: a('s_mov_b32 exec_hi, 0x3fffffff')
        a(f'''ds_add_rtn_u32 v{eR+i}, v{eB+i}, v{U3}
        v_lshrrev_b32 v{U0}, 4, v{U0}
        v_sub_u32 v{eD+i}, v{eD+i}, v{U0}''')
    a(f'''s_mov_b32 exec_hi, -1
    v_add_u32 v{U0}, {CNTA}, v{vL16}
    ds_read_b128 {vr(UQ,4)}, v{U0}''')
    a(f's_waitcnt vmcnt({vm.count_after("edge") + 5})')
    for i in range(10): a(f'v_lshl_or_b32 v{eS+i}, v{eD+i}, 16, v{eS+i}')
    a(f'''s_waitcnt lgkmcnt(0)
    v_add_u32 v{UQ+5}, v{UQ}, v{UQ+1}
    v_add_u32 v{UQ+6}, v{UQ+5}, v{UQ+2}
    v_add_u32 v{U1}, v{UQ+6}, v{UQ+3}
    v_mov_b32 v{U2}, v{U1}
    s_nop 1''')
    for k, d in enumerate(dpp):
        a(f'v_add_u32_dpp v{U2}, v{U2}, v{U2} {d}' + (' bound_ctrl:0' if k < 4 else '') + '\ns_nop 1')
    a(f'''v_sub_u32 v{UQ+4}, v{U2}, v{U1}
    v_add_u32 v{UQ+7}, v{UQ+6}, v{UQ+4}
    v_add_u32 v{UQ+6}, v{UQ+5}, v{UQ+4}
    v_add_u32 v{UQ+5}, v{UQ}, v{UQ+4}
    ds_write_b128 v{U0}, {vr(UQ+4,4)} offset:1024''')
    for i in range(10): a(f'ds_read_b32 v{eD+i}, v{eB+i} offset:1024')
    a(f'''v_lshl_or_b32 v{UQ+4}, v{UQ}, 16, v{UQ+4}
    v_lshl_or_b32 v{UQ+5}, v{UQ+1}, 16, v{UQ+5}
    v_lshl_or_b32 v{UQ+6}, v{UQ+2}, 16, v{UQ+6}
    v_lshl_or_b32 v{UQ+7}, v{UQ+3}, 16, v{UQ+7}
    v_subrev_u32 v{U0}, {CNTA-TAB}, v{U0}
    s_mov_b32 s{sTmp}, {RIMG}
    s_mov_b32 exec_hi, 0x7fffffff''')
    a(vm.wait('edge'))
    for i in range(10):
        if i == 5: a('s_mov_b32 exec_hi, 0x3fffffff')
        a(f'''s_waitcnt lgkmcnt({min(9, 9 - i + 2 * i)})
        v_add_u32 v{eD+i}, v{eD+i}, v{eR+i}
        v_lshl_add_u32 v{eD+i}, v{eD+i}, 4, s{sTmp}
        ds_write_b64 v{eD+i}, {vr(eA+2*i,2)}
        ds_write_b32 v{eD+i}, v{eS+i} offset:8''')
    a(f'''s_mov_b32 exec_hi, -1
    ds_write_b128 v{U0}, {vr(UQ+4,4)}
    s_setprio 0''')
    a.label('kf_nohist')
    for i in range(NPRE, NPRE2): stage(i)
    a(vm.wait('x') + ' lgkmcnt(0)')
    a('s_barrier')
    stampat('c')
    axr = [f'ds_read_b128 {vr(AX+(s_*3+rt)*4,4)}, v{aA+(s_&3)} offset:{rt*8192+(s_>>2)*256}' for s_ in range(8) for rt in range(3)]
    a(f'''s_or_b32 s{sTmp}, s2, s{sWV}
    s_cbranch_scc1 kf_noset
    v_mov_b32 v{U0}, 1
    v_mov_b32 v{U1}, 0
    s_mov_b64 exec, 1
    buffer_store_dword v{U0}, v{U1}, s[{sD}:{sD+3}], 0 offen sc1
    s_mov_b64 exec, -1''')
    a.label('kf_noset')
    axr = [f'ds_read_b128 {vr(AX+(s_*3+rt)*4,4)}, v{aA+(s_&3)} offset:{rt*8192+(s_>>2)*256}' for s_ in range(8) for rt in range(3)]
    AXE = not opt.get('axlate')
    if AXE:
        for x in axr[:12]: a(x)
    for i in range(NPRE2, 3): stage(i)
    stampat('A')
    a(f'''v_lshlrev_b32 v{U3}, 4, v0
    v_add_u32 v{U0}, {TAB}, v{U3}
    ds_read_b128 {vr(UQ,4)}, v{U0}
    ds_read_b128 {vr(UQ+4,4)}, v{U0} offset:8192
    s_mul_i32 s{sT}, s2, {CST}
    s_add_u32 s{sTbase}, s{sT}, 8192
    s_cmp_gt_u32 s{sWV}, 2
    s_waitcnt lgkmcnt(0)
    s_cbranch_scc1 kf_nost2
    buffer_store_dwordx4 {vr(UQ+4,4)}, v{U3}, {WS}, s{sTbase} offen{CS}''')
    a.label('kf_nost2')
    a(f'buffer_store_dwordx4 {vr(UQ,4)}, v{U3}, {WS}, s{sT} offen{CS}')
    vm.issue('cells')
    stampat('E')
    a(f'''s_cmp_lg_u32 s{sWV}, 0
    s_cbranch_scc1 kf_nodb
    v_mov_b32 v{vDB}, 0
    buffer_load_dword v{vDB}, v{vDB}, s[{sD}:{sD+3}], 0 offen sc1''')
    a.label('kf_nodb')
    a(f'''s_cmp_lg_u32 s{sWV}, 7
    s_cbranch_scc1 kf_norl
    s_cmp_ge_u32 s2, 128
    s_cbranch_scc1 kf_norl
    v_lshrrev_b32 v{U0}, 4, v{vLane}
    v_lshlrev_b32 v{U0}, 11, v{U0}
    v_bfe_u32 v{U1}, v{vLane}, 2, 2
    v_lshl_add_u32 v{U0}, v{U1}, 4, v{U0}
    v_and_b32 v{U1}, 3, v{vLane}
    v_lshl_add_u32 v{U0}, v{U1}, 1, v{U0}
    s_bfe_u32 s{sTmp}, s2, 0x30001
    s_lshl_b32 s{sTmp2}, s{sTmp}, 14
    s_add_u32 s{sTmp2}, s{sTmp2}, {256*512}
    s_bfe_u32 s{sTmp}, s2, 0x30004
    s_lshl_b32 s{sTmp}, s{sTmp}, 6
    s_add_u32 s{sTmp2}, s{sTmp2}, s{sTmp}
    s_and_b32 s{sTmp}, s2, 1
    s_lshl_b32 s{sTmp}, s{sTmp}, 3
    s_add_u32 s{sTmp2}, s{sTmp2}, s{sTmp}
    s_add_u32 s{sTmp}, s{sTmp2}, 8192''')
    for e in range(0, 8, 2):
        a(f'''buffer_load_ushort v{RL+e}, v{U0}, s[{sU}:{sU+3}], s{sTmp2} offen offset:{(e>>1)*512}
        buffer_load_ushort v{RL+e+1}, v{U0}, s[{sU}:{sU+3}], s{sTmp} offen offset:{(e>>1)*512}''')
    a.label('kf_norl')
    stampat('B')
    def breads(i, nowait=False):
        if not nowait: a(vm.wait(f'st{i}'))
        for ks in range(2):
            for c in range(2):
                for t_ in range(2):
                    a(f'ds_read_b64_tr_b16 {vr(BF+(i&1)*16+ks*8+c*4+t_*2,2)}, v{aB+c} offset:{(i%3)*4096+(32*ks+4*t_)*64}')
    def compute(i, nowait=False):
        a('s_waitcnt lgkmcnt(0)')
        if opt.get('stfirst') and i + 3 < 8: stage(i + 3)
        for ks in range(2):
            s_ = (2 * i + ks) & 7
            for rt in range(3):
                for c in range(2):
                    d = PD + (rt * 2 + c) * 4
                    cin = '0' if s_ == 0 else vr(d, 4)
                    a(f'v_mfma_f32_16x16x32_bf16 {vr(d,4)}, {vr(AX+(s_*3+rt)*4,4)}, {vr(BF+(i&1)*16+ks*8+c*4,4)}, {cin}')
                    if ks == 0 and rt == 0 and c == 1 and i + 1 < 8 and i != 3: breads(i + 1, nowait)
                    if ks == 1 and rt == 0 and c == 1 and i + 3 < 8 and not opt.get('stfirst'): stage(i + 3)
    def poll(off, lab, PR):
        a(f'''s_and_b32 s{sTmp}, s2, 7
        s_lshl_b32 s{sTmp}, s{sTmp}, 10
        s_add_u32 s{sTmp}, s{sTmp}, {off - WS_CELLS}
        s_mov_b32 s{sPoll}, {POLL_LIMIT}''')
        a.label(lab)
        a(f'''buffer_load_dwordx4 {vr(PR,4)}, v{vL16}, {WS}, s{sTmp} offen sc1
        s_waitcnt vmcnt(0)
        v_and_b32 v{PR}, v{PR}, v{PR+1}
        v_and_b32 v{PR+2}, v{PR+2}, v{PR+3}
        v_and_b32 v{PR}, v{PR}, v{PR+2}
        v_cmp_eq_u32 vcc, 1, v{PR}
        s_cmp_eq_u64 vcc, -1
        s_cbranch_scc1 {lab}_ok
        s_sleep 1
        s_sub_u32 s{sPoll}, s{sPoll}, 1
        s_cbranch_scc0 {lab}''')
        a.label(lab + '_ok')
    def tile_out():
        a(f'''s_mov_b32 s{sSv}, {hex(f2u(-LOG2E))}
        s_mov_b32 s{sSv+1}, {hex(f2u(-LOG2E))}
        s_nop 5''')
        for rt in range(3):
            if rt == 2: a('s_mov_b32 exec_hi, 0')
            for h in range(4):
                d = PD + rt * 8 + 2 * h
                a(f'v_pk_mul_f32 {pr(d)}, {pr(d)}, s[{sSv}:{sSv+1}]')
            for rr in range(4):
                d0 = PD + rt * 8 + rr
                a(f'v_cvt_pk_bf16_f32 v{d0}, v{d0}, v{d0+4}\nds_write_b32 v{aTO}, v{d0} offset:{(16*rt+rr)*QSTR}')
        a('s_mov_b32 exec_hi, -1')
    def signal(off, lab):
        a(f'''s_cmp_lg_u32 s{sWV}, 0
        s_cbranch_scc1 {lab}
        v_lshlrev_b32 v{TOUCH}, 10, v{vLane}
        v_mov_b32 v{TOUCH+1}, 1
        s_lshl_b32 s{sTmp}, s2, 2
        s_add_u32 s{sTmp}, s{sTmp}, {off - WS_CELLS}
        s_mov_b64 exec, 0xff
        buffer_store_dword v{TOUCH+1}, v{TOUCH}, {WS}, s{sTmp} offen sc1
        s_mov_b64 exec, -1''')
        a.label(lab)
    if not AXE:
        for x in axr[:12]: a(x)
        a('s_waitcnt lgkmcnt(6)')
    for ct in range(2):
        for k in range(4): a(f'ds_read_u16 v{W3+4*ct+k}, v{aW3} offset:{k*512+ct*64}')
    a('s_waitcnt lgkmcnt(2)')
    for x in axr[12:]: a(x)
    a('s_waitcnt lgkmcnt(6)')
    stampat('C')
    breads(0)
    stampat('p')
    compute(0)
    stampat('d')
    compute(1); stampat('r')
    a(f's_mov_b32 s{sTmp}, {hex(f2u(-LOG2E))}')
    for k in range(8): a(f'v_lshlrev_b32 v{W3+k}, 16, v{W3+k}\nv_mul_f32 v{W3+k}, s{sTmp}, v{W3+k}')
    for p in range(4): a(f'v_cvt_pk_bf16_f32 v{W3+p}, v{W3+2*p}, v{W3+2*p+1}')
    a(vm.wait('cells'))
    a(f'''s_cmp_lg_u32 s{sWV}, 0
    s_cbranch_scc1 kf_initok
    s_mov_b32 s{sPoll}, {POLL_LIMIT}''')
    a.label('kf_initpoll')
    a(f'''v_readfirstlane_b32 s{sTmp}, v{vDB}
    s_cmp_lg_u32 s{sTmp}, 0
    s_cbranch_scc1 kf_initok
    v_mov_b32 v{vDB}, 0
    s_sleep 2
    buffer_load_dword v{vDB}, v{vDB}, s[{sD}:{sD+3}], 0 offen sc1
    s_waitcnt vmcnt(0)
    s_sub_u32 s{sPoll}, s{sPoll}, 1
    s_cbranch_scc0 kf_initpoll''')
    a.label('kf_initok')
    a('s_barrier')
    signal(WS_FLAG, 'kf_sigA')
    stampat('k')
    compute(2); stampat('s')
    compute(3); stampat('t')
    tile_out()
    a('s_waitcnt lgkmcnt(0)\ns_barrier')
    stampat('l')
    a(f'''s_cmp_lg_u32 s{sWV}, 7
    s_cbranch_scc1 kf_norl2
    s_cmp_ge_u32 s2, 128
    s_cbranch_scc1 kf_norl2''')
    for p in range(4): a(f'v_lshl_or_b32 v{BF+16+p}, v{RL+2*p+1}, 16, v{RL+2*p}')
    a(f'''s_lshl_b32 s{sTmp}, s2, 10
    s_add_u32 s{sTmp}, s{sTmp}, {WS_WF - WS_CELLS}
    buffer_store_dwordx4 {vr(BF+16,4)}, v{vL16}, {WS}, s{sTmp} offen sc1
    s_nop 1''')
    a.label('kf_norl2')
    a(f'''ds_read_b128 {vr(UQ,4)}, v{PR0}
    ds_read_b128 {vr(UQ+4,4)}, v{PR0} offset:{16*QSTR}
    ds_read_b128 {vr(TOUCH,4)}, v{PR1}
    s_lshl_b32 s{sTmp}, s{sN0}, 9
    s_lshl_b32 s{sTmp2}, s{sWV}, 10
    s_add_u32 s{sTmp2}, s{sTmp2}, s{sTmp}
    s_lshl_b32 s{sTmp3}, s{sWV}, 9
    s_add_u32 s{sTmp}, s{sTmp}, s{sTmp3}
    s_add_u32 s{sTmp}, s{sTmp}, 16384
    s_waitcnt lgkmcnt(2)
    buffer_store_dwordx4 {vr(UQ,4)}, v{PG0}, s[{sPw}:{sPw+3}], s{sTmp2} offen{CS}
    s_add_u32 s{sTmp2}, s{sTmp2}, 8192
    s_waitcnt lgkmcnt(1)
    buffer_store_dwordx4 {vr(UQ+4,4)}, v{PG0}, s[{sPw}:{sPw+3}], s{sTmp2} offen{CS}
    s_mov_b32 exec_hi, 0
    s_waitcnt lgkmcnt(0)
    buffer_store_dwordx4 {vr(TOUCH,4)}, v{PG1}, s[{sPw}:{sPw+3}], s{sTmp} offen{CS}
    s_mov_b32 exec_hi, -1''')
    for _ in range(3): vm.issue('pst')
    def rec_loads(tab, t0, t1, lab):
        a(f'''v_and_b32 v{t1}, 1, v0
        v_and_b32 v{t0}, 0xffff, v{tab}
        v_add_u32 v{t0}, v{t0}, v{t1}
        v_lshl_add_u32 v{t0}, v{t0}, 4, v{vNOVF}
        v_lshrrev_b32 v{tab}, 16, v{tab}
        v_sub_u32 v{t1}, v{tab}, v{t1}
        v_add_u32 v{t1}, 1, v{t1}
        v_lshrrev_b32 v{t1}, 1, v{t1}''')
        for i in range(8): a(f'v_cmp_lt_u32 s[{sMask+2*i}:{sMask+2*i+1}], {i}, v{t1}')
        a(f'v_cmp_lt_u32 s[{sOv}:{sOv+1}], 8, v{t1}')
        for i in range(8):
            a(f'''s_mov_b64 exec, s[{sMask+2*i}:{sMask+2*i+1}]
            s_cbranch_execz {lab}
            buffer_load_dwordx3 {vr(REC+4*i,3)}, v{t0}, {WS}, 0 offen offset:{1024+32*i}{LD}''')
        a.label(lab)
        a('s_mov_b64 exec, -1')
    srd(a, sO, 16, N * 512)
    breads(4)
    compute(4); stampat('u')
    compute(5); stampat('v')
    a(f's_cmp_lg_u32 s{sWV}, 0\ns_cbranch_scc1 kf_pollA_ok')
    poll(WS_FLAG, 'kf_pollA', UQ)
    a(vm.wait('st7') + '\ns_barrier')
    a(f'''s_lshl_b32 s{sTmp}, s0, 2
    buffer_load_dword v{vDB}, v{vNOVF}, {WS}, s{sTmp} offen{LD}''')
    vm.issue('tab')
    signal(WS_FLAG + 8192, 'kf_sigB')
    stampat('o')
    compute(6, nowait=True); compute(7); stampat('x')
    for i in range(4): a(f'v_mov_b32 v{XR+8+i}, v{vW+i}')
    a(f'''v_and_b32 v{U0}, 3, v{vLane}
    v_lshlrev_b32 v{U0}, 3, v{U0}
    v_sub_u32 v{aB}, v{aB}, v{U0}
    v_lshlrev_b32 v{U0}, 1, v{U0}
    v_xor_b32 v{aB}, v{aB}, v{U0}''')
    a(vm.wait('tab'))
    rec_loads(vDB, TOUCH, TOUCH + 1, 'kf_recend')
    stampat('w')
    def w1reads(i, reg):
        for ks in range(2):
            for c in range(2):
                for t_ in range(2):
                    a(f'ds_read_b64_tr_b16 {vr(W1F[((i-8)*2+ks)*2+c]+2*t_,2)}, v{reg} offset:{(i%3)*4096+(32*ks+4*t_)*64+8*c}')
    tile_out()
    a(f'v_mov_b32 v{B2A}, v{W3}\nv_mov_b32 v{B2A+1}, v{W3+1}\nv_mov_b32 v{B2B}, v{W3+2}\nv_mov_b32 v{B2B+1}, v{W3+3}')
    stampat('n')
    a(f'''s_sub_u32 s{sP}, s{sPw}, 3072
    s_subb_u32 s{sP+1}, s{sPw+1}, 0
    s_or_b32 s{sP+1}, s{sP+1}, {512 << 16}
    s_mov_b32 s{sP+2}, {0 if opt.get('nogather') else N}
    s_mov_b32 s{sP+3}, 0x20000
    v_mov_b32 v{TQ}, 0
    v_mov_b32 v{TQ+1}, 0
    v_mov_b32 v{TQ+2}, 0
    v_mov_b32 v{TQ+3}, 0
    s_mov_b32 s{sHeavy}, 0
    s_mov_b32 s{sB}, 0
    s_mov_b32 s{sRdone}, 0
    s_mov_b32 s{sAcc}, 0
    s_mov_b32 s{sSafe}, {1 if opt.get('allsafe') else 0}
    s_mov_b32 s{sEAT}, {EAT}
    s_cmp_lg_u32 s{sWV}, 7
    s_cbranch_scc1 k2_nooh
    v_add_u32 v{T0}, {QT + 40*QSTR}, v{vL16}
    ds_write_b128 v{T0}, {vr(TQ,4)}
    ds_write_b128 v{T0}, {vr(TQ,4)} offset:1024
    ds_write_b128 v{T0}, {vr(TQ,4)} offset:2048
    ds_write_b128 v{T0}, {vr(TQ,4)} offset:3072
    v_mul_u32_u24 v{T0}, {OSTR+2}, v{vLane}
    v_mov_b32 v{T2}, 0x3f80
    v_add_u32 v{T0}, {OH}, v{T0}
    s_mov_b32 exec_hi, 0xff
    ds_write_b16 v{T0}, v{T2}
    s_mov_b32 exec_hi, -1''')
    a.label('k2_nooh')
    a(f's_cmp_lg_u32 s{sWV}, 0\ns_cselect_b32 s{sBok}, 1, 0\ns_branch k2_first')
    a.label('k2_batch')
    for i in range(4): a(f'v_mov_b32 v{TQ+i}, 0')
    list_prefill(TQ, DL4, T0, T1)
    list_consts(T0, T1, T2, T3)
    a('s_waitcnt lgkmcnt(0)\ns_barrier')
    a.label('k2_first')
    stampat(1)
    a(f'''v_lshrrev_b32 v{T2}, 5, v{vLane}
    v_and_b32 v{T3}, 31, v{vLane}
    v_lshlrev_b32 v{T0}, 3, v{T2}
    v_sub_u32 v{T0}, v{T3}, v{T0}
    v_mov_b32 v{T1}, 0x3f80
    v_and_b32 v{aQ}, 1, v{T0}
    v_lshlrev_b32 v{aQ}, 4, v{aQ}
    v_lshlrev_b32 v{T1}, v{aQ}, v{T1}
    v_lshrrev_b32 v{T0}, 1, v{T0}''')
    for k, reg in enumerate([I0, I0+1, I0+2, I0+3, I1, I1+1, I1+2, I1+3]):
        c = k if k < 4 else k + 4
        m = 'vcc' if k % 2 == 0 else f's[{sSv}:{sSv+1}]'
        a(f'v_cmp_eq_u32 {m}, {c}, v{T0}')
        if k:
            pk, preg = k - 1, [I0, I0+1, I0+2, I0+3, I1, I1+1, I1+2, I1+3][k-1]
            a('s_nop 0')
            a(f'v_cndmask_b32 v{preg}, 0, v{T1}, ' + ('vcc' if pk % 2 == 0 else f's[{sSv}:{sSv+1}]'))
    a(f'''v_mov_b32 v{A2}, 0
    v_mov_b32 v{A2+1}, 0
    v_cndmask_b32 v{I1+3}, 0, v{T1}, s[{sSv}:{sSv+1}]
    v_mov_b32 v{A2+2}, 0
    v_mov_b32 v{A2+3}, 0
    s_mov_b32 s{sQs}, {QSTR//4}
    s_mov_b32 s{sOs}, {OSTR//4}''')
    for d in range(4):
        a(f'v_mov_b32 v{IDX1+2*d+1}, v{IDX+2*d+1}\nv_mov_b32 v{IDX2+2*d+1}, v{IDX+2*d+1}')
    a(f'v_mov_b32 v{T3}, 1')
    stampat('e')
    a('s_waitcnt vmcnt(0)')
    stampat(2)
    for i in range(8):
        a(f'''s_mov_b64 exec, s[{sMask+2*i}:{sMask+2*i+1}]
        s_cbranch_execz kf_histend
        v_lshrrev_b32 v{DL4+i}, 14, v{REC+4*i+2}
        v_add_u32 v{T1}, {CNT}, v{DL4+i}
        ds_add_rtn_u32 v{RK+i}, v{T1}, v{T3}''')
    a(f'''s_mov_b64 exec, s[{sOv}:{sOv+1}]
    v_mov_b32 v{T1}, {CNT + 252}
    ds_add_u32 v{T1}, v{T3}''')
    a.label('kf_histend')
    a(f'''s_mov_b64 exec, -1
    v_lshlrev_b32 v{T0}, 2, v{vLane}
    v_add_u32 v{T0}, {CNT}, v{T0}
    s_waitcnt lgkmcnt(0)
    s_nop 0''')
    w1pos = opt.get('w1pos', 'r,g,r').split(',')
    def w1stage(pos):
        for i in (8, 9, 10):
            if w1pos[i - 8] == pos:
                a(f's_or_b32 s{sTmp2}, s{sHeavy}, s{sRdone}\ns_cbranch_scc1 kf_nost{i}')
                stage(i)
                a.label(f'kf_nost{i}')
    w1stage('g')
    stampat('f')
    a('s_barrier')
    stampat('g')
    a(f'ds_read_b32 v{T1}, v{T0}\nv_cmp_gt_u32 vcc, 40, v{vLane}')
    w1stage('r')
    a(f'''s_cmp_lg_u32 s{sBok}, 0
    s_cbranch_scc1 kf_nopk1
    s_and_b32 s{sTmp}, s2, 7
    s_lshl_b32 s{sTmp}, s{sTmp}, 10
    s_add_u32 s{sTmp}, s{sTmp}, {WS_FLAG + 8192 - WS_CELLS}
    buffer_load_dwordx4 {vr(IDX3,4)}, v{vL16}, {WS}, s{sTmp} offen sc1''')
    a.label('kf_nopk1')
    dpp = ['row_shr:1 row_mask:0xf bank_mask:0xf', 'row_shr:2 row_mask:0xf bank_mask:0xf', 'row_shr:4 row_mask:0xf bank_mask:0xf',
           'row_shr:8 row_mask:0xf bank_mask:0xf', 'row_bcast:15 row_mask:0xa bank_mask:0xf', 'row_bcast:31 row_mask:0xc bank_mask:0xf']
    a(f'''s_waitcnt lgkmcnt(0)
    v_readlane_b32 s{sT1}, v{T1}, 63
    v_add_u32 v{T1}, 3, v{T1}
    v_lshrrev_b32 v{T1}, 2, v{T1}
    v_cndmask_b32 v{T1}, 0, v{T1}, vcc
    v_mov_b32 v{T2}, v{T1}
    s_lshl_b32 s{sTmp3}, s{sT1}, 8
    s_nop 0''')
    for k, d in enumerate(dpp):
        a(f'v_add_u32_dpp v{T2}, v{T2}, v{T2} {d}' + (' bound_ctrl:0' if k < 4 else ''))
        a('s_nop 1' if k < 5 else 's_nop 0')
    a(f'''v_readlane_b32 s{sQt}, v{T2}, 63
    v_sub_u32 v{T1}, v{T2}, v{T1}
    v_add_u32 v{T2}, 7, v{T1}
    v_lshrrev_b32 v{T2}, 3, v{T2}
    s_add_u32 s{sTmp}, s{sQt}, 7
    v_sub_u32 v{T0}, s{sTmp}, v{T1}
    v_lshrrev_b32 v{T0}, 3, v{T0}
    v_add_u32 v{T2}, v{T2}, v{T0}
    v_lshlrev_b32 v{T0}, 1, v{T1}
    s_add_u32 s{sTmp}, s{sQt}, {int(opt.get('bias', 0))}
    v_sad_u32 v{T0}, v{T0}, s{sTmp}, 0
    v_lshl_add_u32 v{T2}, v{T2}, 5, v{T0}
    v_subrev_u32 v{T0}, 8, v{vLane}
    v_lshl_add_u32 v{T2}, v{T2}, 6, v{vLane}
    v_cmp_gt_u32 vcc, 25, v{T0}
    s_nop 1
    v_cndmask_b32 v{T2}, -1, v{T2}, vcc
    s_nop 1''')
    for k, d in enumerate(dpp):
        a(f'v_min_u32_dpp v{T2}, v{T2}, v{T2} {d}')
        a('s_nop 1' if k < 5 else 's_nop 0')
    a(f'''v_readlane_b32 s{sSplit}, v{T2}, 63
    s_and_b32 s{sSplit}, s{sSplit}, 63
    s_cmp_lg_u32 s{sHeavy}, 0
    s_cselect_b32 s{sSplit}, 20, s{sSplit}
    s_nop 0
    v_readlane_b32 s{sTmp}, v{T1}, s{sSplit}
    v_cmp_le_u32 vcc, s{sSplit}, v{vLane}
    s_add_u32 s{sT0}, s{sTmp}, 7
    s_lshr_b32 s{sT0}, s{sT0}, 3
    s_sub_u32 s{sT1}, s{sQt}, s{sTmp}
    s_add_u32 s{sT1}, s{sT1}, 7
    s_lshr_b32 s{sT1}, s{sT1}, 3
    s_add_u32 s{sTmp2}, s{sT0}, s{sT1}
    s_add_u32 s{sTmp2}, s{sTmp2}, s{sTmp3}
    s_cmp_le_u32 s{sTmp2}, {NT}
    s_cbranch_scc1 k2_fits
    s_mov_b32 s{sHeavy}, 1
    s_branch k2_hentry''')
    a.label('k2_fits')
    stampat('h')
    a(f'''s_lshl_b32 s{sTmp2}, s{sT0}, 3
    s_sub_u32 s{sTmp2}, s{sTmp2}, s{sTmp}
    v_mov_b32 v{T2}, s{sTmp2}
    v_cndmask_b32 v{T2}, 0, v{T2}, vcc
    v_add_lshl_u32 v{T1}, v{T1}, v{T2}, 2''')
    for i in range(8):
        if i in (2, 4, 6): a(f's_cmp_eq_u64 s[{sMask+2*i}:{sMask+2*i+1}], 0\ns_cbranch_scc1 kf_bpend')
        a(f'ds_bpermute_b32 v{TQ+i}, v{DL4+i}, v{T1}')
    a.label('kf_bpend')
    a(f'''s_cmp_eq_u32 s{sG}, 0
    s_cselect_b32 s{sT}, s{sT0}, s{sT1}
    s_cselect_b32 s{sTbase}, 0, s{sT0}
    s_cselect_b32 s{sTmp2}, 0, 192
    s_lshl_b32 s{sT0}, s{sT0}, 5
    s_lshl_b32 s{sTmp}, s{sTbase}, 6
    s_add_u32 s{sTmp}, s{sTmp}, s{sTmp2}
    s_add_u32 s{sTmp}, s{sTmp}, {SRC}
    v_add_u32 v{aSRC}, s{sTmp}, v{aSRC}
    s_lshl_b32 s{sTmp}, s{sTbase}, 9
    s_add_u32 s{sTmp}, s{sTmp}, {EAT}
    v_add_u32 v{aEAT}, s{sTmp}, v{aEAT}
    s_lshl_b32 s{sTmp}, s{sTbase}, 3
    s_add_u32 s{sTmp}, s{sTmp}, {XL}
    v_add_u32 v{aXL}, s{sTmp}, v{aXL}
    v_mov_b32 v{vX}, {SRC}
    v_mov_b32 v{aQ}, {SRC+192}''')
    a(f'v_mov_b32 v{S}, 0x3f80\nv_mov_b32 v{S+1}, 0\ns_mov_b32 s{sTmp}, {XL}\ns_waitcnt lgkmcnt(0)')
    for i in range(8):
        er = REC + 4 * i
        a(f'''s_mov_b64 exec, s[{sMask+2*i}:{sMask+2*i+1}]
        s_cbranch_execz kf_scend
        v_add_u32 v{RK+i}, v{RK+i}, v{TQ+i}
        v_cmp_gt_u32 vcc, s{sT0}, v{RK+i}
        v_lshrrev_b32 v{T2}, 2, v{RK+i}
        v_and_b32 v{T0}, 12, v{RK+i}
        v_cndmask_b32 v{T1}, v{aQ}, v{vX}, vcc
        v_add_u32 v{T2}, s{sTmp}, v{T2}
        v_lshl_add_u32 v{T1}, v{RK+i}, 1, v{T1}
        v_lshlrev_b32 v{T0}, 2, v{T0}
        ds_write_b16 v{T1}, v{er+2}
        ds_write_b8 v{T2}, v{DL4+i}
        v_lshl_add_u32 v{RK+i}, v{RK+i}, 4, s{sEAT}
        v_lshlrev_b64 {vr(er+2,2)}, v{T0}, {vr(S,2)}
        ds_write_b128 v{RK+i}, {vr(er,4)}''')
    a.label('kf_scend')
    a('s_mov_b64 exec, -1')
    a(f's_waitcnt vmcnt(0)\ns_cmp_lg_u32 s{sRdone}, 0\ns_cbranch_scc1 kf_now1\ns_waitcnt lgkmcnt(4)')
    w1reads(9, aB)
    a.label('kf_now1')
    a(f'''s_cmp_lg_u32 s{sBok}, 0
    s_cbranch_scc1 kf_nopeek
    v_and_b32 v{IDX3}, v{IDX3}, v{IDX3+1}
    v_and_b32 v{IDX3+2}, v{IDX3+2}, v{IDX3+3}
    v_and_b32 v{IDX3}, v{IDX3}, v{IDX3+2}
    v_cmp_eq_u32 vcc, 1, v{IDX3}
    s_cmp_eq_u64 vcc, -1
    s_cbranch_scc0 kf_nopeek
    {INV}
    s_mov_b32 s{sBok}, 1''')
    a.label('kf_nopeek')
    a(f's_cmp_lg_u32 s{sBok}, 0\ns_cbranch_scc1 kf_bdone')
    poll(WS_FLAG + 8192, 'kf_pollB', TQ + 4)
    a(f'{INV}\ns_mov_b32 s{sBok}, 1\ns_waitcnt vmcnt(0)')
    a.label('kf_bdone')
    for x in (MA, MA + 1, MB, MB + 1, S, S + 1): a(f'v_mov_b32 v{x}, 0')
    for d in range(4): a(f'v_mov_b32 v{IDX3+2*d+1}, v{IDX+2*d+1}')
    a(f'v_mov_b32 v{T3}, v{aB}\ns_waitcnt lgkmcnt(0)\ns_barrier')
    vm.ops = []
    stampat(3)
    DOFF = [0, 4, 16, 20]
    def idx_reads(base, toff):
        return [f'ds_read_u16 v{base+2*d}, v{aSRC} offset:{toff*64+DOFF[d]}' for d in range(4)]
    def dma_ins(base, d, tag):
        vm.issue(tag)
        return f'buffer_load_dwordx4 {vr(base+2*d,2)}, s[{sP}:{sP+3}], 0 idxen offen offset:{d*1024} lds'
    for x in idx_reads(IDX1, 0) + idx_reads(IDX2, 1): a(x)
    a(f's_mov_b32 m0, s{sRing}\ns_waitcnt lgkmcnt(4)')
    for d in range(4): a(dma_ins(IDX1, d, 'dma0'))
    a(f's_cmp_lg_u32 s{sRdone}, 0\ns_cbranch_scc1 kf_now2')
    w1reads(10, T3)
    a('s_waitcnt lgkmcnt(4)')
    w1reads(8, T3)
    a('s_waitcnt lgkmcnt(0)')
    sv_ = list(vm.ops)
    stage(11)
    vm.ops = sv_
    a.label('kf_now2')
    a(f's_add_u32 m0, s{sRing}, 4096\ns_waitcnt lgkmcnt(0)')
    for d in range(4): a(dma_ins(IDX2, d, 'dma1'))
    stampat(4)
    def gemm(acc, frag, addr, wregs, first, waitv, hook=None):
        def rd(s):
            for rt in range(3):
                f = frag + (s & 1) * 12 + rt * 4
                a(f'ds_read_b128 {vr(f,4)}, v{addr+(s&3)} offset:{rt*8192+(s>>2)*256}')
        rd(0)
        for s in range(8):
            if s + 1 < 8:
                rd(s + 1); w = 'lgkmcnt(3)'
            else: w = 'lgkmcnt(0)'
            wv = waitv(s)
            a((wv + ' ' + w) if wv else 's_waitcnt ' + w)
            if hook: hook(s)
            for rt in range(3):
                for c in range(2):
                    d = acc[rt * 2 + c]; f = frag + (s & 1) * 12 + rt * 4
                    cin = '0' if (first and s == 0) else vr(d, 4)
                    a(f'v_mfma_f32_16x16x32_bf16 {vr(d,4)}, {vr(f,4)}, {vr(wregs(s*2+c),4)}, {cin}')
    def xaddr(dst, t0, t1):
        a(f'''v_and_b32 v{t0}, 15, v{vLane}
        v_lshrrev_b32 v{t1}, 4, v{vLane}
        v_xor_b32 v{t1}, v{t1}, v{t0}
        v_lshlrev_b32 v{t1}, 4, v{t1}
        v_lshl_add_u32 v{t0}, v{t0}, 9, v{t1}
        v_add_u32 v{dst}, {XT}, v{t0}''')
        for s_ in range(1, 4):
            a(f'v_xor_b32 v{t1}, {s_<<6}, v{t0}\nv_add_u32 v{dst+s_}, {XT}, v{t1}')
    a(f's_cmp_lg_u32 s{sRdone}, 0\ns_cbranch_scc1 kf_nor')
    xaddr(RK, T0, T1)
    def hook(s_):
        if s_ == 5:
            a('s_waitcnt vmcnt(4)')
            w1reads(11, T3)
            a('s_waitcnt lgkmcnt(8)')
    gemm([OA + 4 * i for i in range(6)], REC, RK, lambda i: W1F[i], True, lambda s_: None, hook)
    a(f'''s_mov_b32 s{sRdone}, 1
    v_mov_b32 v{T0}, {HMAX+8}
    v_mov_b32 v{T1}, 1
    s_mov_b64 exec, 1
    ds_add_u32 v{T0}, v{T1}
    s_mov_b64 exec, -1''')
    for i in range(4): a(f'v_mov_b32 v{XR+i}, v{RK+i}')
    a(f'''v_and_b32 v{T0}, 31, v{vLane}
    s_lshl_b32 s{sTmp2}, s{sG}, 3
    v_add_u32 v{T0}, s{sTmp2}, v{T0}
    v_and_b32 v{T2}, 15, v{T0}
    s_lshl_b32 s{sTmp2}, s{sCQ}, 3
    v_xor_b32 v{T2}, s{sTmp2}, v{T2}
    v_lshlrev_b32 v{T2}, 4, v{T2}
    v_lshl_add_u32 v{T2}, v{T0}, 9, v{T2}
    v_lshrrev_b32 v{T1}, 5, v{vLane}
    v_lshl_add_u32 v{T2}, v{T1}, 3, v{T2}
    v_add_u32 v{XR+4}, {XT}, v{T2}
    v_and_b32 v{T0}, 15, v{vLane}
    v_lshrrev_b32 v{T1}, 4, v{vLane}
    v_and_b32 v{T2}, 2, v{vLane}
    v_lshlrev_b32 v{T0}, 2, v{T0}
    v_cmp_eq_u32 vcc, 0, v{T2}
    v_lshl_add_u32 v{XR+6}, v{T1}, 11, v{T0}
    v_mov_b32 v{T0}, 0x05040100
    v_mov_b32 v{T1}, 0x07060302
    v_cndmask_b32 v{XR+5}, v{T1}, v{T0}, vcc
    v_mov_b32 v{XR+7}, {HMAX+8}
    v_mov_b32 v{vMX}, 0''')
    a.label('kf_nor')
    a(f'''v_and_b32 v{T0}, 31, v{vLane}
    s_lshl_b32 s{sTmp2}, s{sG}, 3
    v_add_u32 v{T0}, s{sTmp2}, v{T0}
    v_cmp_gt_u32 vcc, s{sSplit}, v{T0}
    s_cmp_eq_u32 s{sG}, 0
    s_cselect_b64 s[{sNM}:{sNM+1}], 0, -1
    s_xor_b64 s[{sNM}:{sNM+1}], s[{sNM}:{sNM+1}], vcc''')
    for x in range(4): a(f'v_mov_b32 v{NF+x}, 0\nv_mov_b32 v{DF+x}, 1.0')
    stampat(5)
    a(f'''s_cmp_eq_u32 s{sT}, 0
    s_cbranch_scc1 k2_loopend
    ds_read_u8 v{vX}, v{aXL}
    s_mov_b64 exec, s[{sHM}:{sHM+1}]
    ds_read_b128 {vr(A2,4)}, v{aEAT}
    s_mov_b64 exec, -1''')
    a(vm.wait('dma0'))
    a(f'''ds_read_b128 {vr(PA,4)}, v{aP}
    ds_read_b128 {vr(PA+4,4)}, v{aP+1}
    ds_read_b128 {vr(PB,4)}, v{aP+2}
    ds_read_b128 {vr(PB+4,4)}, v{aP+3}
    s_waitcnt lgkmcnt(5)
    v_mad_u32_u24 v{aQ}, v{vX}, s{sQs}, v{cQ}
    v_mad_u32_u24 v{aS}, v{vX}, s{sOs}, v{cS}
    ds_read_u8 v{vX}, v{aXL} offset:8
    ds_read_b64_tr_b16 {vr(B2A+2,2)}, v{aQ}
    ds_read_b64_tr_b16 {vr(B2B+2,2)}, v{aQ} offset:64''')
    for x in idx_reads(IDX3, 2) + idx_reads(IDX, 3): a(x)
    a(f's_sub_u32 s{sCnt}, s{sT}, 1\ns_waitcnt lgkmcnt(9)')
    def zchain(D, B2, P):
        return [f'v_mfma_f32_32x32x16_bf16 {vr(D,16)}, {vr(A2,4)}, {vr(B2,4)}, 0',
                f'v_mfma_f32_32x32x16_bf16 {vr(D,16)}, {vr(P,4)}, {vr(I0,4)}, {vr(D,16)}',
                f'v_mfma_f32_32x32x16_bf16 {vr(D,16)}, {vr(P+4,4)}, {vr(I1,4)}, {vr(D,16)}']
    for m in zchain(DA, B2A, PA): a(m)
    if prio == 'young': a(f's_cmp_eq_u32 s{sG}, 0\ns_cbranch_scc1 k2_noprio\ns_setprio 1\nk2_noprio:')
    a('s_nop 7\ns_nop 3')
    stampat(6)

    cur = {'pT': None, 'pP': None, 'safe': bool(opt.get('allsafe'))}
    maxops = [f'v_max3_f32 v{vMX}, v{vMX}, v{DF}, v{DF+1}', f'v_max3_f32 v{vMX}, v{vMX}, v{DF+2}, v{DF+3}']
    def half(D, accprev, Mprev, Mfin, zc, extra_T, extra_P):
        Ts = [f'v_exp_f32 v{EE+i}, v{D+i}' for i in range(16)] + [f'v_rcp_f32 v{DF+i}, v{DF+i}' for i in range(4)]
        if not cur['safe']:
            extra_T = dict(extra_T)
            extra_T[2] = extra_T.get(2, []) + maxops
        mf = [f'v_mfma_f32_32x32x8_bf16 {vr(accprev,16)}, {vr(Mprev,2)}, {vr(S,2)}, {vr(accprev,16)}'] + zc
        if cur['pT'] is not None: a(f's_setprio {cur["pT"]}')
        LEAD = int(opt.get('lead', 0))
        for t_ in Ts[:LEAD]: a(t_)
        a('s_waitcnt lgkmcnt(0)')
        Ts = [None] * LEAD + Ts[LEAD:]
        for k in range(4):
            if k == 0 and cur.get('first'):
                lab = cur['first']
                a(f's_cmp_lg_u32 s{sAcc}, 0\ns_cbranch_scc1 {lab}_a')
                a(f'v_mfma_f32_32x32x8_bf16 {vr(accprev,16)}, {vr(Mprev,2)}, {vr(S,2)}, 0')
                a.label(lab + '_a')
                continue_T = True
                for x in extra_T.get(k, []): a(x)
                for t_ in Ts[5 * k:5 * k + 5]:
                    if t_: a(t_)
                continue
            a(mf[k])
            for x in extra_T.get(k, []): a(x)
            for t_ in Ts[5 * k:5 * k + 5]:
                if t_: a(t_)
        if cur['pP'] is not None: a(f's_setprio {cur["pP"]}')
        bs = [0, 4, 8, 12]
        fin = [f'v_pk_mul_f32 {pr(NF)}, {pr(NF)}, {pr(DF)}', f'v_pk_mul_f32 {pr(NF+2)}, {pr(NF+2)}, {pr(DF+2)}']
        cvt = [f'v_cvt_pk_bf16_f32 v{Mfin}, v{NF}, v{NF+1}', f'v_cvt_pk_bf16_f32 v{Mfin+1}, v{NF+2}, v{NF+3}']
        if cur['safe']:
            Ps = [f'v_pk_fma_f32 {pr(EE+2*p)}, {pr(EE+2*p)}, s[{sC}:{sC+1}], s[{sC}:{sC+1}] clamp' for p in range(8)]
            Ps += fin
            Ps += [f'v_pk_mul_f32 {pr(D+b)}, {pr(D+b)}, {pr(EE+b+2)}' for b in bs]
            Ps += cvt
            Ps += [f'v_pk_fma_f32 {pr(D+b)}, {pr(D+b+2)}, {pr(EE+b)}, {pr(D+b)}' for b in bs]
            Ps += [f'v_pk_mul_f32 {pr(EE+b)}, {pr(EE+b)}, {pr(EE+b+2)}' for b in bs]
        else:
            Ps = [f'v_pk_add_f32 {pr(EE+b+2)}, {pr(EE+b+2)}, 1.0 op_sel_hi:[1,0]' for b in bs]
            Ps += fin
            Ps += [f'v_pk_fma_f32 {pr(D+b)}, {pr(D+b)}, {pr(EE+b+2)}, {pr(D+b+2)}' for b in bs]
            Ps += cvt
            Ps += [f'v_pk_fma_f32 {pr(D+b)}, {pr(D+b+2)}, {pr(EE+b)}, {pr(D+b)}' for b in bs]
            Ps += [f'v_pk_fma_f32 {pr(EE+b)}, {pr(EE+b)}, {pr(EE+b+2)}, {pr(EE+b+2)}' for b in bs]
        Ps += [f'v_pk_mul_f32 {pr(NF+2*B)}, {pr(D+8*B)}, {pr(EE+8*B+4)}' for B in range(2)]
        Ps += [f'v_pk_mul_f32 {pr(DF+2*B)}, {pr(EE+8*B)}, {pr(EE+8*B+4)}' for B in range(2)]
        Ps += [f'v_pk_fma_f32 {pr(NF+2*B)}, {pr(D+8*B+4)}, {pr(EE+8*B)}, {pr(NF+2*B)}' for B in range(2)]
        nP = len(Ps)
        remap = {}
        for i in sorted(extra_P): remap.setdefault(min(i * nP // 30, nP - 1), []).extend(extra_P[i])
        for i, p in enumerate(Ps):
            for x in remap.get(i, []):
                a(x() if callable(x) else x)
            a(p)
    def spread(d, xs, start, step=1):
        for i, x in enumerate(xs):
            d.setdefault(start + i * step, []).extend(x if isinstance(x, list) else [x])
    wsched = [('u2', i) for i in range(16)]
    NPEEL = int(opt.get('npeel', 6))
    per = {6: [0, 3, 3, 3, 3, 4], 3: [4, 6, 6]}[NPEEL]
    def iteration(tau, u, peeled):
        sl = (u + 1) % 3
        eT = {3: [f'v_mad_u32_u24 v{aQ}, v{vX}, s{sQs}, v{cQ}', f'v_mad_u32_u24 v{aS+sl}, v{vX}, s{sOs}, v{cS}']}
        eP = {}
        spread(eP, [(lambda: vm.wait(f'dma{tau+1}')) if peeled else 's_waitcnt vmcnt(4)',
              f'ds_read_b128 {vr(PA,4)}, v{aP} offset:{sl*4096}', f'ds_read_b128 {vr(PA+4,4)}, v{aP+1} offset:{sl*4096}',
              f'ds_read_b64_tr_b16 {vr(B2A+2,2)}, v{aQ}',
              [f's_mov_b64 exec, s[{sHM}:{sHM+1}]', f'ds_read_b128 {vr(A2,4)}, v{aEAT} offset:{(u+1)*512}', 's_mov_b64 exec, -1'],
              f's_add_u32 m0, s{sRing}, {u*4096}'], 1)
        if peeled and tau == 0:
            eP[6] = [f's_add_u32 m0, s{sRing}, 8192']
            spread(eP, [(lambda d=d: dma_ins(IDX3, d, 'dma2')) for d in range(4)], 7, 3)
            eP.setdefault(18, []).append(f's_mov_b32 m0, s{sRing}')
            spread(eP, [(lambda d=d: dma_ins(IDX, d, 'dma3')) for d in range(4)], 19, 3)
        else:
            spread(eP, [(lambda d=d: dma_ins(IDX, d, f'dma{tau+3}')) for d in range(4)], int(opt.get('d0', 8)), int(opt.get('ds', 7)))
        cur['first'] = f'kf_f{cur["g"]}A' if (peeled and tau == 0) else None
        half(DA, ACCA, MA, MB, zchain(DB, B2B, PB), eT, eP)
        eP = {}
        xs = [f'ds_read_b128 {vr(PB,4)}, v{aP+2} offset:{sl*4096}', f'ds_read_b128 {vr(PB+4,4)}, v{aP+3} offset:{sl*4096}',
              f'ds_read_b64_tr_b16 {vr(B2B+2,2)}, v{aQ} offset:64', f'ds_read_b64_tr_b16 {vr(S,2)}, v{aS+u}',
              f'ds_read_u8 v{vX}, v{aXL} offset:{(u+2)*8}'] + idx_reads(IDX, u + 4)
        spread(eP, xs, int(opt.get('x0', 1)), int(opt.get('xs', 2)))
        if peeled and not opt.get('nowpf') and cur['g'] != 'S':
            k0 = sum(per[:tau])
            for j, (m, i) in enumerate(wsched[k0:k0 + per[tau]]):
                def f(m=m, i=i):
                    ins = wload(WB2 + 4 * i, 2, i, 'wu')
                    return '\n'.join(ins)
                eP.setdefault(18 + 2 * j, []).append(f)
            if tau == NPEEL - 1: eP.setdefault(28, []).append(f's_mov_b32 s{sWdone}, 1')
        if u == 2:
            eP.setdefault(29, []).extend([f'v_add_u32 v{aSRC}, 192, v{aSRC}', f'v_add_u32 v{aEAT}, 1536, v{aEAT}', f'v_add_u32 v{aXL}, 24, v{aXL}'])
        eP.setdefault(29, []).append(f's_sub_u32 s{sCnt}, s{sCnt}, 1')
        cur['first'] = f'kf_f{cur["g"]}B' if (peeled and tau == 0) else None
        if cur['first']: eP.setdefault(27, []).append(f's_mov_b32 s{sAcc}, 1')
        half(DB, ACCB, MB, MA, zchain(DA, B2A, PA), {}, eP)
    spec = {'P': '01', 'none': 'xx', 'young': 'xx'}.get(prio, prio).split('|')
    saved = list(vm.ops)
    a(f's_cmp_lg_u32 s{sSafe}, 0\ns_cbranch_scc1 k2_safe')
    if len(spec) > 1: a(f's_cmp_lg_u32 s{sG}, 0\ns_cbranch_scc1 k2_g1')
    for g, sp in enumerate(spec):
        vm.ops = list(saved)
        sp = sp.split(',')
        def setp(k):
            x = sp[k % len(sp)]
            cur['pT'] = None if x[0] == 'x' else int(x[0]); cur['pP'] = None if x[1] == 'x' else int(x[1])
        cur['g'] = g
        if g: a.label('k2_g1')
        for tau in range(NPEEL):
            setp(tau)
            iteration(tau, tau % 3, True)
            a('s_cbranch_scc1 k2_drain')
        a.label(f'k2_loop{g}')
        for u in range(3):
            setp(u)
            iteration(100 + u, u, False)
            a('s_cbranch_scc1 k2_drain' if u < 2 else f's_cbranch_scc0 k2_loop{g}')
        if g + 1 < len(spec): a('s_branch k2_drain')
    a.label('k2_drain')
    a('s_setprio 0\ns_waitcnt lgkmcnt(0)')
    for x in maxops: a(x)
    a(f'v_mfma_f32_32x32x8_bf16 {vr(ACCA,16)}, {vr(MA,2)}, {vr(S,2)}, {vr(ACCA,16)}')
    for i in range(4): a(f'v_rcp_f32 v{DF+i}, v{DF+i}')
    a('s_nop 0')
    for i in range(4): a(f'v_mul_f32 v{NF+i}, v{NF+i}, v{DF+i}')
    a(f'''v_cvt_pk_bf16_f32 v{MB}, v{NF}, v{NF+1}
    v_cvt_pk_bf16_f32 v{MB+1}, v{NF+2}, v{NF+3}
    s_nop 1
    v_mfma_f32_32x32x8_bf16 {vr(ACCB,16)}, {vr(MB,2)}, {vr(S,2)}, {vr(ACCB,16)}''')
    a.label('k2_loopend')
    stampat(7)
    a(f'''s_cmp_eq_u32 s{sHeavy}, 0
    s_cbranch_scc1 k2_epi
    s_add_u32 s{sB}, s{sB}, 1''')
    a.label('k2_fetch')
    a(f'''s_waitcnt vmcnt(0) lgkmcnt(0)
    s_barrier
    s_cmp_ge_u32 s{sB}, s{sHeavy}
    s_cbranch_scc1 k2_epi
    s_lshl_b32 s{sTmp}, s0, 2
    buffer_load_dword v{TQ}, v{vNOVF}, {WS}, s{sTmp} offen sc1
    v_and_b32 v{T1}, 1, v0
    s_lshl_b32 s{sTmp}, s{sB}, 1
    v_add_u32 v{T1}, s{sTmp}, v{T1}
    s_waitcnt vmcnt(0)
    v_and_b32 v{T0}, 0xffff, v{TQ}
    v_lshrrev_b32 v{TQ}, 16, v{TQ}
    v_add_u32 v{T0}, v{T0}, v{T1}
    v_cmp_lt_u32 s[{sMask}:{sMask+1}], v{T1}, v{TQ}
    v_lshl_add_u32 v{T0}, v{T0}, 4, v{vNOVF}
    buffer_load_dwordx3 {vr(REC,3)}, v{T0}, {WS}, 0 offen offset:1024 sc1''')
    for i in range(1, 8): a(f's_mov_b64 s[{sMask+2*i}:{sMask+2*i+1}], 0')
    a(f's_mov_b64 s[{sOv}:{sOv+1}], 0\ns_waitcnt vmcnt(0)\ns_branch k2_batch')
    a.label('k2_redo')
    a(f's_mov_b32 s{sSafe}, 1\ns_mov_b32 s{sAcc}, 0\ns_mov_b32 s{sB}, 0')
    a.label('k2_hentry')
    a(f'''s_waitcnt vmcnt(0) lgkmcnt(0)
    s_lshl_b32 s{sTmp}, s0, 2
    buffer_load_dword v{TQ}, v{vNOVF}, {WS}, s{sTmp} offen sc1
    v_mov_b32 v{T0}, {HMAX}
    v_mov_b32 v{T1}, 1
    ds_write_b32 v{T0}, v{T1}
    s_waitcnt vmcnt(0) lgkmcnt(0)
    s_barrier
    v_lshrrev_b32 v{TQ}, 16, v{TQ}
    v_add_u32 v{TQ}, 1, v{TQ}
    v_lshrrev_b32 v{TQ}, 1, v{TQ}
    ds_max_u32 v{T0}, v{TQ}
    s_waitcnt lgkmcnt(0)
    s_barrier
    ds_read_b32 v{T1}, v{T0}
    s_waitcnt lgkmcnt(0)
    v_readfirstlane_b32 s{sHeavy}, v{T1}
    s_branch k2_fetch''')
    a.label('k2_epi')
    vm.ops = []
    a(f's_waitcnt vmcnt(0)\ns_cmp_lg_u32 s{sWdone}, 0\ns_cbranch_scc1 k2_wok')
    for (m, i) in wsched:
        for x in wload(WB2 + 4 * i, 2, i, 'c'): a(x)
    a('s_waitcnt vmcnt(0)')
    a.label('k2_wok')
    Y0, Y1, Y2, Y3 = X0, X0 + 1, X0 + 2, X0 + 3
    a(f'''s_mov_b32 s{sSv}, {hex(f2u(-LN2))}
    s_mov_b32 s{sSv+1}, {hex(f2u(-LN2 * 2.0**-30))}
    s_cmp_lg_u32 s{sSafe}, 0
    s_cselect_b32 s{sSv}, s{sSv+1}, s{sSv}
    s_mov_b32 s{sSv+1}, s{sSv}
    s_cbranch_scc1 kf_noflag
    v_cmp_lt_f32 vcc, 0x5d800000, v{vMX}
    s_cbranch_vccz kf_noflag
    v_mov_b32 v{Y0}, 1
    ds_write_b32 v{XR+7}, v{Y0} offset:4
    kf_noflag:
    s_cmp_lg_u32 s{sAcc}, 0
    s_cbranch_scc1 kf_accok''')
    for i in range(32): a(f'v_mov_b32 v{ACCA+i}, 0')
    a.label('kf_accok')
    a(f'''ds_read_b32 v{Y0}, v{XR+7}
    s_waitcnt lgkmcnt(0)
    v_readfirstlane_b32 s{sTmp}, v{Y0}
    s_cmp_lt_u32 s{sTmp}, 8
    s_cbranch_scc1 kf_accok
    s_mov_b64 exec, s[{sNM}:{sNM+1}]''')
    Y2 = XR + 4
    for q in range(8):
        a(f'''v_pk_mul_f32 {pr(ACCA+4*q)}, {pr(ACCA+4*q)}, s[{sSv}:{sSv+1}]
        v_pk_mul_f32 {pr(ACCA+4*q+2)}, {pr(ACCA+4*q+2)}, s[{sSv}:{sSv+1}]''')
        if q: a(f'v_xor_b32 v{Y3}, {q<<4}, v{Y2}')
        a(f'''v_cvt_pk_bf16_f32 v{ACCA+4*q}, v{ACCA+4*q}, v{ACCA+4*q+1}
        v_cvt_pk_bf16_f32 v{ACCA+4*q+1}, v{ACCA+4*q+2}, v{ACCA+4*q+3}
        ds_write_b64 v{Y3 if q else Y2}, {vr(ACCA+4*q,2)}''')
    a('s_mov_b64 exec, -1')
    EA_ = XR; Y2 = XR + 6; Y3 = XR + 5
    a(f'''s_lshl_b32 s{sTmp2}, s{sN0}, 9
    s_lshl_b32 s{sTmp}, s{sWV}, 6
    s_add_u32 s{sTmp2}, s{sTmp2}, s{sTmp}
    s_waitcnt lgkmcnt(0)''')
    stampat(8)
    a(f's_barrier\nds_read_b32 v{Y0}, v{XR+7} offset:4')
    Z = DA
    def silu_ops(rt):
        b = OA + rt * 8
        ops = [f'v_mul_f32 v{Z+p}, s{sC}, v{b+p}' for p in range(8)]
        ops += [f'v_exp_f32 v{Z+p}, v{Z+p}' for p in range(8)]
        ops += [f'v_add_f32 v{Z+p}, 1.0, v{Z+p}' for p in range(8)]
        ops += [f'v_rcp_f32 v{Z+p}, v{Z+p}' for p in range(8)]
        ops += [f'v_mul_f32 v{Z+p}, v{b+p}, v{Z+p}' for p in range(8)]
        for rr in range(4):
            ops.append(f'v_cvt_pk_bf16_f32 v{Z+8+rr}, v{Z+rr}, v{Z+4+rr}')
        for rr in range(4):
            ops.append(f'v_mov_b32_dpp v{Z+rr}, v{Z+8+rr} quad_perm:[0,2,0,2] row_mask:0xf bank_mask:0xf')
        for rr in range(4):
            ops.append(f'v_mov_b32_dpp v{Z+4+rr}, v{Z+8+rr} quad_perm:[1,3,1,3] row_mask:0xf bank_mask:0xf')
        for rr in range(4):
            ops.append(f'v_perm_b32 v{Z+8+rr}, v{Z+4+rr}, v{Z+rr}, v{Y3}')
        for rr in range(4):
            if rt == 2 and rr == 3:
                ops.append(f's_cmp_eq_u32 s{sNN}, 40\ns_cselect_b32 exec_lo, -1, 0xffff')
            ops.append(f'buffer_store_dword v{Z+8+rr}, v{Y2}, s[{sO}:{sO+3}], s{sTmp2} offen offset:{rr*512}' + opt.get('outst', ' sc1'))
        ops.append(f's_add_u32 s{sTmp2}, s{sTmp2}, 8192')
        return ops
    seq = [(rt, s) for rt in range(3) for s in range(8)]
    def ard(k):
        rt, s = seq[k]
        a(f'ds_read_b128 {vr(AF+4*(k%6),4)}, v{EA_+(s&3)} offset:{rt*8192+(s>>2)*256}')
    for k in range(5): ard(k)
    a(f'''s_waitcnt lgkmcnt(5)
    v_readfirstlane_b32 s{sTmp}, v{Y0}
    s_cmp_gt_u32 s{sTmp}, s{sSafe}
    s_cbranch_scc1 k2_redo
    s_mov_b32 s{sC}, {hex(f2u(-LOG2E))}''')
    pend = []
    for k, (rt, s) in enumerate(seq):
        if k + 5 < 24: ard(k + 5)
        a(f's_waitcnt lgkmcnt({min(5, 23-k)})')
        for c in range(2):
            d = OA + (rt * 2 + c) * 4
            a(f'v_mfma_f32_16x16x32_bf16 {vr(d,4)}, {vr(AF+4*(k%6),4)}, {vr(WB2+4*(2*s+c),4)}, {vr(d,4)}')
            if s >= 1 or c == 1:
                n = 5 if s >= 1 else 0
                for x in pend[:n]: a(x)
                pend = pend[n:]
        if s == 7:
            for x in pend: a(x)
            pend = silu_ops(rt)
    if opt.get('oldtail'):
        a('s_mov_b32 exec_hi, 0\ns_nop 6')
        for x in pend: a(x)
    else:
        b = OA + 16
        a(f's_mov_b32 s{sC+1}, {hex(f2u(-LOG2E))}\ns_mov_b32 s{sSv}, 1.0\ns_mov_b32 s{sSv+1}, 1.0\ns_nop 4')
        for rr in range(4): a(f'v_permlane32_swap_b32 v{b+rr}, v{b+4+rr}')
        a('s_nop 0')
        for p in range(2): a(f'v_pk_mul_f32 {pr(Z+2*p)}, {pr(b+2*p)}, s[{sC}:{sC+1}]')
        for p in range(4): a(f'v_exp_f32 v{Z+p}, v{Z+p}')
        for p in range(2): a(f'v_pk_add_f32 {pr(Z+2*p)}, {pr(Z+2*p)}, s[{sSv}:{sSv+1}]')
        for p in range(4): a(f'v_rcp_f32 v{Z+p}, v{Z+p}')
        for p in range(2): a(f'v_pk_mul_f32 {pr(Z+2*p)}, {pr(b+2*p)}, {pr(Z+2*p)}')
        for rr in range(4): a(f'v_mov_b32 v{Z+4+rr}, v{Z+rr}')
        a('s_nop 0')
        for rr in range(4): a(f'v_permlane32_swap_b32 v{Z+rr}, v{Z+4+rr}')
        a('s_mov_b32 exec_hi, 0')
        for x in pend[40:]: a(x)
    if stamp:
        stampat(9)
        a(f's_mov_b64 exec, 1\ns_waitcnt lgkmcnt(0)')
        a(f's_lshl_b32 s{sTmp}, s2, 3\ns_add_u32 s{sTmp}, s{sTmp}, s{sWV}\ns_lshl_b32 s{sTmp}, s{sTmp}, 6\ns_add_u32 s{sTmp}, s{sTmp}, {WS_END - WS_CELLS}\nv_mov_b32 v{Y0}, 0')
        for i in range(10):
            a(f'v_mov_b32 v{Y1}, s{sStamp+2*i}\nbuffer_store_dword v{Y1}, v{Y0}, {WS}, s{sTmp} offen offset:{4*i}')
        a(f'v_mov_b32 v{Y1}, s{sT}\nbuffer_store_dword v{Y1}, v{Y0}, {WS}, s{sTmp} offen offset:40')
        a(f'v_mov_b32 v{Y1}, s{sPoll}\nbuffer_store_dword v{Y1}, v{Y0}, {WS}, s{sTmp} offen offset:44')
    if opt.get('diagpad'):
        a(f's_add_u32 s94, s94, {int(opt["diagpad"])}')
        a.label('kf_diag')
        a('s_memrealtime s[92:93]\ns_waitcnt lgkmcnt(0)\ns_sub_u32 s92, s92, s94\ns_cmp_lt_i32 s92, 0\ns_cbranch_scc1 kf_diag')
    a.label('k2_done')
    a('s_endpgm')
    vm.ops = list(saved)
    cur.update({'pT': None, 'pP': None, 'safe': True, 'g': 'S'})
    a.label('k2_safe')
    iteration(0, 0, True)
    a('s_cbranch_scc1 k2_drain')
    a.label('k2_loopS')
    for u in (1, 2, 0):
        iteration(100 + u, u, False)
        a('s_cbranch_scc1 k2_drain' if u != 0 else 's_cbranch_scc0 k2_loopS')
    a('s_branch k2_drain')
    return kd(KNAME, 256, 102)
```

```python
from common import *
FCH = 625; CST = 11264
WS_CELLS = 5242880
WS_WF = WS_CELLS + 256 * CST
WS_FLAG = WS_WF + 131072
WS_END = WS_FLAG + 16384
KNAME = 'standalone__mpnn_edge_mlp__graph_kernel'
POLL_LIMIT = 40000
K2_GRID = NB
NT = 29
QT = 98304; QSTR = 576
OH = QT + 41 * QSTR; OSTR = 80
XT = QT + 40 * QSTR + 4096
EAT = XT + 20480
CNT = EAT + NT * 512
SRC = CNT + 256
XL = SRC + (NT + 7) * 64
K2_LDS = 163840
assert XL + 256 <= K2_LDS
C30 = 0x30800000

class R:
    def __init__(self, start): self.n = start
    def get(self, k=1, align=1):
        self.n = (self.n + align - 1) // align * align
        r = self.n; self.n += k; return r

def vr(r, k): return f'v[{r}:{r+k-1}]' if k > 1 else f'v{r}'
def pr(x): return f'v[{x}:{x+1}]'

def gen_kf(a, opt):
    stamp = opt.get('stamp')
    prio = opt.get('prio', '02,02,13|13,13,02')
    vm = VM()
    INV = 'buffer_inv sc1' if opt.get('inv') else ''
    LD = ' sc1' if opt.get('ldsc1', '0') == '1' else ''
    CS = opt.get('cellst', ' sc1')
    r = R(1)
    vLane = r.get(); vNOVF = r.get(); vL16 = r.get()
    aSRC = r.get(); aEAT = r.get(); aXL = r.get(); cQ = r.get(); cS = r.get(); vX = r.get(); aQ = r.get()
    aS = r.get(3); aP = r.get(4)
    IDX = r.get(8, 2)
    A2 = r.get(4, 2); B2A = r.get(4, 2); B2B = r.get(4, 2)
    S = r.get(2, 2); MA = r.get(2, 2); MB = r.get(2, 2)
    ACCA = r.get(16, 2); ACCB = r.get(16, 2)
    DA = r.get(16, 2); DB = r.get(16, 2)
    EE = r.get(16, 2); NF = r.get(4, 2); DF = r.get(4, 2)
    PA = r.get(8, 2); PB = r.get(8, 2); I0 = r.get(4, 2); I1 = r.get(4, 2)
    WB2 = r.get(64, 2)
    XR = r.get(12, 2)
    OA = r.get(24, 2)
    assert r.n <= 256, r.n
    W1F = [NF + 4 * i for i in range(6)] + [WB2 + 36 + 4 * i for i in range(10)]
    aW = None
    assert PB + 8 == NF + 24 and WB2 + 36 + 40 == OA
    t = R(WB2)
    REC = DB
    assert EE == DB + 16
    RK = t.get(8, 2); TQ = t.get(8, 2); DL4 = t.get(8, 2)
    T0 = t.get(); T1 = t.get(); T2 = t.get(); T3 = t.get()
    IDX3 = t.get(8, 2)
    HMAX = XL + 256
    vMX = XR + 8
    IDX1 = DA; IDX2 = DA + 8
    AF = PA
    X0 = DB + 12
    EA_ = IDX

    sP = 20; sX = 24; sE = 28; sWS = 32; sM = 36; sO = 24
    sWV = 44; sG = 45; sCQ = 46; sHeavy = 47; sB = 48; sPoll = 49; sSplit = 50; sT = 51; sTbase = 52
    sRing = 53; sCnt = 54; sTmp = 55; sTmp2 = 56; sTmp3 = 57; sC = 58
    sMask = 4
    sQs = 68; sOs = 69; sT0 = 70; sT1 = 71; sQt = 72; sWdone = 73; sSv = 74
    sStamp = 76
    sHM = 96; sN0 = 98; sWF = 99; sNN = 3; sBok = 100; sOv = 28; sRdone = 30; sEAT = 31; sAcc = 38; sNM = 36; sSafe = 39; sD = 60; sPw = 64

    names = (stamp if stamp and stamp != '1' else '0,1,2,3,4,5,6,7,8,9').split(',')
    def stampat(nm):
        nm = str(nm)
        if stamp:
            if nm in names:
                i = names.index(nm)
                a(f's_memrealtime s[{sStamp+2*i}:{sStamp+2*i+1}]')
            if nm == '6': a('s_memtime s[100:101]\ns_waitcnt lgkmcnt(0)\ns_mov_b32 s{}, s100'.format(sPoll))
            if nm == '7': a('s_memtime s[100:101]\ns_waitcnt lgkmcnt(0)\ns_sub_u32 s{0}, s100, s{0}'.format(sPoll))
    WS = f's[{sWS}:{sWS+3}]'
    def wload(dst, mat, i, tag):
        off = i * 1024
        ins = [f's_add_u32 s{sTmp3}, s{sWF}, {off & ~4095}',
               f'buffer_load_dwordx4 {vr(dst,4)}, v{vL16}, {WS}, s{sTmp3} offen offset:{off & 4095}']
        vm.issue(tag)
        return ins

    a.raw(f'.globl {KNAME}\n.p2align 8\n.type {KNAME},@function')
    a.label(KNAME)
    a(f's_cmp_ge_u32 s2, {K2_GRID}\ns_cbranch_scc1 k2_done')
    stampat(0)
    if opt.get('diagpad'): a('s_memrealtime s[94:95]')
    eD = 26; eS = 36; eA = 46; eR = 66; eB = 76
    PD = 26; RL = 50; W3 = 58; TOUCH = 86; CT = 58
    UQ = 92; vW = 100; aA = 104; U0 = 108; U1 = 109; U2 = 110; U3 = 111; vW1 = 112; PR0 = 113; PR1 = 114; PG0 = 115; PG1 = 116; aW3 = 117
    vDB = 252; aTO = 253; aB = 90
    BF = NF; AX = WB2
    assert BF == 124 and BF + 32 == WB2 and WB2 + 96 <= 256 and REC == 92
    W3L = QT + 24576
    SW = 1
    TAB = QT; RIMG = QT + 1024; CNTA = QT + 12288
    sS = 20; sDs = 28; sEs = 36; sU = 40
    sWm = 68
    sEM = 76 if not stamp else 8
    a(f'''s_load_dwordx4 s[12:15], s[0:1], 32
    s_load_dwordx4 s[8:11], s[0:1], 16
    s_load_dwordx4 s[4:7], s[0:1], 0
    s_load_dwordx4 s[16:19], s[0:1], 48
    s_load_dwordx2 s[{sWS}:{sWS+1}], s[0:1], 64
    v_lshrrev_b32 v{U0}, 6, v0
    v_and_b32 v{vLane}, 63, v0
    v_readfirstlane_b32 s{sWV}, v{U0}
    v_lshlrev_b32 v{vL16}, 4, v{vLane}
    s_cmp_lg_u32 s{sWV}, 3
    s_cbranch_scc1 kf_noct
    s_getpc_b64 s[{sSv}:{sSv+1}]
    kf_pc:
    s_and_b32 s{sTmp3}, s2, 0xf8
    s_lshl_b32 s{sTmp3}, s{sTmp3}, 7
    s_min_u32 s{sTmp3}, s{sTmp3}, k2_done-kf_pc-1024
    s_add_u32 s{sSv}, s{sSv}, s{sTmp3}
    s_addc_u32 s{sSv+1}, s{sSv+1}, 0
    global_load_dwordx4 {vr(CT,4)}, v{vL16}, s[{sSv}:{sSv+1}]
    kf_noct:
    v_lshlrev_b32 v{U3}, 4, v0
    s_mul_i32 s{sN0}, s2, 625
    s_bfe_u32 s{sTmp3}, s2, 0x50003
    s_lshl_b32 s{sTmp3}, s{sTmp3}, 13
    s_lshl_b32 s{sT}, s{sN0}, 2
    s_lshl_b32 s{sTbase}, s{sN0}, 3
    s_and_b32 s{sPoll}, s2, 7
    s_lshl_b32 s{sPoll}, s{sPoll}, 5
    s_lshr_b32 s{sTmp}, s2, 3
    s_or_b32 s{sPoll}, s{sPoll}, s{sTmp}
    s_mul_i32 s{sN0}, s{sPoll}, 625
    s_add_u32 s{sNN}, s{sN0}, {625+15}
    s_add_u32 s{sN0}, s{sN0}, 15
    s_lshr_b32 s{sN0}, s{sN0}, 4
    s_lshr_b32 s{sNN}, s{sNN}, 4
    s_sub_u32 s{sNN}, s{sNN}, s{sN0}
    s_lshr_b32 s{sG}, s{sWV}, 2
    s_and_b32 s{sCQ}, s{sWV}, 3
    s_lshl_b32 s{sWF}, s{sWV}, 14
    s_add_u32 s{sWF}, s{sWF}, {WS_WF - WS_CELLS}
    v_lshrrev_b32 v{U0}, 5, v{vLane}
    v_and_b32 v{U1}, 31, v{vLane}
    s_lshl_b32 s{sTmp}, s{sWV}, 1
    v_xor_b32 v{U2}, v{U1}, v{U0}
    v_xor_b32 v{U2}, s{sTmp}, v{U2}
    v_lshlrev_b32 v{U2}, 4, v{U2}
    v_lshl_add_u32 v{U2}, v{U0}, 9, v{U2}
    v_xor_b32 v{vW1}, s{sWV}, v{U1}
    v_lshlrev_b32 v{vW1}, 4, v{vW1}
    s_waitcnt lgkmcnt(0)
    s_mov_b32 s0, s{sPoll}''')
    a(f'''s_cmp_lg_u32 s{sWV}, {SW}
    s_cbranch_scc1 kf_noedge
    s_setprio 3
    v_mul_u32_u24 v{U0}, 40, v{vLane}
    v_mul_u32_u24 v{U1}, 80, v{vLane}''')
    srd(a, sDs, 10, E * 4)
    a(f'''buffer_load_dwordx4 {vr(eD,4)}, v{U0}, s[{sDs}:{sDs+3}], s{sT} offen
    buffer_load_dwordx4 {vr(eD+4,4)}, v{U0}, s[{sDs}:{sDs+3}], s{sT} offen offset:16
    buffer_load_dwordx2 {vr(eD+8,2)}, v{U0}, s[{sDs}:{sDs+3}], s{sT} offen offset:32''')
    srd(a, sS, 8, E * 4)
    a(f'''buffer_load_dwordx4 {vr(eS,4)}, v{U0}, s[{sS}:{sS+3}], s{sT} offen
    buffer_load_dwordx4 {vr(eS+4,4)}, v{U0}, s[{sS}:{sS+3}], s{sT} offen offset:16
    buffer_load_dwordx2 {vr(eS+8,2)}, v{U0}, s[{sS}:{sS+3}], s{sT} offen offset:32''')
    srd(a, sEs, 6, E * 8)
    for k in range(5): a(f'buffer_load_dwordx4 {vr(eA+4*k,4)}, v{U1}, s[{sEs}:{sEs+3}], s{sTbase} offen offset:{16*k}')
    a.label('kf_noedge')
    a(f'''s_add_u32 s{sPw}, s{sWS}, {WS_P}
    s_addc_u32 s{sPw+1}, s{sWS+1}, 0
    s_and_b32 s{sPw+1}, s{sPw+1}, 0xffff
    s_mov_b32 s{sPw+2}, {N*512}
    s_mov_b32 s{sPw+3}, 0x20000
    s_add_u32 s{sWS}, s{sWS}, {WS_CELLS}
    s_addc_u32 s{sWS+1}, s{sWS+1}, 0
    s_and_b32 s{sWS+1}, s{sWS+1}, 0xffff
    s_mov_b32 s{sWS+2}, {WS_END - WS_CELLS + (1 << 20 if stamp else 0)}
    s_mov_b32 s{sWS+3}, 0x20000''')
    srd(a, sD, 18, 256)
    a(f'''s_cmp_lg_u32 s2, 0
    s_cbranch_scc1 kf_noinit
    v_mov_b32 v{BF}, 0
    v_mov_b32 v{BF+1}, 0
    v_mov_b32 v{BF+2}, 0
    v_mov_b32 v{BF+3}, 0
    s_mov_b32 s{sTmp}, {WS_FLAG - WS_CELLS}
    s_add_u32 s{sTmp2}, s{sTmp}, 8192
    buffer_store_dwordx4 {vr(BF,4)}, v{U3}, {WS}, s{sTmp} offen sc1
    buffer_store_dwordx4 {vr(BF,4)}, v{U3}, {WS}, s{sTmp2} offen sc1''')
    a.label('kf_noinit')
    vm.issue('edge')
    vm.ops = vm.ops
    srd(a, sWm, 12, 516 * 512)
    a(f'buffer_load_dwordx4 {vr(TOUCH,4)}, v{U3}, s[{sWm}:{sWm+3}], s{sTmp3} offen')
    vm.issue('touch')
    srd(a, sU, 14, 512 * 512)
    a(f'''s_cmp_lt_u32 s{sWV}, 4
    s_cbranch_scc1 kf_nt2
    s_lshr_b32 s{sTmp}, s{sTmp3}, 1
    s_lshl_b32 s{sTmp2}, s{sCQ}, 10
    s_add_u32 s{sTmp}, s{sTmp}, s{sTmp2}
    buffer_load_dwordx4 {vr(eD,4)}, v{vL16}, s[{sU}:{sU+3}], s{sTmp} offen''')
    a.label('kf_nt2')
    a(f'''s_cmp_lg_u32 s{sWV}, 6
    s_cbranch_scc1 kf_now3
    s_mov_b32 m0, {W3L}
    s_mov_b32 s{sTmp}, {512*512}
    buffer_load_dwordx4 v{vL16}, s[{sWm}:{sWm+3}], s{sTmp} offen lds
    buffer_load_dwordx4 v{vL16}, s[{sWm}:{sWm+3}], s{sTmp} offen offset:1024 lds''')
    a.label('kf_now3')
    srd(a, sX, 4, N * 512)
    a(f'''s_lshl_b32 s{sTmp}, s{sN0}, 9
    s_lshl_b32 s{sTmp2}, s{sWV}, 10
    s_add_u32 s{sTmp3}, s{sTmp}, s{sTmp2}
    s_add_u32 m0, s{sTmp2}, {XT}
    s_lshl_b32 s{sCnt}, s{sWV}, 9
    buffer_load_dwordx4 v{U2}, s[{sX}:{sX+3}], s{sTmp3} offen lds
    s_add_u32 m0, s{sTmp2}, {XT+8192}
    s_add_u32 s{sTmp3}, s{sTmp3}, 8192
    buffer_load_dwordx4 v{U2}, s[{sX}:{sX+3}], s{sTmp3} offen lds
    s_add_u32 m0, s{sCnt}, {XT+16384}
    s_add_u32 s{sTmp}, s{sTmp}, s{sCnt}
    s_add_u32 s{sTmp}, s{sTmp}, 16384
    s_mov_b32 exec_hi, 0
    buffer_load_dwordx4 v{vW1}, s[{sX}:{sX+3}], s{sTmp} offen lds
    s_mov_b32 exec_hi, -1''')
    for _ in range(3): vm.issue('x')
    stampat('a')
    a(f'''v_mov_b32 v{UQ+4}, 0
    v_mov_b32 v{UQ+5}, 0
    v_mov_b32 v{UQ+6}, 0
    v_mov_b32 v{UQ+7}, 0
    v_add_u32 v{U1}, {CNTA}, v{vL16}
    s_cmp_lg_u32 s{sWV}, {SW}
    s_cbranch_scc1 kf_nocz
    ds_write_b128 v{U1}, {vr(UQ+4,4)}
    v_mov_b32 v{U1}, {HMAX+8}
    ds_write_b64 v{U1}, {vr(UQ+4,2)}''')
    a.label('kf_nocz')
    nz = (NT * 512 + 256 - 8192) // 16; nf = (NT + 7) * 64 // 16; nx = 16
    def list_prefill(Z, F, t0, t1):
        a(f'''v_lshlrev_b32 v{t0}, 4, v0
        v_add_u32 v{t0}, {EAT}, v{t0}
        v_mov_b32 v{t1}, 0xa0a0a0a0
        ds_write_b128 v{t0}, {vr(Z,4)}
        v_cmp_gt_u32 vcc, {nz}, v0
        s_and_saveexec_b64 s[{sSv}:{sSv+1}], vcc
        ds_write_b128 v{t0}, {vr(Z,4)} offset:8192
        s_mov_b64 exec, -1
        v_cmp_gt_u32 vcc, {nf}, v0
        s_mov_b32 s{sWdone}, 0
        s_nop 0
        v_cndmask_b32 v{F}, v{t1}, -1, vcc
        v_cmp_gt_u32 vcc, {nf+nx}, v0
        v_mov_b32 v{F+1}, v{F}
        v_mov_b32 v{F+2}, v{F}
        v_mov_b32 v{F+3}, v{F}
        s_and_saveexec_b64 s[{sSv}:{sSv+1}], vcc
        ds_write_b128 v{t0}, {vr(F,4)} offset:{SRC-EAT}
        s_mov_b64 exec, -1''')
    stampat('b')
    a(f'''v_lshrrev_b32 v{U0}, 5, v{vLane}
    v_and_b32 v{U1}, 3, v{vLane}
    v_lshlrev_b32 v{U0}, 1, v{U0}
    v_xor_b32 v{U0}, v{U0}, v{U1}
    v_lshrrev_b32 v{U1}, 2, v{vLane}
    v_lshlrev_b32 v{U1}, 9, v{U1}
    v_lshl_add_u32 v{U0}, v{U0}, 4, v{U1}
    s_lshl_b32 s{sTmp}, s{sWV}, 6
    v_add_u32 v{vW}, s{sTmp}, v{U0}
    v_add_u32 v{vW+1}, 7168, v{vW}
    v_add_u32 v{vW+2}, 14336, v{vW}
    v_add_u32 v{vW+3}, 21504, v{vW}
    s_mul_i32 s{sRing}, s{sWV}, 12288''')
    def stage(i):
        a(f's_add_u32 m0, s{sRing}, {(i % 3) * 4096}\ns_mov_b32 s{sTmp3}, {(i & 7) * 32768}')
        sr = sWm if i < 8 else sU
        for t_ in range(4):
            a(f'buffer_load_dwordx4 v{(vW if i < 8 else XR + 8)+t_}, s[{sr}:{sr+3}], s{sTmp3} offen offset:{t_*1024} lds')
            vm.issue(f'st{i}')
    a(f'''v_and_b32 v{U0}, 15, v{vLane}
    v_lshrrev_b32 v{U1}, 4, v{vLane}
    v_xor_b32 v{U2}, v{U1}, v{U0}
    v_lshlrev_b32 v{U2}, 4, v{U2}
    v_lshl_add_u32 v{U0}, v{U0}, 9, v{U2}
    v_add_u32 v{aA}, {XT}, v{U0}''')
    for s_ in range(1, 4):
        a(f'v_xor_b32 v{U2}, {s_<<6}, v{U0}\nv_add_u32 v{aA+s_}, {XT}, v{U2}')
    a(f'''v_bfe_u32 v{U0}, v{vLane}, 2, 2
    v_lshl_add_u32 v{U0}, v{U1}, 3, v{U0}
    v_and_b32 v{U2}, 1, v{U1}
    v_lshlrev_b32 v{U2}, 5, v{U2}
    v_and_b32 v{U3}, 3, v{vLane}
    v_lshl_add_u32 v{U2}, v{U3}, 3, v{U2}
    v_lshl_add_u32 v{U2}, v{U0}, 6, v{U2}
    v_add_u32 v{aB}, s{sRing}, v{U2}
    v_xor_b32 v{aB+1}, 32, v{aB}
    v_mov_b32 v{U3}, 1''')
    list_prefill(UQ + 4, BF + 4, U0, U1)
    NPRE = int(opt.get('npre', 1))
    NPRE2 = int(opt.get('npre2', NPRE))
    for i in range(NPRE): stage(i)
    stampat('y')
    def early_consts(T0, T1, T2, T3):
        a(f'''v_lshrrev_b32 v{T2}, 5, v{vLane}
        v_and_b32 v{T3}, 31, v{vLane}
        v_bfe_u32 v{T0}, v{T3}, 2, 1
        v_cmp_eq_u32 s[{sHM}:{sHM+1}], v{T0}, v{T2}
        v_bfe_u32 v{T0}, v{T3}, 1, 3
        v_xor_b32 v{T0}, v{T0}, v{T2}
        v_lshlrev_b32 v{T0}, 4, v{T0}
        v_lshl_add_u32 v{T0}, v{T3}, 7, v{T0}
        v_add_u32 v{aP}, s{sRing}, v{T0}
        v_xor_b32 v{aP+1}, 32, v{aP}
        v_xor_b32 v{aP+2}, 64, v{aP}
        v_xor_b32 v{aP+3}, 96, v{aP}
        v_and_b32 v{T0}, 7, v{vLane}
        v_lshrrev_b32 v{T1}, 4, v{vLane}
        v_xor_b32 v{T0}, v{T0}, v{T1}
        s_lshl_b32 s{sTmp}, s{sCQ}, 7
        v_lshl_add_u32 v{T0}, v{T0}, 4, s{sTmp}
        v_xor_b32 v{IDX+7}, 64, v{T0}
        v_add_u32 v{IDX+1}, 3072, v{T0}
        v_add_u32 v{IDX+3}, 2048, v{IDX+7}
        v_add_u32 v{IDX+5}, 1024, v{T0}
        v_bfe_u32 v{T0}, v{vLane}, 4, 1
        v_and_b32 v{T1}, 3, v{vLane}
        v_lshlrev_b32 v{T1}, 3, v{T1}
        v_lshl_add_u32 v{T0}, v{T0}, 5, v{T1}
        s_add_u32 s{sTmp}, s{sTmp}, {QT}
        v_add_u32 v{cQ}, s{sTmp}, v{T0}
        s_lshl_b32 s{sTmp}, s{sG}, 4
        s_add_u32 s{sTmp}, s{sTmp}, {OH}
        v_add_u32 v{cS}, s{sTmp}, v{T0}
        s_mov_b32 s{sC}, {hex(C30)}
        s_mov_b32 s{sC+1}, {hex(C30)}''')
    def list_consts(T0, T1, T2, T3):
        a(f'''v_bfe_u32 v{T0}, v{vLane}, 5, 1
        v_bfe_u32 v{T1}, v{vLane}, 3, 1
        v_bfe_u32 v{T2}, v{vLane}, 4, 1
        v_lshlrev_b32 v{aSRC}, 5, v{T0}
        v_lshl_add_u32 v{aSRC}, v{T1}, 3, v{aSRC}
        v_lshl_add_u32 v{aSRC}, v{T2}, 1, v{aSRC}
        v_bfe_u32 v{T3}, v{vLane}, 2, 2
        v_lshl_add_u32 v{aXL}, v{T0}, 2, v{T3}
        v_and_b32 v{T3}, 1, v{T3}
        v_lshl_add_u32 v{aEAT}, v{T3}, 1, v{T2}
        v_and_b32 v{T0}, 1, v{vLane}
        v_lshl_add_u32 v{aEAT}, v{aEAT}, 1, v{T0}
        v_lshl_add_u32 v{aEAT}, v{aEAT}, 1, v{T1}
        v_bfe_u32 v{T0}, v{vLane}, 1, 1
        v_lshl_add_u32 v{aEAT}, v{aEAT}, 1, v{T0}
        v_lshlrev_b32 v{aEAT}, 4, v{aEAT}''')
    TOUCH_T = 118
    def hoisted():
        early_consts(U0, U1, U2, TOUCH_T)
        list_consts(U0, U1, U2, TOUCH_T)
        a(f'''v_lshrrev_b32 v{U0}, 4, v{vLane}
    v_mul_u32_u24 v{U0}, {4*QSTR}, v{U0}
    v_and_b32 v{U1}, 15, v{vLane}
    v_lshl_add_u32 v{U0}, v{U1}, 2, v{U0}
    s_lshl_b32 s{sTmp2}, s{sWV}, 6
    s_add_u32 s{sTmp2}, s{sTmp2}, {QT}
    v_add_u32 v{aTO}, s{sTmp2}, v{U0}
    v_lshrrev_b32 v{U0}, 5, v{vLane}
    v_and_b32 v{PG1}, 31, v{vLane}
    v_lshlrev_b32 v{PG1}, 4, v{PG1}
    v_lshl_add_u32 v{PG0}, v{U0}, 9, v{PG1}
    v_mul_u32_u24 v{U0}, {QSTR}, v{U0}
    v_add_u32 v{U0}, v{U0}, v{PG1}
    s_mul_i32 s{sTmp}, s{sWV}, {2*QSTR}
    s_add_u32 s{sTmp}, s{sTmp}, {QT}
    v_add_u32 v{PR0}, s{sTmp}, v{U0}
    s_mul_i32 s{sTmp}, s{sWV}, {QSTR}
    s_add_u32 s{sTmp}, s{sTmp}, {QT + 32*QSTR}
    v_add_u32 v{PR1}, s{sTmp}, v{PG1}
    v_bfe_u32 v{U0}, v{vLane}, 1, 4
    v_and_b32 v{U1}, 1, v{vLane}
    v_lshlrev_b32 v{U0}, 1, v{U0}
    v_lshl_add_u32 v{U0}, v{U1}, 5, v{U0}
    s_lshl_b32 s{sTmp}, s{sCQ}, 7
    s_add_u32 s{sTmp}, s{sTmp}, {W3L}
    v_add_u32 v{aW3}, s{sTmp}, v{U0}
    v_lshrrev_b32 v{U0}, 1, v0
    v_mul_u32_u24 v{vNOVF}, {CST}, v{U0}''')
    hoisted()
    dpp = ['row_shr:1 row_mask:0xf bank_mask:0xf', 'row_shr:2 row_mask:0xf bank_mask:0xf', 'row_shr:4 row_mask:0xf bank_mask:0xf',
           'row_shr:8 row_mask:0xf bank_mask:0xf', 'row_bcast:15 row_mask:0xa bank_mask:0xf', 'row_bcast:31 row_mask:0xc bank_mask:0xf']
    a(f'''s_cmp_lg_u32 s{sWV}, {SW}
    s_cbranch_scc1 kf_nohist
    s_movk_i32 s{sTmp}, 625
    s_mov_b32 exec_hi, 0x7fffffff''')
    a(f's_waitcnt vmcnt({vm.count_after("edge") + 8})')
    stampat('z')
    for i in range(10):
        a(f'''v_mul_u32_u24 v{eB+i}, 429497, v{eD+i}
        v_lshrrev_b32 v{eB+i}, 24, v{eB+i}
        v_mad_u32_u24 v{U0}, v{eB+i}, s{sTmp}, 15
        v_lshlrev_b32 v{eB+i}, 2, v{eB+i}
        v_add_u32 v{eB+i}, {CNTA}, v{eB+i}''')
        if i == 5: a('s_mov_b32 exec_hi, 0x3fffffff')
        a(f'''ds_add_rtn_u32 v{eR+i}, v{eB+i}, v{U3}
        v_lshrrev_b32 v{U0}, 4, v{U0}
        v_sub_u32 v{eD+i}, v{eD+i}, v{U0}''')
    a(f'''s_mov_b32 exec_hi, -1
    v_add_u32 v{U0}, {CNTA}, v{vL16}
    ds_read_b128 {vr(UQ,4)}, v{U0}''')
    a(f's_waitcnt vmcnt({vm.count_after("edge") + 5})')
    for i in range(10): a(f'v_lshl_or_b32 v{eS+i}, v{eD+i}, 16, v{eS+i}')
    a(f'''s_waitcnt lgkmcnt(0)
    v_add_u32 v{UQ+5}, v{UQ}, v{UQ+1}
    v_add_u32 v{UQ+6}, v{UQ+5}, v{UQ+2}
    v_add_u32 v{U1}, v{UQ+6}, v{UQ+3}
    v_mov_b32 v{U2}, v{U1}
    s_nop 1''')
    for k, d in enumerate(dpp):
        a(f'v_add_u32_dpp v{U2}, v{U2}, v{U2} {d}' + (' bound_ctrl:0' if k < 4 else '') + '\ns_nop 1')
    a(f'''v_sub_u32 v{UQ+4}, v{U2}, v{U1}
    v_add_u32 v{UQ+7}, v{UQ+6}, v{UQ+4}
    v_add_u32 v{UQ+6}, v{UQ+5}, v{UQ+4}
    v_add_u32 v{UQ+5}, v{UQ}, v{UQ+4}
    ds_write_b128 v{U0}, {vr(UQ+4,4)} offset:1024''')
    for i in range(10): a(f'ds_read_b32 v{eD+i}, v{eB+i} offset:1024')
    a(f'''v_lshl_or_b32 v{UQ+4}, v{UQ}, 16, v{UQ+4}
    v_lshl_or_b32 v{UQ+5}, v{UQ+1}, 16, v{UQ+5}
    v_lshl_or_b32 v{UQ+6}, v{UQ+2}, 16, v{UQ+6}
    v_lshl_or_b32 v{UQ+7}, v{UQ+3}, 16, v{UQ+7}
    v_subrev_u32 v{U0}, {CNTA-TAB}, v{U0}
    s_mov_b32 s{sTmp}, {RIMG}
    s_mov_b32 exec_hi, 0x7fffffff''')
    a(vm.wait('edge'))
    for i in range(10):
        if i == 5: a('s_mov_b32 exec_hi, 0x3fffffff')
        a(f'''s_waitcnt lgkmcnt({min(9, 9 - i + 2 * i)})
        v_add_u32 v{eD+i}, v{eD+i}, v{eR+i}
        v_lshl_add_u32 v{eD+i}, v{eD+i}, 4, s{sTmp}
        ds_write_b64 v{eD+i}, {vr(eA+2*i,2)}
        ds_write_b32 v{eD+i}, v{eS+i} offset:8''')
    a(f'''s_mov_b32 exec_hi, -1
    ds_write_b128 v{U0}, {vr(UQ+4,4)}
    s_setprio 0''')
    a.label('kf_nohist')
    for i in range(NPRE, NPRE2): stage(i)
    a(vm.wait('x') + ' lgkmcnt(0)')
    a('s_barrier')
    stampat('c')
    axr = [f'ds_read_b128 {vr(AX+(s_*3+rt)*4,4)}, v{aA+(s_&3)} offset:{rt*8192+(s_>>2)*256}' for s_ in range(8) for rt in range(3)]
    a(f'''s_or_b32 s{sTmp}, s2, s{sWV}
    s_cbranch_scc1 kf_noset
    v_mov_b32 v{U0}, 1
    v_mov_b32 v{U1}, 0
    s_mov_b64 exec, 1
    buffer_store_dword v{U0}, v{U1}, s[{sD}:{sD+3}], 0 offen sc1
    s_mov_b64 exec, -1''')
    a.label('kf_noset')
    axr = [f'ds_read_b128 {vr(AX+(s_*3+rt)*4,4)}, v{aA+(s_&3)} offset:{rt*8192+(s_>>2)*256}' for s_ in range(8) for rt in range(3)]
    AXE = not opt.get('axlate')
    if AXE:
        for x in axr[:12]: a(x)
    LA = int(opt.get('la', 3))
    for i in range(NPRE2, LA): stage(i)
    stampat('A')
    a(f'''v_lshlrev_b32 v{U3}, 4, v0
    v_add_u32 v{U0}, {TAB}, v{U3}
    ds_read_b128 {vr(UQ,4)}, v{U0}
    ds_read_b128 {vr(UQ+4,4)}, v{U0} offset:8192
    s_mul_i32 s{sT}, s2, {CST}
    s_add_u32 s{sTbase}, s{sT}, 8192
    s_cmp_gt_u32 s{sWV}, 2
    s_waitcnt lgkmcnt(0)
    s_cbranch_scc1 kf_nost2
    buffer_store_dwordx4 {vr(UQ+4,4)}, v{U3}, {WS}, s{sTbase} offen{CS}''')
    a.label('kf_nost2')
    a(f'buffer_store_dwordx4 {vr(UQ,4)}, v{U3}, {WS}, s{sT} offen{CS}')
    vm.issue('cells')
    stampat('E')
    a(f'''s_cmp_lg_u32 s{sWV}, 0
    s_cbranch_scc1 kf_nodb
    v_mov_b32 v{vDB}, 0
    buffer_load_dword v{vDB}, v{vDB}, s[{sD}:{sD+3}], 0 offen sc1''')
    a.label('kf_nodb')
    a(f'''s_cmp_lg_u32 s{sWV}, 7
    s_cbranch_scc1 kf_norl
    s_cmp_ge_u32 s2, 128
    s_cbranch_scc1 kf_norl
    v_lshrrev_b32 v{U0}, 4, v{vLane}
    v_lshlrev_b32 v{U0}, 11, v{U0}
    v_bfe_u32 v{U1}, v{vLane}, 2, 2
    v_lshl_add_u32 v{U0}, v{U1}, 4, v{U0}
    v_and_b32 v{U1}, 3, v{vLane}
    v_lshl_add_u32 v{U0}, v{U1}, 1, v{U0}
    s_bfe_u32 s{sTmp}, s2, 0x30001
    s_lshl_b32 s{sTmp2}, s{sTmp}, 14
    s_add_u32 s{sTmp2}, s{sTmp2}, {256*512}
    s_bfe_u32 s{sTmp}, s2, 0x30004
    s_lshl_b32 s{sTmp}, s{sTmp}, 6
    s_add_u32 s{sTmp2}, s{sTmp2}, s{sTmp}
    s_and_b32 s{sTmp}, s2, 1
    s_lshl_b32 s{sTmp}, s{sTmp}, 3
    s_add_u32 s{sTmp2}, s{sTmp2}, s{sTmp}
    s_add_u32 s{sTmp}, s{sTmp2}, 8192''')
    for e in range(0, 8, 2):
        a(f'''buffer_load_ushort v{RL+e}, v{U0}, s[{sU}:{sU+3}], s{sTmp2} offen offset:{(e>>1)*512}
        buffer_load_ushort v{RL+e+1}, v{U0}, s[{sU}:{sU+3}], s{sTmp} offen offset:{(e>>1)*512}''')
    a.label('kf_norl')
    stampat('B')
    def breads(i, nowait=False):
        if not nowait: a(vm.wait(f'st{i}'))
        for ks in range(2):
            for c in range(2):
                for t_ in range(2):
                    a(f'ds_read_b64_tr_b16 {vr(BF+(i&1)*16+ks*8+c*4+t_*2,2)}, v{aB+c} offset:{(i%3)*4096+(32*ks+4*t_)*64}')
    def compute(i, nowait=False):
        a('s_waitcnt lgkmcnt(0)')
        if opt.get('stfirst') and i + 3 < 8: stage(i + 3)
        for ks in range(2):
            s_ = (2 * i + ks) & 7
            for rt in range(3):
                for c in range(2):
                    d = PD + (rt * 2 + c) * 4
                    cin = '0' if s_ == 0 else vr(d, 4)
                    a(f'v_mfma_f32_16x16x32_bf16 {vr(d,4)}, {vr(AX+(s_*3+rt)*4,4)}, {vr(BF+(i&1)*16+ks*8+c*4,4)}, {cin}')
                    if ks == 0 and rt == 0 and c == 1 and i + 1 < 8 and i != 3: breads(i + 1, nowait)
                    if ks == 1 and rt == 0 and c == 1 and i + LA < 8 and LA == 3: stage(i + LA)
                    if ks == 0 and rt == 0 and c == 0 and i + LA < 8 and LA == 2: stage(i + LA)
    def poll(off, lab, PR):
        a(f'''s_and_b32 s{sTmp}, s2, 7
        s_lshl_b32 s{sTmp}, s{sTmp}, 10
        s_add_u32 s{sTmp}, s{sTmp}, {off - WS_CELLS}
        s_mov_b32 s{sPoll}, {POLL_LIMIT}''')
        a.label(lab)
        a(f'''buffer_load_dwordx4 {vr(PR,4)}, v{vL16}, {WS}, s{sTmp} offen sc1
        s_waitcnt vmcnt(0)
        v_and_b32 v{PR}, v{PR}, v{PR+1}
        v_and_b32 v{PR+2}, v{PR+2}, v{PR+3}
        v_and_b32 v{PR}, v{PR}, v{PR+2}
        v_cmp_eq_u32 vcc, 1, v{PR}
        s_cmp_eq_u64 vcc, -1
        s_cbranch_scc1 {lab}_ok
        s_sleep 1
        s_sub_u32 s{sPoll}, s{sPoll}, 1
        s_cbranch_scc0 {lab}''')
        a.label(lab + '_ok')
    def tile_out():
        a(f'''s_mov_b32 s{sSv}, {hex(f2u(-LOG2E))}
        s_mov_b32 s{sSv+1}, {hex(f2u(-LOG2E))}
        s_nop 5''')
        for rt in range(3):
            if rt == 2: a('s_mov_b32 exec_hi, 0')
            for h in range(4):
                d = PD + rt * 8 + 2 * h
                a(f'v_pk_mul_f32 {pr(d)}, {pr(d)}, s[{sSv}:{sSv+1}]')
            for rr in range(4):
                d0 = PD + rt * 8 + rr
                a(f'v_cvt_pk_bf16_f32 v{d0}, v{d0}, v{d0+4}\nds_write_b32 v{aTO}, v{d0} offset:{(16*rt+rr)*QSTR}')
        a('s_mov_b32 exec_hi, -1')
    def signal(off, lab):
        a(f'''s_cmp_lg_u32 s{sWV}, 0
        s_cbranch_scc1 {lab}
        v_lshlrev_b32 v{TOUCH}, 10, v{vLane}
        v_mov_b32 v{TOUCH+1}, 1
        s_lshl_b32 s{sTmp}, s2, 2
        s_add_u32 s{sTmp}, s{sTmp}, {off - WS_CELLS}
        s_mov_b64 exec, 0xff
        buffer_store_dword v{TOUCH+1}, v{TOUCH}, {WS}, s{sTmp} offen sc1
        s_mov_b64 exec, -1''')
        a.label(lab)
    if not AXE:
        for x in axr[:12]: a(x)
        a('s_waitcnt lgkmcnt(6)')
    for ct in range(2):
        for k in range(4): a(f'ds_read_u16 v{W3+4*ct+k}, v{aW3} offset:{k*512+ct*64}')
    a('s_waitcnt lgkmcnt(2)')
    for x in axr[12:]: a(x)
    a('s_waitcnt lgkmcnt(6)')
    stampat('C')
    breads(0)
    stampat('p')
    compute(0)
    stampat('d')
    compute(1); stampat('r')
    a(f's_mov_b32 s{sTmp}, {hex(f2u(-LOG2E))}')
    for k in range(8): a(f'v_lshlrev_b32 v{W3+k}, 16, v{W3+k}\nv_mul_f32 v{W3+k}, s{sTmp}, v{W3+k}')
    for p in range(4): a(f'v_cvt_pk_bf16_f32 v{W3+p}, v{W3+2*p}, v{W3+2*p+1}')
    a(vm.wait('cells'))
    a(f'''s_cmp_lg_u32 s{sWV}, 0
    s_cbranch_scc1 kf_initok
    s_mov_b32 s{sPoll}, {POLL_LIMIT}''')
    a.label('kf_initpoll')
    a(f'''v_readfirstlane_b32 s{sTmp}, v{vDB}
    s_cmp_lg_u32 s{sTmp}, 0
    s_cbranch_scc1 kf_initok
    v_mov_b32 v{vDB}, 0
    s_sleep 2
    buffer_load_dword v{vDB}, v{vDB}, s[{sD}:{sD+3}], 0 offen sc1
    s_waitcnt vmcnt(0)
    s_sub_u32 s{sPoll}, s{sPoll}, 1
    s_cbranch_scc0 kf_initpoll''')
    a.label('kf_initok')
    a('s_barrier')
    signal(WS_FLAG, 'kf_sigA')
    stampat('k')
    compute(2); stampat('s')
    compute(3); stampat('t')
    tile_out()
    a('s_waitcnt lgkmcnt(0)\ns_barrier')
    stampat('l')
    a(f'''s_cmp_lg_u32 s{sWV}, 7
    s_cbranch_scc1 kf_norl2
    s_cmp_ge_u32 s2, 128
    s_cbranch_scc1 kf_norl2''')
    for p in range(4): a(f'v_lshl_or_b32 v{BF+16+p}, v{RL+2*p+1}, 16, v{RL+2*p}')
    a(f'''s_lshl_b32 s{sTmp}, s2, 10
    s_add_u32 s{sTmp}, s{sTmp}, {WS_WF - WS_CELLS}
    buffer_store_dwordx4 {vr(BF+16,4)}, v{vL16}, {WS}, s{sTmp} offen sc1
    s_nop 1''')
    a.label('kf_norl2')
    a(f'''ds_read_b128 {vr(UQ,4)}, v{PR0}
    ds_read_b128 {vr(UQ+4,4)}, v{PR0} offset:{16*QSTR}
    ds_read_b128 {vr(TOUCH,4)}, v{PR1}
    s_lshl_b32 s{sTmp}, s{sN0}, 9
    s_lshl_b32 s{sTmp2}, s{sWV}, 10
    s_add_u32 s{sTmp2}, s{sTmp2}, s{sTmp}
    s_lshl_b32 s{sTmp3}, s{sWV}, 9
    s_add_u32 s{sTmp}, s{sTmp}, s{sTmp3}
    s_add_u32 s{sTmp}, s{sTmp}, 16384
    s_waitcnt lgkmcnt(2)
    buffer_store_dwordx4 {vr(UQ,4)}, v{PG0}, s[{sPw}:{sPw+3}], s{sTmp2} offen{CS}
    s_add_u32 s{sTmp2}, s{sTmp2}, 8192
    s_waitcnt lgkmcnt(1)
    buffer_store_dwordx4 {vr(UQ+4,4)}, v{PG0}, s[{sPw}:{sPw+3}], s{sTmp2} offen{CS}
    s_mov_b32 exec_hi, 0
    s_waitcnt lgkmcnt(0)
    buffer_store_dwordx4 {vr(TOUCH,4)}, v{PG1}, s[{sPw}:{sPw+3}], s{sTmp} offen{CS}
    s_mov_b32 exec_hi, -1''')
    for _ in range(3): vm.issue('pst')
    def rec_loads(tab, t0, t1, lab):
        a(f'''v_and_b32 v{t1}, 1, v0
        v_and_b32 v{t0}, 0xffff, v{tab}
        v_add_u32 v{t0}, v{t0}, v{t1}
        v_lshl_add_u32 v{t0}, v{t0}, 4, v{vNOVF}
        v_lshrrev_b32 v{tab}, 16, v{tab}
        v_sub_u32 v{t1}, v{tab}, v{t1}
        v_add_u32 v{t1}, 1, v{t1}
        v_lshrrev_b32 v{t1}, 1, v{t1}''')
        for i in range(8): a(f'v_cmp_lt_u32 s[{sMask+2*i}:{sMask+2*i+1}], {i}, v{t1}')
        a(f'v_cmp_lt_u32 s[{sOv}:{sOv+1}], 8, v{t1}')
        for i in range(8):
            a(f'''s_mov_b64 exec, s[{sMask+2*i}:{sMask+2*i+1}]
            s_cbranch_execz {lab}
            buffer_load_dwordx3 {vr(REC+4*i,3)}, v{t0}, {WS}, 0 offen offset:{1024+32*i}{LD}''')
        a.label(lab)
        a('s_mov_b64 exec, -1')
    srd(a, sO, 16, N * 512)
    breads(4)
    compute(4); stampat('u')
    compute(5); stampat('v')
    a(f's_cmp_lg_u32 s{sWV}, 0\ns_cbranch_scc1 kf_pollA_ok')
    poll(WS_FLAG, 'kf_pollA', UQ)
    a(vm.wait('st7') + '\ns_barrier')
    a(f'''s_lshl_b32 s{sTmp}, s0, 2
    buffer_load_dword v{vDB}, v{vNOVF}, {WS}, s{sTmp} offen{LD}''')
    vm.issue('tab')
    signal(WS_FLAG + 8192, 'kf_sigB')
    stampat('o')
    compute(6, nowait=True); compute(7); stampat('x')
    for i in range(4): a(f'v_mov_b32 v{XR+8+i}, v{vW+i}')
    a(f'''v_and_b32 v{U0}, 3, v{vLane}
    v_lshlrev_b32 v{U0}, 3, v{U0}
    v_sub_u32 v{aB}, v{aB}, v{U0}
    v_lshlrev_b32 v{U0}, 1, v{U0}
    v_xor_b32 v{aB}, v{aB}, v{U0}''')
    a(vm.wait('tab'))
    rec_loads(vDB, TOUCH, TOUCH + 1, 'kf_recend')
    stampat('w')
    def w1reads(i, reg):
        for ks in range(2):
            for c in range(2):
                for t_ in range(2):
                    a(f'ds_read_b64_tr_b16 {vr(W1F[((i-8)*2+ks)*2+c]+2*t_,2)}, v{reg} offset:{(i%3)*4096+(32*ks+4*t_)*64+8*c}')
    tile_out()
    a(f'v_mov_b32 v{B2A}, v{W3}\nv_mov_b32 v{B2A+1}, v{W3+1}\nv_mov_b32 v{B2B}, v{W3+2}\nv_mov_b32 v{B2B+1}, v{W3+3}')
    stampat('n')
    a(f'''s_sub_u32 s{sP}, s{sPw}, 3072
    s_subb_u32 s{sP+1}, s{sPw+1}, 0
    s_or_b32 s{sP+1}, s{sP+1}, {512 << 16}
    s_mov_b32 s{sP+2}, {0 if opt.get('nogather') else N}
    s_mov_b32 s{sP+3}, 0x20000
    v_mov_b32 v{TQ}, 0
    v_mov_b32 v{TQ+1}, 0
    v_mov_b32 v{TQ+2}, 0
    v_mov_b32 v{TQ+3}, 0
    s_mov_b32 s{sHeavy}, 0
    s_mov_b32 s{sB}, 0
    s_mov_b32 s{sRdone}, 0
    s_mov_b32 s{sAcc}, 0
    s_mov_b32 s{sSafe}, {1 if opt.get('allsafe') else 0}
    s_mov_b32 s{sEAT}, {EAT}
    s_cmp_lg_u32 s{sWV}, 7
    s_cbranch_scc1 k2_nooh
    v_add_u32 v{T0}, {QT + 40*QSTR}, v{vL16}
    ds_write_b128 v{T0}, {vr(TQ,4)}
    ds_write_b128 v{T0}, {vr(TQ,4)} offset:1024
    ds_write_b128 v{T0}, {vr(TQ,4)} offset:2048
    ds_write_b128 v{T0}, {vr(TQ,4)} offset:3072
    v_mul_u32_u24 v{T0}, {OSTR+2}, v{vLane}
    v_mov_b32 v{T2}, 0x3f80
    v_add_u32 v{T0}, {OH}, v{T0}
    s_mov_b32 exec_hi, 0xff
    ds_write_b16 v{T0}, v{T2}
    s_mov_b32 exec_hi, -1''')
    a.label('k2_nooh')
    a(f's_cmp_lg_u32 s{sWV}, 0\ns_cselect_b32 s{sBok}, 1, 0\ns_branch k2_first')
    a.label('k2_batch')
    for i in range(4): a(f'v_mov_b32 v{TQ+i}, 0')
    list_prefill(TQ, DL4, T0, T1)
    list_consts(T0, T1, T2, T3)
    a('s_waitcnt lgkmcnt(0)\ns_barrier')
    a.label('k2_first')
    stampat(1)
    a(f'''v_lshrrev_b32 v{T2}, 5, v{vLane}
    v_and_b32 v{T3}, 31, v{vLane}
    v_lshlrev_b32 v{T0}, 3, v{T2}
    v_sub_u32 v{T0}, v{T3}, v{T0}
    v_mov_b32 v{T1}, 0x3f80
    v_and_b32 v{aQ}, 1, v{T0}
    v_lshlrev_b32 v{aQ}, 4, v{aQ}
    v_lshlrev_b32 v{T1}, v{aQ}, v{T1}
    v_lshrrev_b32 v{T0}, 1, v{T0}''')
    for k, reg in enumerate([I0, I0+1, I0+2, I0+3, I1, I1+1, I1+2, I1+3]):
        c = k if k < 4 else k + 4
        m = 'vcc' if k % 2 == 0 else f's[{sSv}:{sSv+1}]'
        a(f'v_cmp_eq_u32 {m}, {c}, v{T0}')
        if k:
            pk, preg = k - 1, [I0, I0+1, I0+2, I0+3, I1, I1+1, I1+2, I1+3][k-1]
            a('s_nop 0')
            a(f'v_cndmask_b32 v{preg}, 0, v{T1}, ' + ('vcc' if pk % 2 == 0 else f's[{sSv}:{sSv+1}]'))
    a(f'''v_mov_b32 v{A2}, 0
    v_mov_b32 v{A2+1}, 0
    v_cndmask_b32 v{I1+3}, 0, v{T1}, s[{sSv}:{sSv+1}]
    v_mov_b32 v{A2+2}, 0
    v_mov_b32 v{A2+3}, 0
    s_mov_b32 s{sQs}, {QSTR//4}
    s_mov_b32 s{sOs}, {OSTR//4}''')
    for d in range(4):
        a(f'v_mov_b32 v{IDX1+2*d+1}, v{IDX+2*d+1}\nv_mov_b32 v{IDX2+2*d+1}, v{IDX+2*d+1}')
    a(f'v_mov_b32 v{T3}, 1')
    stampat('e')
    a('s_waitcnt vmcnt(0)')
    stampat(2)
    for i in range(8):
        a(f'''s_mov_b64 exec, s[{sMask+2*i}:{sMask+2*i+1}]
        s_cbranch_execz kf_histend
        v_lshrrev_b32 v{DL4+i}, 14, v{REC+4*i+2}
        v_add_u32 v{T1}, {CNT}, v{DL4+i}
        ds_add_rtn_u32 v{RK+i}, v{T1}, v{T3}''')
    a(f'''s_mov_b64 exec, s[{sOv}:{sOv+1}]
    v_mov_b32 v{T1}, {CNT + 252}
    ds_add_u32 v{T1}, v{T3}''')
    a.label('kf_histend')
    a(f'''s_mov_b64 exec, -1
    v_lshlrev_b32 v{T0}, 2, v{vLane}
    v_add_u32 v{T0}, {CNT}, v{T0}
    s_waitcnt lgkmcnt(0)
    s_nop 0''')
    w1pos = opt.get('w1pos', 'r,g,r').split(',')
    def w1stage(pos):
        for i in (8, 9, 10):
            if w1pos[i - 8] == pos:
                a(f's_or_b32 s{sTmp2}, s{sHeavy}, s{sRdone}\ns_cbranch_scc1 kf_nost{i}')
                stage(i)
                a.label(f'kf_nost{i}')
    w1stage('g')
    stampat('f')
    a('s_barrier')
    stampat('g')
    a(f'ds_read_b32 v{T1}, v{T0}\nv_cmp_gt_u32 vcc, 40, v{vLane}')
    w1stage('r')
    a(f'''s_cmp_lg_u32 s{sBok}, 0
    s_cbranch_scc1 kf_nopk1
    s_and_b32 s{sTmp}, s2, 7
    s_lshl_b32 s{sTmp}, s{sTmp}, 10
    s_add_u32 s{sTmp}, s{sTmp}, {WS_FLAG + 8192 - WS_CELLS}
    buffer_load_dwordx4 {vr(IDX3,4)}, v{vL16}, {WS}, s{sTmp} offen sc1''')
    a.label('kf_nopk1')
    dpp = ['row_shr:1 row_mask:0xf bank_mask:0xf', 'row_shr:2 row_mask:0xf bank_mask:0xf', 'row_shr:4 row_mask:0xf bank_mask:0xf',
           'row_shr:8 row_mask:0xf bank_mask:0xf', 'row_bcast:15 row_mask:0xa bank_mask:0xf', 'row_bcast:31 row_mask:0xc bank_mask:0xf']
    a(f'''s_waitcnt lgkmcnt(0)
    v_readlane_b32 s{sT1}, v{T1}, 63
    v_add_u32 v{T1}, 3, v{T1}
    v_lshrrev_b32 v{T1}, 2, v{T1}
    v_cndmask_b32 v{T1}, 0, v{T1}, vcc
    v_mov_b32 v{T2}, v{T1}
    s_lshl_b32 s{sTmp3}, s{sT1}, 8
    s_nop 0''')
    for k, d in enumerate(dpp):
        a(f'v_add_u32_dpp v{T2}, v{T2}, v{T2} {d}' + (' bound_ctrl:0' if k < 4 else ''))
        a('s_nop 1' if k < 5 else 's_nop 0')
    a(f'''v_readlane_b32 s{sQt}, v{T2}, 63
    v_sub_u32 v{T1}, v{T2}, v{T1}
    v_add_u32 v{T2}, 7, v{T1}
    v_lshrrev_b32 v{T2}, 3, v{T2}
    s_add_u32 s{sTmp}, s{sQt}, 7
    v_sub_u32 v{T0}, s{sTmp}, v{T1}
    v_lshrrev_b32 v{T0}, 3, v{T0}
    v_add_u32 v{T2}, v{T2}, v{T0}
    v_lshlrev_b32 v{T0}, 1, v{T1}
    s_add_u32 s{sTmp}, s{sQt}, {int(opt.get('bias', 0))}
    v_sad_u32 v{T0}, v{T0}, s{sTmp}, 0
    v_lshl_add_u32 v{T2}, v{T2}, 5, v{T0}
    v_subrev_u32 v{T0}, 8, v{vLane}
    v_lshl_add_u32 v{T2}, v{T2}, 6, v{vLane}
    v_cmp_gt_u32 vcc, 25, v{T0}
    s_nop 1
    v_cndmask_b32 v{T2}, -1, v{T2}, vcc
    s_nop 1''')
    for k, d in enumerate(dpp):
        a(f'v_min_u32_dpp v{T2}, v{T2}, v{T2} {d}')
        a('s_nop 1' if k < 5 else 's_nop 0')
    a(f'''v_readlane_b32 s{sSplit}, v{T2}, 63
    s_and_b32 s{sSplit}, s{sSplit}, 63
    s_cmp_lg_u32 s{sHeavy}, 0
    s_cselect_b32 s{sSplit}, 20, s{sSplit}
    s_nop 0
    v_readlane_b32 s{sTmp}, v{T1}, s{sSplit}
    v_cmp_le_u32 vcc, s{sSplit}, v{vLane}
    s_add_u32 s{sT0}, s{sTmp}, 7
    s_lshr_b32 s{sT0}, s{sT0}, 3
    s_sub_u32 s{sT1}, s{sQt}, s{sTmp}
    s_add_u32 s{sT1}, s{sT1}, 7
    s_lshr_b32 s{sT1}, s{sT1}, 3
    s_add_u32 s{sTmp2}, s{sT0}, s{sT1}
    s_add_u32 s{sTmp2}, s{sTmp2}, s{sTmp3}
    s_cmp_le_u32 s{sTmp2}, {NT}
    s_cbranch_scc1 k2_fits
    s_mov_b32 s{sHeavy}, 1
    s_branch k2_hentry''')
    a.label('k2_fits')
    stampat('h')
    a(f'''s_lshl_b32 s{sTmp2}, s{sT0}, 3
    s_sub_u32 s{sTmp2}, s{sTmp2}, s{sTmp}
    v_mov_b32 v{T2}, s{sTmp2}
    v_cndmask_b32 v{T2}, 0, v{T2}, vcc
    v_add_lshl_u32 v{T1}, v{T1}, v{T2}, 2''')
    for i in range(8):
        if i in (2, 4, 6): a(f's_cmp_eq_u64 s[{sMask+2*i}:{sMask+2*i+1}], 0\ns_cbranch_scc1 kf_bpend')
        a(f'ds_bpermute_b32 v{TQ+i}, v{DL4+i}, v{T1}')
    a.label('kf_bpend')
    a(f'''s_cmp_eq_u32 s{sG}, 0
    s_cselect_b32 s{sT}, s{sT0}, s{sT1}
    s_cselect_b32 s{sTbase}, 0, s{sT0}
    s_cselect_b32 s{sTmp2}, 0, 192
    s_lshl_b32 s{sT0}, s{sT0}, 5
    s_lshl_b32 s{sTmp}, s{sTbase}, 6
    s_add_u32 s{sTmp}, s{sTmp}, s{sTmp2}
    s_add_u32 s{sTmp}, s{sTmp}, {SRC}
    v_add_u32 v{aSRC}, s{sTmp}, v{aSRC}
    s_lshl_b32 s{sTmp}, s{sTbase}, 9
    s_add_u32 s{sTmp}, s{sTmp}, {EAT}
    v_add_u32 v{aEAT}, s{sTmp}, v{aEAT}
    s_lshl_b32 s{sTmp}, s{sTbase}, 3
    s_add_u32 s{sTmp}, s{sTmp}, {XL}
    v_add_u32 v{aXL}, s{sTmp}, v{aXL}
    v_mov_b32 v{vX}, {SRC}
    v_mov_b32 v{aQ}, {SRC+192}''')
    a(f'v_mov_b32 v{S}, 0x3f80\nv_mov_b32 v{S+1}, 0\ns_mov_b32 s{sTmp}, {XL}\ns_waitcnt lgkmcnt(0)')
    for i in range(8):
        er = REC + 4 * i
        a(f'''s_mov_b64 exec, s[{sMask+2*i}:{sMask+2*i+1}]
        s_cbranch_execz kf_scend
        v_add_u32 v{RK+i}, v{RK+i}, v{TQ+i}
        v_cmp_gt_u32 vcc, s{sT0}, v{RK+i}
        v_lshrrev_b32 v{T2}, 2, v{RK+i}
        v_and_b32 v{T0}, 12, v{RK+i}
        v_cndmask_b32 v{T1}, v{aQ}, v{vX}, vcc
        v_add_u32 v{T2}, s{sTmp}, v{T2}
        v_lshl_add_u32 v{T1}, v{RK+i}, 1, v{T1}
        v_lshlrev_b32 v{T0}, 2, v{T0}
        ds_write_b16 v{T1}, v{er+2}
        ds_write_b8 v{T2}, v{DL4+i}
        v_lshl_add_u32 v{RK+i}, v{RK+i}, 4, s{sEAT}
        v_lshlrev_b64 {vr(er+2,2)}, v{T0}, {vr(S,2)}
        ds_write_b128 v{RK+i}, {vr(er,4)}''')
    a.label('kf_scend')
    a('s_mov_b64 exec, -1')
    a(f's_waitcnt vmcnt(0)\ns_cmp_lg_u32 s{sRdone}, 0\ns_cbranch_scc1 kf_now1\ns_waitcnt lgkmcnt(4)')
    w1reads(9, aB)
    a.label('kf_now1')
    a(f'''s_cmp_lg_u32 s{sBok}, 0
    s_cbranch_scc1 kf_nopeek
    v_and_b32 v{IDX3}, v{IDX3}, v{IDX3+1}
    v_and_b32 v{IDX3+2}, v{IDX3+2}, v{IDX3+3}
    v_and_b32 v{IDX3}, v{IDX3}, v{IDX3+2}
    v_cmp_eq_u32 vcc, 1, v{IDX3}
    s_cmp_eq_u64 vcc, -1
    s_cbranch_scc0 kf_nopeek
    {INV}
    s_mov_b32 s{sBok}, 1''')
    a.label('kf_nopeek')
    a(f's_cmp_lg_u32 s{sBok}, 0\ns_cbranch_scc1 kf_bdone')
    poll(WS_FLAG + 8192, 'kf_pollB', TQ + 4)
    a(f'{INV}\ns_mov_b32 s{sBok}, 1\ns_waitcnt vmcnt(0)')
    a.label('kf_bdone')
    for x in (MA, MA + 1, MB, MB + 1, S, S + 1): a(f'v_mov_b32 v{x}, 0')
    for d in range(4): a(f'v_mov_b32 v{IDX3+2*d+1}, v{IDX+2*d+1}')
    a(f'v_mov_b32 v{T3}, v{aB}\ns_waitcnt lgkmcnt(0)\ns_barrier')
    vm.ops = []
    stampat(3)
    DOFF = [0, 4, 16, 20]
    def idx_reads(base, toff):
        return [f'ds_read_u16 v{base+2*d}, v{aSRC} offset:{toff*64+DOFF[d]}' for d in range(4)]
    def dma_ins(base, d, tag):
        vm.issue(tag)
        return f'buffer_load_dwordx4 {vr(base+2*d,2)}, s[{sP}:{sP+3}], 0 idxen offen offset:{d*1024} lds'
    for x in idx_reads(IDX1, 0) + idx_reads(IDX2, 1): a(x)
    a(f's_mov_b32 m0, s{sRing}\ns_waitcnt lgkmcnt(4)')
    for d in range(4): a(dma_ins(IDX1, d, 'dma0'))
    a(f's_cmp_lg_u32 s{sRdone}, 0\ns_cbranch_scc1 kf_now2')
    w1reads(10, T3)
    a('s_waitcnt lgkmcnt(4)')
    w1reads(8, T3)
    a('s_waitcnt lgkmcnt(0)')
    sv_ = list(vm.ops)
    stage(11)
    vm.ops = sv_
    a.label('kf_now2')
    D1 = int(opt.get('d1pos', -1))
    a('s_waitcnt lgkmcnt(0)')
    def dma1():
        a(f's_add_u32 m0, s{sRing}, 4096\ns_nop 0')
        for d in range(4): a(dma_ins(IDX2, d, 'dma1'))
    if D1 < 0: dma1()
    stampat(4)
    def gemm(acc, frag, addr, wregs, first, waitv, hook=None):
        def rd(s):
            for rt in range(3):
                f = frag + (s & 1) * 12 + rt * 4
                a(f'ds_read_b128 {vr(f,4)}, v{addr+(s&3)} offset:{rt*8192+(s>>2)*256}')
        rd(0)
        for s in range(8):
            if s + 1 < 8:
                rd(s + 1); w = 'lgkmcnt(3)'
            else: w = 'lgkmcnt(0)'
            wv = waitv(s)
            a((wv + ' ' + w) if wv else 's_waitcnt ' + w)
            if hook: hook(s)
            for rt in range(3):
                for c in range(2):
                    d = acc[rt * 2 + c]; f = frag + (s & 1) * 12 + rt * 4
                    cin = '0' if (first and s == 0) else vr(d, 4)
                    a(f'v_mfma_f32_16x16x32_bf16 {vr(d,4)}, {vr(f,4)}, {vr(wregs(s*2+c),4)}, {cin}')
    def xaddr(dst, t0, t1):
        a(f'''v_and_b32 v{t0}, 15, v{vLane}
        v_lshrrev_b32 v{t1}, 4, v{vLane}
        v_xor_b32 v{t1}, v{t1}, v{t0}
        v_lshlrev_b32 v{t1}, 4, v{t1}
        v_lshl_add_u32 v{t0}, v{t0}, 9, v{t1}
        v_add_u32 v{dst}, {XT}, v{t0}''')
        for s_ in range(1, 4):
            a(f'v_xor_b32 v{t1}, {s_<<6}, v{t0}\nv_add_u32 v{dst+s_}, {XT}, v{t1}')
    if D1 >= 0:
        a(f's_cmp_eq_u32 s{sRdone}, 0\ns_cbranch_scc1 kf_dor')
        sv_ = list(vm.ops); dma1(); vm.ops = sv_
        a('s_branch kf_nor')
        a.label('kf_dor')
    else: a(f's_cmp_lg_u32 s{sRdone}, 0\ns_cbranch_scc1 kf_nor')
    xaddr(RK, T0, T1)
    def hook(s_):
        if s_ == D1: dma1()
        if s_ == 5:
            a('s_waitcnt vmcnt(4)')
            w1reads(11, T3)
            a('s_waitcnt lgkmcnt(8)')
    gemm([OA + 4 * i for i in range(6)], REC, RK, lambda i: W1F[i], True, lambda s_: None, hook)
    a(f'''s_mov_b32 s{sRdone}, 1
    v_mov_b32 v{T0}, {HMAX+8}
    v_mov_b32 v{T1}, 1
    s_mov_b64 exec, 1
    ds_add_u32 v{T0}, v{T1}
    s_mov_b64 exec, -1''')
    for i in range(4): a(f'v_mov_b32 v{XR+i}, v{RK+i}')
    a(f'''v_and_b32 v{T0}, 31, v{vLane}
    s_lshl_b32 s{sTmp2}, s{sG}, 3
    v_add_u32 v{T0}, s{sTmp2}, v{T0}
    v_and_b32 v{T2}, 15, v{T0}
    s_lshl_b32 s{sTmp2}, s{sCQ}, 3
    v_xor_b32 v{T2}, s{sTmp2}, v{T2}
    v_lshlrev_b32 v{T2}, 4, v{T2}
    v_lshl_add_u32 v{T2}, v{T0}, 9, v{T2}
    v_lshrrev_b32 v{T1}, 5, v{vLane}
    v_lshl_add_u32 v{T2}, v{T1}, 3, v{T2}
    v_add_u32 v{XR+4}, {XT}, v{T2}
    v_and_b32 v{T0}, 15, v{vLane}
    v_lshrrev_b32 v{T1}, 4, v{vLane}
    v_and_b32 v{T2}, 2, v{vLane}
    v_lshlrev_b32 v{T0}, 2, v{T0}
    v_cmp_eq_u32 vcc, 0, v{T2}
    v_lshl_add_u32 v{XR+6}, v{T1}, 11, v{T0}
    v_mov_b32 v{T0}, 0x05040100
    v_mov_b32 v{T1}, 0x07060302
    v_cndmask_b32 v{XR+5}, v{T1}, v{T0}, vcc
    v_mov_b32 v{XR+7}, {HMAX+8}
    v_mov_b32 v{vMX}, 0''')
    a.label('kf_nor')
    a(f'''v_and_b32 v{T0}, 31, v{vLane}
    s_lshl_b32 s{sTmp2}, s{sG}, 3
    v_add_u32 v{T0}, s{sTmp2}, v{T0}
    v_cmp_gt_u32 vcc, s{sSplit}, v{T0}
    s_cmp_eq_u32 s{sG}, 0
    s_cselect_b64 s[{sNM}:{sNM+1}], 0, -1
    s_xor_b64 s[{sNM}:{sNM+1}], s[{sNM}:{sNM+1}], vcc''')
    for x in range(4): a(f'v_mov_b32 v{NF+x}, 0\nv_mov_b32 v{DF+x}, 1.0')
    stampat(5)
    a(f'''s_cmp_eq_u32 s{sT}, 0
    s_cbranch_scc1 k2_loopend
    ds_read_u8 v{vX}, v{aXL}
    s_mov_b64 exec, s[{sHM}:{sHM+1}]
    ds_read_b128 {vr(A2,4)}, v{aEAT}
    s_mov_b64 exec, -1''')
    a(vm.wait('dma0'))
    a(f'''ds_read_b128 {vr(PA,4)}, v{aP}
    ds_read_b128 {vr(PA+4,4)}, v{aP+1}
    ds_read_b128 {vr(PB,4)}, v{aP+2}
    ds_read_b128 {vr(PB+4,4)}, v{aP+3}
    s_waitcnt lgkmcnt(5)
    v_mad_u32_u24 v{aQ}, v{vX}, s{sQs}, v{cQ}
    v_mad_u32_u24 v{aS}, v{vX}, s{sOs}, v{cS}
    ds_read_u8 v{vX}, v{aXL} offset:8
    ds_read_b64_tr_b16 {vr(B2A+2,2)}, v{aQ}
    ds_read_b64_tr_b16 {vr(B2B+2,2)}, v{aQ} offset:64''')
    for x in idx_reads(IDX3, 2) + idx_reads(IDX, 3): a(x)
    a(f's_sub_u32 s{sCnt}, s{sT}, 1\ns_waitcnt lgkmcnt(9)')
    def zchain(D, B2, P):
        return [f'v_mfma_f32_32x32x16_bf16 {vr(D,16)}, {vr(A2,4)}, {vr(B2,4)}, 0',
                f'v_mfma_f32_32x32x16_bf16 {vr(D,16)}, {vr(P,4)}, {vr(I0,4)}, {vr(D,16)}',
                f'v_mfma_f32_32x32x16_bf16 {vr(D,16)}, {vr(P+4,4)}, {vr(I1,4)}, {vr(D,16)}']
    for m in zchain(DA, B2A, PA): a(m)
    if prio == 'young': a(f's_cmp_eq_u32 s{sG}, 0\ns_cbranch_scc1 k2_noprio\ns_setprio 1\nk2_noprio:')
    a('s_nop 7\ns_nop 3')
    stampat(6)

    cur = {'pT': None, 'pP': None, 'safe': bool(opt.get('allsafe'))}
    maxops = [f'v_max3_f32 v{vMX}, v{vMX}, v{DF}, v{DF+1}', f'v_max3_f32 v{vMX}, v{vMX}, v{DF+2}, v{DF+3}'][:2 if opt.get('noshare') else 1]
    def half(D, accprev, Mprev, Mfin, zc, extra_T, extra_P):
        sh = not cur['safe'] and not opt.get('noshare')
        Ts = [f'v_exp_f32 v{EE+i}, v{D+i}' for i in range(16)] + [f'v_rcp_f32 v{DF+i}, v{DF+i}' for i in range(2 if sh else 4)]
        cuts = [0, 4, 8, 12, 18] if sh else [0, 5, 10, 15, 20]
        if not cur['safe']:
            extra_T = dict(extra_T)
            extra_T[2] = extra_T.get(2, []) + maxops
        mf = [f'v_mfma_f32_32x32x8_bf16 {vr(accprev,16)}, {vr(Mprev,2)}, {vr(S,2)}, {vr(accprev,16)}'] + zc
        if cur['pT'] is not None: a(f's_setprio {cur["pT"]}')
        LEAD = int(opt.get('lead', 0))
        for t_ in Ts[:LEAD]: a(t_)
        a('s_waitcnt lgkmcnt(0)')
        Ts = [None] * LEAD + Ts[LEAD:]
        for k in range(4):
            if k == 0 and cur.get('first'):
                lab = cur['first']
                a(f's_cmp_lg_u32 s{sAcc}, 0\ns_cbranch_scc1 {lab}_a')
                a(f'v_mfma_f32_32x32x8_bf16 {vr(accprev,16)}, {vr(Mprev,2)}, {vr(S,2)}, 0')
                a.label(lab + '_a')
                continue_T = True
                for x in extra_T.get(k, []): a(x)
                for t_ in Ts[cuts[k]:cuts[k + 1]]:
                    if t_: a(t_)
                continue
            a(mf[k])
            for x in extra_T.get(k, []): a(x)
            for t_ in Ts[cuts[k]:cuts[k + 1]]:
                if t_: a(t_)
        if cur['pP'] is not None: a(f's_setprio {cur["pP"]}')
        bs = [0, 4, 8, 12]
        fin = [f'v_pk_mul_f32 {pr(NF)}, {pr(NF)}, {pr(DF)}', f'v_pk_mul_f32 {pr(NF+2)}, {pr(NF+2)}, {pr(DF if sh else DF+2)}']
        cvt = [f'v_cvt_pk_bf16_f32 v{Mfin}, v{NF}, v{NF+1}', f'v_cvt_pk_bf16_f32 v{Mfin+1}, v{NF+2}, v{NF+3}']
        if cur['safe']:
            Ps = [f'v_pk_fma_f32 {pr(EE+2*p)}, {pr(EE+2*p)}, s[{sC}:{sC+1}], s[{sC}:{sC+1}] clamp' for p in range(8)]
            Ps += fin
            Ps += [f'v_pk_mul_f32 {pr(D+b)}, {pr(D+b)}, {pr(EE+b+2)}' for b in bs]
            Ps += cvt
            Ps += [f'v_pk_fma_f32 {pr(D+b)}, {pr(D+b+2)}, {pr(EE+b)}, {pr(D+b)}' for b in bs]
            Ps += [f'v_pk_mul_f32 {pr(EE+b)}, {pr(EE+b)}, {pr(EE+b+2)}' for b in bs]
        else:
            Ps = [f'v_pk_add_f32 {pr(EE+b+2)}, {pr(EE+b+2)}, 1.0 op_sel_hi:[1,0]' for b in bs]
            Ps += fin
            Ps += [f'v_pk_fma_f32 {pr(D+b)}, {pr(D+b)}, {pr(EE+b+2)}, {pr(D+b+2)}' for b in bs]
            Ps += cvt
            Ps += [f'v_pk_fma_f32 {pr(D+b)}, {pr(D+b+2)}, {pr(EE+b)}, {pr(D+b)}' for b in bs]
            Ps += [f'v_pk_fma_f32 {pr(EE+b)}, {pr(EE+b)}, {pr(EE+b+2)}, {pr(EE+b+2)}' for b in bs]
        Ps += [f'v_pk_mul_f32 {pr(NF+2*B)}, {pr(D+8*B)}, {pr(EE+8*B+4)}' for B in range(2)]
        Ps += [f'v_pk_mul_f32 {pr(DF+2*B)}, {pr(EE+8*B)}, {pr(EE+8*B+4)}' for B in range(2)]
        Ps += [f'v_pk_fma_f32 {pr(NF+2*B)}, {pr(D+8*B+4)}, {pr(EE+8*B)}, {pr(NF+2*B)}' for B in range(2)]
        if sh:
            Ps += [f'v_pk_mul_f32 {pr(NF)}, {pr(NF)}, {pr(DF+2)}', f'v_pk_mul_f32 {pr(NF+2)}, {pr(NF+2)}, {pr(DF)}',
                   f'v_pk_mul_f32 {pr(DF)}, {pr(DF)}, {pr(DF+2)}']
        nP = len(Ps)
        remap = {}
        for i in sorted(extra_P): remap.setdefault(min(i * nP // 30, nP - 1), []).extend(extra_P[i])
        for i, p in enumerate(Ps):
            for x in remap.get(i, []):
                a(x() if callable(x) else x)
            a(p)
    def spread(d, xs, start, step=1):
        for i, x in enumerate(xs):
            d.setdefault(start + i * step, []).extend(x if isinstance(x, list) else [x])
    wsched = [('u2', i) for i in range(16)]
    NPEEL = int(opt.get('npeel', 6))
    per = {6: [0, 3, 3, 3, 3, 4], 3: [4, 6, 6]}[NPEEL]
    def iteration(tau, u, peeled):
        sl = (u + 1) % 3
        eT = {3: [f'v_mad_u32_u24 v{aQ}, v{vX}, s{sQs}, v{cQ}', f'v_mad_u32_u24 v{aS+sl}, v{vX}, s{sOs}, v{cS}']}
        eP = {}
        spread(eP, [(lambda: vm.wait(f'dma{tau+1}')) if peeled else 's_waitcnt vmcnt(4)',
              f'ds_read_b128 {vr(PA,4)}, v{aP} offset:{sl*4096}', f'ds_read_b128 {vr(PA+4,4)}, v{aP+1} offset:{sl*4096}',
              f'ds_read_b64_tr_b16 {vr(B2A+2,2)}, v{aQ}',
              [f's_mov_b64 exec, s[{sHM}:{sHM+1}]', f'ds_read_b128 {vr(A2,4)}, v{aEAT} offset:{(u+1)*512}', 's_mov_b64 exec, -1'],
              f's_add_u32 m0, s{sRing}, {u*4096}'], 1)
        if peeled and tau == 0:
            eP[6] = [f's_add_u32 m0, s{sRing}, 8192']
            spread(eP, [(lambda d=d: dma_ins(IDX3, d, 'dma2')) for d in range(4)], 7, 3)
            eP.setdefault(18, []).append(f's_mov_b32 m0, s{sRing}')
            spread(eP, [(lambda d=d: dma_ins(IDX, d, 'dma3')) for d in range(4)], 19, 3)
        else:
            spread(eP, [(lambda d=d: dma_ins(IDX, d, f'dma{tau+3}')) for d in range(4)], int(opt.get('d0', 8)), int(opt.get('ds', 7)))
        cur['first'] = f'kf_f{cur["g"]}A' if (peeled and tau == 0) else None
        half(DA, ACCA, MA, MB, zchain(DB, B2B, PB), eT, eP)
        eP = {}
        xs = [f'ds_read_b128 {vr(PB,4)}, v{aP+2} offset:{sl*4096}', f'ds_read_b128 {vr(PB+4,4)}, v{aP+3} offset:{sl*4096}',
              f'ds_read_b64_tr_b16 {vr(B2B+2,2)}, v{aQ} offset:64', f'ds_read_b64_tr_b16 {vr(S,2)}, v{aS+u}',
              f'ds_read_u8 v{vX}, v{aXL} offset:{(u+2)*8}'] + idx_reads(IDX, u + 4)
        spread(eP, xs, int(opt.get('x0', 1)), int(opt.get('xs', 2)))
        if peeled and not opt.get('nowpf') and cur['g'] != 'S':
            k0 = sum(per[:tau])
            for j, (m, i) in enumerate(wsched[k0:k0 + per[tau]]):
                def f(m=m, i=i):
                    ins = wload(WB2 + 4 * i, 2, i, 'wu')
                    return '\n'.join(ins)
                eP.setdefault(18 + 2 * j, []).append(f)
            if tau == NPEEL - 1: eP.setdefault(28, []).append(f's_mov_b32 s{sWdone}, 1')
        if u == 2:
            eP.setdefault(29, []).extend([f'v_add_u32 v{aSRC}, 192, v{aSRC}', f'v_add_u32 v{aEAT}, 1536, v{aEAT}', f'v_add_u32 v{aXL}, 24, v{aXL}'])
        eP.setdefault(29, []).append(f's_sub_u32 s{sCnt}, s{sCnt}, 1')
        cur['first'] = f'kf_f{cur["g"]}B' if (peeled and tau == 0) else None
        if cur['first']: eP.setdefault(27, []).append(f's_mov_b32 s{sAcc}, 1')
        half(DB, ACCB, MB, MA, zchain(DA, B2A, PA), {}, eP)
    spec = {'P': '01', 'none': 'xx', 'young': 'xx'}.get(prio, prio).split('|')
    saved = list(vm.ops)
    a(f's_cmp_lg_u32 s{sSafe}, 0\ns_cbranch_scc1 k2_safe')
    if len(spec) > 1: a(f's_cmp_lg_u32 s{sG}, 0\ns_cbranch_scc1 k2_g1')
    for g, sp in enumerate(spec):
        vm.ops = list(saved)
        sp = sp.split(',')
        def setp(k):
            x = sp[k % len(sp)]
            cur['pT'] = None if x[0] == 'x' else int(x[0]); cur['pP'] = None if x[1] == 'x' else int(x[1])
        cur['g'] = g
        if g: a.label('k2_g1')
        for tau in range(NPEEL):
            setp(tau)
            iteration(tau, tau % 3, True)
            a('s_cbranch_scc1 k2_drain')
        a.label(f'k2_loop{g}')
        for u in range(3):
            setp(u)
            iteration(100 + u, u, False)
            a('s_cbranch_scc1 k2_drain' if u < 2 else f's_cbranch_scc0 k2_loop{g}')
        if g + 1 < len(spec): a('s_branch k2_drain')
    a.label('k2_drain')
    a('s_setprio 0\ns_waitcnt lgkmcnt(0)')
    for x in maxops: a(x)
    a(f'v_mfma_f32_32x32x8_bf16 {vr(ACCA,16)}, {vr(MA,2)}, {vr(S,2)}, {vr(ACCA,16)}')
    if not opt.get('noshare'):
        a(f's_cmp_lg_u32 s{sSafe}, 0\ns_cbranch_scc1 kf_dr4\nv_mov_b32 v{DF+2}, v{DF}\nv_mov_b32 v{DF+3}, v{DF+1}')
        a.label('kf_dr4')
    for i in range(4): a(f'v_rcp_f32 v{DF+i}, v{DF+i}')
    a('s_nop 0')
    for i in range(4): a(f'v_mul_f32 v{NF+i}, v{NF+i}, v{DF+i}')
    a(f'''v_cvt_pk_bf16_f32 v{MB}, v{NF}, v{NF+1}
    v_cvt_pk_bf16_f32 v{MB+1}, v{NF+2}, v{NF+3}
    s_nop 1
    v_mfma_f32_32x32x8_bf16 {vr(ACCB,16)}, {vr(MB,2)}, {vr(S,2)}, {vr(ACCB,16)}''')
    a.label('k2_loopend')
    stampat(7)
    a(f'''s_cmp_eq_u32 s{sHeavy}, 0
    s_cbranch_scc1 k2_epi
    s_add_u32 s{sB}, s{sB}, 1''')
    a.label('k2_fetch')
    a(f'''s_waitcnt vmcnt(0) lgkmcnt(0)
    s_barrier
    s_cmp_ge_u32 s{sB}, s{sHeavy}
    s_cbranch_scc1 k2_epi
    s_lshl_b32 s{sTmp}, s0, 2
    buffer_load_dword v{TQ}, v{vNOVF}, {WS}, s{sTmp} offen sc1
    v_and_b32 v{T1}, 1, v0
    s_lshl_b32 s{sTmp}, s{sB}, 1
    v_add_u32 v{T1}, s{sTmp}, v{T1}
    s_waitcnt vmcnt(0)
    v_and_b32 v{T0}, 0xffff, v{TQ}
    v_lshrrev_b32 v{TQ}, 16, v{TQ}
    v_add_u32 v{T0}, v{T0}, v{T1}
    v_cmp_lt_u32 s[{sMask}:{sMask+1}], v{T1}, v{TQ}
    v_lshl_add_u32 v{T0}, v{T0}, 4, v{vNOVF}
    buffer_load_dwordx3 {vr(REC,3)}, v{T0}, {WS}, 0 offen offset:1024 sc1''')
    for i in range(1, 8): a(f's_mov_b64 s[{sMask+2*i}:{sMask+2*i+1}], 0')
    a(f's_mov_b64 s[{sOv}:{sOv+1}], 0\ns_waitcnt vmcnt(0)\ns_branch k2_batch')
    a.label('k2_redo')
    a(f's_mov_b32 s{sSafe}, 1\ns_mov_b32 s{sAcc}, 0\ns_mov_b32 s{sB}, 0')
    a.label('k2_hentry')
    a(f'''s_waitcnt vmcnt(0) lgkmcnt(0)
    s_lshl_b32 s{sTmp}, s0, 2
    buffer_load_dword v{TQ}, v{vNOVF}, {WS}, s{sTmp} offen sc1
    v_mov_b32 v{T0}, {HMAX}
    v_mov_b32 v{T1}, 1
    ds_write_b32 v{T0}, v{T1}
    s_waitcnt vmcnt(0) lgkmcnt(0)
    s_barrier
    v_lshrrev_b32 v{TQ}, 16, v{TQ}
    v_add_u32 v{TQ}, 1, v{TQ}
    v_lshrrev_b32 v{TQ}, 1, v{TQ}
    ds_max_u32 v{T0}, v{TQ}
    s_waitcnt lgkmcnt(0)
    s_barrier
    ds_read_b32 v{T1}, v{T0}
    s_waitcnt lgkmcnt(0)
    v_readfirstlane_b32 s{sHeavy}, v{T1}
    s_branch k2_fetch''')
    a.label('k2_epi')
    vm.ops = []
    a(f's_waitcnt vmcnt(0)\ns_cmp_lg_u32 s{sWdone}, 0\ns_cbranch_scc1 k2_wok')
    for (m, i) in wsched:
        for x in wload(WB2 + 4 * i, 2, i, 'c'): a(x)
    a('s_waitcnt vmcnt(0)')
    a.label('k2_wok')
    Y0, Y1, Y2, Y3 = X0, X0 + 1, X0 + 2, X0 + 3
    a(f'''s_mov_b32 s{sSv}, {hex(f2u(-LN2))}
    s_mov_b32 s{sSv+1}, {hex(f2u(-LN2 * 2.0**-30))}
    s_cmp_lg_u32 s{sSafe}, 0
    s_cselect_b32 s{sSv}, s{sSv+1}, s{sSv}
    s_mov_b32 s{sSv+1}, s{sSv}
    s_cbranch_scc1 kf_noflag
    v_cmp_lt_f32 vcc, 0x5d800000, v{vMX}
    s_cbranch_vccz kf_noflag
    v_mov_b32 v{Y0}, 1
    ds_write_b32 v{XR+7}, v{Y0} offset:4
    kf_noflag:
    s_cmp_lg_u32 s{sAcc}, 0
    s_cbranch_scc1 kf_accok''')
    for i in range(32): a(f'v_mov_b32 v{ACCA+i}, 0')
    a.label('kf_accok')
    a(f'''ds_read_b32 v{Y0}, v{XR+7}
    s_waitcnt lgkmcnt(0)
    v_readfirstlane_b32 s{sTmp}, v{Y0}
    s_cmp_lt_u32 s{sTmp}, 8
    s_cbranch_scc1 kf_accok
    s_mov_b64 exec, s[{sNM}:{sNM+1}]''')
    Y2 = XR + 4
    for q in range(8):
        a(f'''v_pk_mul_f32 {pr(ACCA+4*q)}, {pr(ACCA+4*q)}, s[{sSv}:{sSv+1}]
        v_pk_mul_f32 {pr(ACCA+4*q+2)}, {pr(ACCA+4*q+2)}, s[{sSv}:{sSv+1}]''')
        if q: a(f'v_xor_b32 v{Y3}, {q<<4}, v{Y2}')
        a(f'''v_cvt_pk_bf16_f32 v{ACCA+4*q}, v{ACCA+4*q}, v{ACCA+4*q+1}
        v_cvt_pk_bf16_f32 v{ACCA+4*q+1}, v{ACCA+4*q+2}, v{ACCA+4*q+3}
        ds_write_b64 v{Y3 if q else Y2}, {vr(ACCA+4*q,2)}''')
    a('s_mov_b64 exec, -1')
    EA_ = XR; Y2 = XR + 6; Y3 = XR + 5
    a(f'''s_lshl_b32 s{sTmp2}, s{sN0}, 9
    s_lshl_b32 s{sTmp}, s{sWV}, 6
    s_add_u32 s{sTmp2}, s{sTmp2}, s{sTmp}
    s_waitcnt lgkmcnt(0)''')
    stampat(8)
    a(f's_barrier\nds_read_b32 v{Y0}, v{XR+7} offset:4')
    Z = DA
    def silu_ops(rt):
        b = OA + rt * 8
        ops = [f'v_mul_f32 v{Z+p}, s{sC}, v{b+p}' for p in range(8)]
        ops += [f'v_exp_f32 v{Z+p}, v{Z+p}' for p in range(8)]
        ops += [f'v_add_f32 v{Z+p}, 1.0, v{Z+p}' for p in range(8)]
        ops += [f'v_rcp_f32 v{Z+p}, v{Z+p}' for p in range(8)]
        ops += [f'v_mul_f32 v{Z+p}, v{b+p}, v{Z+p}' for p in range(8)]
        for rr in range(4):
            ops.append(f'v_cvt_pk_bf16_f32 v{Z+8+rr}, v{Z+rr}, v{Z+4+rr}')
        for rr in range(4):
            ops.append(f'v_mov_b32_dpp v{Z+rr}, v{Z+8+rr} quad_perm:[0,2,0,2] row_mask:0xf bank_mask:0xf')
        for rr in range(4):
            ops.append(f'v_mov_b32_dpp v{Z+4+rr}, v{Z+8+rr} quad_perm:[1,3,1,3] row_mask:0xf bank_mask:0xf')
        for rr in range(4):
            ops.append(f'v_perm_b32 v{Z+8+rr}, v{Z+4+rr}, v{Z+rr}, v{Y3}')
        for rr in range(4):
            if rt == 2 and rr == 3:
                ops.append(f's_cmp_eq_u32 s{sNN}, 40\ns_cselect_b32 exec_lo, -1, 0xffff')
            ops.append(f'buffer_store_dword v{Z+8+rr}, v{Y2}, s[{sO}:{sO+3}], s{sTmp2} offen offset:{rr*512}' + opt.get('outst', ' sc1'))
        ops.append(f's_add_u32 s{sTmp2}, s{sTmp2}, 8192')
        return ops
    seq = [(rt, s) for rt in range(3) for s in range(8)]
    def ard(k):
        rt, s = seq[k]
        a(f'ds_read_b128 {vr(AF+4*(k%6),4)}, v{EA_+(s&3)} offset:{rt*8192+(s>>2)*256}')
    for k in range(5): ard(k)
    a(f'''s_waitcnt lgkmcnt(5)
    v_readfirstlane_b32 s{sTmp}, v{Y0}
    s_cmp_gt_u32 s{sTmp}, s{sSafe}
    s_cbranch_scc1 k2_redo
    s_mov_b32 s{sC}, {hex(f2u(-LOG2E))}''')
    pend = []
    for k, (rt, s) in enumerate(seq):
        if k + 5 < 24: ard(k + 5)
        a(f's_waitcnt lgkmcnt({min(5, 23-k)})')
        for c in range(2):
            d = OA + (rt * 2 + c) * 4
            a(f'v_mfma_f32_16x16x32_bf16 {vr(d,4)}, {vr(AF+4*(k%6),4)}, {vr(WB2+4*(2*s+c),4)}, {vr(d,4)}')
            if s >= 1 or c == 1:
                n = 5 if s >= 1 else 0
                for x in pend[:n]: a(x)
                pend = pend[n:]
        if s == 7:
            for x in pend: a(x)
            pend = silu_ops(rt)
    if opt.get('oldtail'):
        a('s_mov_b32 exec_hi, 0\ns_nop 6')
        for x in pend: a(x)
    else:
        b = OA + 16
        a(f's_mov_b32 s{sC+1}, {hex(f2u(-LOG2E))}\ns_mov_b32 s{sSv}, 1.0\ns_mov_b32 s{sSv+1}, 1.0\ns_nop 4')
        for rr in range(4): a(f'v_permlane32_swap_b32 v{b+rr}, v{b+4+rr}')
        a('s_nop 0')
        for p in range(2): a(f'v_pk_mul_f32 {pr(Z+2*p)}, {pr(b+2*p)}, s[{sC}:{sC+1}]')
        for p in range(4): a(f'v_exp_f32 v{Z+p}, v{Z+p}')
        for p in range(2): a(f'v_pk_add_f32 {pr(Z+2*p)}, {pr(Z+2*p)}, s[{sSv}:{sSv+1}]')
        for p in range(4): a(f'v_rcp_f32 v{Z+p}, v{Z+p}')
        for p in range(2): a(f'v_pk_mul_f32 {pr(Z+2*p)}, {pr(b+2*p)}, {pr(Z+2*p)}')
        for rr in range(4): a(f'v_mov_b32 v{Z+4+rr}, v{Z+rr}')
        a('s_nop 0')
        for rr in range(4): a(f'v_permlane32_swap_b32 v{Z+rr}, v{Z+4+rr}')
        a('s_mov_b32 exec_hi, 0')
        for x in pend[40:]: a(x)
    if stamp:
        stampat(9)
        a(f's_mov_b64 exec, 1\ns_waitcnt lgkmcnt(0)')
        a(f's_lshl_b32 s{sTmp}, s2, 3\ns_add_u32 s{sTmp}, s{sTmp}, s{sWV}\ns_lshl_b32 s{sTmp}, s{sTmp}, 6\ns_add_u32 s{sTmp}, s{sTmp}, {WS_END - WS_CELLS}\nv_mov_b32 v{Y0}, 0')
        for i in range(10):
            a(f'v_mov_b32 v{Y1}, s{sStamp+2*i}\nbuffer_store_dword v{Y1}, v{Y0}, {WS}, s{sTmp} offen offset:{4*i}')
        a(f'v_mov_b32 v{Y1}, s{sT}\nbuffer_store_dword v{Y1}, v{Y0}, {WS}, s{sTmp} offen offset:40')
        a(f'v_mov_b32 v{Y1}, s{sPoll}\nbuffer_store_dword v{Y1}, v{Y0}, {WS}, s{sTmp} offen offset:44')
    if opt.get('diagpad'):
        a(f's_add_u32 s94, s94, {int(opt["diagpad"])}')
        a.label('kf_diag')
        a('s_memrealtime s[92:93]\ns_waitcnt lgkmcnt(0)\ns_sub_u32 s92, s92, s94\ns_cmp_lt_i32 s92, 0\ns_cbranch_scc1 kf_diag')
    a.label('k2_done')
    a('s_endpgm')
    vm.ops = list(saved)
    cur.update({'pT': None, 'pP': None, 'safe': True, 'g': 'S'})
    a.label('k2_safe')
    iteration(0, 0, True)
    a('s_cbranch_scc1 k2_drain')
    a.label('k2_loopS')
    for u in (1, 2, 0):
        iteration(100 + u, u, False)
        a('s_cbranch_scc1 k2_drain' if u != 0 else 's_cbranch_scc0 k2_loopS')
    a('s_branch k2_drain')
    return kd(KNAME, 256, 102)
```

```python
from common import *
FCH = 625; CST = 11264
WS_CELLS = 5242880
WS_WF = WS_CELLS + 256 * CST
WS_FLAG = WS_WF + 131072
WS_END = WS_FLAG + 16384
KNAME = 'standalone__mpnn_edge_mlp__graph_kernel'
POLL_LIMIT = 40000
K2_GRID = NB
NT = 29
QT = 98304; QSTR = 576
OH = QT + 41 * QSTR; OSTR = 80
XT = QT + 40 * QSTR + 4096
EAT = XT + 20480
CNT = EAT + NT * 512
SRC = CNT + 256
XL = SRC + (NT + 7) * 64
K2_LDS = 163840
assert XL + 256 <= K2_LDS
C30 = 0x30800000

class R:
    def __init__(self, start): self.n = start
    def get(self, k=1, align=1):
        self.n = (self.n + align - 1) // align * align
        r = self.n; self.n += k; return r

def vr(r, k): return f'v[{r}:{r+k-1}]' if k > 1 else f'v{r}'
def pr(x): return f'v[{x}:{x+1}]'

def gen_kf(a, opt):
    stamp = opt.get('stamp')
    prio = opt.get('prio', '02,02,13|13,13,02')
    vm = VM()
    INV = 'buffer_inv sc1' if opt.get('inv') else ''
    LD = ' sc1' if opt.get('ldsc1', '0') == '1' else ''
    CS = opt.get('cellst', ' sc1')
    r = R(1)
    vLane = r.get(); vNOVF = r.get(); vL16 = r.get()
    aSRC = r.get(); aEAT = r.get(); aXL = r.get(); cQ = r.get(); cS = r.get(); vX = r.get(); aQ = r.get()
    aS = r.get(3); aP = r.get(4)
    IDX = r.get(8, 2)
    A2 = r.get(4, 2); B2A = r.get(4, 2); B2B = r.get(4, 2)
    S = r.get(2, 2); MA = r.get(2, 2); MB = r.get(2, 2)
    ACCA = r.get(16, 2); ACCB = r.get(16, 2)
    DA = r.get(16, 2); DB = r.get(16, 2)
    EE = r.get(16, 2); NF = r.get(4, 2); DF = r.get(4, 2)
    PA = r.get(8, 2); PB = r.get(8, 2); I0 = r.get(4, 2); I1 = r.get(4, 2)
    WB2 = r.get(64, 2)
    XR = r.get(12, 2)
    OA = r.get(24, 2)
    assert r.n <= 256, r.n
    W1F = [NF + 4 * i for i in range(6)] + [WB2 + 36 + 4 * i for i in range(10)]
    aW = None
    assert PB + 8 == NF + 24 and WB2 + 36 + 40 == OA
    t = R(WB2)
    REC = DB
    assert EE == DB + 16
    RK = t.get(8, 2); TQ = t.get(8, 2); DL4 = t.get(8, 2)
    T0 = t.get(); T1 = t.get(); T2 = t.get(); T3 = t.get()
    IDX3 = t.get(8, 2)
    HMAX = XL + 256
    vMX = XR + 8
    IDX1 = DA; IDX2 = DA + 8
    AF = PA
    X0 = DB + 12
    EA_ = IDX

    sP = 20; sX = 24; sE = 28; sWS = 32; sM = 36; sO = 24
    sWV = 44; sG = 45; sCQ = 46; sHeavy = 47; sB = 48; sPoll = 49; sSplit = 50; sT = 51; sTbase = 52
    sRing = 53; sCnt = 54; sTmp = 55; sTmp2 = 56; sTmp3 = 57; sC = 58
    sMask = 4
    sQs = 68; sOs = 69; sT0 = 70; sT1 = 71; sQt = 72; sWdone = 73; sSv = 74
    sStamp = 76
    sHM = 96; sN0 = 98; sWF = 99; sNN = 3; sBok = 100; sOv = 28; sRdone = 30; sEAT = 31; sAcc = 38; sNM = 36; sSafe = 39; sD = 60; sPw = 64

    names = (stamp if stamp and stamp != '1' else '0,1,2,3,4,5,6,7,8,9').split(',')
    def stampat(nm):
        nm = str(nm)
        if stamp:
            if nm in names:
                i = names.index(nm)
                a(f's_memrealtime s[{sStamp+2*i}:{sStamp+2*i+1}]')
            if nm == '6': a('s_memtime s[100:101]\ns_waitcnt lgkmcnt(0)\ns_mov_b32 s{}, s100'.format(sPoll))
            if nm == '7': a('s_memtime s[100:101]\ns_waitcnt lgkmcnt(0)\ns_sub_u32 s{0}, s100, s{0}'.format(sPoll))
    WS = f's[{sWS}:{sWS+3}]'
    def wload(dst, mat, i, tag):
        off = i * 1024
        ins = [f's_add_u32 s{sTmp3}, s{sWF}, {off & ~4095}',
               f'buffer_load_dwordx4 {vr(dst,4)}, v{vL16}, {WS}, s{sTmp3} offen offset:{off & 4095}']
        vm.issue(tag)
        return ins

    a.raw(f'.globl {KNAME}\n.p2align 8\n.type {KNAME},@function')
    a.label(KNAME)
    a(f's_cmp_ge_u32 s2, {K2_GRID}\ns_cbranch_scc1 k2_done')
    stampat(0)
    if opt.get('diagpad'): a('s_memrealtime s[94:95]')
    eD = 26; eS = 36; eA = 46; eR = 66; eB = 76
    PD = 26; RL = 50; W3 = 58; TOUCH = 86; CT = 58
    UQ = 92; vW = 100; aA = 104; U0 = 108; U1 = 109; U2 = 110; U3 = 111; vW1 = 112; PR0 = 113; PR1 = 114; PG0 = 115; PG1 = 116; aW3 = 117
    vDB = 252; aTO = 253; aB = 90
    BF = NF; AX = WB2
    assert BF == 124 and BF + 32 == WB2 and WB2 + 96 <= 256 and REC == 92
    W3L = QT + 24576
    SW = 1
    TAB = QT; RIMG = QT + 1024; CNTA = QT + 12288
    sS = 20; sDs = 28; sEs = 36; sU = 40
    sWm = 68
    sEM = 76 if not stamp else 8
    a(f'''s_load_dwordx4 s[12:15], s[0:1], 32
    s_load_dwordx4 s[8:11], s[0:1], 16
    s_load_dwordx4 s[4:7], s[0:1], 0
    s_load_dwordx4 s[16:19], s[0:1], 48
    s_load_dwordx2 s[{sWS}:{sWS+1}], s[0:1], 64
    v_lshrrev_b32 v{U0}, 6, v0
    v_and_b32 v{vLane}, 63, v0
    v_readfirstlane_b32 s{sWV}, v{U0}
    v_lshlrev_b32 v{vL16}, 4, v{vLane}
    s_cmp_lg_u32 s{sWV}, 3
    s_cbranch_scc1 kf_noct
    s_getpc_b64 s[{sSv}:{sSv+1}]
    kf_pc:
    s_and_b32 s{sTmp3}, s2, 0xf8
    s_lshl_b32 s{sTmp3}, s{sTmp3}, 7
    s_min_u32 s{sTmp3}, s{sTmp3}, k2_done-kf_pc-1024
    s_add_u32 s{sSv}, s{sSv}, s{sTmp3}
    s_addc_u32 s{sSv+1}, s{sSv+1}, 0
    global_load_dwordx4 {vr(CT,4)}, v{vL16}, s[{sSv}:{sSv+1}]
    kf_noct:
    v_lshlrev_b32 v{U3}, 4, v0
    s_mul_i32 s{sN0}, s2, 625
    s_bfe_u32 s{sTmp3}, s2, 0x50003
    s_lshl_b32 s{sTmp3}, s{sTmp3}, 13
    s_lshl_b32 s{sT}, s{sN0}, 2
    s_lshl_b32 s{sTbase}, s{sN0}, 3
    s_and_b32 s{sPoll}, s2, 7
    s_lshl_b32 s{sPoll}, s{sPoll}, 5
    s_lshr_b32 s{sTmp}, s2, 3
    s_or_b32 s{sPoll}, s{sPoll}, s{sTmp}
    s_mul_i32 s{sN0}, s{sPoll}, 625
    s_add_u32 s{sNN}, s{sN0}, {625+15}
    s_add_u32 s{sN0}, s{sN0}, 15
    s_lshr_b32 s{sN0}, s{sN0}, 4
    s_lshr_b32 s{sNN}, s{sNN}, 4
    s_sub_u32 s{sNN}, s{sNN}, s{sN0}
    s_lshr_b32 s{sG}, s{sWV}, 2
    s_and_b32 s{sCQ}, s{sWV}, 3
    s_lshl_b32 s{sWF}, s{sWV}, 14
    s_add_u32 s{sWF}, s{sWF}, {WS_WF - WS_CELLS}
    v_lshrrev_b32 v{U0}, 5, v{vLane}
    v_and_b32 v{U1}, 31, v{vLane}
    s_lshl_b32 s{sTmp}, s{sWV}, 1
    v_xor_b32 v{U2}, v{U1}, v{U0}
    v_xor_b32 v{U2}, s{sTmp}, v{U2}
    v_lshlrev_b32 v{U2}, 4, v{U2}
    v_lshl_add_u32 v{U2}, v{U0}, 9, v{U2}
    v_xor_b32 v{vW1}, s{sWV}, v{U1}
    v_lshlrev_b32 v{vW1}, 4, v{vW1}
    s_waitcnt lgkmcnt(0)
    s_mov_b32 s0, s{sPoll}''')
    a(f'''s_cmp_lg_u32 s{sWV}, {SW}
    s_cbranch_scc1 kf_noedge
    s_setprio 3
    v_mul_u32_u24 v{U0}, 40, v{vLane}
    v_mul_u32_u24 v{U1}, 80, v{vLane}''')
    srd(a, sDs, 10, E * 4)
    a(f'''buffer_load_dwordx4 {vr(eD,4)}, v{U0}, s[{sDs}:{sDs+3}], s{sT} offen
    buffer_load_dwordx4 {vr(eD+4,4)}, v{U0}, s[{sDs}:{sDs+3}], s{sT} offen offset:16
    buffer_load_dwordx2 {vr(eD+8,2)}, v{U0}, s[{sDs}:{sDs+3}], s{sT} offen offset:32''')
    srd(a, sS, 8, E * 4)
    a(f'''buffer_load_dwordx4 {vr(eS,4)}, v{U0}, s[{sS}:{sS+3}], s{sT} offen
    buffer_load_dwordx4 {vr(eS+4,4)}, v{U0}, s[{sS}:{sS+3}], s{sT} offen offset:16
    buffer_load_dwordx2 {vr(eS+8,2)}, v{U0}, s[{sS}:{sS+3}], s{sT} offen offset:32''')
    srd(a, sEs, 6, E * 8)
    for k in range(5): a(f'buffer_load_dwordx4 {vr(eA+4*k,4)}, v{U1}, s[{sEs}:{sEs+3}], s{sTbase} offen offset:{16*k}')
    a.label('kf_noedge')
    a(f'''s_add_u32 s{sPw}, s{sWS}, {WS_P}
    s_addc_u32 s{sPw+1}, s{sWS+1}, 0
    s_and_b32 s{sPw+1}, s{sPw+1}, 0xffff
    s_mov_b32 s{sPw+2}, {N*512}
    s_mov_b32 s{sPw+3}, 0x20000
    s_add_u32 s{sWS}, s{sWS}, {WS_CELLS}
    s_addc_u32 s{sWS+1}, s{sWS+1}, 0
    s_and_b32 s{sWS+1}, s{sWS+1}, 0xffff
    s_mov_b32 s{sWS+2}, {WS_END - WS_CELLS + (1 << 20 if stamp else 0)}
    s_mov_b32 s{sWS+3}, 0x20000''')
    srd(a, sD, 18, 256)
    a(f'''s_cmp_lg_u32 s2, 0
    s_cbranch_scc1 kf_noinit
    v_mov_b32 v{BF}, 0
    v_mov_b32 v{BF+1}, 0
    v_mov_b32 v{BF+2}, 0
    v_mov_b32 v{BF+3}, 0
    s_mov_b32 s{sTmp}, {WS_FLAG - WS_CELLS}
    s_add_u32 s{sTmp2}, s{sTmp}, 8192
    buffer_store_dwordx4 {vr(BF,4)}, v{U3}, {WS}, s{sTmp} offen sc1
    buffer_store_dwordx4 {vr(BF,4)}, v{U3}, {WS}, s{sTmp2} offen sc1''')
    a.label('kf_noinit')
    vm.issue('edge')
    vm.ops = vm.ops
    srd(a, sWm, 12, 516 * 512)
    a(f'buffer_load_dwordx4 {vr(TOUCH,4)}, v{U3}, s[{sWm}:{sWm+3}], s{sTmp3} offen')
    vm.issue('touch')
    srd(a, sU, 14, 512 * 512)
    a(f'''s_cmp_lt_u32 s{sWV}, 4
    s_cbranch_scc1 kf_nt2
    s_lshr_b32 s{sTmp}, s{sTmp3}, 1
    s_lshl_b32 s{sTmp2}, s{sCQ}, 10
    s_add_u32 s{sTmp}, s{sTmp}, s{sTmp2}
    buffer_load_dwordx4 {vr(eD,4)}, v{vL16}, s[{sU}:{sU+3}], s{sTmp} offen''')
    a.label('kf_nt2')
    a(f'''s_cmp_lg_u32 s{sWV}, 6
    s_cbranch_scc1 kf_now3
    s_mov_b32 m0, {W3L}
    s_mov_b32 s{sTmp}, {512*512}
    buffer_load_dwordx4 v{vL16}, s[{sWm}:{sWm+3}], s{sTmp} offen lds
    buffer_load_dwordx4 v{vL16}, s[{sWm}:{sWm+3}], s{sTmp} offen offset:1024 lds''')
    a.label('kf_now3')
    srd(a, sX, 4, N * 512)
    a(f'''s_lshl_b32 s{sTmp}, s{sN0}, 9
    s_lshl_b32 s{sTmp2}, s{sWV}, 10
    s_add_u32 s{sTmp3}, s{sTmp}, s{sTmp2}
    s_add_u32 m0, s{sTmp2}, {XT}
    s_lshl_b32 s{sCnt}, s{sWV}, 9
    buffer_load_dwordx4 v{U2}, s[{sX}:{sX+3}], s{sTmp3} offen lds
    s_add_u32 m0, s{sTmp2}, {XT+8192}
    s_add_u32 s{sTmp3}, s{sTmp3}, 8192
    buffer_load_dwordx4 v{U2}, s[{sX}:{sX+3}], s{sTmp3} offen lds
    s_add_u32 m0, s{sCnt}, {XT+16384}
    s_add_u32 s{sTmp}, s{sTmp}, s{sCnt}
    s_add_u32 s{sTmp}, s{sTmp}, 16384
    s_mov_b32 exec_hi, 0
    buffer_load_dwordx4 v{vW1}, s[{sX}:{sX+3}], s{sTmp} offen lds
    s_mov_b32 exec_hi, -1''')
    for _ in range(3): vm.issue('x')
    stampat('a')
    a(f'''v_mov_b32 v{UQ+4}, 0
    v_mov_b32 v{UQ+5}, 0
    v_mov_b32 v{UQ+6}, 0
    v_mov_b32 v{UQ+7}, 0
    v_add_u32 v{U1}, {CNTA}, v{vL16}
    s_cmp_lg_u32 s{sWV}, {SW}
    s_cbranch_scc1 kf_nocz
    ds_write_b128 v{U1}, {vr(UQ+4,4)}
    v_mov_b32 v{U1}, {HMAX+8}
    ds_write_b64 v{U1}, {vr(UQ+4,2)}''')
    a.label('kf_nocz')
    nz = (NT * 512 + 256 - 8192) // 16; nf = (NT + 7) * 64 // 16; nx = 16
    def list_prefill(Z, F, t0, t1):
        a(f'''v_lshlrev_b32 v{t0}, 4, v0
        v_add_u32 v{t0}, {EAT}, v{t0}
        v_mov_b32 v{t1}, 0xa0a0a0a0
        ds_write_b128 v{t0}, {vr(Z,4)}
        v_cmp_gt_u32 vcc, {nz}, v0
        s_and_saveexec_b64 s[{sSv}:{sSv+1}], vcc
        ds_write_b128 v{t0}, {vr(Z,4)} offset:8192
        s_mov_b64 exec, -1
        v_cmp_gt_u32 vcc, {nf}, v0
        s_mov_b32 s{sWdone}, 0
        s_nop 0
        v_cndmask_b32 v{F}, v{t1}, -1, vcc
        v_cmp_gt_u32 vcc, {nf+nx}, v0
        v_mov_b32 v{F+1}, v{F}
        v_mov_b32 v{F+2}, v{F}
        v_mov_b32 v{F+3}, v{F}
        s_and_saveexec_b64 s[{sSv}:{sSv+1}], vcc
        ds_write_b128 v{t0}, {vr(F,4)} offset:{SRC-EAT}
        s_mov_b64 exec, -1''')
    stampat('b')
    a(f'''v_lshrrev_b32 v{U0}, 5, v{vLane}
    v_and_b32 v{U1}, 3, v{vLane}
    v_lshlrev_b32 v{U0}, 1, v{U0}
    v_xor_b32 v{U0}, v{U0}, v{U1}
    v_lshrrev_b32 v{U1}, 2, v{vLane}
    v_lshlrev_b32 v{U1}, 9, v{U1}
    v_lshl_add_u32 v{U0}, v{U0}, 4, v{U1}
    s_lshl_b32 s{sTmp}, s{sWV}, 6
    v_add_u32 v{vW}, s{sTmp}, v{U0}
    v_add_u32 v{vW+1}, 7168, v{vW}
    v_add_u32 v{vW+2}, 14336, v{vW}
    v_add_u32 v{vW+3}, 21504, v{vW}
    s_mul_i32 s{sRing}, s{sWV}, 12288''')
    def stage(i):
        a(f's_add_u32 m0, s{sRing}, {(i % 3) * 4096}\ns_mov_b32 s{sTmp3}, {(i & 7) * 32768}')
        sr = sWm if i < 8 else sU
        for t_ in range(4):
            a(f'buffer_load_dwordx4 v{(vW if i < 8 else XR + 8)+t_}, s[{sr}:{sr+3}], s{sTmp3} offen offset:{t_*1024} lds')
            vm.issue(f'st{i}')
    a(f'''v_and_b32 v{U0}, 15, v{vLane}
    v_lshrrev_b32 v{U1}, 4, v{vLane}
    v_xor_b32 v{U2}, v{U1}, v{U0}
    v_lshlrev_b32 v{U2}, 4, v{U2}
    v_lshl_add_u32 v{U0}, v{U0}, 9, v{U2}
    v_add_u32 v{aA}, {XT}, v{U0}''')
    for s_ in range(1, 4):
        a(f'v_xor_b32 v{U2}, {s_<<6}, v{U0}\nv_add_u32 v{aA+s_}, {XT}, v{U2}')
    a(f'''v_bfe_u32 v{U0}, v{vLane}, 2, 2
    v_lshl_add_u32 v{U0}, v{U1}, 3, v{U0}
    v_and_b32 v{U2}, 1, v{U1}
    v_lshlrev_b32 v{U2}, 5, v{U2}
    v_and_b32 v{U3}, 3, v{vLane}
    v_lshl_add_u32 v{U2}, v{U3}, 3, v{U2}
    v_lshl_add_u32 v{U2}, v{U0}, 6, v{U2}
    v_add_u32 v{aB}, s{sRing}, v{U2}
    v_xor_b32 v{aB+1}, 32, v{aB}
    v_mov_b32 v{U3}, 1''')
    list_prefill(UQ + 4, BF + 4, U0, U1)
    NPRE = int(opt.get('npre', 1))
    NPRE2 = int(opt.get('npre2', NPRE))
    for i in range(NPRE): stage(i)
    stampat('y')
    def early_consts(T0, T1, T2, T3):
        a(f'''v_lshrrev_b32 v{T2}, 5, v{vLane}
        v_and_b32 v{T3}, 31, v{vLane}
        v_bfe_u32 v{T0}, v{T3}, 2, 1
        v_cmp_eq_u32 s[{sHM}:{sHM+1}], v{T0}, v{T2}
        v_bfe_u32 v{T0}, v{T3}, 1, 3
        v_xor_b32 v{T0}, v{T0}, v{T2}
        v_lshlrev_b32 v{T0}, 4, v{T0}
        v_lshl_add_u32 v{T0}, v{T3}, 7, v{T0}
        v_add_u32 v{aP}, s{sRing}, v{T0}
        v_xor_b32 v{aP+1}, 32, v{aP}
        v_xor_b32 v{aP+2}, 64, v{aP}
        v_xor_b32 v{aP+3}, 96, v{aP}
        v_and_b32 v{T0}, 7, v{vLane}
        v_lshrrev_b32 v{T1}, 4, v{vLane}
        v_xor_b32 v{T0}, v{T0}, v{T1}
        s_lshl_b32 s{sTmp}, s{sCQ}, 7
        v_lshl_add_u32 v{T0}, v{T0}, 4, s{sTmp}
        v_xor_b32 v{IDX+7}, 64, v{T0}
        v_add_u32 v{IDX+1}, 3072, v{T0}
        v_add_u32 v{IDX+3}, 2048, v{IDX+7}
        v_add_u32 v{IDX+5}, 1024, v{T0}
        v_bfe_u32 v{T0}, v{vLane}, 4, 1
        v_and_b32 v{T1}, 3, v{vLane}
        v_lshlrev_b32 v{T1}, 3, v{T1}
        v_lshl_add_u32 v{T0}, v{T0}, 5, v{T1}
        s_add_u32 s{sTmp}, s{sTmp}, {QT}
        v_add_u32 v{cQ}, s{sTmp}, v{T0}
        s_lshl_b32 s{sTmp}, s{sG}, 4
        s_add_u32 s{sTmp}, s{sTmp}, {OH}
        v_add_u32 v{cS}, s{sTmp}, v{T0}
        s_mov_b32 s{sC}, {hex(C30)}
        s_mov_b32 s{sC+1}, {hex(C30)}''')
    def list_consts(T0, T1, T2, T3):
        a(f'''v_bfe_u32 v{T0}, v{vLane}, 5, 1
        v_bfe_u32 v{T1}, v{vLane}, 3, 1
        v_bfe_u32 v{T2}, v{vLane}, 4, 1
        v_lshlrev_b32 v{aSRC}, 5, v{T0}
        v_lshl_add_u32 v{aSRC}, v{T1}, 3, v{aSRC}
        v_lshl_add_u32 v{aSRC}, v{T2}, 1, v{aSRC}
        v_bfe_u32 v{T3}, v{vLane}, 2, 2
        v_lshl_add_u32 v{aXL}, v{T0}, 2, v{T3}
        v_and_b32 v{T3}, 1, v{T3}
        v_lshl_add_u32 v{aEAT}, v{T3}, 1, v{T2}
        v_and_b32 v{T0}, 1, v{vLane}
        v_lshl_add_u32 v{aEAT}, v{aEAT}, 1, v{T0}
        v_lshl_add_u32 v{aEAT}, v{aEAT}, 1, v{T1}
        v_bfe_u32 v{T0}, v{vLane}, 1, 1
        v_lshl_add_u32 v{aEAT}, v{aEAT}, 1, v{T0}
        v_lshlrev_b32 v{aEAT}, 4, v{aEAT}''')
    TOUCH_T = 118
    def hoisted():
        early_consts(U0, U1, U2, TOUCH_T)
        list_consts(U0, U1, U2, TOUCH_T)
        a(f'''v_lshrrev_b32 v{U0}, 4, v{vLane}
    v_mul_u32_u24 v{U0}, {4*QSTR}, v{U0}
    v_and_b32 v{U1}, 15, v{vLane}
    v_lshl_add_u32 v{U0}, v{U1}, 2, v{U0}
    s_lshl_b32 s{sTmp2}, s{sWV}, 6
    s_add_u32 s{sTmp2}, s{sTmp2}, {QT}
    v_add_u32 v{aTO}, s{sTmp2}, v{U0}
    v_lshrrev_b32 v{U0}, 5, v{vLane}
    v_and_b32 v{PG1}, 31, v{vLane}
    v_lshlrev_b32 v{PG1}, 4, v{PG1}
    v_lshl_add_u32 v{PG0}, v{U0}, 9, v{PG1}
    v_mul_u32_u24 v{U0}, {QSTR}, v{U0}
    v_add_u32 v{U0}, v{U0}, v{PG1}
    s_mul_i32 s{sTmp}, s{sWV}, {2*QSTR}
    s_add_u32 s{sTmp}, s{sTmp}, {QT}
    v_add_u32 v{PR0}, s{sTmp}, v{U0}
    s_mul_i32 s{sTmp}, s{sWV}, {QSTR}
    s_add_u32 s{sTmp}, s{sTmp}, {QT + 32*QSTR}
    v_add_u32 v{PR1}, s{sTmp}, v{PG1}
    v_bfe_u32 v{U0}, v{vLane}, 1, 4
    v_and_b32 v{U1}, 1, v{vLane}
    v_lshlrev_b32 v{U0}, 1, v{U0}
    v_lshl_add_u32 v{U0}, v{U1}, 5, v{U0}
    s_lshl_b32 s{sTmp}, s{sCQ}, 7
    s_add_u32 s{sTmp}, s{sTmp}, {W3L}
    v_add_u32 v{aW3}, s{sTmp}, v{U0}
    v_lshrrev_b32 v{U0}, 1, v0
    v_mul_u32_u24 v{vNOVF}, {CST}, v{U0}''')
    hoisted()
    dpp = ['row_shr:1 row_mask:0xf bank_mask:0xf', 'row_shr:2 row_mask:0xf bank_mask:0xf', 'row_shr:4 row_mask:0xf bank_mask:0xf',
           'row_shr:8 row_mask:0xf bank_mask:0xf', 'row_bcast:15 row_mask:0xa bank_mask:0xf', 'row_bcast:31 row_mask:0xc bank_mask:0xf']
    a(f'''s_cmp_lg_u32 s{sWV}, {SW}
    s_cbranch_scc1 kf_nohist
    s_movk_i32 s{sTmp}, 625
    s_mov_b32 exec_hi, 0x7fffffff''')
    a(f's_waitcnt vmcnt({vm.count_after("edge") + 8})')
    stampat('z')
    for i in range(10):
        a(f'''v_mul_u32_u24 v{eB+i}, 429497, v{eD+i}
        v_lshrrev_b32 v{eB+i}, 24, v{eB+i}
        v_mad_u32_u24 v{U0}, v{eB+i}, s{sTmp}, 15
        v_lshlrev_b32 v{eB+i}, 2, v{eB+i}
        v_add_u32 v{eB+i}, {CNTA}, v{eB+i}''')
        if i == 5: a('s_mov_b32 exec_hi, 0x3fffffff')
        a(f'''ds_add_rtn_u32 v{eR+i}, v{eB+i}, v{U3}
        v_lshrrev_b32 v{U0}, 4, v{U0}
        v_sub_u32 v{eD+i}, v{eD+i}, v{U0}''')
    a(f'''s_mov_b32 exec_hi, -1
    v_add_u32 v{U0}, {CNTA}, v{vL16}
    ds_read_b128 {vr(UQ,4)}, v{U0}''')
    a(f's_waitcnt vmcnt({vm.count_after("edge") + 5})')
    for i in range(10): a(f'v_lshl_or_b32 v{eS+i}, v{eD+i}, 16, v{eS+i}')
    a(f'''s_waitcnt lgkmcnt(0)
    v_add_u32 v{UQ+5}, v{UQ}, v{UQ+1}
    v_add_u32 v{UQ+6}, v{UQ+5}, v{UQ+2}
    v_add_u32 v{U1}, v{UQ+6}, v{UQ+3}
    v_mov_b32 v{U2}, v{U1}
    s_nop 1''')
    for k, d in enumerate(dpp):
        a(f'v_add_u32_dpp v{U2}, v{U2}, v{U2} {d}' + (' bound_ctrl:0' if k < 4 else '') + '\ns_nop 1')
    a(f'''v_sub_u32 v{UQ+4}, v{U2}, v{U1}
    v_add_u32 v{UQ+7}, v{UQ+6}, v{UQ+4}
    v_add_u32 v{UQ+6}, v{UQ+5}, v{UQ+4}
    v_add_u32 v{UQ+5}, v{UQ}, v{UQ+4}
    ds_write_b128 v{U0}, {vr(UQ+4,4)} offset:1024''')
    for i in range(10): a(f'ds_read_b32 v{eD+i}, v{eB+i} offset:1024')
    a(f'''v_lshl_or_b32 v{UQ+4}, v{UQ}, 16, v{UQ+4}
    v_lshl_or_b32 v{UQ+5}, v{UQ+1}, 16, v{UQ+5}
    v_lshl_or_b32 v{UQ+6}, v{UQ+2}, 16, v{UQ+6}
    v_lshl_or_b32 v{UQ+7}, v{UQ+3}, 16, v{UQ+7}
    v_subrev_u32 v{U0}, {CNTA-TAB}, v{U0}
    s_mov_b32 s{sTmp}, {RIMG}
    s_mov_b32 exec_hi, 0x7fffffff''')
    a(vm.wait('edge'))
    for i in range(10):
        if i == 5: a('s_mov_b32 exec_hi, 0x3fffffff')
        a(f'''s_waitcnt lgkmcnt({min(9, 9 - i + 2 * i)})
        v_add_u32 v{eD+i}, v{eD+i}, v{eR+i}
        v_lshl_add_u32 v{eD+i}, v{eD+i}, 4, s{sTmp}
        ds_write_b64 v{eD+i}, {vr(eA+2*i,2)}
        ds_write_b32 v{eD+i}, v{eS+i} offset:8''')
    a(f'''s_mov_b32 exec_hi, -1
    ds_write_b128 v{U0}, {vr(UQ+4,4)}
    s_setprio 0''')
    a.label('kf_nohist')
    for i in range(NPRE, NPRE2): stage(i)
    a(vm.wait('x') + ' lgkmcnt(0)')
    a('s_barrier')
    stampat('c')
    axr = [f'ds_read_b128 {vr(AX+(s_*3+rt)*4,4)}, v{aA+(s_&3)} offset:{rt*8192+(s_>>2)*256}' for s_ in range(8) for rt in range(3)]
    a(f'''s_or_b32 s{sTmp}, s2, s{sWV}
    s_cbranch_scc1 kf_noset
    v_mov_b32 v{U0}, 1
    v_mov_b32 v{U1}, 0
    s_mov_b64 exec, 1
    buffer_store_dword v{U0}, v{U1}, s[{sD}:{sD+3}], 0 offen sc1
    s_mov_b64 exec, -1''')
    a.label('kf_noset')
    axr = [f'ds_read_b128 {vr(AX+(s_*3+rt)*4,4)}, v{aA+(s_&3)} offset:{rt*8192+(s_>>2)*256}' for s_ in range(8) for rt in range(3)]
    AXE = not opt.get('axlate')
    a(f'''v_lshlrev_b32 v{U3}, 4, v0
    v_add_u32 v{U0}, {TAB}, v{U3}
    ds_read_b128 {vr(UQ,4)}, v{U0}
    ds_read_b128 {vr(UQ+4,4)}, v{U0} offset:8192''')
    if AXE:
        for x in axr[:12]: a(x)
    LA = int(opt.get('la', 3))
    for i in range(NPRE2, LA): stage(i)
    stampat('A')
    RSA = opt.get('rsafter')
    def rstores():
        a(f'''s_mul_i32 s{sT}, s2, {CST}
        s_add_u32 s{sTbase}, s{sT}, 8192
        s_cmp_gt_u32 s{sWV}, 2
        s_cbranch_scc1 kf_nost2
        buffer_store_dwordx4 {vr(UQ+4,4)}, v{U3}, {WS}, s{sTbase} offen{CS}''')
        a.label('kf_nost2')
        a(f'buffer_store_dwordx4 {vr(UQ,4)}, v{U3}, {WS}, s{sT} offen{CS}')
        vm.issue('cells')
    if not RSA:
        a('s_waitcnt lgkmcnt(0)')
        rstores()
    stampat('E')
    a(f'''s_cmp_lg_u32 s{sWV}, 0
    s_cbranch_scc1 kf_nodb
    v_mov_b32 v{vDB}, 0
    buffer_load_dword v{vDB}, v{vDB}, s[{sD}:{sD+3}], 0 offen sc1''')
    a.label('kf_nodb')
    a(f'''s_cmp_lg_u32 s{sWV}, 7
    s_cbranch_scc1 kf_norl
    s_cmp_ge_u32 s2, 128
    s_cbranch_scc1 kf_norl
    v_lshrrev_b32 v{U0}, 4, v{vLane}
    v_lshlrev_b32 v{U0}, 11, v{U0}
    v_bfe_u32 v{U1}, v{vLane}, 2, 2
    v_lshl_add_u32 v{U0}, v{U1}, 4, v{U0}
    v_and_b32 v{U1}, 3, v{vLane}
    v_lshl_add_u32 v{U0}, v{U1}, 1, v{U0}
    s_bfe_u32 s{sTmp}, s2, 0x30001
    s_lshl_b32 s{sTmp2}, s{sTmp}, 14
    s_add_u32 s{sTmp2}, s{sTmp2}, {256*512}
    s_bfe_u32 s{sTmp}, s2, 0x30004
    s_lshl_b32 s{sTmp}, s{sTmp}, 6
    s_add_u32 s{sTmp2}, s{sTmp2}, s{sTmp}
    s_and_b32 s{sTmp}, s2, 1
    s_lshl_b32 s{sTmp}, s{sTmp}, 3
    s_add_u32 s{sTmp2}, s{sTmp2}, s{sTmp}
    s_add_u32 s{sTmp}, s{sTmp2}, 8192''')
    for e in range(0, 8, 2):
        a(f'''buffer_load_ushort v{RL+e}, v{U0}, s[{sU}:{sU+3}], s{sTmp2} offen offset:{(e>>1)*512}
        buffer_load_ushort v{RL+e+1}, v{U0}, s[{sU}:{sU+3}], s{sTmp} offen offset:{(e>>1)*512}''')
    a.label('kf_norl')
    stampat('B')
    def breads(i, nowait=False):
        if not nowait: a(vm.wait(f'st{i}'))
        for ks in range(2):
            for c in range(2):
                for t_ in range(2):
                    a(f'ds_read_b64_tr_b16 {vr(BF+(i&1)*16+ks*8+c*4+t_*2,2)}, v{aB+c} offset:{(i%3)*4096+(32*ks+4*t_)*64}')
    def compute(i, nowait=False):
        a('s_waitcnt lgkmcnt(0)')
        if opt.get('stfirst') and i + 3 < 8: stage(i + 3)
        for ks in range(2):
            s_ = (2 * i + ks) & 7
            for rt in range(3):
                for c in range(2):
                    d = PD + (rt * 2 + c) * 4
                    cin = '0' if s_ == 0 else vr(d, 4)
                    a(f'v_mfma_f32_16x16x32_bf16 {vr(d,4)}, {vr(AX+(s_*3+rt)*4,4)}, {vr(BF+(i&1)*16+ks*8+c*4,4)}, {cin}')
                    if ks == 0 and rt == 0 and c == 1 and i + 1 < 8 and i != 3: breads(i + 1, nowait)
                    if ks == 1 and rt == 0 and c == 1 and i + LA < 8 and LA == 3: stage(i + LA)
                    if ks == 0 and rt == 0 and c == 0 and i + LA < 8 and LA == 2: stage(i + LA)
    def poll(off, lab, PR):
        a(f'''s_and_b32 s{sTmp}, s2, 7
        s_lshl_b32 s{sTmp}, s{sTmp}, 10
        s_add_u32 s{sTmp}, s{sTmp}, {off - WS_CELLS}
        s_mov_b32 s{sPoll}, {POLL_LIMIT}''')
        a.label(lab)
        a(f'''buffer_load_dwordx4 {vr(PR,4)}, v{vL16}, {WS}, s{sTmp} offen sc1
        s_waitcnt vmcnt(0)
        v_and_b32 v{PR}, v{PR}, v{PR+1}
        v_and_b32 v{PR+2}, v{PR+2}, v{PR+3}
        v_and_b32 v{PR}, v{PR}, v{PR+2}
        v_cmp_eq_u32 vcc, 1, v{PR}
        s_cmp_eq_u64 vcc, -1
        s_cbranch_scc1 {lab}_ok
        s_sleep 1
        s_sub_u32 s{sPoll}, s{sPoll}, 1
        s_cbranch_scc0 {lab}''')
        a.label(lab + '_ok')
    def tile_out():
        a(f'''s_mov_b32 s{sSv}, {hex(f2u(-LOG2E))}
        s_mov_b32 s{sSv+1}, {hex(f2u(-LOG2E))}
        s_nop 5''')
        for rt in range(3):
            if rt == 2: a('s_mov_b32 exec_hi, 0')
            for h in range(4):
                d = PD + rt * 8 + 2 * h
                a(f'v_pk_mul_f32 {pr(d)}, {pr(d)}, s[{sSv}:{sSv+1}]')
            for rr in range(4):
                d0 = PD + rt * 8 + rr
                a(f'v_cvt_pk_bf16_f32 v{d0}, v{d0}, v{d0+4}\nds_write_b32 v{aTO}, v{d0} offset:{(16*rt+rr)*QSTR}')
        a('s_mov_b32 exec_hi, -1')
    def signal(off, lab):
        a(f'''s_cmp_lg_u32 s{sWV}, 0
        s_cbranch_scc1 {lab}
        v_lshlrev_b32 v{TOUCH}, 10, v{vLane}
        v_mov_b32 v{TOUCH+1}, 1
        s_lshl_b32 s{sTmp}, s2, 2
        s_add_u32 s{sTmp}, s{sTmp}, {off - WS_CELLS}
        s_mov_b64 exec, 0xff
        buffer_store_dword v{TOUCH+1}, v{TOUCH}, {WS}, s{sTmp} offen sc1
        s_mov_b64 exec, -1''')
        a.label(lab)
    if not AXE:
        for x in axr[:12]: a(x)
        a('s_waitcnt lgkmcnt(6)')
    for ct in range(2):
        for k in range(4): a(f'ds_read_u16 v{W3+4*ct+k}, v{aW3} offset:{k*512+ct*64}')
    a('s_waitcnt lgkmcnt(2)')
    for x in axr[12:]: a(x)
    a('s_waitcnt lgkmcnt(6)')
    stampat('C')
    breads(0)
    stampat('p')
    compute(0)
    if RSA: rstores()
    stampat('d')
    compute(1); stampat('r')
    a(f's_mov_b32 s{sTmp}, {hex(f2u(-LOG2E))}')
    for k in range(8): a(f'v_lshlrev_b32 v{W3+k}, 16, v{W3+k}\nv_mul_f32 v{W3+k}, s{sTmp}, v{W3+k}')
    for p in range(4): a(f'v_cvt_pk_bf16_f32 v{W3+p}, v{W3+2*p}, v{W3+2*p+1}')
    def sigA(extra=''):
        a(vm.wait('cells'))
        a(f'''s_cmp_lg_u32 s{sWV}, 0
    s_cbranch_scc1 kf_initok
    s_mov_b32 s{sPoll}, {POLL_LIMIT}''')
        a.label('kf_initpoll')
        a(f'''v_readfirstlane_b32 s{sTmp}, v{vDB}
    s_cmp_lg_u32 s{sTmp}, 0
    s_cbranch_scc1 kf_initok
    v_mov_b32 v{vDB}, 0
    s_sleep 2
    buffer_load_dword v{vDB}, v{vDB}, s[{sD}:{sD+3}], 0 offen sc1
    s_waitcnt vmcnt(0)
    s_sub_u32 s{sPoll}, s{sPoll}, 1
    s_cbranch_scc0 kf_initpoll''')
        a.label('kf_initok')
        a(extra + 's_barrier')
        signal(WS_FLAG, 'kf_sigA')
    if not RSA: sigA()
    stampat('k')
    compute(2); stampat('s')
    compute(3); stampat('t')
    tile_out()
    if RSA: sigA('s_waitcnt lgkmcnt(0)\n')
    else: a('s_waitcnt lgkmcnt(0)\ns_barrier')
    stampat('l')
    a(f'''s_cmp_lg_u32 s{sWV}, 7
    s_cbranch_scc1 kf_norl2
    s_cmp_ge_u32 s2, 128
    s_cbranch_scc1 kf_norl2''')
    for p in range(4): a(f'v_lshl_or_b32 v{BF+16+p}, v{RL+2*p+1}, 16, v{RL+2*p}')
    a(f'''s_lshl_b32 s{sTmp}, s2, 10
    s_add_u32 s{sTmp}, s{sTmp}, {WS_WF - WS_CELLS}
    buffer_store_dwordx4 {vr(BF+16,4)}, v{vL16}, {WS}, s{sTmp} offen sc1
    s_nop 1''')
    a.label('kf_norl2')
    a(f'''ds_read_b128 {vr(UQ,4)}, v{PR0}
    ds_read_b128 {vr(UQ+4,4)}, v{PR0} offset:{16*QSTR}
    ds_read_b128 {vr(TOUCH,4)}, v{PR1}
    s_lshl_b32 s{sTmp}, s{sN0}, 9
    s_lshl_b32 s{sTmp2}, s{sWV}, 10
    s_add_u32 s{sTmp2}, s{sTmp2}, s{sTmp}
    s_lshl_b32 s{sTmp3}, s{sWV}, 9
    s_add_u32 s{sTmp}, s{sTmp}, s{sTmp3}
    s_add_u32 s{sTmp}, s{sTmp}, 16384
    s_waitcnt lgkmcnt(2)
    buffer_store_dwordx4 {vr(UQ,4)}, v{PG0}, s[{sPw}:{sPw+3}], s{sTmp2} offen{CS}
    s_add_u32 s{sTmp2}, s{sTmp2}, 8192
    s_waitcnt lgkmcnt(1)
    buffer_store_dwordx4 {vr(UQ+4,4)}, v{PG0}, s[{sPw}:{sPw+3}], s{sTmp2} offen{CS}
    s_mov_b32 exec_hi, 0
    s_waitcnt lgkmcnt(0)
    buffer_store_dwordx4 {vr(TOUCH,4)}, v{PG1}, s[{sPw}:{sPw+3}], s{sTmp} offen{CS}
    s_mov_b32 exec_hi, -1''')
    for _ in range(3): vm.issue('pst')
    def rec_loads(tab, t0, t1, lab):
        a(f'''v_and_b32 v{t1}, 1, v0
        v_and_b32 v{t0}, 0xffff, v{tab}
        v_add_u32 v{t0}, v{t0}, v{t1}
        v_lshl_add_u32 v{t0}, v{t0}, 4, v{vNOVF}
        v_lshrrev_b32 v{tab}, 16, v{tab}
        v_sub_u32 v{t1}, v{tab}, v{t1}
        v_add_u32 v{t1}, 1, v{t1}
        v_lshrrev_b32 v{t1}, 1, v{t1}''')
        for i in range(8): a(f'v_cmp_lt_u32 s[{sMask+2*i}:{sMask+2*i+1}], {i}, v{t1}')
        a(f'v_cmp_lt_u32 s[{sOv}:{sOv+1}], 8, v{t1}')
        for i in range(8):
            a(f'''s_mov_b64 exec, s[{sMask+2*i}:{sMask+2*i+1}]
            s_cbranch_execz {lab}
            buffer_load_dwordx3 {vr(REC+4*i,3)}, v{t0}, {WS}, 0 offen offset:{1024+32*i}{LD}''')
        a.label(lab)
        a('s_mov_b64 exec, -1')
    srd(a, sO, 16, N * 512)
    breads(4)
    compute(4); stampat('u')
    compute(5); stampat('v')
    a(f's_cmp_lg_u32 s{sWV}, 0\ns_cbranch_scc1 kf_pollA_ok')
    poll(WS_FLAG, 'kf_pollA', UQ)
    a(vm.wait('st7') + '\ns_barrier')
    a(f'''s_lshl_b32 s{sTmp}, s0, 2
    buffer_load_dword v{vDB}, v{vNOVF}, {WS}, s{sTmp} offen{LD}''')
    vm.issue('tab')
    signal(WS_FLAG + 8192, 'kf_sigB')
    stampat('o')
    compute(6, nowait=True); compute(7); stampat('x')
    for i in range(4): a(f'v_mov_b32 v{XR+8+i}, v{vW+i}')
    a(f'''v_and_b32 v{U0}, 3, v{vLane}
    v_lshlrev_b32 v{U0}, 3, v{U0}
    v_sub_u32 v{aB}, v{aB}, v{U0}
    v_lshlrev_b32 v{U0}, 1, v{U0}
    v_xor_b32 v{aB}, v{aB}, v{U0}''')
    a(vm.wait('tab'))
    rec_loads(vDB, TOUCH, TOUCH + 1, 'kf_recend')
    stampat('w')
    def w1reads(i, reg):
        for ks in range(2):
            for c in range(2):
                for t_ in range(2):
                    a(f'ds_read_b64_tr_b16 {vr(W1F[((i-8)*2+ks)*2+c]+2*t_,2)}, v{reg} offset:{(i%3)*4096+(32*ks+4*t_)*64+8*c}')
    tile_out()
    a(f'v_mov_b32 v{B2A}, v{W3}\nv_mov_b32 v{B2A+1}, v{W3+1}\nv_mov_b32 v{B2B}, v{W3+2}\nv_mov_b32 v{B2B+1}, v{W3+3}')
    stampat('n')
    a(f'''s_sub_u32 s{sP}, s{sPw}, 3072
    s_subb_u32 s{sP+1}, s{sPw+1}, 0
    s_or_b32 s{sP+1}, s{sP+1}, {512 << 16}
    s_mov_b32 s{sP+2}, {0 if opt.get('nogather') else N}
    s_mov_b32 s{sP+3}, 0x20000
    v_mov_b32 v{TQ}, 0
    v_mov_b32 v{TQ+1}, 0
    v_mov_b32 v{TQ+2}, 0
    v_mov_b32 v{TQ+3}, 0
    s_mov_b32 s{sHeavy}, 0
    s_mov_b32 s{sB}, 0
    s_mov_b32 s{sRdone}, 0
    s_mov_b32 s{sAcc}, 0
    s_mov_b32 s{sSafe}, {1 if opt.get('allsafe') else 0}
    s_mov_b32 s{sEAT}, {EAT}
    s_cmp_lg_u32 s{sWV}, 7
    s_cbranch_scc1 k2_nooh
    v_add_u32 v{T0}, {QT + 40*QSTR}, v{vL16}
    ds_write_b128 v{T0}, {vr(TQ,4)}
    ds_write_b128 v{T0}, {vr(TQ,4)} offset:1024
    ds_write_b128 v{T0}, {vr(TQ,4)} offset:2048
    ds_write_b128 v{T0}, {vr(TQ,4)} offset:3072
    v_mul_u32_u24 v{T0}, {OSTR+2}, v{vLane}
    v_mov_b32 v{T2}, 0x3f80
    v_add_u32 v{T0}, {OH}, v{T0}
    s_mov_b32 exec_hi, 0xff
    ds_write_b16 v{T0}, v{T2}
    s_mov_b32 exec_hi, -1''')
    a.label('k2_nooh')
    a(f's_cmp_lg_u32 s{sWV}, 0\ns_cselect_b32 s{sBok}, 1, 0\ns_branch k2_first')
    a.label('k2_batch')
    for i in range(4): a(f'v_mov_b32 v{TQ+i}, 0')
    list_prefill(TQ, DL4, T0, T1)
    list_consts(T0, T1, T2, T3)
    a('s_waitcnt lgkmcnt(0)\ns_barrier')
    a.label('k2_first')
    stampat(1)
    a(f'''v_lshrrev_b32 v{T2}, 5, v{vLane}
    v_and_b32 v{T3}, 31, v{vLane}
    v_lshlrev_b32 v{T0}, 3, v{T2}
    v_sub_u32 v{T0}, v{T3}, v{T0}
    v_mov_b32 v{T1}, 0x3f80
    v_and_b32 v{aQ}, 1, v{T0}
    v_lshlrev_b32 v{aQ}, 4, v{aQ}
    v_lshlrev_b32 v{T1}, v{aQ}, v{T1}
    v_lshrrev_b32 v{T0}, 1, v{T0}''')
    for k, reg in enumerate([I0, I0+1, I0+2, I0+3, I1, I1+1, I1+2, I1+3]):
        c = k if k < 4 else k + 4
        m = 'vcc' if k % 2 == 0 else f's[{sSv}:{sSv+1}]'
        a(f'v_cmp_eq_u32 {m}, {c}, v{T0}')
        if k:
            pk, preg = k - 1, [I0, I0+1, I0+2, I0+3, I1, I1+1, I1+2, I1+3][k-1]
            a('s_nop 0')
            a(f'v_cndmask_b32 v{preg}, 0, v{T1}, ' + ('vcc' if pk % 2 == 0 else f's[{sSv}:{sSv+1}]'))
    a(f'''v_mov_b32 v{A2}, 0
    v_mov_b32 v{A2+1}, 0
    v_cndmask_b32 v{I1+3}, 0, v{T1}, s[{sSv}:{sSv+1}]
    v_mov_b32 v{A2+2}, 0
    v_mov_b32 v{A2+3}, 0
    s_mov_b32 s{sQs}, {QSTR//4}
    s_mov_b32 s{sOs}, {OSTR//4}''')
    for d in range(4):
        a(f'v_mov_b32 v{IDX1+2*d+1}, v{IDX+2*d+1}\nv_mov_b32 v{IDX2+2*d+1}, v{IDX+2*d+1}')
    a(f'v_mov_b32 v{T3}, 1')
    stampat('e')
    a('s_waitcnt vmcnt(0)')
    stampat(2)
    for i in range(8):
        a(f'''s_mov_b64 exec, s[{sMask+2*i}:{sMask+2*i+1}]
        s_cbranch_execz kf_histend
        v_lshrrev_b32 v{DL4+i}, 14, v{REC+4*i+2}
        v_add_u32 v{T1}, {CNT}, v{DL4+i}
        ds_add_rtn_u32 v{RK+i}, v{T1}, v{T3}''')
    a(f'''s_mov_b64 exec, s[{sOv}:{sOv+1}]
    v_mov_b32 v{T1}, {CNT + 252}
    ds_add_u32 v{T1}, v{T3}''')
    a.label('kf_histend')
    a(f'''s_mov_b64 exec, -1
    v_lshlrev_b32 v{T0}, 2, v{vLane}
    v_add_u32 v{T0}, {CNT}, v{T0}
    s_waitcnt lgkmcnt(0)
    s_nop 0''')
    w1pos = opt.get('w1pos', 'r,g,r').split(',')
    def w1stage(pos):
        for i in (8, 9, 10):
            if w1pos[i - 8] == pos:
                a(f's_or_b32 s{sTmp2}, s{sHeavy}, s{sRdone}\ns_cbranch_scc1 kf_nost{i}')
                stage(i)
                a.label(f'kf_nost{i}')
    w1stage('g')
    stampat('f')
    a('s_barrier')
    stampat('g')
    a(f'ds_read_b32 v{T1}, v{T0}\nv_cmp_gt_u32 vcc, 40, v{vLane}')
    w1stage('r')
    a(f'''s_cmp_lg_u32 s{sBok}, 0
    s_cbranch_scc1 kf_nopk1
    s_and_b32 s{sTmp}, s2, 7
    s_lshl_b32 s{sTmp}, s{sTmp}, 10
    s_add_u32 s{sTmp}, s{sTmp}, {WS_FLAG + 8192 - WS_CELLS}
    buffer_load_dwordx4 {vr(IDX3,4)}, v{vL16}, {WS}, s{sTmp} offen sc1''')
    a.label('kf_nopk1')
    dpp = ['row_shr:1 row_mask:0xf bank_mask:0xf', 'row_shr:2 row_mask:0xf bank_mask:0xf', 'row_shr:4 row_mask:0xf bank_mask:0xf',
           'row_shr:8 row_mask:0xf bank_mask:0xf', 'row_bcast:15 row_mask:0xa bank_mask:0xf', 'row_bcast:31 row_mask:0xc bank_mask:0xf']
    a(f'''s_waitcnt lgkmcnt(0)
    v_readlane_b32 s{sT1}, v{T1}, 63
    v_add_u32 v{T1}, 3, v{T1}
    v_lshrrev_b32 v{T1}, 2, v{T1}
    v_cndmask_b32 v{T1}, 0, v{T1}, vcc
    v_mov_b32 v{T2}, v{T1}
    s_lshl_b32 s{sTmp3}, s{sT1}, 8
    s_nop 0''')
    for k, d in enumerate(dpp):
        a(f'v_add_u32_dpp v{T2}, v{T2}, v{T2} {d}' + (' bound_ctrl:0' if k < 4 else ''))
        a('s_nop 1' if k < 5 else 's_nop 0')
    a(f'''v_readlane_b32 s{sQt}, v{T2}, 63
    v_sub_u32 v{T1}, v{T2}, v{T1}
    v_add_u32 v{T2}, 7, v{T1}
    v_lshrrev_b32 v{T2}, 3, v{T2}
    s_add_u32 s{sTmp}, s{sQt}, 7
    v_sub_u32 v{T0}, s{sTmp}, v{T1}
    v_lshrrev_b32 v{T0}, 3, v{T0}
    v_add_u32 v{T2}, v{T2}, v{T0}
    v_lshlrev_b32 v{T0}, 1, v{T1}
    s_add_u32 s{sTmp}, s{sQt}, {int(opt.get('bias', 0))}
    v_sad_u32 v{T0}, v{T0}, s{sTmp}, 0
    v_lshl_add_u32 v{T2}, v{T2}, 5, v{T0}
    v_subrev_u32 v{T0}, 8, v{vLane}
    v_lshl_add_u32 v{T2}, v{T2}, 6, v{vLane}
    v_cmp_gt_u32 vcc, 25, v{T0}
    s_nop 1
    v_cndmask_b32 v{T2}, -1, v{T2}, vcc
    s_nop 1''')
    for k, d in enumerate(dpp):
        a(f'v_min_u32_dpp v{T2}, v{T2}, v{T2} {d}')
        a('s_nop 1' if k < 5 else 's_nop 0')
    a(f'''v_readlane_b32 s{sSplit}, v{T2}, 63
    s_and_b32 s{sSplit}, s{sSplit}, 63
    s_cmp_lg_u32 s{sHeavy}, 0
    s_cselect_b32 s{sSplit}, 20, s{sSplit}
    s_nop 0
    v_readlane_b32 s{sTmp}, v{T1}, s{sSplit}
    v_cmp_le_u32 vcc, s{sSplit}, v{vLane}
    s_add_u32 s{sT0}, s{sTmp}, 7
    s_lshr_b32 s{sT0}, s{sT0}, 3
    s_sub_u32 s{sT1}, s{sQt}, s{sTmp}
    s_add_u32 s{sT1}, s{sT1}, 7
    s_lshr_b32 s{sT1}, s{sT1}, 3
    s_add_u32 s{sTmp2}, s{sT0}, s{sT1}
    s_add_u32 s{sTmp2}, s{sTmp2}, s{sTmp3}
    s_cmp_le_u32 s{sTmp2}, {NT}
    s_cbranch_scc1 k2_fits
    s_mov_b32 s{sHeavy}, 1
    s_branch k2_hentry''')
    a.label('k2_fits')
    stampat('h')
    a(f'''s_lshl_b32 s{sTmp2}, s{sT0}, 3
    s_sub_u32 s{sTmp2}, s{sTmp2}, s{sTmp}
    v_mov_b32 v{T2}, s{sTmp2}
    v_cndmask_b32 v{T2}, 0, v{T2}, vcc
    v_add_lshl_u32 v{T1}, v{T1}, v{T2}, 2''')
    for i in range(8):
        if i in (2, 4, 6): a(f's_cmp_eq_u64 s[{sMask+2*i}:{sMask+2*i+1}], 0\ns_cbranch_scc1 kf_bpend')
        a(f'ds_bpermute_b32 v{TQ+i}, v{DL4+i}, v{T1}')
    a.label('kf_bpend')
    a(f'''s_cmp_eq_u32 s{sG}, 0
    s_cselect_b32 s{sT}, s{sT0}, s{sT1}
    s_cselect_b32 s{sTbase}, 0, s{sT0}
    s_cselect_b32 s{sTmp2}, 0, 192
    s_lshl_b32 s{sT0}, s{sT0}, 5
    s_lshl_b32 s{sTmp}, s{sTbase}, 6
    s_add_u32 s{sTmp}, s{sTmp}, s{sTmp2}
    s_add_u32 s{sTmp}, s{sTmp}, {SRC}
    v_add_u32 v{aSRC}, s{sTmp}, v{aSRC}
    s_lshl_b32 s{sTmp}, s{sTbase}, 9
    s_add_u32 s{sTmp}, s{sTmp}, {EAT}
    v_add_u32 v{aEAT}, s{sTmp}, v{aEAT}
    s_lshl_b32 s{sTmp}, s{sTbase}, 3
    s_add_u32 s{sTmp}, s{sTmp}, {XL}
    v_add_u32 v{aXL}, s{sTmp}, v{aXL}
    v_mov_b32 v{vX}, {SRC}
    v_mov_b32 v{aQ}, {SRC+192}''')
    a(f'v_mov_b32 v{S}, 0x3f80\nv_mov_b32 v{S+1}, 0\ns_mov_b32 s{sTmp}, {XL}\ns_waitcnt lgkmcnt(0)')
    for i in range(8):
        er = REC + 4 * i
        a(f'''s_mov_b64 exec, s[{sMask+2*i}:{sMask+2*i+1}]
        s_cbranch_execz kf_scend
        v_add_u32 v{RK+i}, v{RK+i}, v{TQ+i}
        v_cmp_gt_u32 vcc, s{sT0}, v{RK+i}
        v_lshrrev_b32 v{T2}, 2, v{RK+i}
        v_and_b32 v{T0}, 12, v{RK+i}
        v_cndmask_b32 v{T1}, v{aQ}, v{vX}, vcc
        v_add_u32 v{T2}, s{sTmp}, v{T2}
        v_lshl_add_u32 v{T1}, v{RK+i}, 1, v{T1}
        v_lshlrev_b32 v{T0}, 2, v{T0}
        ds_write_b16 v{T1}, v{er+2}
        ds_write_b8 v{T2}, v{DL4+i}
        v_lshl_add_u32 v{RK+i}, v{RK+i}, 4, s{sEAT}
        v_lshlrev_b64 {vr(er+2,2)}, v{T0}, {vr(S,2)}
        ds_write_b128 v{RK+i}, {vr(er,4)}''')
    a.label('kf_scend')
    a('s_mov_b64 exec, -1')
    a(f's_waitcnt vmcnt(0)\ns_cmp_lg_u32 s{sRdone}, 0\ns_cbranch_scc1 kf_now1\ns_waitcnt lgkmcnt(4)')
    w1reads(9, aB)
    a.label('kf_now1')
    a(f'''s_cmp_lg_u32 s{sBok}, 0
    s_cbranch_scc1 kf_nopeek
    v_and_b32 v{IDX3}, v{IDX3}, v{IDX3+1}
    v_and_b32 v{IDX3+2}, v{IDX3+2}, v{IDX3+3}
    v_and_b32 v{IDX3}, v{IDX3}, v{IDX3+2}
    v_cmp_eq_u32 vcc, 1, v{IDX3}
    s_cmp_eq_u64 vcc, -1
    s_cbranch_scc0 kf_nopeek
    {INV}
    s_mov_b32 s{sBok}, 1''')
    a.label('kf_nopeek')
    a(f's_cmp_lg_u32 s{sBok}, 0\ns_cbranch_scc1 kf_bdone')
    poll(WS_FLAG + 8192, 'kf_pollB', TQ + 4)
    a(f'{INV}\ns_mov_b32 s{sBok}, 1\ns_waitcnt vmcnt(0)')
    a.label('kf_bdone')
    for x in (MA, MA + 1, MB, MB + 1, S, S + 1): a(f'v_mov_b32 v{x}, 0')
    for d in range(4): a(f'v_mov_b32 v{IDX3+2*d+1}, v{IDX+2*d+1}')
    a(f'v_mov_b32 v{T3}, v{aB}\ns_waitcnt lgkmcnt(0)\ns_barrier')
    vm.ops = []
    stampat(3)
    DOFF = [0, 4, 16, 20]
    def idx_reads(base, toff):
        return [f'ds_read_u16 v{base+2*d}, v{aSRC} offset:{toff*64+DOFF[d]}' for d in range(4)]
    def dma_ins(base, d, tag):
        vm.issue(tag)
        return f'buffer_load_dwordx4 {vr(base+2*d,2)}, s[{sP}:{sP+3}], 0 idxen offen offset:{d*1024} lds'
    for x in idx_reads(IDX1, 0) + idx_reads(IDX2, 1): a(x)
    a(f's_mov_b32 m0, s{sRing}\ns_waitcnt lgkmcnt(4)')
    for d in range(4): a(dma_ins(IDX1, d, 'dma0'))
    a(f's_cmp_lg_u32 s{sRdone}, 0\ns_cbranch_scc1 kf_now2')
    w1reads(10, T3)
    a('s_waitcnt lgkmcnt(4)')
    w1reads(8, T3)
    a('s_waitcnt lgkmcnt(0)')
    sv_ = list(vm.ops)
    stage(11)
    vm.ops = sv_
    a.label('kf_now2')
    D1 = int(opt.get('d1pos', 2))
    a('s_waitcnt lgkmcnt(0)')
    def dma1():
        a(f's_add_u32 m0, s{sRing}, 4096\ns_nop 0')
        for d in range(4): a(dma_ins(IDX2, d, 'dma1'))
    if D1 < 0: dma1()
    stampat(4)
    def gemm(acc, frag, addr, wregs, first, waitv, hook=None):
        def rd(s):
            for rt in range(3):
                f = frag + (s & 1) * 12 + rt * 4
                a(f'ds_read_b128 {vr(f,4)}, v{addr+(s&3)} offset:{rt*8192+(s>>2)*256}')
        rd(0)
        for s in range(8):
            if s + 1 < 8:
                rd(s + 1); w = 'lgkmcnt(3)'
            else: w = 'lgkmcnt(0)'
            wv = waitv(s)
            a((wv + ' ' + w) if wv else 's_waitcnt ' + w)
            if hook: hook(s)
            for rt in range(3):
                for c in range(2):
                    d = acc[rt * 2 + c]; f = frag + (s & 1) * 12 + rt * 4
                    cin = '0' if (first and s == 0) else vr(d, 4)
                    a(f'v_mfma_f32_16x16x32_bf16 {vr(d,4)}, {vr(f,4)}, {vr(wregs(s*2+c),4)}, {cin}')
    def xaddr(dst, t0, t1):
        a(f'''v_and_b32 v{t0}, 15, v{vLane}
        v_lshrrev_b32 v{t1}, 4, v{vLane}
        v_xor_b32 v{t1}, v{t1}, v{t0}
        v_lshlrev_b32 v{t1}, 4, v{t1}
        v_lshl_add_u32 v{t0}, v{t0}, 9, v{t1}
        v_add_u32 v{dst}, {XT}, v{t0}''')
        for s_ in range(1, 4):
            a(f'v_xor_b32 v{t1}, {s_<<6}, v{t0}\nv_add_u32 v{dst+s_}, {XT}, v{t1}')
    if D1 >= 0:
        a(f's_cmp_eq_u32 s{sRdone}, 0\ns_cbranch_scc1 kf_dor')
        sv_ = list(vm.ops); dma1(); vm.ops = sv_
        a('s_branch kf_nor')
        a.label('kf_dor')
    else: a(f's_cmp_lg_u32 s{sRdone}, 0\ns_cbranch_scc1 kf_nor')
    xaddr(RK, T0, T1)
    def hook(s_):
        if s_ == D1: dma1()
        if s_ == 5:
            a('s_waitcnt vmcnt(4)')
            w1reads(11, T3)
            a('s_waitcnt lgkmcnt(8)')
    gemm([OA + 4 * i for i in range(6)], REC, RK, lambda i: W1F[i], True, lambda s_: None, hook)
    a(f'''s_mov_b32 s{sRdone}, 1
    v_mov_b32 v{T0}, {HMAX+8}
    v_mov_b32 v{T1}, 1
    s_mov_b64 exec, 1
    ds_add_u32 v{T0}, v{T1}
    s_mov_b64 exec, -1''')
    for i in range(4): a(f'v_mov_b32 v{XR+i}, v{RK+i}')
    a(f's_mov_b32 s{sSv}, {hex(f2u(-LOG2E))}\ns_mov_b32 s{sSv+1}, {hex(f2u(-LOG2E))}')
    a(f'''v_and_b32 v{T0}, 31, v{vLane}
    s_lshl_b32 s{sTmp2}, s{sG}, 3
    v_add_u32 v{T0}, s{sTmp2}, v{T0}
    v_and_b32 v{T2}, 15, v{T0}
    s_lshl_b32 s{sTmp2}, s{sCQ}, 3
    v_xor_b32 v{T2}, s{sTmp2}, v{T2}
    v_lshlrev_b32 v{T2}, 4, v{T2}
    v_lshl_add_u32 v{T2}, v{T0}, 9, v{T2}
    v_lshrrev_b32 v{T1}, 5, v{vLane}
    v_lshl_add_u32 v{T2}, v{T1}, 3, v{T2}
    v_add_u32 v{XR+4}, {XT}, v{T2}
    v_and_b32 v{T0}, 15, v{vLane}
    v_lshrrev_b32 v{T1}, 4, v{vLane}
    v_and_b32 v{T2}, 2, v{vLane}
    v_lshlrev_b32 v{T0}, 2, v{T0}
    v_cmp_eq_u32 vcc, 0, v{T2}
    v_lshl_add_u32 v{XR+6}, v{T1}, 11, v{T0}
    v_mov_b32 v{T0}, 0x05040100
    v_mov_b32 v{T1}, 0x07060302
    v_cndmask_b32 v{XR+5}, v{T1}, v{T0}, vcc
    v_mov_b32 v{XR+7}, {HMAX+8}
    v_mov_b32 v{vMX}, 0''')
    for i in range(12): a(f'v_pk_mul_f32 {pr(OA+2*i)}, {pr(OA+2*i)}, s[{sSv}:{sSv+1}]')
    a.label('kf_nor')
    a(f'''v_and_b32 v{T0}, 31, v{vLane}
    s_lshl_b32 s{sTmp2}, s{sG}, 3
    v_add_u32 v{T0}, s{sTmp2}, v{T0}
    v_cmp_gt_u32 vcc, s{sSplit}, v{T0}
    s_cmp_eq_u32 s{sG}, 0
    s_cselect_b64 s[{sNM}:{sNM+1}], 0, -1
    s_xor_b64 s[{sNM}:{sNM+1}], s[{sNM}:{sNM+1}], vcc''')
    for x in range(4): a(f'v_mov_b32 v{NF+x}, 0\nv_mov_b32 v{DF+x}, 1.0')
    stampat(5)
    a(f'''s_cmp_eq_u32 s{sT}, 0
    s_cbranch_scc1 k2_loopend
    ds_read_u8 v{vX}, v{aXL}
    s_mov_b64 exec, s[{sHM}:{sHM+1}]
    ds_read_b128 {vr(A2,4)}, v{aEAT}
    s_mov_b64 exec, -1''')
    a(vm.wait('dma0'))
    a(f'''ds_read_b128 {vr(PA,4)}, v{aP}
    ds_read_b128 {vr(PA+4,4)}, v{aP+1}
    ds_read_b128 {vr(PB,4)}, v{aP+2}
    ds_read_b128 {vr(PB+4,4)}, v{aP+3}
    s_waitcnt lgkmcnt(5)
    v_mad_u32_u24 v{aQ}, v{vX}, s{sQs}, v{cQ}
    v_mad_u32_u24 v{aS}, v{vX}, s{sOs}, v{cS}
    ds_read_u8 v{vX}, v{aXL} offset:8
    ds_read_b64_tr_b16 {vr(B2A+2,2)}, v{aQ}
    ds_read_b64_tr_b16 {vr(B2B+2,2)}, v{aQ} offset:64''')
    for x in idx_reads(IDX3, 2) + idx_reads(IDX, 3): a(x)
    a(f's_sub_u32 s{sCnt}, s{sT}, 1\ns_waitcnt lgkmcnt(9)')
    def zchain(D, B2, P):
        return [f'v_mfma_f32_32x32x16_bf16 {vr(D,16)}, {vr(A2,4)}, {vr(B2,4)}, 0',
                f'v_mfma_f32_32x32x16_bf16 {vr(D,16)}, {vr(P,4)}, {vr(I0,4)}, {vr(D,16)}',
                f'v_mfma_f32_32x32x16_bf16 {vr(D,16)}, {vr(P+4,4)}, {vr(I1,4)}, {vr(D,16)}']
    for m in zchain(DA, B2A, PA): a(m)
    if prio == 'young': a(f's_cmp_eq_u32 s{sG}, 0\ns_cbranch_scc1 k2_noprio\ns_setprio 1\nk2_noprio:')
    a('s_nop 7\ns_nop 3')
    stampat(6)

    cur = {'pT': None, 'pP': None, 'safe': bool(opt.get('allsafe'))}
    maxops = [f'v_max3_f32 v{vMX}, v{vMX}, v{DF}, v{DF+1}', f'v_max3_f32 v{vMX}, v{vMX}, v{DF+2}, v{DF+3}'][:2 if opt.get('noshare') else 1]
    def half(D, accprev, Mprev, Mfin, zc, extra_T, extra_P):
        sh = not cur['safe'] and not opt.get('noshare')
        Ts = [f'v_exp_f32 v{EE+i}, v{D+i}' for i in range(16)] + [f'v_rcp_f32 v{DF+i}, v{DF+i}' for i in range(2 if sh else 4)]
        cuts = [0, 4, 8, 12, 18] if sh else [0, 5, 10, 15, 20]
        if not cur['safe']:
            extra_T = dict(extra_T)
            extra_T[2] = extra_T.get(2, []) + maxops
        mf = [f'v_mfma_f32_32x32x8_bf16 {vr(accprev,16)}, {vr(Mprev,2)}, {vr(S,2)}, {vr(accprev,16)}'] + zc
        if cur['pT'] is not None: a(f's_setprio {cur["pT"]}')
        LEAD = int(opt.get('lead', 0))
        for t_ in Ts[:LEAD]: a(t_)
        a('s_waitcnt lgkmcnt(0)')
        Ts = [None] * LEAD + Ts[LEAD:]
        for k in range(4):
            if k == 0 and cur.get('first'):
                lab = cur['first']
                a(f's_cmp_lg_u32 s{sAcc}, 0\ns_cbranch_scc1 {lab}_a')
                a(f'v_mfma_f32_32x32x8_bf16 {vr(accprev,16)}, {vr(Mprev,2)}, {vr(S,2)}, 0')
                a.label(lab + '_a')
                continue_T = True
                for x in extra_T.get(k, []): a(x)
                for t_ in Ts[cuts[k]:cuts[k + 1]]:
                    if t_: a(t_)
                continue
            a(mf[k])
            for x in extra_T.get(k, []): a(x)
            for t_ in Ts[cuts[k]:cuts[k + 1]]:
                if t_: a(t_)
        if cur['pP'] is not None: a(f's_setprio {cur["pP"]}')
        bs = [0, 4, 8, 12]
        fin = [f'v_pk_mul_f32 {pr(NF)}, {pr(NF)}, {pr(DF)}', f'v_pk_mul_f32 {pr(NF+2)}, {pr(NF+2)}, {pr(DF if sh else DF+2)}']
        cvt = [f'v_cvt_pk_bf16_f32 v{Mfin}, v{NF}, v{NF+1}', f'v_cvt_pk_bf16_f32 v{Mfin+1}, v{NF+2}, v{NF+3}']
        if cur['safe']:
            Ps = [f'v_pk_fma_f32 {pr(EE+2*p)}, {pr(EE+2*p)}, s[{sC}:{sC+1}], s[{sC}:{sC+1}] clamp' for p in range(8)]
            Ps += fin
            Ps += [f'v_pk_mul_f32 {pr(D+b)}, {pr(D+b)}, {pr(EE+b+2)}' for b in bs]
            Ps += cvt
            Ps += [f'v_pk_fma_f32 {pr(D+b)}, {pr(D+b+2)}, {pr(EE+b)}, {pr(D+b)}' for b in bs]
            Ps += [f'v_pk_mul_f32 {pr(EE+b)}, {pr(EE+b)}, {pr(EE+b+2)}' for b in bs]
        else:
            Ps = [f'v_pk_add_f32 {pr(EE+b+2)}, {pr(EE+b+2)}, 1.0 op_sel_hi:[1,0]' for b in bs]
            Ps += fin
            Ps += [f'v_pk_fma_f32 {pr(D+b)}, {pr(D+b)}, {pr(EE+b+2)}, {pr(D+b+2)}' for b in bs]
            Ps += cvt
            Ps += [f'v_pk_fma_f32 {pr(D+b)}, {pr(D+b+2)}, {pr(EE+b)}, {pr(D+b)}' for b in bs]
            Ps += [f'v_pk_fma_f32 {pr(EE+b)}, {pr(EE+b)}, {pr(EE+b+2)}, {pr(EE+b+2)}' for b in bs]
        Ps += [f'v_pk_mul_f32 {pr(NF+2*B)}, {pr(D+8*B)}, {pr(EE+8*B+4)}' for B in range(2)]
        Ps += [f'v_pk_mul_f32 {pr(DF+2*B)}, {pr(EE+8*B)}, {pr(EE+8*B+4)}' for B in range(2)]
        Ps += [f'v_pk_fma_f32 {pr(NF+2*B)}, {pr(D+8*B+4)}, {pr(EE+8*B)}, {pr(NF+2*B)}' for B in range(2)]
        if sh:
            Ps += [f'v_pk_mul_f32 {pr(NF)}, {pr(NF)}, {pr(DF+2)}', f'v_pk_mul_f32 {pr(NF+2)}, {pr(NF+2)}, {pr(DF)}',
                   f'v_pk_mul_f32 {pr(DF)}, {pr(DF)}, {pr(DF+2)}']
        nP = len(Ps)
        remap = {}
        for i in sorted(extra_P): remap.setdefault(min(i * nP // 30, nP - 1), []).extend(extra_P[i])
        for i, p in enumerate(Ps):
            for x in remap.get(i, []):
                a(x() if callable(x) else x)
            a(p)
    def spread(d, xs, start, step=1):
        for i, x in enumerate(xs):
            d.setdefault(start + i * step, []).extend(x if isinstance(x, list) else [x])
    wsched = [('u2', i) for i in range(16)]
    NPEEL = int(opt.get('npeel', 6))
    per = {6: [0, 3, 3, 3, 3, 4], 3: [4, 6, 6], 9: [0, 2, 2, 2, 2, 2, 2, 2, 2]}[NPEEL]
    def iteration(tau, u, peeled):
        sl = (u + 1) % 3
        eT = {3: [f'v_mad_u32_u24 v{aQ}, v{vX}, s{sQs}, v{cQ}', f'v_mad_u32_u24 v{aS+sl}, v{vX}, s{sOs}, v{cS}']}
        eP = {}
        spread(eP, [(lambda: vm.wait(f'dma{tau+1}')) if peeled else 's_waitcnt vmcnt(4)',
              f'ds_read_b128 {vr(PA,4)}, v{aP} offset:{sl*4096}', f'ds_read_b128 {vr(PA+4,4)}, v{aP+1} offset:{sl*4096}',
              f'ds_read_b64_tr_b16 {vr(B2A+2,2)}, v{aQ}',
              [f's_mov_b64 exec, s[{sHM}:{sHM+1}]', f'ds_read_b128 {vr(A2,4)}, v{aEAT} offset:{(u+1)*512}', 's_mov_b64 exec, -1'],
              f's_add_u32 m0, s{sRing}, {u*4096}'], 1)
        if peeled and tau == 0:
            eP[6] = [f's_add_u32 m0, s{sRing}, 8192']
            spread(eP, [(lambda d=d: dma_ins(IDX3, d, 'dma2')) for d in range(4)], 7, 3)
            eP.setdefault(18, []).append(f's_mov_b32 m0, s{sRing}')
            spread(eP, [(lambda d=d: dma_ins(IDX, d, 'dma3')) for d in range(4)], 19, 3)
        else:
            spread(eP, [(lambda d=d: dma_ins(IDX, d, f'dma{tau+3}')) for d in range(4)], int(opt.get('d0', 8)), int(opt.get('ds', 7)))
        cur['first'] = f'kf_f{cur["g"]}A' if (peeled and tau == 0) else None
        half(DA, ACCA, MA, MB, zchain(DB, B2B, PB), eT, eP)
        eP = {}
        xs = [f'ds_read_b128 {vr(PB,4)}, v{aP+2} offset:{sl*4096}', f'ds_read_b128 {vr(PB+4,4)}, v{aP+3} offset:{sl*4096}',
              f'ds_read_b64_tr_b16 {vr(B2B+2,2)}, v{aQ} offset:64', f'ds_read_b64_tr_b16 {vr(S,2)}, v{aS+u}',
              f'ds_read_u8 v{vX}, v{aXL} offset:{(u+2)*8}'] + idx_reads(IDX, u + 4)
        spread(eP, xs, int(opt.get('x0', 1)), int(opt.get('xs', 2)))
        if peeled and not opt.get('nowpf') and cur['g'] != 'S':
            k0 = sum(per[:tau])
            for j, (m, i) in enumerate(wsched[k0:k0 + per[tau]]):
                def f(m=m, i=i):
                    ins = wload(WB2 + 4 * i, 2, i, 'wu')
                    return '\n'.join(ins)
                eP.setdefault(18 + 2 * j, []).append(f)
            if tau == NPEEL - 1: eP.setdefault(28, []).append(f's_mov_b32 s{sWdone}, 1')
        if u == 2:
            eP.setdefault(29, []).extend([f'v_add_u32 v{aSRC}, 192, v{aSRC}', f'v_add_u32 v{aEAT}, 1536, v{aEAT}', f'v_add_u32 v{aXL}, 24, v{aXL}'])
        eP.setdefault(29, []).append(f's_sub_u32 s{sCnt}, s{sCnt}, 1')
        cur['first'] = f'kf_f{cur["g"]}B' if (peeled and tau == 0) else None
        if cur['first']: eP.setdefault(27, []).append(f's_mov_b32 s{sAcc}, 1')
        half(DB, ACCB, MB, MA, zchain(DA, B2A, PA), {}, eP)
    spec = {'P': '01', 'none': 'xx', 'young': 'xx'}.get(prio, prio).split('|')
    saved = list(vm.ops)
    a(f's_cmp_lg_u32 s{sSafe}, 0\ns_cbranch_scc1 k2_safe')
    if len(spec) > 1: a(f's_cmp_lg_u32 s{sG}, 0\ns_cbranch_scc1 k2_g1')
    for g, sp in enumerate(spec):
        vm.ops = list(saved)
        sp = sp.split(',')
        def setp(k):
            x = sp[k % len(sp)]
            cur['pT'] = None if x[0] == 'x' else int(x[0]); cur['pP'] = None if x[1] == 'x' else int(x[1])
        cur['g'] = g
        if g: a.label('k2_g1')
        for tau in range(NPEEL):
            setp(tau)
            iteration(tau, tau % 3, True)
            a('s_cbranch_scc1 k2_drain')
        a.label(f'k2_loop{g}')
        for u in range(3):
            setp(u)
            iteration(100 + u, u, False)
            a('s_cbranch_scc1 k2_drain' if u < 2 else f's_cbranch_scc0 k2_loop{g}')
        if g + 1 < len(spec): a('s_branch k2_drain')
    a.label('k2_drain')
    a('s_setprio 0\ns_waitcnt lgkmcnt(0)')
    for x in maxops: a(x)
    a(f'v_mfma_f32_32x32x8_bf16 {vr(ACCA,16)}, {vr(MA,2)}, {vr(S,2)}, {vr(ACCA,16)}')
    if not opt.get('noshare'):
        a(f's_cmp_lg_u32 s{sSafe}, 0\ns_cbranch_scc1 kf_dr4\nv_mov_b32 v{DF+2}, v{DF}\nv_mov_b32 v{DF+3}, v{DF+1}')
        a.label('kf_dr4')
    for i in range(4): a(f'v_rcp_f32 v{DF+i}, v{DF+i}')
    a('s_nop 0')
    for i in range(4): a(f'v_mul_f32 v{NF+i}, v{NF+i}, v{DF+i}')
    a(f'''v_cvt_pk_bf16_f32 v{MB}, v{NF}, v{NF+1}
    v_cvt_pk_bf16_f32 v{MB+1}, v{NF+2}, v{NF+3}
    s_nop 1
    v_mfma_f32_32x32x8_bf16 {vr(ACCB,16)}, {vr(MB,2)}, {vr(S,2)}, {vr(ACCB,16)}''')
    a.label('k2_loopend')
    stampat(7)
    a(f'''s_cmp_eq_u32 s{sHeavy}, 0
    s_cbranch_scc1 k2_epi
    s_add_u32 s{sB}, s{sB}, 1''')
    a.label('k2_fetch')
    a(f'''s_waitcnt vmcnt(0) lgkmcnt(0)
    s_barrier
    s_cmp_ge_u32 s{sB}, s{sHeavy}
    s_cbranch_scc1 k2_epi
    s_lshl_b32 s{sTmp}, s0, 2
    buffer_load_dword v{TQ}, v{vNOVF}, {WS}, s{sTmp} offen sc1
    v_and_b32 v{T1}, 1, v0
    s_lshl_b32 s{sTmp}, s{sB}, 1
    v_add_u32 v{T1}, s{sTmp}, v{T1}
    s_waitcnt vmcnt(0)
    v_and_b32 v{T0}, 0xffff, v{TQ}
    v_lshrrev_b32 v{TQ}, 16, v{TQ}
    v_add_u32 v{T0}, v{T0}, v{T1}
    v_cmp_lt_u32 s[{sMask}:{sMask+1}], v{T1}, v{TQ}
    v_lshl_add_u32 v{T0}, v{T0}, 4, v{vNOVF}
    buffer_load_dwordx3 {vr(REC,3)}, v{T0}, {WS}, 0 offen offset:1024 sc1''')
    for i in range(1, 8): a(f's_mov_b64 s[{sMask+2*i}:{sMask+2*i+1}], 0')
    a(f's_mov_b64 s[{sOv}:{sOv+1}], 0\ns_waitcnt vmcnt(0)\ns_branch k2_batch')
    a.label('k2_redo')
    a(f's_mov_b32 s{sSafe}, 1\ns_mov_b32 s{sAcc}, 0\ns_mov_b32 s{sB}, 0')
    a.label('k2_hentry')
    a(f'''s_waitcnt vmcnt(0) lgkmcnt(0)
    s_lshl_b32 s{sTmp}, s0, 2
    buffer_load_dword v{TQ}, v{vNOVF}, {WS}, s{sTmp} offen sc1
    v_mov_b32 v{T0}, {HMAX}
    v_mov_b32 v{T1}, 1
    ds_write_b32 v{T0}, v{T1}
    s_waitcnt vmcnt(0) lgkmcnt(0)
    s_barrier
    v_lshrrev_b32 v{TQ}, 16, v{TQ}
    v_add_u32 v{TQ}, 1, v{TQ}
    v_lshrrev_b32 v{TQ}, 1, v{TQ}
    ds_max_u32 v{T0}, v{TQ}
    s_waitcnt lgkmcnt(0)
    s_barrier
    ds_read_b32 v{T1}, v{T0}
    s_waitcnt lgkmcnt(0)
    v_readfirstlane_b32 s{sHeavy}, v{T1}
    s_branch k2_fetch''')
    a.label('k2_epi')
    vm.ops = []
    a(f's_waitcnt vmcnt(0)\ns_cmp_lg_u32 s{sWdone}, 0\ns_cbranch_scc1 k2_wok')
    for (m, i) in wsched:
        for x in wload(WB2 + 4 * i, 2, i, 'c'): a(x)
    a('s_waitcnt vmcnt(0)')
    a.label('k2_wok')
    Y0, Y1, Y2, Y3 = X0, X0 + 1, X0 + 2, X0 + 3
    a(f'''s_cmp_lg_u32 s{sSafe}, 0
    s_cbranch_scc1 kf_noflag
    v_cmp_lt_f32 vcc, 0x5d800000, v{vMX}
    s_cbranch_vccz kf_noflag
    v_mov_b32 v{Y0}, 1
    ds_write_b32 v{XR+7}, v{Y0} offset:4
    kf_noflag:
    s_cmp_lg_u32 s{sAcc}, 0
    s_cbranch_scc1 kf_accok''')
    for i in range(32): a(f'v_mov_b32 v{ACCA+i}, 0')
    a.label('kf_accok')
    a(f'''ds_read_b32 v{Y0}, v{XR+7}
    s_waitcnt lgkmcnt(0)
    v_readfirstlane_b32 s{sTmp}, v{Y0}
    s_cmp_lt_u32 s{sTmp}, 8
    s_cbranch_scc1 kf_accok
    s_mov_b64 exec, s[{sNM}:{sNM+1}]''')
    Y2 = XR + 4
    a(f's_cmp_eq_u32 s{sSafe}, 0\ns_cbranch_scc1 kf_noscale')
    for q in range(16): a(f'v_pk_mul_f32 {pr(ACCA+2*q)}, {pr(ACCA+2*q)}, s[{sC}:{sC+1}]')
    a.label('kf_noscale')
    for q in range(8):
        if q: a(f'v_xor_b32 v{Y3}, {q<<4}, v{Y2}')
        a(f'''v_cvt_pk_bf16_f32 v{ACCA+4*q}, v{ACCA+4*q}, v{ACCA+4*q+1}
        v_cvt_pk_bf16_f32 v{ACCA+4*q+1}, v{ACCA+4*q+2}, v{ACCA+4*q+3}
        ds_write_b64 v{Y3 if q else Y2}, {vr(ACCA+4*q,2)}''')
    a('s_mov_b64 exec, -1')
    EA_ = XR; Y2 = XR + 6; Y3 = XR + 5
    a(f'''s_lshl_b32 s{sTmp2}, s{sN0}, 9
    s_lshl_b32 s{sTmp}, s{sWV}, 6
    s_add_u32 s{sTmp2}, s{sTmp2}, s{sTmp}
    s_waitcnt lgkmcnt(0)''')
    stampat(8)
    a(f's_barrier\nds_read_b32 v{Y0}, v{XR+7} offset:4')
    Z = DA
    def silu_ops(rt):
        b = OA + rt * 8
        ops = [f'v_exp_f32 v{Z+p}, v{b+p}' for p in range(8)]
        ops += [f'v_fma_f32 v{Z+p}, v{Z+p}, s{sC}, s{sC}' for p in range(8)]
        ops += [f'v_rcp_f32 v{Z+p}, v{Z+p}' for p in range(8)]
        ops += [f'v_mul_f32 v{Z+p}, v{b+p}, v{Z+p}' for p in range(8)]
        for rr in range(4):
            ops.append(f'v_cvt_pk_bf16_f32 v{Z+8+rr}, v{Z+rr}, v{Z+4+rr}')
        for rr in range(4):
            ops.append(f'v_mov_b32_dpp v{Z+rr}, v{Z+8+rr} quad_perm:[0,2,0,2] row_mask:0xf bank_mask:0xf')
        for rr in range(4):
            ops.append(f'v_mov_b32_dpp v{Z+4+rr}, v{Z+8+rr} quad_perm:[1,3,1,3] row_mask:0xf bank_mask:0xf')
        for rr in range(4):
            ops.append(f'v_perm_b32 v{Z+8+rr}, v{Z+4+rr}, v{Z+rr}, v{Y3}')
        for rr in range(4):
            if rt == 2 and rr == 3:
                ops.append(f's_cmp_eq_u32 s{sNN}, 40\ns_cselect_b32 exec_lo, -1, 0xffff')
            ops.append(f'buffer_store_dword v{Z+8+rr}, v{Y2}, s[{sO}:{sO+3}], s{sTmp2} offen offset:{rr*512}' + opt.get('outst', ' sc1'))
        ops.append(f's_add_u32 s{sTmp2}, s{sTmp2}, 8192')
        return ops
    seq = [(rt, s) for rt in range(3) for s in range(8)]
    def ard(k):
        rt, s = seq[k]
        a(f'ds_read_b128 {vr(AF+4*(k%6),4)}, v{EA_+(s&3)} offset:{rt*8192+(s>>2)*256}')
    for k in range(5): ard(k)
    a(f'''s_waitcnt lgkmcnt(5)
    v_readfirstlane_b32 s{sTmp}, v{Y0}
    s_cmp_gt_u32 s{sTmp}, s{sSafe}
    s_cbranch_scc1 k2_redo
    s_mov_b32 s{sC}, {hex(f2u(-LOG2E))}''')
    pend = []
    for k, (rt, s) in enumerate(seq):
        if k + 5 < 24: ard(k + 5)
        a(f's_waitcnt lgkmcnt({min(5, 23-k)})')
        for c in range(2):
            d = OA + (rt * 2 + c) * 4
            a(f'v_mfma_f32_16x16x32_bf16 {vr(d,4)}, {vr(AF+4*(k%6),4)}, {vr(WB2+4*(2*s+c),4)}, {vr(d,4)}')
            if s >= 1 or c == 1:
                n = 4 if s >= 1 else 0
                for x in pend[:n]: a(x)
                pend = pend[n:]
        if s == 7:
            for x in pend: a(x)
            pend = silu_ops(rt)
    if opt.get('oldtail'):
        a('s_mov_b32 exec_hi, 0\ns_nop 6')
        for x in pend: a(x)
    else:
        b = OA + 16
        a(f's_mov_b32 s{sC+1}, {hex(f2u(-LOG2E))}\ns_nop 6')
        for rr in range(4): a(f'v_permlane32_swap_b32 v{b+rr}, v{b+4+rr}')
        for p in range(4): a(f'v_exp_f32 v{Z+p}, v{b+p}')
        for p in range(2): a(f'v_pk_fma_f32 {pr(Z+2*p)}, {pr(Z+2*p)}, s[{sC}:{sC+1}], s[{sC}:{sC+1}]')
        for p in range(4): a(f'v_rcp_f32 v{Z+p}, v{Z+p}')
        for p in range(2): a(f'v_pk_mul_f32 {pr(Z+2*p)}, {pr(b+2*p)}, {pr(Z+2*p)}')
        for rr in range(4): a(f'v_mov_b32 v{Z+4+rr}, v{Z+rr}')
        a('s_nop 0')
        for rr in range(4): a(f'v_permlane32_swap_b32 v{Z+rr}, v{Z+4+rr}')
        a('s_mov_b32 exec_hi, 0')
        for x in pend[32:]: a(x)
    if stamp:
        stampat(9)
        a(f's_mov_b64 exec, 1\ns_waitcnt lgkmcnt(0)')
        a(f's_lshl_b32 s{sTmp}, s2, 3\ns_add_u32 s{sTmp}, s{sTmp}, s{sWV}\ns_lshl_b32 s{sTmp}, s{sTmp}, 6\ns_add_u32 s{sTmp}, s{sTmp}, {WS_END - WS_CELLS}\nv_mov_b32 v{Y0}, 0')
        for i in range(10):
            a(f'v_mov_b32 v{Y1}, s{sStamp+2*i}\nbuffer_store_dword v{Y1}, v{Y0}, {WS}, s{sTmp} offen offset:{4*i}')
        a(f'v_mov_b32 v{Y1}, s{sT}\nbuffer_store_dword v{Y1}, v{Y0}, {WS}, s{sTmp} offen offset:40')
        a(f'v_mov_b32 v{Y1}, s{sPoll}\nbuffer_store_dword v{Y1}, v{Y0}, {WS}, s{sTmp} offen offset:44')
    if opt.get('diagpad'):
        a(f's_add_u32 s94, s94, {int(opt["diagpad"])}')
        a.label('kf_diag')
        a('s_memrealtime s[92:93]\ns_waitcnt lgkmcnt(0)\ns_sub_u32 s92, s92, s94\ns_cmp_lt_i32 s92, 0\ns_cbranch_scc1 kf_diag')
    a.label('k2_done')
    a('s_endpgm')
    vm.ops = list(saved)
    cur.update({'pT': None, 'pP': None, 'safe': True, 'g': 'S'})
    a.label('k2_safe')
    iteration(0, 0, True)
    a('s_cbranch_scc1 k2_drain')
    a.label('k2_loopS')
    for u in (1, 2, 0):
        iteration(100 + u, u, False)
        a('s_cbranch_scc1 k2_drain' if u != 0 else 's_cbranch_scc0 k2_loopS')
    a('s_branch k2_drain')
    return kd(KNAME, 256, 102)
```

```python
from common import *
FCH = 625; CST = 8704; RB = 12
WS_CELLS = 5242880
WS_WF = WS_CELLS + 256 * 11264
WS_FLAG = WS_WF + 131072
WS_END = WS_FLAG + 16384
KNAME = 'standalone__mpnn_edge_mlp__graph_kernel'
POLL_LIMIT = 40000
K2_GRID = NB
NT = 28
QT = 98304; QSTR = 592
OH = QT + 41 * QSTR; OSTR = 80
XT = 126208
assert QT + 40 * QSTR + 4096 <= XT and OH + 41 * OSTR <= QT + 40 * QSTR + 4096
EAT = XT + 20480
CNT = EAT + NT * 512
SRC = CNT + 256
XL = SRC + (NT + 7) * 64
K2_LDS = 163840
assert XL + 256 + 16 <= K2_LDS
C30 = 0x30800000

class R:
    def __init__(self, start): self.n = start
    def get(self, k=1, align=1):
        self.n = (self.n + align - 1) // align * align
        r = self.n; self.n += k; return r

def vr(r, k): return f'v[{r}:{r+k-1}]' if k > 1 else f'v{r}'
def pr(x): return f'v[{x}:{x+1}]'

def gen_kf(a, opt):
    stamp = opt.get('stamp')
    prio = opt.get('prio', '02,02,13|13,13,02')
    vm = VM()
    INV = 'buffer_inv sc1' if opt.get('inv') else ''
    LD = ' sc1' if opt.get('ldsc1', '0') == '1' else ''
    CS = opt.get('cellst', ' sc1')
    r = R(1)
    vLane = r.get(); vNOVF = r.get(); vL16 = r.get()
    aSRC = r.get(); aEAT = r.get(); aXL = r.get(); cQ = r.get(); cS = r.get(); vX = r.get(); aQ = r.get()
    aS = r.get(3); aP = r.get(4)
    IDX = r.get(8, 2)
    A2 = r.get(4, 2); B2A = r.get(4, 2); B2B = r.get(4, 2)
    S = r.get(2, 2); MA = r.get(2, 2); MB = r.get(2, 2)
    ACCA = r.get(16, 2); ACCB = r.get(16, 2)
    DA = r.get(16, 2); DB = r.get(16, 2)
    EE = r.get(16, 2); NF = r.get(4, 2); DF = r.get(4, 2)
    PA = r.get(8, 2); PB = r.get(8, 2); I0 = r.get(4, 2); I1 = r.get(4, 2)
    WB2 = r.get(64, 2)
    XR = r.get(12, 2)
    OA = r.get(24, 2)
    assert r.n <= 256, r.n
    W1F = [NF + 4 * i for i in range(6)] + [WB2 + 36 + 4 * i for i in range(10)]
    aW = None
    assert PB + 8 == NF + 24 and WB2 + 36 + 40 == OA
    t = R(WB2)
    REC = DB
    assert EE == DB + 16
    RK = t.get(8, 2); TQ = t.get(8, 2); DL4 = t.get(8, 2)
    T0 = t.get(); T1 = t.get(); T2 = t.get(); T3 = t.get()
    IDX3 = t.get(8, 2)
    HMAX = XL + 256
    vMX = XR + 8
    IDX1 = DA; IDX2 = DA + 8
    AF = PA
    X0 = DB + 12
    EA_ = IDX

    sP = 20; sX = 24; sE = 28; sWS = 32; sM = 36; sO = 24
    sWV = 44; sG = 45; sCQ = 46; sHeavy = 47; sB = 48; sPoll = 49; sSplit = 50; sT = 51; sTbase = 52
    sRing = 53; sCnt = 54; sTmp = 55; sTmp2 = 56; sTmp3 = 57; sC = 58
    sMask = 4
    sQs = 68; sOs = 69; sT0 = 70; sT1 = 71; sQt = 72; sWdone = 73; sSv = 74
    sStamp = 76
    sHM = 96; sN0 = 98; sWF = 99; sNN = 3; sBok = 100; sOv = 28; sRdone = 30; sEAT = 31; sAcc = 38; sNM = 36; sSafe = 39; sD = 60; sPw = 64

    names = (stamp if stamp and stamp != '1' else '0,1,2,3,4,5,6,7,8,9').split(',')
    def stampat(nm):
        nm = str(nm)
        if stamp:
            if nm in names:
                i = names.index(nm)
                a(f's_memrealtime s[{sStamp+2*i}:{sStamp+2*i+1}]')
            if nm == '6': a('s_memtime s[100:101]\ns_waitcnt lgkmcnt(0)\ns_mov_b32 s{}, s100'.format(sPoll))
            if nm == '7': a('s_memtime s[100:101]\ns_waitcnt lgkmcnt(0)\ns_sub_u32 s{0}, s100, s{0}'.format(sPoll))
    WS = f's[{sWS}:{sWS+3}]'
    def wload(dst, mat, i, tag):
        off = i * 1024
        ins = [f's_add_u32 s{sTmp3}, s{sWF}, {off & ~4095}',
               f'buffer_load_dwordx4 {vr(dst,4)}, v{vL16}, {WS}, s{sTmp3} offen offset:{off & 4095}']
        vm.issue(tag)
        return ins

    a.raw(f'.globl {KNAME}\n.p2align 8\n.type {KNAME},@function')
    a.label(KNAME)
    a(f's_cmp_ge_u32 s2, {K2_GRID}\ns_cbranch_scc1 k2_done')
    stampat(0)
    if opt.get('diagpad'): a('s_memrealtime s[94:95]')
    eD = 26; eS = 36; eA = 46; eR = 66; eB = 76
    PD = 26; RL = 50; W3 = 58; TOUCH = 86; CT = 58
    UQ = 92; vW = 100; aA = 104; U0 = 108; U1 = 109; U2 = 110; U3 = 111; vW1 = 112; PR0 = 113; PR1 = 114; PG0 = 115; PG1 = 116; aW3 = 117
    vDB = 252; aTO = 253; aB = 90
    BF = NF; AX = WB2
    assert BF == 124 and BF + 32 == WB2 and WB2 + 96 <= 256 and REC == 92
    W3L = QT + 24576
    SW = 1
    TAB = QT; RIMG = QT + 1024; CNTA = QT + 12288
    sS = 20; sDs = 28; sEs = 36; sU = 40
    sWm = 68
    sEM = 76 if not stamp else 8
    a(f'''s_load_dwordx4 s[12:15], s[0:1], 32
    s_load_dwordx4 s[8:11], s[0:1], 16
    s_load_dwordx4 s[4:7], s[0:1], 0
    s_load_dwordx4 s[16:19], s[0:1], 48
    s_load_dwordx2 s[{sWS}:{sWS+1}], s[0:1], 64
    v_lshrrev_b32 v{U0}, 6, v0
    v_and_b32 v{vLane}, 63, v0
    v_readfirstlane_b32 s{sWV}, v{U0}
    v_lshlrev_b32 v{vL16}, 4, v{vLane}
    s_cmp_lg_u32 s{sWV}, 3
    s_cbranch_scc1 kf_noct
    s_getpc_b64 s[{sSv}:{sSv+1}]
    kf_pc:
    s_and_b32 s{sTmp3}, s2, 0xf8
    s_lshl_b32 s{sTmp3}, s{sTmp3}, 7
    s_min_u32 s{sTmp3}, s{sTmp3}, k2_done-kf_pc-1024
    s_add_u32 s{sSv}, s{sSv}, s{sTmp3}
    s_addc_u32 s{sSv+1}, s{sSv+1}, 0
    global_load_dwordx4 {vr(CT,4)}, v{vL16}, s[{sSv}:{sSv+1}]
    kf_noct:
    v_lshlrev_b32 v{U3}, 4, v0
    s_mul_i32 s{sN0}, s2, 625
    s_bfe_u32 s{sTmp3}, s2, 0x50003
    s_lshl_b32 s{sTmp3}, s{sTmp3}, 13
    s_lshl_b32 s{sT}, s{sN0}, 2
    s_lshl_b32 s{sTbase}, s{sN0}, 3
    s_and_b32 s{sPoll}, s2, 7
    s_lshl_b32 s{sPoll}, s{sPoll}, 5
    s_lshr_b32 s{sTmp}, s2, 3
    s_or_b32 s{sPoll}, s{sPoll}, s{sTmp}
    s_mul_i32 s{sN0}, s{sPoll}, 625
    s_add_u32 s{sNN}, s{sN0}, {625+15}
    s_add_u32 s{sN0}, s{sN0}, 15
    s_lshr_b32 s{sN0}, s{sN0}, 4
    s_lshr_b32 s{sNN}, s{sNN}, 4
    s_sub_u32 s{sNN}, s{sNN}, s{sN0}
    s_lshr_b32 s{sG}, s{sWV}, 2
    s_and_b32 s{sCQ}, s{sWV}, 3
    s_lshl_b32 s{sWF}, s{sWV}, 14
    s_add_u32 s{sWF}, s{sWF}, {WS_WF - WS_CELLS}
    v_lshrrev_b32 v{U0}, 5, v{vLane}
    v_and_b32 v{U1}, 31, v{vLane}
    s_lshl_b32 s{sTmp}, s{sWV}, 1
    v_xor_b32 v{U2}, v{U1}, v{U0}
    v_xor_b32 v{U2}, s{sTmp}, v{U2}
    v_lshlrev_b32 v{U2}, 4, v{U2}
    v_lshl_add_u32 v{U2}, v{U0}, 9, v{U2}
    v_xor_b32 v{vW1}, s{sWV}, v{U1}
    v_lshlrev_b32 v{vW1}, 4, v{vW1}
    s_waitcnt lgkmcnt(0)
    s_mov_b32 s0, s{sPoll}''')
    a(f'''s_cmp_lg_u32 s{sWV}, {SW}
    s_cbranch_scc1 kf_noedge
    s_setprio 3
    v_mul_u32_u24 v{U0}, 40, v{vLane}
    v_mul_u32_u24 v{U1}, 80, v{vLane}''')
    srd(a, sDs, 10, E * 4)
    a(f'''buffer_load_dwordx4 {vr(eD,4)}, v{U0}, s[{sDs}:{sDs+3}], s{sT} offen
    buffer_load_dwordx4 {vr(eD+4,4)}, v{U0}, s[{sDs}:{sDs+3}], s{sT} offen offset:16
    buffer_load_dwordx2 {vr(eD+8,2)}, v{U0}, s[{sDs}:{sDs+3}], s{sT} offen offset:32''')
    srd(a, sS, 8, E * 4)
    a(f'''buffer_load_dwordx4 {vr(eS,4)}, v{U0}, s[{sS}:{sS+3}], s{sT} offen
    buffer_load_dwordx4 {vr(eS+4,4)}, v{U0}, s[{sS}:{sS+3}], s{sT} offen offset:16
    buffer_load_dwordx2 {vr(eS+8,2)}, v{U0}, s[{sS}:{sS+3}], s{sT} offen offset:32''')
    srd(a, sEs, 6, E * 8)
    for k in range(5): a(f'buffer_load_dwordx4 {vr(eA+4*k,4)}, v{U1}, s[{sEs}:{sEs+3}], s{sTbase} offen offset:{16*k}')
    a.label('kf_noedge')
    a('s_cmp_eq_u32 s2, 0\ns_cbranch_scc1 kf_init')
    a.label('kf_noinit')
    vm.issue('edge')
    vm.ops = vm.ops
    srd(a, sWm, 12, 516 * 512)
    a(f'buffer_load_dwordx4 {vr(TOUCH,4)}, v{U3}, s[{sWm}:{sWm+3}], s{sTmp3} offen')
    vm.issue('touch')
    a(f'''s_cmp_lg_u32 s{sWV}, 6
    s_cbranch_scc1 kf_now3
    s_mov_b32 m0, {W3L}
    s_mov_b32 s{sTmp}, {512*512}
    buffer_load_dwordx4 v{vL16}, s[{sWm}:{sWm+3}], s{sTmp} offen lds
    buffer_load_dwordx4 v{vL16}, s[{sWm}:{sWm+3}], s{sTmp} offen offset:1024 lds''')
    a.label('kf_now3')
    srd(a, sX, 4, N * 512)
    a(f'''s_lshl_b32 s{sTmp}, s{sN0}, 9
    s_lshl_b32 s{sTmp2}, s{sWV}, 10
    s_add_u32 s{sTmp3}, s{sTmp}, s{sTmp2}
    s_add_u32 m0, s{sTmp2}, {XT}
    s_lshl_b32 s{sCnt}, s{sWV}, 9
    buffer_load_dwordx4 v{U2}, s[{sX}:{sX+3}], s{sTmp3} offen lds
    s_add_u32 m0, s{sTmp2}, {XT+8192}
    s_add_u32 s{sTmp3}, s{sTmp3}, 8192
    buffer_load_dwordx4 v{U2}, s[{sX}:{sX+3}], s{sTmp3} offen lds
    s_add_u32 m0, s{sCnt}, {XT+16384}
    s_add_u32 s{sTmp}, s{sTmp}, s{sCnt}
    s_add_u32 s{sTmp}, s{sTmp}, 16384
    s_mov_b32 exec_hi, 0
    buffer_load_dwordx4 v{vW1}, s[{sX}:{sX+3}], s{sTmp} offen lds
    s_mov_b32 exec_hi, -1''')
    for _ in range(3): vm.issue('x')
    stampat('a')
    a(f'''s_add_u32 s{sPw}, s{sWS}, {WS_P}
    s_addc_u32 s{sPw+1}, s{sWS+1}, 0
    s_and_b32 s{sPw+1}, s{sPw+1}, 0xffff
    s_mov_b32 s{sPw+2}, {N*512}
    s_mov_b32 s{sPw+3}, 0x20000
    s_add_u32 s{sWS}, s{sWS}, {WS_CELLS}
    s_addc_u32 s{sWS+1}, s{sWS+1}, 0
    s_and_b32 s{sWS+1}, s{sWS+1}, 0xffff
    s_mov_b32 s{sWS+2}, {WS_END - WS_CELLS + (1 << 20 if stamp else 0)}
    s_mov_b32 s{sWS+3}, 0x20000''')
    srd(a, sD, 18, 256)
    srd(a, sU, 14, 512 * 512)
    a(f'''v_mov_b32 v{UQ+4}, 0
    v_mov_b32 v{UQ+5}, 0
    v_mov_b32 v{UQ+6}, 0
    v_mov_b32 v{UQ+7}, 0
    v_add_u32 v{U1}, {CNTA}, v{vL16}
    s_cmp_lg_u32 s{sWV}, {SW}
    s_cbranch_scc1 kf_nocz
    ds_write_b128 v{U1}, {vr(UQ+4,4)}
    v_mov_b32 v{U1}, {HMAX+8}
    ds_write_b64 v{U1}, {vr(UQ+4,2)}''')
    a.label('kf_nocz')
    nz = (NT * 512 + 256 - 8192) // 16; nf = (NT + 7) * 64 // 16; nx = 16
    def list_prefill(Z, F, t0, t1):
        a(f'''v_lshlrev_b32 v{t0}, 4, v0
        v_add_u32 v{t0}, {EAT}, v{t0}
        v_mov_b32 v{t1}, 0xa0a0a0a0
        ds_write_b128 v{t0}, {vr(Z,4)}
        v_cmp_gt_u32 vcc, {nz}, v0
        s_and_saveexec_b64 s[{sSv}:{sSv+1}], vcc
        ds_write_b128 v{t0}, {vr(Z,4)} offset:8192
        s_mov_b64 exec, -1
        v_cmp_gt_u32 vcc, {nf}, v0
        s_mov_b32 s{sWdone}, 0
        s_nop 0
        v_cndmask_b32 v{F}, v{t1}, -1, vcc
        v_cmp_gt_u32 vcc, {nf+nx}, v0
        v_mov_b32 v{F+1}, v{F}
        v_mov_b32 v{F+2}, v{F}
        v_mov_b32 v{F+3}, v{F}
        s_and_saveexec_b64 s[{sSv}:{sSv+1}], vcc
        ds_write_b128 v{t0}, {vr(F,4)} offset:{SRC-EAT}
        s_mov_b64 exec, -1''')
    stampat('b')
    a(f'''v_lshrrev_b32 v{U0}, 5, v{vLane}
    v_and_b32 v{U1}, 3, v{vLane}
    v_lshlrev_b32 v{U0}, 1, v{U0}
    v_xor_b32 v{U0}, v{U0}, v{U1}
    v_lshrrev_b32 v{U1}, 2, v{vLane}
    v_lshlrev_b32 v{U1}, 9, v{U1}
    v_lshl_add_u32 v{U0}, v{U0}, 4, v{U1}
    s_lshl_b32 s{sTmp}, s{sWV}, 6
    v_add_u32 v{vW}, s{sTmp}, v{U0}
    v_add_u32 v{vW+1}, 7168, v{vW}
    v_add_u32 v{vW+2}, 14336, v{vW}
    v_add_u32 v{vW+3}, 21504, v{vW}
    s_mul_i32 s{sRing}, s{sWV}, 12288''')
    def stage(i):
        a(f's_add_u32 m0, s{sRing}, {(i % 3) * 4096}\ns_mov_b32 s{sTmp3}, {(i & 7) * 32768}')
        sr = sWm if i < 8 else sU
        for t_ in range(4):
            a(f'buffer_load_dwordx4 v{(vW if i < 8 else XR + 8)+t_}, s[{sr}:{sr+3}], s{sTmp3} offen offset:{t_*1024} lds')
            vm.issue(f'st{i}')
    a(f'''v_and_b32 v{U0}, 15, v{vLane}
    v_lshrrev_b32 v{U1}, 4, v{vLane}
    v_xor_b32 v{U2}, v{U1}, v{U0}
    v_lshlrev_b32 v{U2}, 4, v{U2}
    v_lshl_add_u32 v{U0}, v{U0}, 9, v{U2}
    v_add_u32 v{aA}, {XT}, v{U0}''')
    for s_ in range(1, 4):
        a(f'v_xor_b32 v{U2}, {s_<<6}, v{U0}\nv_add_u32 v{aA+s_}, {XT}, v{U2}')
    a(f'''v_bfe_u32 v{U0}, v{vLane}, 2, 2
    v_lshl_add_u32 v{U0}, v{U1}, 3, v{U0}
    v_and_b32 v{U2}, 1, v{U1}
    v_lshlrev_b32 v{U2}, 5, v{U2}
    v_and_b32 v{U3}, 3, v{vLane}
    v_lshl_add_u32 v{U2}, v{U3}, 3, v{U2}
    v_lshl_add_u32 v{U2}, v{U0}, 6, v{U2}
    v_add_u32 v{aB}, s{sRing}, v{U2}
    v_xor_b32 v{aB+1}, 32, v{aB}
    v_mov_b32 v{U3}, 1''')
    list_prefill(UQ + 4, BF + 4, U0, U1)
    NPRE = int(opt.get('npre', 2))
    NPRE2 = int(opt.get('npre2', NPRE))
    stampat('y')
    def early_consts(T0, T1, T2, T3):
        a(f'''v_lshrrev_b32 v{T2}, 5, v{vLane}
        v_and_b32 v{T3}, 31, v{vLane}
        v_bfe_u32 v{T0}, v{T3}, 2, 1
        v_cmp_eq_u32 s[{sHM}:{sHM+1}], v{T0}, v{T2}
        v_bfe_u32 v{T0}, v{T3}, 1, 3
        v_xor_b32 v{T0}, v{T0}, v{T2}
        v_lshlrev_b32 v{T0}, 4, v{T0}
        v_lshl_add_u32 v{T0}, v{T3}, 7, v{T0}
        v_add_u32 v{aP}, s{sRing}, v{T0}
        v_xor_b32 v{aP+1}, 32, v{aP}
        v_xor_b32 v{aP+2}, 64, v{aP}
        v_xor_b32 v{aP+3}, 96, v{aP}
        v_and_b32 v{T0}, 7, v{vLane}
        v_lshrrev_b32 v{T1}, 4, v{vLane}
        v_xor_b32 v{T0}, v{T0}, v{T1}
        s_lshl_b32 s{sTmp}, s{sCQ}, 7
        v_lshl_add_u32 v{T0}, v{T0}, 4, s{sTmp}
        v_xor_b32 v{IDX+7}, 64, v{T0}
        v_add_u32 v{IDX+1}, 3072, v{T0}
        v_add_u32 v{IDX+3}, 2048, v{IDX+7}
        v_add_u32 v{IDX+5}, 1024, v{T0}
        v_bfe_u32 v{T0}, v{vLane}, 4, 1
        v_and_b32 v{T1}, 3, v{vLane}
        v_lshlrev_b32 v{T1}, 3, v{T1}
        v_lshl_add_u32 v{T0}, v{T0}, 5, v{T1}
        s_add_u32 s{sTmp}, s{sTmp}, {QT}
        v_add_u32 v{cQ}, s{sTmp}, v{T0}
        s_lshl_b32 s{sTmp}, s{sG}, 4
        s_add_u32 s{sTmp}, s{sTmp}, {OH}
        v_add_u32 v{cS}, s{sTmp}, v{T0}
        s_mov_b32 s{sC}, {hex(C30)}
        s_mov_b32 s{sC+1}, {hex(C30)}''')
    def list_consts(T0, T1, T2, T3):
        a(f'''v_bfe_u32 v{T0}, v{vLane}, 5, 1
        v_bfe_u32 v{T1}, v{vLane}, 3, 1
        v_bfe_u32 v{T2}, v{vLane}, 4, 1
        v_lshlrev_b32 v{aSRC}, 5, v{T0}
        v_lshl_add_u32 v{aSRC}, v{T1}, 3, v{aSRC}
        v_lshl_add_u32 v{aSRC}, v{T2}, 1, v{aSRC}
        v_bfe_u32 v{T3}, v{vLane}, 2, 2
        v_lshl_add_u32 v{aXL}, v{T0}, 2, v{T3}
        v_and_b32 v{T3}, 1, v{T3}
        v_lshl_add_u32 v{aEAT}, v{T3}, 1, v{T2}
        v_and_b32 v{T0}, 1, v{vLane}
        v_lshl_add_u32 v{aEAT}, v{aEAT}, 1, v{T0}
        v_lshl_add_u32 v{aEAT}, v{aEAT}, 1, v{T1}
        v_bfe_u32 v{T0}, v{vLane}, 1, 1
        v_lshl_add_u32 v{aEAT}, v{aEAT}, 1, v{T0}
        v_lshlrev_b32 v{aEAT}, 4, v{aEAT}''')
    TOUCH_T = 118
    def hoisted():
        sQTs = sT
        a(f's_mov_b32 s{sQTs}, {QT}')
        early_consts(U0, U1, U2, TOUCH_T)
        list_consts(U0, U1, U2, TOUCH_T)
        a(f'''v_and_b32 v{U0}, 15, v{vLane}
    v_lshrrev_b32 v{U1}, 4, v{vLane}
    v_lshlrev_b32 v{U1}, 4, v{U1}
    s_lshl_b32 s{sTmp2}, s{sWV}, 6
    v_add_u32 v{U1}, s{sTmp2}, v{U1}
    v_lshl_add_u32 v{PG0}, v{U0}, 9, v{U1}
    v_mul_u32_u24 v{U0}, {QSTR}, v{U0}
    v_add3_u32 v{aTO}, v{U0}, v{U1}, s{sQTs}
    v_bfe_u32 v{U0}, v{vLane}, 3, 2
    v_and_b32 v{U1}, 3, v{vLane}
    v_lshl_add_u32 v{U0}, v{U0}, 2, v{U1}
    v_bfe_u32 v{U1}, v{vLane}, 2, 1
    v_lshl_add_u32 v{U0}, v{U1}, 4, v{U0}
    v_lshlrev_b32 v{U0}, 1, v{U0}
    s_lshl_b32 s{sTmp}, s{sCQ}, 7
    s_add_u32 s{sTmp}, s{sTmp}, {W3L}
    v_add_u32 v{aW3}, s{sTmp}, v{U0}
    v_lshrrev_b32 v{U0}, 1, v0
    v_mul_u32_u24 v{vNOVF}, {CST}, v{U0}''')
    hoisted()
    dpp = ['row_shr:1 row_mask:0xf bank_mask:0xf', 'row_shr:2 row_mask:0xf bank_mask:0xf', 'row_shr:4 row_mask:0xf bank_mask:0xf',
           'row_shr:8 row_mask:0xf bank_mask:0xf', 'row_bcast:15 row_mask:0xa bank_mask:0xf', 'row_bcast:31 row_mask:0xc bank_mask:0xf']
    a(f'''s_cmp_lg_u32 s{sWV}, {SW}
    s_cbranch_scc1 kf_nohist
    s_movk_i32 s{sTmp}, 625
    s_mov_b32 exec_hi, 0x7fffffff''')
    a(f's_waitcnt vmcnt({vm.count_after("edge") + 8})')
    stampat('z')
    for i in range(10):
        a(f'''v_mul_u32_u24 v{eB+i}, 429497, v{eD+i}
        v_lshrrev_b32 v{eB+i}, 24, v{eB+i}
        v_mad_u32_u24 v{U0}, v{eB+i}, s{sTmp}, 15
        v_lshlrev_b32 v{eB+i}, 2, v{eB+i}
        v_add_u32 v{eB+i}, {CNTA}, v{eB+i}''')
        if i == 5: a('s_mov_b32 exec_hi, 0x3fffffff')
        a(f'''ds_add_rtn_u32 v{eR+i}, v{eB+i}, v{U3}
        v_lshrrev_b32 v{U0}, 4, v{U0}
        v_sub_u32 v{eD+i}, v{eD+i}, v{U0}''')
    a(f'''s_mov_b32 exec_hi, -1
    v_add_u32 v{U0}, {CNTA}, v{vL16}
    ds_read_b128 {vr(UQ,4)}, v{U0}''')
    a(f's_waitcnt vmcnt({vm.count_after("edge") + 5})')
    for i in range(10): a(f'v_lshl_or_b32 v{eS+i}, v{eD+i}, 16, v{eS+i}')
    a(f'''s_waitcnt lgkmcnt(0)
    v_add_u32 v{UQ+5}, v{UQ}, v{UQ+1}
    v_add_u32 v{UQ+6}, v{UQ+5}, v{UQ+2}
    v_add_u32 v{U1}, v{UQ+6}, v{UQ+3}
    v_mov_b32 v{U2}, v{U1}
    s_nop 1''')
    for k, d in enumerate(dpp):
        a(f'v_add_u32_dpp v{U2}, v{U2}, v{U2} {d}' + (' bound_ctrl:0' if k < 4 else '') + '\ns_nop 1')
    a(f'''v_sub_u32 v{UQ+4}, v{U2}, v{U1}
    v_add_u32 v{UQ+7}, v{UQ+6}, v{UQ+4}
    v_add_u32 v{UQ+6}, v{UQ+5}, v{UQ+4}
    v_add_u32 v{UQ+5}, v{UQ}, v{UQ+4}
    ds_write_b128 v{U0}, {vr(UQ+4,4)} offset:1024''')
    for i in range(10): a(f'ds_read_b32 v{eD+i}, v{eB+i} offset:1024')
    a(f'''v_lshl_or_b32 v{UQ+4}, v{UQ}, 16, v{UQ+4}
    v_lshl_or_b32 v{UQ+5}, v{UQ+1}, 16, v{UQ+5}
    v_lshl_or_b32 v{UQ+6}, v{UQ+2}, 16, v{UQ+6}
    v_lshl_or_b32 v{UQ+7}, v{UQ+3}, 16, v{UQ+7}
    v_subrev_u32 v{U0}, {CNTA-TAB}, v{U0}
    s_mov_b32 s{sTmp}, {RIMG}
    s_mov_b32 exec_hi, 0x7fffffff''')
    a(vm.wait('edge'))
    for i in range(10):
        if i == 5: a('s_mov_b32 exec_hi, 0x3fffffff')
        a(f'''s_waitcnt lgkmcnt({min(9, 9 - i + 2 * i)})
        v_add_u32 v{eD+i}, v{eD+i}, v{eR+i}
        v_mad_u32_u24 v{eD+i}, v{eD+i}, 12, s{sTmp}
        ds_write2_b32 v{eD+i}, v{eA+2*i}, v{eA+2*i+1} offset1:1
        ds_write_b32 v{eD+i}, v{eS+i} offset:8''')
    a(f'''s_mov_b32 exec_hi, -1
    ds_write_b128 v{U0}, {vr(UQ+4,4)}
    s_setprio 0''')
    a.label('kf_nohist')
    for i in range(NPRE): stage(i)
    for i in range(NPRE, NPRE2): stage(i)
    stampat('H')
    a(vm.wait('x') + ' lgkmcnt(0)')
    stampat('I')
    a('s_barrier')
    stampat('c')
    axr = [f'ds_read_b128 {vr(AX+(s_*3+rt)*4,4)}, v{aA+(s_&3)} offset:{rt*8192+(s_>>2)*256}' for s_ in range(8) for rt in range(3)]
    a(f'''s_or_b32 s{sTmp}, s2, s{sWV}
    s_cbranch_scc1 kf_noset
    v_mov_b32 v{U0}, 1
    v_mov_b32 v{U1}, 0
    s_mov_b64 exec, 1
    buffer_store_dword v{U0}, v{U1}, s[{sD}:{sD+3}], 0 offen sc1
    s_mov_b64 exec, -1''')
    a.label('kf_noset')
    if not opt.get('noprioA'): a('s_setprio 2')
    axr = [f'ds_read_b128 {vr(AX+(s_*3+rt)*4,4)}, v{aA+(s_&3)} offset:{rt*8192+(s_>>2)*256}' for s_ in range(8) for rt in range(3)]
    AXE = not opt.get('axlate')
    a(f'''v_lshlrev_b32 v{U3}, 4, v0
    v_add_u32 v{U0}, {TAB}, v{U3}
    ds_read_b128 {vr(UQ,4)}, v{U0}
    ds_read_b128 {vr(UQ+4,4)}, v{U0} offset:8192''')
    RSA = opt.get('rs2')
    def rstores():
        a(f'''s_mul_i32 s{sT}, s2, {CST}
        s_add_u32 s{sTbase}, s{sT}, 8192
        s_cmp_lg_u32 s{sWV}, 0
        s_cbranch_scc1 kf_nost2
        s_mov_b32 exec_hi, 0
        buffer_store_dwordx4 {vr(UQ+4,4)}, v{U3}, {WS}, s{sTbase} offen{CS}
        s_mov_b32 exec_hi, -1''')
        a.label('kf_nost2')
        a(f'buffer_store_dwordx4 {vr(UQ,4)}, v{U3}, {WS}, s{sT} offen{CS}')
        vm.issue('cells')
    RSF = opt.get('rsfirst')
    if AXE:
        for x in axr[:12]: a(x)
    if RSF:
        a('s_waitcnt lgkmcnt(12)')
        rstores()
    LA = int(opt.get('la', 3))
    for i in range(NPRE2, LA): stage(i)
    stampat('A')
    if not RSA and not RSF:
        a('s_waitcnt lgkmcnt(0)')
        rstores()
    else: a('s_waitcnt lgkmcnt(6)')
    stampat('E')
    a(f'''s_cmp_lg_u32 s{sWV}, 0
    s_cbranch_scc1 kf_nodb
    v_mov_b32 v{vDB}, 0
    buffer_load_dword v{vDB}, v{vDB}, s[{sD}:{sD+3}], 0 offen sc1''')
    a.label('kf_nodb')
    a(f'''s_cmp_lg_u32 s{sWV}, 7
    s_cbranch_scc1 kf_norl
    s_cmp_ge_u32 s2, 128
    s_cbranch_scc1 kf_norl
    v_lshrrev_b32 v{U0}, 4, v{vLane}
    v_lshlrev_b32 v{U0}, 11, v{U0}
    v_bfe_u32 v{U1}, v{vLane}, 2, 2
    v_lshl_add_u32 v{U0}, v{U1}, 4, v{U0}
    v_and_b32 v{U1}, 3, v{vLane}
    v_lshl_add_u32 v{U0}, v{U1}, 1, v{U0}
    s_bfe_u32 s{sTmp}, s2, 0x30001
    s_lshl_b32 s{sTmp2}, s{sTmp}, 14
    s_add_u32 s{sTmp2}, s{sTmp2}, {256*512}
    s_bfe_u32 s{sTmp}, s2, 0x30004
    s_lshl_b32 s{sTmp}, s{sTmp}, 6
    s_add_u32 s{sTmp2}, s{sTmp2}, s{sTmp}
    s_and_b32 s{sTmp}, s2, 1
    s_lshl_b32 s{sTmp}, s{sTmp}, 3
    s_add_u32 s{sTmp2}, s{sTmp2}, s{sTmp}
    s_add_u32 s{sTmp}, s{sTmp2}, 8192''')
    for e in range(8):
        a(f'buffer_load_ushort v{RL+e}, v{U0}, s[{sU}:{sU+3}], s{sTmp if e >> 2 else sTmp2} offen offset:{(e&3)*512}')
    a.label('kf_norl')
    stampat('B')
    def breads(i, nowait=False):
        if not nowait: a(vm.wait(f'st{i}'))
        for ks in range(2):
            for c in range(2):
                for t_ in range(2):
                    a(f'ds_read_b64_tr_b16 {vr(BF+(i&1)*16+ks*8+c*4+t_*2,2)}, v{aB+c} offset:{(i%3)*4096+(32*ks+4*t_)*64}')
    def compute(i, nowait=False, nostage=False, noread=False):
        a('s_waitcnt lgkmcnt(0)')
        order = [(ks, rt, c) for ks in range(2) for rt in range(3) for c in range(2)]
        for n_, (ks, rt, c) in enumerate(order):
            s_ = (2 * i + ks) & 7
            d = PD + (rt * 2 + c) * 4
            cin = '0' if s_ == 0 else vr(d, 4)
            a(f'v_mfma_f32_16x16x32_bf16 {vr(d,4)}, {vr(BF+(i&1)*16+ks*8+c*4,4)}, {vr(AX+(s_*3+rt)*4,4)}, {cin}')
            if n_ == 1 and i + 1 < 8 and not noread: breads(i + 1, nowait)
            if n_ == 7 and i + LA < 8 and not nostage: stage(i + LA)
    def poll(off, lab, PR):
        a(f'''s_and_b32 s{sTmp}, s2, 7
        s_lshl_b32 s{sTmp}, s{sTmp}, 10
        s_add_u32 s{sTmp}, s{sTmp}, {off - WS_CELLS}
        s_mov_b32 s{sPoll}, {POLL_LIMIT}''')
        a.label(lab)
        a(f'''buffer_load_dwordx4 {vr(PR,4)}, v{vL16}, {WS}, s{sTmp} offen sc1
        s_waitcnt vmcnt(0)
        v_and_b32 v{PR}, v{PR}, v{PR+1}
        v_and_b32 v{PR+2}, v{PR+2}, v{PR+3}
        v_and_b32 v{PR}, v{PR}, v{PR+2}
        v_cmp_eq_u32 vcc, 1, v{PR}
        s_cmp_eq_u64 vcc, -1
        s_cbranch_scc1 {lab}_ok
        s_sleep 1
        s_sub_u32 s{sPoll}, s{sPoll}, 1
        s_cbranch_scc0 {lab}''')
        a.label(lab + '_ok')
    def tile_out(toP):
        a(f'''s_mov_b32 s{sSv}, {hex(f2u(-LOG2E))}
        s_mov_b32 s{sSv+1}, {hex(f2u(-LOG2E))}
        s_lshl_b32 s{sTmp}, s{sN0}, 9
        s_nop 4''')
        for rt in range(3):
            b = PD + rt * 8; o = UQ + 4 * (rt & 1) if toP else b
            for h in range(4): a(f'v_pk_mul_f32 {pr(b+2*h)}, {pr(b+2*h)}, s[{sSv}:{sSv+1}]')
            for h in range(4): a(f'v_cvt_pk_bf16_f32 v{b+h}, v{b+2*h}, v{b+2*h+1}')
            if rt == 2: a('s_mov_b32 exec_lo, 0x00ff00ff\ns_mov_b32 exec_hi, 0x00ff00ff')
            if toP:
                a(f'buffer_store_dwordx4 {vr(b,4)}, v{PG0}, s[{sPw}:{sPw+3}], s{sTmp} offen{CS}')
                if rt < 2: a(f's_add_u32 s{sTmp}, s{sTmp}, 8192')
                vm.issue('pst')
            else: a(f'ds_write_b128 v{aTO}, {vr(b,4)} offset:{16*rt*QSTR}')
        a('s_mov_b64 exec, -1')
    def signal(off, lab):
        a(f'''s_cmp_lg_u32 s{sWV}, 0
        s_cbranch_scc1 {lab}
        v_lshlrev_b32 v{TOUCH}, 10, v{vLane}
        v_mov_b32 v{TOUCH+1}, 1
        s_lshl_b32 s{sTmp}, s2, 2
        s_add_u32 s{sTmp}, s{sTmp}, {off - WS_CELLS}
        s_mov_b64 exec, 0xff
        buffer_store_dword v{TOUCH+1}, v{TOUCH}, {WS}, s{sTmp} offen sc1
        s_mov_b64 exec, -1''')
        a.label(lab)
    if not AXE:
        for x in axr[:12]: a(x)
        a('s_waitcnt lgkmcnt(6)')
    for ct in range(2):
        for k in range(4): a(f'ds_read_u16 v{W3+4*ct+k}, v{aW3} offset:{k*512+ct*64}')
    a('s_waitcnt lgkmcnt(2)')
    for x in axr[12:]: a(x)
    a('s_waitcnt lgkmcnt(6)')
    stampat('C')
    breads(0)
    stampat('p')
    if RSA:
        a('s_waitcnt lgkmcnt(0)')
        stage(3)
        rstores()
    compute(0, nostage=bool(RSA))
    stampat('d')
    compute(1); stampat('r')
    a(f's_mov_b32 s{sTmp}, {hex(f2u(-LOG2E))}')
    for k in range(8): a(f'v_lshlrev_b32 v{W3+k}, 16, v{W3+k}\nv_mul_f32 v{W3+k}, s{sTmp}, v{W3+k}')
    for p in range(4): a(f'v_cvt_pk_bf16_f32 v{W3+p}, v{W3+2*p}, v{W3+2*p+1}')
    def sigA(extra=''):
        a(vm.wait('cells'))
        a(f'''s_cmp_lg_u32 s{sWV}, 0
    s_cbranch_scc1 kf_initok
    s_mov_b32 s{sPoll}, {POLL_LIMIT}''')
        a.label('kf_initpoll')
        a(f'''v_readfirstlane_b32 s{sTmp}, v{vDB}
    s_cmp_lg_u32 s{sTmp}, 0
    s_cbranch_scc1 kf_initok
    v_mov_b32 v{vDB}, 0
    s_sleep 2
    buffer_load_dword v{vDB}, v{vDB}, s[{sD}:{sD+3}], 0 offen sc1
    s_waitcnt vmcnt(0)
    s_sub_u32 s{sPoll}, s{sPoll}, 1
    s_cbranch_scc0 kf_initpoll''')
        a.label('kf_initok')
        a(extra + 's_barrier')
        signal(WS_FLAG, 'kf_sigA')
    if not RSA: sigA()
    stampat('k')
    a(f'''s_cmp_lt_u32 s{sWV}, 4
    s_cbranch_scc1 kf_nt2
    s_and_b32 s{sTmp}, s2, 0xf8
    s_lshl_b32 s{sTmp}, s{sTmp}, 9
    s_lshl_b32 s{sTmp2}, s{sCQ}, 10
    s_add_u32 s{sTmp}, s{sTmp}, s{sTmp2}
    buffer_load_dwordx4 {vr(66,4)}, v{vL16}, s[{sU}:{sU+3}], s{sTmp} offen''')
    a.label('kf_nt2')
    compute(2); stampat('s')
    S6 = not opt.get('s6early')
    compute(3, nostage=S6, noread=bool(RSA)); stampat('t')
    a(f'''s_cmp_lg_u32 s{sWV}, 7
    s_cbranch_scc1 kf_norl2
    s_cmp_ge_u32 s2, 128
    s_cbranch_scc1 kf_norl2''')
    for p in range(4): a(f'v_lshl_or_b32 v{RL+p}, v{RL+2*p+1}, 16, v{RL+2*p}')
    a(f'''s_lshl_b32 s{sTmp}, s2, 10
    s_add_u32 s{sTmp}, s{sTmp}, {WS_WF - WS_CELLS}
    buffer_store_dwordx4 {vr(RL,4)}, v{vL16}, {WS}, s{sTmp} offen sc1''')
    a.label('kf_norl2')
    tile_out(True)
    a('s_setprio 0' if not opt.get('noprioA') else 's_nop 1')
    if RSA:
        sigA()
        breads(4)
    if S6: stage(6)
    stampat('l')
    def rec_loads(tab, t0, t1, lab):
        a(f'''v_and_b32 v{t1}, 1, v0
        v_and_b32 v{t0}, 0xffff, v{tab}
        v_add_u32 v{t0}, v{t0}, v{t1}
        v_mad_u32_u24 v{t0}, v{t0}, 12, v{vNOVF}
        v_lshrrev_b32 v{tab}, 16, v{tab}
        v_sub_u32 v{t1}, v{tab}, v{t1}
        v_add_u32 v{t1}, 1, v{t1}
        v_lshrrev_b32 v{t1}, 1, v{t1}''')
        for i in range(8): a(f'v_cmp_lt_u32 s[{sMask+2*i}:{sMask+2*i+1}], {i}, v{t1}')
        a(f'v_cmp_lt_u32 s[{sOv}:{sOv+1}], 8, v{t1}')
        for i in range(8):
            a(f'''s_mov_b64 exec, s[{sMask+2*i}:{sMask+2*i+1}]
            s_cbranch_execz {lab}
            buffer_load_dwordx3 {vr(REC+4*i,3)}, v{t0}, {WS}, 0 offen offset:{1024+24*i}{LD}''')
        a.label(lab)
        a('s_mov_b64 exec, -1')
    srd(a, sO, 16, N * 512)
    compute(4); stampat('u')
    compute(5, noread=S6); stampat('v')
    a(f's_cmp_lg_u32 s{sWV}, 0\ns_cbranch_scc1 kf_pollA_ok')
    poll(WS_FLAG, 'kf_pollA', UQ)
    a(vm.wait('st7') + '\ns_barrier')
    a(f'''s_lshl_b32 s{sTmp}, s0, 2
    buffer_load_dword v{vDB}, v{vNOVF}, {WS}, s{sTmp} offen{LD}''')
    vm.issue('tab')
    signal(WS_FLAG + 8192, 'kf_sigB')
    stampat('o')
    if S6: breads(6, True)
    compute(6, nowait=True); compute(7); stampat('x')
    for i in range(4): a(f'v_mov_b32 v{XR+8+i}, v{vW+i}')
    a(f'''v_and_b32 v{U0}, 3, v{vLane}
    v_lshlrev_b32 v{U0}, 3, v{U0}
    v_sub_u32 v{aB}, v{aB}, v{U0}
    v_lshlrev_b32 v{U0}, 1, v{U0}
    v_xor_b32 v{aB}, v{aB}, v{U0}''')
    a(vm.wait('tab'))
    rec_loads(vDB, TOUCH, TOUCH + 1, 'kf_recend')
    stampat('w')
    def w1reads(i, reg):
        for ks in range(2):
            for c in range(2):
                for t_ in range(2):
                    a(f'ds_read_b64_tr_b16 {vr(W1F[((i-8)*2+ks)*2+c]+2*t_,2)}, v{reg} offset:{(i%3)*4096+(32*ks+4*t_)*64+8*c}')
    tile_out(False)
    a(f'v_mov_b32 v{B2A}, v{W3}\nv_mov_b32 v{B2A+1}, v{W3+1}\nv_mov_b32 v{B2B}, v{W3+2}\nv_mov_b32 v{B2B+1}, v{W3+3}')
    stampat('n')
    w1pos = opt.get('w1pos', 'r,g,r').split(',')
    NN_ = sum(1 for x in w1pos if x == 'n')
    for i in (9, 10, 8):
        if w1pos[i - 8] == 'n': stage(i)
    a(f'''s_sub_u32 s{sP}, s{sPw}, 3072
    s_subb_u32 s{sP+1}, s{sPw+1}, 0
    s_or_b32 s{sP+1}, s{sP+1}, {512 << 16}
    s_mov_b32 s{sP+2}, {0 if opt.get('nogather') else N}
    s_mov_b32 s{sP+3}, 0x20000
    v_mov_b32 v{TQ}, 0
    v_mov_b32 v{TQ+1}, 0
    v_mov_b32 v{TQ+2}, 0
    v_mov_b32 v{TQ+3}, 0
    s_mov_b32 s{sHeavy}, 0
    s_mov_b32 s{sB}, 0
    s_mov_b32 s{sRdone}, 0
    s_mov_b32 s{sAcc}, 0
    s_mov_b32 s{sSafe}, {1 if opt.get('allsafe') else 0}
    s_mov_b32 s{sEAT}, {EAT}
    s_cmp_lg_u32 s{sWV}, 7
    s_cbranch_scc1 k2_nooh
    v_add_u32 v{T0}, {QT + 40*QSTR}, v{vL16}
    ds_write_b128 v{T0}, {vr(TQ,4)}
    ds_write_b128 v{T0}, {vr(TQ,4)} offset:1024
    ds_write_b128 v{T0}, {vr(TQ,4)} offset:2048
    ds_write_b128 v{T0}, {vr(TQ,4)} offset:3072
    v_mul_u32_u24 v{T0}, {OSTR+2}, v{vLane}
    v_mov_b32 v{T2}, 0x3f80
    v_add_u32 v{T0}, {OH}, v{T0}
    s_mov_b32 exec_hi, 0xff
    ds_write_b16 v{T0}, v{T2}
    s_mov_b32 exec_hi, -1''')
    a.label('k2_nooh')
    a(f's_cmp_lg_u32 s{sWV}, 0\ns_cselect_b32 s{sBok}, 1, 0\ns_branch k2_first')
    a.label('k2_batch')
    for i in range(4): a(f'v_mov_b32 v{TQ+i}, 0')
    list_prefill(TQ, DL4, T0, T1)
    list_consts(T0, T1, T2, T3)
    a('s_waitcnt lgkmcnt(0)\ns_barrier')
    a.label('k2_first')
    stampat(1)
    a(f'''v_lshrrev_b32 v{T2}, 5, v{vLane}
    v_and_b32 v{T3}, 31, v{vLane}
    v_lshlrev_b32 v{T0}, 3, v{T2}
    v_sub_u32 v{T0}, v{T3}, v{T0}
    v_mov_b32 v{T1}, 0x3f80
    v_and_b32 v{aQ}, 1, v{T0}
    v_lshlrev_b32 v{aQ}, 4, v{aQ}
    v_lshlrev_b32 v{T1}, v{aQ}, v{T1}
    v_lshrrev_b32 v{T0}, 1, v{T0}''')
    for k, reg in enumerate([I0, I0+1, I0+2, I0+3, I1, I1+1, I1+2, I1+3]):
        c = k if k < 4 else k + 4
        m = 'vcc' if k % 2 == 0 else f's[{sSv}:{sSv+1}]'
        a(f'v_cmp_eq_u32 {m}, {c}, v{T0}')
        if k:
            pk, preg = k - 1, [I0, I0+1, I0+2, I0+3, I1, I1+1, I1+2, I1+3][k-1]
            a('s_nop 0')
            a(f'v_cndmask_b32 v{preg}, 0, v{T1}, ' + ('vcc' if pk % 2 == 0 else f's[{sSv}:{sSv+1}]'))
    a(f'''v_mov_b32 v{A2}, 0
    v_mov_b32 v{A2+1}, 0
    v_cndmask_b32 v{I1+3}, 0, v{T1}, s[{sSv}:{sSv+1}]
    v_mov_b32 v{A2+2}, 0
    v_mov_b32 v{A2+3}, 0
    s_mov_b32 s{sQs}, {QSTR//4}
    s_mov_b32 s{sOs}, {OSTR//4}''')
    for d in range(4):
        a(f'v_mov_b32 v{IDX1+2*d+1}, v{IDX+2*d+1}\nv_mov_b32 v{IDX2+2*d+1}, v{IDX+2*d+1}')
    a(f'v_mov_b32 v{T3}, 1')
    stampat('e')
    a(f's_waitcnt vmcnt({4 * NN_})')
    stampat(2)
    for i in range(8):
        a(f'''s_mov_b64 exec, s[{sMask+2*i}:{sMask+2*i+1}]
        s_cbranch_execz kf_histend
        v_lshrrev_b32 v{DL4+i}, 14, v{REC+4*i+2}
        v_add_u32 v{T1}, {CNT}, v{DL4+i}
        ds_add_rtn_u32 v{RK+i}, v{T1}, v{T3}''')
    a(f'''s_mov_b64 exec, s[{sOv}:{sOv+1}]
    v_mov_b32 v{T1}, {CNT + 252}
    ds_add_u32 v{T1}, v{T3}''')
    a.label('kf_histend')
    a(f'''s_mov_b64 exec, -1
    v_lshlrev_b32 v{T0}, 2, v{vLane}
    v_add_u32 v{T0}, {CNT}, v{T0}
    s_waitcnt lgkmcnt(0)
    s_nop 0''')
    def w1stage(pos):
        for i in (8, 9, 10):
            if w1pos[i - 8] == pos:
                a(f's_or_b32 s{sTmp2}, s{sHeavy}, s{sRdone}\ns_cbranch_scc1 kf_nost{i}')
                stage(i)
                a.label(f'kf_nost{i}')
    w1stage('g')
    stampat('f')
    a('s_barrier')
    stampat('g')
    a(f'ds_read_b32 v{T1}, v{T0}\nv_cmp_gt_u32 vcc, 40, v{vLane}')
    w1stage('r')
    a(f'''s_cmp_lg_u32 s{sBok}, 0
    s_cbranch_scc1 kf_nopk1
    s_and_b32 s{sTmp}, s2, 7
    s_lshl_b32 s{sTmp}, s{sTmp}, 10
    s_add_u32 s{sTmp}, s{sTmp}, {WS_FLAG + 8192 - WS_CELLS}
    buffer_load_dwordx4 {vr(IDX3,4)}, v{vL16}, {WS}, s{sTmp} offen sc1''')
    a.label('kf_nopk1')
    dpp = ['row_shr:1 row_mask:0xf bank_mask:0xf', 'row_shr:2 row_mask:0xf bank_mask:0xf', 'row_shr:4 row_mask:0xf bank_mask:0xf',
           'row_shr:8 row_mask:0xf bank_mask:0xf', 'row_bcast:15 row_mask:0xa bank_mask:0xf', 'row_bcast:31 row_mask:0xc bank_mask:0xf']
    a(f'''s_waitcnt lgkmcnt(0)
    v_readlane_b32 s{sT1}, v{T1}, 63
    v_add_u32 v{T1}, 3, v{T1}
    v_lshrrev_b32 v{T1}, 2, v{T1}
    v_cndmask_b32 v{T1}, 0, v{T1}, vcc
    v_mov_b32 v{T2}, v{T1}
    s_lshl_b32 s{sTmp3}, s{sT1}, 8
    s_nop 0''')
    for k, d in enumerate(dpp):
        a(f'v_add_u32_dpp v{T2}, v{T2}, v{T2} {d}' + (' bound_ctrl:0' if k < 4 else ''))
        a('s_nop 1' if k < 5 else 's_nop 0')
    a(f'''v_readlane_b32 s{sQt}, v{T2}, 63
    v_sub_u32 v{T1}, v{T2}, v{T1}
    v_add_u32 v{T2}, 7, v{T1}
    v_lshrrev_b32 v{T2}, 3, v{T2}
    s_add_u32 s{sTmp}, s{sQt}, 7
    v_sub_u32 v{T0}, s{sTmp}, v{T1}
    v_lshrrev_b32 v{T0}, 3, v{T0}
    v_add_u32 v{T2}, v{T2}, v{T0}
    v_lshlrev_b32 v{T0}, 1, v{T1}
    s_add_u32 s{sTmp}, s{sQt}, {int(opt.get('bias', 0))}
    v_sad_u32 v{T0}, v{T0}, s{sTmp}, 0
    v_lshl_add_u32 v{T2}, v{T2}, 5, v{T0}
    v_subrev_u32 v{T0}, 8, v{vLane}
    v_lshl_add_u32 v{T2}, v{T2}, 6, v{vLane}
    v_cmp_gt_u32 vcc, 25, v{T0}
    s_nop 1
    v_cndmask_b32 v{T2}, -1, v{T2}, vcc
    s_nop 1''')
    for k, d in enumerate(dpp):
        a(f'v_min_u32_dpp v{T2}, v{T2}, v{T2} {d}')
        a('s_nop 1' if k < 5 else 's_nop 0')
    a(f'''v_readlane_b32 s{sSplit}, v{T2}, 63
    s_and_b32 s{sSplit}, s{sSplit}, 63
    s_cmp_lg_u32 s{sHeavy}, 0
    s_cselect_b32 s{sSplit}, 20, s{sSplit}
    s_nop 0
    v_readlane_b32 s{sTmp}, v{T1}, s{sSplit}
    v_cmp_le_u32 vcc, s{sSplit}, v{vLane}
    s_add_u32 s{sT0}, s{sTmp}, 7
    s_lshr_b32 s{sT0}, s{sT0}, 3
    s_sub_u32 s{sT1}, s{sQt}, s{sTmp}
    s_add_u32 s{sT1}, s{sT1}, 7
    s_lshr_b32 s{sT1}, s{sT1}, 3
    s_add_u32 s{sTmp2}, s{sT0}, s{sT1}
    s_add_u32 s{sTmp2}, s{sTmp2}, s{sTmp3}
    s_cmp_le_u32 s{sTmp2}, {NT}
    s_cbranch_scc1 k2_fits
    s_mov_b32 s{sHeavy}, 1
    s_branch k2_hentry''')
    a.label('k2_fits')
    stampat('h')
    a(f'''s_lshl_b32 s{sTmp2}, s{sT0}, 3
    s_sub_u32 s{sTmp2}, s{sTmp2}, s{sTmp}
    v_mov_b32 v{T2}, s{sTmp2}
    v_cndmask_b32 v{T2}, 0, v{T2}, vcc
    v_add_lshl_u32 v{T1}, v{T1}, v{T2}, 2''')
    for i in range(8):
        if i in (2, 4, 6): a(f's_cmp_eq_u64 s[{sMask+2*i}:{sMask+2*i+1}], 0\ns_cbranch_scc1 kf_bpend')
        a(f'ds_bpermute_b32 v{TQ+i}, v{DL4+i}, v{T1}')
    a.label('kf_bpend')
    a(f'''s_cmp_eq_u32 s{sG}, 0
    s_cselect_b32 s{sT}, s{sT0}, s{sT1}
    s_cselect_b32 s{sTbase}, 0, s{sT0}
    s_cselect_b32 s{sTmp2}, 0, 192
    s_lshl_b32 s{sT0}, s{sT0}, 5
    s_lshl_b32 s{sTmp}, s{sTbase}, 6
    s_add_u32 s{sTmp}, s{sTmp}, s{sTmp2}
    s_add_u32 s{sTmp}, s{sTmp}, {SRC}
    v_add_u32 v{aSRC}, s{sTmp}, v{aSRC}
    s_lshl_b32 s{sTmp}, s{sTbase}, 9
    s_add_u32 s{sTmp}, s{sTmp}, {EAT}
    v_add_u32 v{aEAT}, s{sTmp}, v{aEAT}
    s_lshl_b32 s{sTmp}, s{sTbase}, 3
    s_add_u32 s{sTmp}, s{sTmp}, {XL}
    v_add_u32 v{aXL}, s{sTmp}, v{aXL}
    v_mov_b32 v{vX}, {SRC}
    v_mov_b32 v{aQ}, {SRC+192}''')
    a(f'v_mov_b32 v{S}, 0x3f80\nv_mov_b32 v{S+1}, 0\ns_mov_b32 s{sTmp}, {XL}\ns_waitcnt lgkmcnt(0)')
    for i in range(8):
        er = REC + 4 * i
        a(f'''s_mov_b64 exec, s[{sMask+2*i}:{sMask+2*i+1}]
        s_cbranch_execz kf_scend
        v_add_u32 v{RK+i}, v{RK+i}, v{TQ+i}
        v_cmp_gt_u32 vcc, s{sT0}, v{RK+i}
        v_lshrrev_b32 v{T2}, 2, v{RK+i}
        v_and_b32 v{T0}, 12, v{RK+i}
        v_cndmask_b32 v{T1}, v{aQ}, v{vX}, vcc
        v_add_u32 v{T2}, s{sTmp}, v{T2}
        v_lshl_add_u32 v{T1}, v{RK+i}, 1, v{T1}
        v_lshlrev_b32 v{T0}, 2, v{T0}
        ds_write_b16 v{T1}, v{er+2}
        ds_write_b8 v{T2}, v{DL4+i}
        v_lshl_add_u32 v{RK+i}, v{RK+i}, 4, s{sEAT}
        v_lshlrev_b64 {vr(er+2,2)}, v{T0}, {vr(S,2)}
        ds_write_b128 v{RK+i}, {vr(er,4)}''')
    a.label('kf_scend')
    a('s_mov_b64 exec, -1')
    a(f's_waitcnt vmcnt(0)\ns_cmp_lg_u32 s{sRdone}, 0\ns_cbranch_scc1 kf_now1\ns_waitcnt lgkmcnt(4)')
    w1reads(9, aB)
    a.label('kf_now1')
    a(f'''s_cmp_lg_u32 s{sBok}, 0
    s_cbranch_scc1 kf_nopeek
    v_and_b32 v{IDX3}, v{IDX3}, v{IDX3+1}
    v_and_b32 v{IDX3+2}, v{IDX3+2}, v{IDX3+3}
    v_and_b32 v{IDX3}, v{IDX3}, v{IDX3+2}
    v_cmp_eq_u32 vcc, 1, v{IDX3}
    s_cmp_eq_u64 vcc, -1
    s_cbranch_scc0 kf_nopeek
    {INV}
    s_mov_b32 s{sBok}, 1''')
    a.label('kf_nopeek')
    a(f's_cmp_lg_u32 s{sBok}, 0\ns_cbranch_scc1 kf_bdone')
    poll(WS_FLAG + 8192, 'kf_pollB', TQ + 4)
    a(f'{INV}\ns_mov_b32 s{sBok}, 1\ns_waitcnt vmcnt(0)')
    a.label('kf_bdone')
    for x in (MA, MA + 1, MB, MB + 1, S, S + 1): a(f'v_mov_b32 v{x}, 0')
    for d in range(4): a(f'v_mov_b32 v{IDX3+2*d+1}, v{IDX+2*d+1}')
    a(f'v_mov_b32 v{T3}, v{aB}\ns_waitcnt lgkmcnt(0)\ns_barrier')
    vm.ops = []
    stampat(3)
    if opt.get('prio3'): a('s_setprio 2')
    DOFF = [0, 4, 16, 20]
    def idx_reads(base, toff):
        return [f'ds_read_u16 v{base+2*d}, v{aSRC} offset:{toff*64+DOFF[d]}' for d in range(4)]
    def dma_ins(base, d, tag):
        vm.issue(tag)
        return f'buffer_load_dwordx4 {vr(base+2*d,2)}, s[{sP}:{sP+3}], 0 idxen offen offset:{d*1024} lds'
    for x in idx_reads(IDX1, 0) + idx_reads(IDX2, 1): a(x)
    a(f's_mov_b32 m0, s{sRing}\ns_waitcnt lgkmcnt(4)')
    for d in range(4): a(dma_ins(IDX1, d, 'dma0'))
    a(f's_cmp_lg_u32 s{sRdone}, 0\ns_cbranch_scc1 kf_now2')
    w1reads(10, T3)
    a('s_waitcnt lgkmcnt(4)')
    w1reads(8, T3)
    a('s_waitcnt lgkmcnt(0)')
    sv_ = list(vm.ops)
    stage(11)
    vm.ops = sv_
    a.label('kf_now2')
    D1 = int(opt.get('d1pos', 2))
    a('s_waitcnt lgkmcnt(0)')
    def dma1():
        a(f's_add_u32 m0, s{sRing}, 4096\ns_nop 0')
        for d in range(4): a(dma_ins(IDX2, d, 'dma1'))
    if D1 < 0: dma1()
    if opt.get('prio3'): a('s_setprio 0')
    stampat(4)
    def gemm(acc, frag, addr, wregs, first, waitv, hook=None):
        def rd(s):
            for rt in range(3):
                f = frag + (s & 1) * 12 + rt * 4
                a(f'ds_read_b128 {vr(f,4)}, v{addr+(s&3)} offset:{rt*8192+(s>>2)*256}')
        rd(0)
        for s in range(8):
            if s + 1 < 8:
                rd(s + 1); w = 'lgkmcnt(3)'
            else: w = 'lgkmcnt(0)'
            wv = waitv(s)
            a((wv + ' ' + w) if wv else 's_waitcnt ' + w)
            if hook: hook(s)
            for rt in range(3):
                for c in range(2):
                    d = acc[rt * 2 + c]; f = frag + (s & 1) * 12 + rt * 4
                    cin = '0' if (first and s == 0) else vr(d, 4)
                    a(f'v_mfma_f32_16x16x32_bf16 {vr(d,4)}, {vr(wregs(s*2+c),4)}, {vr(f,4)}, {cin}')
    def xaddr(dst, t0, t1):
        a(f'''v_and_b32 v{t0}, 15, v{vLane}
        v_lshrrev_b32 v{t1}, 4, v{vLane}
        v_xor_b32 v{t1}, v{t1}, v{t0}
        v_lshlrev_b32 v{t1}, 4, v{t1}
        v_lshl_add_u32 v{t0}, v{t0}, 9, v{t1}
        v_add_u32 v{dst}, {XT}, v{t0}''')
        for s_ in range(1, 4):
            a(f'v_xor_b32 v{t1}, {s_<<6}, v{t0}\nv_add_u32 v{dst+s_}, {XT}, v{t1}')
    if D1 >= 0:
        a(f's_cmp_eq_u32 s{sRdone}, 0\ns_cbranch_scc1 kf_dor')
        sv_ = list(vm.ops); dma1(); vm.ops = sv_
        a('s_branch kf_nor')
        a.label('kf_dor')
    else: a(f's_cmp_lg_u32 s{sRdone}, 0\ns_cbranch_scc1 kf_nor')
    xaddr(RK, T0, T1)
    def hook(s_):
        if s_ == D1: dma1()
        if s_ == 5:
            a('s_waitcnt vmcnt(4)')
            w1reads(11, T3)
            a('s_waitcnt lgkmcnt(8)')
    gemm([OA + 4 * i for i in range(6)], REC, RK, lambda i: W1F[i], True, lambda s_: None, hook)
    a(f'''s_mov_b32 s{sRdone}, 1
    v_mov_b32 v{T0}, {HMAX+8}
    v_mov_b32 v{T1}, 1
    s_mov_b64 exec, 1
    ds_add_u32 v{T0}, v{T1}
    s_mov_b64 exec, -1''')
    for i in range(4): a(f'v_mov_b32 v{XR+i}, v{RK+i}')
    a(f's_mov_b32 s{sSv}, {hex(f2u(-LOG2E))}\ns_mov_b32 s{sSv+1}, {hex(f2u(-LOG2E))}')
    a(f'''v_and_b32 v{T0}, 31, v{vLane}
    s_lshl_b32 s{sTmp2}, s{sG}, 3
    v_add_u32 v{T0}, s{sTmp2}, v{T0}
    v_and_b32 v{T2}, 15, v{T0}
    s_lshl_b32 s{sTmp2}, s{sCQ}, 3
    v_xor_b32 v{T2}, s{sTmp2}, v{T2}
    v_lshlrev_b32 v{T2}, 4, v{T2}
    v_lshl_add_u32 v{T2}, v{T0}, 9, v{T2}
    v_lshrrev_b32 v{T1}, 5, v{vLane}
    v_lshl_add_u32 v{T2}, v{T1}, 3, v{T2}
    v_add_u32 v{XR+4}, {XT}, v{T2}
    v_and_b32 v{T0}, 15, v{vLane}
    v_lshrrev_b32 v{T1}, 4, v{vLane}
    v_lshlrev_b32 v{T1}, 4, v{T1}
    v_lshl_add_u32 v{XR+6}, v{T0}, 9, v{T1}
    v_mov_b32 v{XR+7}, {HMAX+8}
    v_mov_b32 v{vMX}, 0''')
    for i in range(12): a(f'v_pk_mul_f32 {pr(OA+2*i)}, {pr(OA+2*i)}, s[{sSv}:{sSv+1}]')
    a.label('kf_nor')
    a(f'''v_and_b32 v{T0}, 31, v{vLane}
    s_lshl_b32 s{sTmp2}, s{sG}, 3
    v_add_u32 v{T0}, s{sTmp2}, v{T0}
    v_cmp_gt_u32 vcc, s{sSplit}, v{T0}
    s_cmp_eq_u32 s{sG}, 0
    s_cselect_b64 s[{sNM}:{sNM+1}], 0, -1
    s_xor_b64 s[{sNM}:{sNM+1}], s[{sNM}:{sNM+1}], vcc''')
    for x in range(4): a(f'v_mov_b32 v{NF+x}, 0\nv_mov_b32 v{DF+x}, 1.0')
    stampat(5)
    a(f'''s_cmp_eq_u32 s{sT}, 0
    s_cbranch_scc1 k2_loopend
    ds_read_u8 v{vX}, v{aXL}
    s_mov_b64 exec, s[{sHM}:{sHM+1}]
    ds_read_b128 {vr(A2,4)}, v{aEAT}
    s_mov_b64 exec, -1''')
    a(vm.wait('dma0'))
    a(f'''ds_read_b128 {vr(PA,4)}, v{aP}
    ds_read_b128 {vr(PA+4,4)}, v{aP+1}
    ds_read_b128 {vr(PB,4)}, v{aP+2}
    ds_read_b128 {vr(PB+4,4)}, v{aP+3}
    s_waitcnt lgkmcnt(5)
    v_mad_u32_u24 v{aQ}, v{vX}, s{sQs}, v{cQ}
    v_mad_u32_u24 v{aS}, v{vX}, s{sOs}, v{cS}
    ds_read_u8 v{vX}, v{aXL} offset:8
    ds_read_b64_tr_b16 {vr(B2A+2,2)}, v{aQ}
    ds_read_b64_tr_b16 {vr(B2B+2,2)}, v{aQ} offset:64''')
    for x in idx_reads(IDX3, 2) + idx_reads(IDX, 3): a(x)
    a(f's_sub_u32 s{sCnt}, s{sT}, 1\ns_waitcnt lgkmcnt(9)')
    def zchain(D, B2, P):
        return [f'v_mfma_f32_32x32x16_bf16 {vr(D,16)}, {vr(A2,4)}, {vr(B2,4)}, 0',
                f'v_mfma_f32_32x32x16_bf16 {vr(D,16)}, {vr(P,4)}, {vr(I0,4)}, {vr(D,16)}',
                f'v_mfma_f32_32x32x16_bf16 {vr(D,16)}, {vr(P+4,4)}, {vr(I1,4)}, {vr(D,16)}']
    for m in zchain(DA, B2A, PA): a(m)
    if prio == 'young': a(f's_cmp_eq_u32 s{sG}, 0\ns_cbranch_scc1 k2_noprio\ns_setprio 1\nk2_noprio:')
    a('s_nop 7\ns_nop 3')
    stampat(6)

    cur = {'pT': None, 'pP': None, 'safe': bool(opt.get('allsafe'))}
    maxops = [f'v_max3_f32 v{vMX}, v{vMX}, v{DF}, v{DF+1}', f'v_max3_f32 v{vMX}, v{vMX}, v{DF+2}, v{DF+3}'][:2 if opt.get('noshare') else 1]
    def half(D, accprev, Mprev, Mfin, zc, extra_T, extra_P):
        sh = not cur['safe'] and not opt.get('noshare')
        Ts = [f'v_exp_f32 v{EE+i}, v{D+i}' for i in range(16)] + [f'v_rcp_f32 v{DF+i}, v{DF+i}' for i in range(2 if sh else 4)]
        cuts = [0, 4, 8, 12, 18] if sh else [0, 5, 10, 15, 20]
        if not cur['safe']:
            extra_T = dict(extra_T)
            extra_T[2] = extra_T.get(2, []) + maxops
        mf = [f'v_mfma_f32_32x32x8_bf16 {vr(accprev,16)}, {vr(Mprev,2)}, {vr(S,2)}, {vr(accprev,16)}'] + zc
        if cur['pT'] is not None: a(f's_setprio {cur["pT"]}')
        LEAD = int(opt.get('lead', 0))
        for t_ in Ts[:LEAD]: a(t_)
        a('s_waitcnt lgkmcnt(0)')
        Ts = [None] * LEAD + Ts[LEAD:]
        for k in range(4):
            if k == 0 and cur.get('first'):
                lab = cur['first']
                a(f's_cmp_lg_u32 s{sAcc}, 0\ns_cbranch_scc1 {lab}_a')
                a(f'v_mfma_f32_32x32x8_bf16 {vr(accprev,16)}, {vr(Mprev,2)}, {vr(S,2)}, 0')
                a.label(lab + '_a')
                continue_T = True
                for x in extra_T.get(k, []): a(x)
                for t_ in Ts[cuts[k]:cuts[k + 1]]:
                    if t_: a(t_)
                continue
            a(mf[k])
            for x in extra_T.get(k, []): a(x)
            for t_ in Ts[cuts[k]:cuts[k + 1]]:
                if t_: a(t_)
        if cur['pP'] is not None: a(f's_setprio {cur["pP"]}')
        bs = [0, 4, 8, 12]
        fin = [f'v_pk_mul_f32 {pr(NF)}, {pr(NF)}, {pr(DF)}', f'v_pk_mul_f32 {pr(NF+2)}, {pr(NF+2)}, {pr(DF if sh else DF+2)}']
        cvt = [f'v_cvt_pk_bf16_f32 v{Mfin}, v{NF}, v{NF+1}', f'v_cvt_pk_bf16_f32 v{Mfin+1}, v{NF+2}, v{NF+3}']
        if cur['safe']:
            Ps = [f'v_pk_fma_f32 {pr(EE+2*p)}, {pr(EE+2*p)}, s[{sC}:{sC+1}], s[{sC}:{sC+1}] clamp' for p in range(8)]
            Ps += fin
            Ps += [f'v_pk_mul_f32 {pr(D+b)}, {pr(D+b)}, {pr(EE+b+2)}' for b in bs]
            Ps += cvt
            Ps += [f'v_pk_fma_f32 {pr(D+b)}, {pr(D+b+2)}, {pr(EE+b)}, {pr(D+b)}' for b in bs]
            Ps += [f'v_pk_mul_f32 {pr(EE+b)}, {pr(EE+b)}, {pr(EE+b+2)}' for b in bs]
        else:
            Ps = [f'v_pk_add_f32 {pr(EE+b+2)}, {pr(EE+b+2)}, 1.0 op_sel_hi:[1,0]' for b in bs]
            Ps += fin
            Ps += [f'v_pk_fma_f32 {pr(D+b)}, {pr(D+b)}, {pr(EE+b+2)}, {pr(D+b+2)}' for b in bs]
            Ps += cvt
            Ps += [f'v_pk_fma_f32 {pr(D+b)}, {pr(D+b+2)}, {pr(EE+b)}, {pr(D+b)}' for b in bs]
            Ps += [f'v_pk_fma_f32 {pr(EE+b)}, {pr(EE+b)}, {pr(EE+b+2)}, {pr(EE+b+2)}' for b in bs]
        Ps += [f'v_pk_mul_f32 {pr(NF+2*B)}, {pr(D+8*B)}, {pr(EE+8*B+4)}' for B in range(2)]
        Ps += [f'v_pk_mul_f32 {pr(DF+2*B)}, {pr(EE+8*B)}, {pr(EE+8*B+4)}' for B in range(2)]
        Ps += [f'v_pk_fma_f32 {pr(NF+2*B)}, {pr(D+8*B+4)}, {pr(EE+8*B)}, {pr(NF+2*B)}' for B in range(2)]
        if sh:
            Ps += [f'v_pk_mul_f32 {pr(NF)}, {pr(NF)}, {pr(DF+2)}', f'v_pk_mul_f32 {pr(NF+2)}, {pr(NF+2)}, {pr(DF)}',
                   f'v_pk_mul_f32 {pr(DF)}, {pr(DF)}, {pr(DF+2)}']
        nP = len(Ps)
        remap = {}
        for i in sorted(extra_P): remap.setdefault(min(i * nP // 30, nP - 1), []).extend(extra_P[i])
        for i, p in enumerate(Ps):
            for x in remap.get(i, []):
                a(x() if callable(x) else x)
            a(p)
    def spread(d, xs, start, step=1):
        for i, x in enumerate(xs):
            d.setdefault(start + i * step, []).extend(x if isinstance(x, list) else [x])
    wsched = [('u2', i) for i in range(16)]
    NPEEL = int(opt.get('npeel', 6))
    per = {6: [0, 3, 3, 3, 3, 4], 3: [4, 6, 6], 9: [0, 2, 2, 2, 2, 2, 2, 2, 2]}[NPEEL]
    def iteration(tau, u, peeled):
        sl = (u + 1) % 3
        eT = {3: [f'v_mad_u32_u24 v{aQ}, v{vX}, s{sQs}, v{cQ}', f'v_mad_u32_u24 v{aS+sl}, v{vX}, s{sOs}, v{cS}']}
        eP = {}
        spread(eP, [(lambda: vm.wait(f'dma{tau+1}')) if peeled else 's_waitcnt vmcnt(4)',
              f'ds_read_b128 {vr(PA,4)}, v{aP} offset:{sl*4096}', f'ds_read_b128 {vr(PA+4,4)}, v{aP+1} offset:{sl*4096}',
              f'ds_read_b64_tr_b16 {vr(B2A+2,2)}, v{aQ}',
              [f's_mov_b64 exec, s[{sHM}:{sHM+1}]', f'ds_read_b128 {vr(A2,4)}, v{aEAT} offset:{(u+1)*512}', 's_mov_b64 exec, -1'],
              f's_add_u32 m0, s{sRing}, {u*4096}'], 1)
        if peeled and tau == 0:
            eP[6] = [f's_add_u32 m0, s{sRing}, 8192']
            spread(eP, [(lambda d=d: dma_ins(IDX3, d, 'dma2')) for d in range(4)], 7, 3)
            eP.setdefault(18, []).append(f's_mov_b32 m0, s{sRing}')
            spread(eP, [(lambda d=d: dma_ins(IDX, d, 'dma3')) for d in range(4)], 19, 3)
        else:
            spread(eP, [(lambda d=d: dma_ins(IDX, d, f'dma{tau+3}')) for d in range(4)], int(opt.get('d0', 8)), int(opt.get('ds', 7)))
        cur['first'] = f'kf_f{cur["g"]}A' if (peeled and tau == 0) else None
        half(DA, ACCA, MA, MB, zchain(DB, B2B, PB), eT, eP)
        eP = {}
        xs = [f'ds_read_b128 {vr(PB,4)}, v{aP+2} offset:{sl*4096}', f'ds_read_b128 {vr(PB+4,4)}, v{aP+3} offset:{sl*4096}',
              f'ds_read_b64_tr_b16 {vr(B2B+2,2)}, v{aQ} offset:64', f'ds_read_b64_tr_b16 {vr(S,2)}, v{aS+u}',
              f'ds_read_u8 v{vX}, v{aXL} offset:{(u+2)*8}'] + idx_reads(IDX, u + 4)
        spread(eP, xs, int(opt.get('x0', 1)), int(opt.get('xs', 2)))
        if peeled and not opt.get('nowpf') and cur['g'] != 'S':
            k0 = sum(per[:tau])
            for j, (m, i) in enumerate(wsched[k0:k0 + per[tau]]):
                def f(m=m, i=i):
                    ins = wload(WB2 + 4 * i, 2, i, 'wu')
                    return '\n'.join(ins)
                eP.setdefault(18 + 2 * j, []).append(f)
            if tau == NPEEL - 1: eP.setdefault(28, []).append(f's_mov_b32 s{sWdone}, 1')
        if u == 2:
            eP.setdefault(29, []).extend([f'v_add_u32 v{aSRC}, 192, v{aSRC}', f'v_add_u32 v{aEAT}, 1536, v{aEAT}', f'v_add_u32 v{aXL}, 24, v{aXL}'])
        eP.setdefault(29, []).append(f's_sub_u32 s{sCnt}, s{sCnt}, 1')
        cur['first'] = f'kf_f{cur["g"]}B' if (peeled and tau == 0) else None
        if cur['first']: eP.setdefault(27, []).append(f's_mov_b32 s{sAcc}, 1')
        half(DB, ACCB, MB, MA, zchain(DA, B2A, PA), {}, eP)
    spec = {'P': '01', 'none': 'xx', 'young': 'xx'}.get(prio, prio).split('|')
    saved = list(vm.ops)
    a(f's_cmp_lg_u32 s{sSafe}, 0\ns_cbranch_scc1 k2_safe')
    if len(spec) > 1: a(f's_cmp_lg_u32 s{sG}, 0\ns_cbranch_scc1 k2_g1')
    for g, sp in enumerate(spec):
        vm.ops = list(saved)
        sp = sp.split(',')
        def setp(k):
            x = sp[k % len(sp)]
            cur['pT'] = None if x[0] == 'x' else int(x[0]); cur['pP'] = None if x[1] == 'x' else int(x[1])
        cur['g'] = g
        if g: a.label('k2_g1')
        for tau in range(NPEEL):
            setp(tau)
            iteration(tau, tau % 3, True)
            a('s_cbranch_scc1 k2_drain')
        a.label(f'k2_loop{g}')
        for u in range(3):
            setp(u)
            iteration(100 + u, u, False)
            a('s_cbranch_scc1 k2_drain' if u < 2 else f's_cbranch_scc0 k2_loop{g}')
        if g + 1 < len(spec): a('s_branch k2_drain')
    a.label('k2_drain')
    a('s_setprio 0\ns_waitcnt lgkmcnt(0)')
    for x in maxops: a(x)
    a(f'v_mfma_f32_32x32x8_bf16 {vr(ACCA,16)}, {vr(MA,2)}, {vr(S,2)}, {vr(ACCA,16)}')
    if not opt.get('noshare'):
        a(f's_cmp_lg_u32 s{sSafe}, 0\ns_cbranch_scc1 kf_dr4\nv_mov_b32 v{DF+2}, v{DF}\nv_mov_b32 v{DF+3}, v{DF+1}')
        a.label('kf_dr4')
    for i in range(4): a(f'v_rcp_f32 v{DF+i}, v{DF+i}')
    a('s_nop 0')
    for i in range(4): a(f'v_mul_f32 v{NF+i}, v{NF+i}, v{DF+i}')
    a(f'''v_cvt_pk_bf16_f32 v{MB}, v{NF}, v{NF+1}
    v_cvt_pk_bf16_f32 v{MB+1}, v{NF+2}, v{NF+3}
    s_nop 1
    v_mfma_f32_32x32x8_bf16 {vr(ACCB,16)}, {vr(MB,2)}, {vr(S,2)}, {vr(ACCB,16)}''')
    a.label('k2_loopend')
    stampat(7)
    a(f'''s_cmp_eq_u32 s{sHeavy}, 0
    s_cbranch_scc1 k2_epi
    s_add_u32 s{sB}, s{sB}, 1''')
    a.label('k2_fetch')
    a(f'''s_waitcnt vmcnt(0) lgkmcnt(0)
    s_barrier
    s_cmp_ge_u32 s{sB}, s{sHeavy}
    s_cbranch_scc1 k2_epi
    s_lshl_b32 s{sTmp}, s0, 2
    buffer_load_dword v{TQ}, v{vNOVF}, {WS}, s{sTmp} offen sc1
    v_and_b32 v{T1}, 1, v0
    s_lshl_b32 s{sTmp}, s{sB}, 1
    v_add_u32 v{T1}, s{sTmp}, v{T1}
    s_waitcnt vmcnt(0)
    v_and_b32 v{T0}, 0xffff, v{TQ}
    v_lshrrev_b32 v{TQ}, 16, v{TQ}
    v_add_u32 v{T0}, v{T0}, v{T1}
    v_cmp_lt_u32 s[{sMask}:{sMask+1}], v{T1}, v{TQ}
    v_mad_u32_u24 v{T0}, v{T0}, 12, v{vNOVF}
    buffer_load_dwordx3 {vr(REC,3)}, v{T0}, {WS}, 0 offen offset:1024 sc1''')
    for i in range(1, 8): a(f's_mov_b64 s[{sMask+2*i}:{sMask+2*i+1}], 0')
    a(f's_mov_b64 s[{sOv}:{sOv+1}], 0\ns_waitcnt vmcnt(0)\ns_branch k2_batch')
    a.label('k2_redo')
    a(f's_mov_b32 s{sSafe}, 1\ns_mov_b32 s{sAcc}, 0\ns_mov_b32 s{sB}, 0')
    a.label('k2_hentry')
    a(f'''s_waitcnt vmcnt(0) lgkmcnt(0)
    s_lshl_b32 s{sTmp}, s0, 2
    buffer_load_dword v{TQ}, v{vNOVF}, {WS}, s{sTmp} offen sc1
    v_mov_b32 v{T0}, {HMAX}
    v_mov_b32 v{T1}, 1
    ds_write_b32 v{T0}, v{T1}
    s_waitcnt vmcnt(0) lgkmcnt(0)
    s_barrier
    v_lshrrev_b32 v{TQ}, 16, v{TQ}
    v_add_u32 v{TQ}, 1, v{TQ}
    v_lshrrev_b32 v{TQ}, 1, v{TQ}
    ds_max_u32 v{T0}, v{TQ}
    s_waitcnt lgkmcnt(0)
    s_barrier
    ds_read_b32 v{T1}, v{T0}
    s_waitcnt lgkmcnt(0)
    v_readfirstlane_b32 s{sHeavy}, v{T1}
    s_branch k2_fetch''')
    a.label('k2_epi')
    vm.ops = []
    a(f's_waitcnt vmcnt(0)\ns_cmp_lg_u32 s{sWdone}, 0\ns_cbranch_scc1 k2_wok')
    for (m, i) in wsched:
        for x in wload(WB2 + 4 * i, 2, i, 'c'): a(x)
    a('s_waitcnt vmcnt(0)')
    a.label('k2_wok')
    Y0, Y1, Y2, Y3 = X0, X0 + 1, X0 + 2, X0 + 3
    a(f'''s_cmp_lg_u32 s{sSafe}, 0
    s_cbranch_scc1 kf_noflag
    v_cmp_lt_f32 vcc, 0x5d800000, v{vMX}
    s_cbranch_vccz kf_noflag
    v_mov_b32 v{Y0}, 1
    ds_write_b32 v{XR+7}, v{Y0} offset:4
    kf_noflag:
    s_cmp_lg_u32 s{sAcc}, 0
    s_cbranch_scc1 kf_accok''')
    for i in range(32): a(f'v_mov_b32 v{ACCA+i}, 0')
    a.label('kf_accok')
    a(f'''ds_read_b32 v{Y0}, v{XR+7}
    s_waitcnt lgkmcnt(0)
    v_readfirstlane_b32 s{sTmp}, v{Y0}
    s_cmp_lt_u32 s{sTmp}, 8
    s_cbranch_scc1 kf_accok
    s_mov_b64 exec, s[{sNM}:{sNM+1}]''')
    Y2 = XR + 4
    a(f's_cmp_eq_u32 s{sSafe}, 0\ns_cbranch_scc1 kf_noscale')
    for q in range(16): a(f'v_pk_mul_f32 {pr(ACCA+2*q)}, {pr(ACCA+2*q)}, s[{sC}:{sC+1}]')
    a.label('kf_noscale')
    for q in range(8):
        if q: a(f'v_xor_b32 v{Y3}, {q<<4}, v{Y2}')
        a(f'''v_cvt_pk_bf16_f32 v{ACCA+4*q}, v{ACCA+4*q}, v{ACCA+4*q+1}
        v_cvt_pk_bf16_f32 v{ACCA+4*q+1}, v{ACCA+4*q+2}, v{ACCA+4*q+3}
        ds_write_b64 v{Y3 if q else Y2}, {vr(ACCA+4*q,2)}''')
    a('s_mov_b64 exec, -1')
    EA_ = XR; Y2 = XR + 6; Y3 = XR + 5
    a(f'''s_lshl_b32 s{sTmp2}, s{sN0}, 9
    s_lshl_b32 s{sTmp}, s{sWV}, 6
    s_add_u32 s{sTmp2}, s{sTmp2}, s{sTmp}
    s_waitcnt lgkmcnt(0)''')
    stampat(8)
    a(f's_barrier\nds_read_b32 v{Y0}, v{XR+7} offset:4')
    Z = DA
    def silu_ops(rt):
        b = OA + rt * 8
        ops = [f'v_exp_f32 v{Z+p}, v{b+p}' for p in range(8)]
        ops += [f'v_fma_f32 v{Z+p}, v{Z+p}, s{sC}, s{sC}' for p in range(8)]
        ops += [f'v_rcp_f32 v{Z+p}, v{Z+p}' for p in range(8)]
        ops += [f'v_mul_f32 v{Z+p}, v{b+p}, v{Z+p}' for p in range(8)]
        for h in range(4): ops.append(f'v_cvt_pk_bf16_f32 v{Z+8+h}, v{Z+2*h}, v{Z+2*h+1}')
        if rt == 2:
            ops.append(f's_cmp_eq_u32 s{sNN}, 40\ns_cselect_b32 s{sTmp}, 0x00ff00ff, s{sTmp3}\ns_mov_b32 exec_lo, s{sTmp}\ns_mov_b32 exec_hi, s{sTmp}')
        ops.append(f'buffer_store_dwordx4 {vr(Z+8,4)}, v{Y2}, s[{sO}:{sO+3}], s{sTmp2} offen' + opt.get('outst', ' sc1'))
        ops.append(f's_add_u32 s{sTmp2}, s{sTmp2}, 8192')
        return ops
    seq = [(rt, s) for rt in range(3) for s in range(8)]
    def ard(k):
        rt, s = seq[k]
        a(f'ds_read_b128 {vr(AF+4*(k%6),4)}, v{EA_+(s&3)} offset:{rt*8192+(s>>2)*256}')
    for k in range(5): ard(k)
    a(f'''s_waitcnt lgkmcnt(5)
    v_readfirstlane_b32 s{sTmp}, v{Y0}
    s_cmp_gt_u32 s{sTmp}, s{sSafe}
    s_cbranch_scc1 k2_redo
    s_mov_b32 s{sC}, {hex(f2u(-LOG2E))}''')
    pend = []
    for k, (rt, s) in enumerate(seq):
        if k + 5 < 24: ard(k + 5)
        a(f's_waitcnt lgkmcnt({min(5, 23-k)})')
        for c in range(2):
            d = OA + (rt * 2 + c) * 4
            a(f'v_mfma_f32_16x16x32_bf16 {vr(d,4)}, {vr(WB2+4*(2*s+c),4)}, {vr(AF+4*(k%6),4)}, {vr(d,4)}')
            if s >= 1 or c == 1:
                n = 3 if s >= 1 else 0
                for x in pend[:n]: a(x)
                pend = pend[n:]
        if s == 7:
            for x in pend: a(x)
            pend = silu_ops(rt)
    b = OA + 16
    a(f's_mov_b32 s{sC+1}, {hex(f2u(-LOG2E))}\ns_mov_b32 s{sTmp3}, 0x007f007f\ns_nop 5')
    for rr in range(4): a(f'v_mov_b32_dpp v{b+rr}, v{b+4+rr} row_shr:8 row_mask:0xf bank_mask:0xc')
    for p in range(4): a(f'v_exp_f32 v{Z+p}, v{b+p}')
    for p in range(2): a(f'v_pk_fma_f32 {pr(Z+2*p)}, {pr(Z+2*p)}, s[{sC}:{sC+1}], s[{sC}:{sC+1}]')
    for p in range(4): a(f'v_rcp_f32 v{Z+p}, v{Z+p}')
    for p in range(2): a(f'v_pk_mul_f32 {pr(Z+2*p)}, {pr(b+2*p)}, {pr(Z+2*p)}')
    a('s_nop 1')
    for rr in range(4): a(f'v_mov_b32_dpp v{Z+4+rr}, v{Z+rr} row_shl:8 row_mask:0xf bank_mask:0x3')
    for x in pend[32:]: a(x)
    if stamp:
        stampat(9)
        a(f's_mov_b64 exec, 1\ns_waitcnt lgkmcnt(0)')
        a(f's_lshl_b32 s{sTmp}, s2, 3\ns_add_u32 s{sTmp}, s{sTmp}, s{sWV}\ns_lshl_b32 s{sTmp}, s{sTmp}, 6\ns_add_u32 s{sTmp}, s{sTmp}, {WS_END - WS_CELLS}\nv_mov_b32 v{Y0}, 0')
        for i in range(10):
            a(f'v_mov_b32 v{Y1}, s{sStamp+2*i}\nbuffer_store_dword v{Y1}, v{Y0}, {WS}, s{sTmp} offen offset:{4*i}')
        a(f'v_mov_b32 v{Y1}, s{sT}\nbuffer_store_dword v{Y1}, v{Y0}, {WS}, s{sTmp} offen offset:40')
        a(f'v_mov_b32 v{Y1}, s{sPoll}\nbuffer_store_dword v{Y1}, v{Y0}, {WS}, s{sTmp} offen offset:44')
    if opt.get('diagpad'):
        a(f's_add_u32 s94, s94, {int(opt["diagpad"])}')
        a.label('kf_diag')
        a('s_memrealtime s[92:93]\ns_waitcnt lgkmcnt(0)\ns_sub_u32 s92, s92, s94\ns_cmp_lt_i32 s92, 0\ns_cbranch_scc1 kf_diag')
    a.label('k2_done')
    a('s_endpgm')
    a.label('kf_init')
    srd(a, sD, sWS, 16384, add=WS_FLAG)
    a(f'''v_mov_b32 v{BF}, 0
    v_mov_b32 v{BF+1}, 0
    v_mov_b32 v{BF+2}, 0
    v_mov_b32 v{BF+3}, 0
    s_mov_b32 s{sTmp2}, 8192
    buffer_store_dwordx4 {vr(BF,4)}, v{U3}, s[{sD}:{sD+3}], 0 offen sc1
    buffer_store_dwordx4 {vr(BF,4)}, v{U3}, s[{sD}:{sD+3}], s{sTmp2} offen sc1''')
    a('s_branch kf_noinit')
    vm.ops = list(saved)
    cur.update({'pT': None, 'pP': None, 'safe': True, 'g': 'S'})
    a.label('k2_safe')
    iteration(0, 0, True)
    a('s_cbranch_scc1 k2_drain')
    a.label('k2_loopS')
    for u in (1, 2, 0):
        iteration(100 + u, u, False)
        a('s_cbranch_scc1 k2_drain' if u != 0 else 's_cbranch_scc0 k2_loopS')
    a('s_branch k2_drain')
    return kd(KNAME, 256, 102)
```

```python
from common import *
FCH = 625; CST = 8704; RB = 12
WS_CELLS = 5242880
WS_WF = WS_CELLS + 256 * 11264
WS_FLAG = WS_WF + 131072
WS_END = WS_FLAG + 16384
KNAME = 'standalone__mpnn_edge_mlp__graph_kernel'
POLL_LIMIT = 40000
K2_GRID = NB
NT = 28
QT = 98304; QSTR = 592
OH = QT + 41 * QSTR; OSTR = 80
XT = 126208
assert QT + 40 * QSTR + 4096 <= XT and OH + 41 * OSTR <= QT + 40 * QSTR + 4096
EAT = XT + 20480
CNT = EAT + NT * 512
SRC = CNT + 256
XL = SRC + (NT + 7) * 64
K2_LDS = 163840
assert XL + 256 + 16 <= K2_LDS
C30 = 0x30800000

class R:
    def __init__(self, start): self.n = start
    def get(self, k=1, align=1):
        self.n = (self.n + align - 1) // align * align
        r = self.n; self.n += k; return r

def vr(r, k): return f'v[{r}:{r+k-1}]' if k > 1 else f'v{r}'
def pr(x): return f'v[{x}:{x+1}]'

def gen_kf(a, opt):
    stamp = opt.get('stamp')
    prio = opt.get('prio', '02,02,13|13,13,02')
    vm = VM()
    INV = 'buffer_inv sc1' if opt.get('inv') else ''
    LD = ' sc1' if opt.get('ldsc1', '0') == '1' else ''
    CS = opt.get('cellst', ' sc1')
    r = R(1)
    vLane = r.get(); vNOVF = r.get(); vL16 = r.get()
    aSRC = r.get(); aEAT = r.get(); aXL = r.get(); cQ = r.get(); cS = r.get(); vX = r.get(); aQ = r.get()
    aS = r.get(3); aP = r.get(4)
    IDX = r.get(8, 2)
    A2 = r.get(4, 2); B2A = r.get(4, 2); B2B = r.get(4, 2)
    S = r.get(2, 2); MA = r.get(2, 2); MB = r.get(2, 2)
    ACCA = r.get(16, 2); ACCB = r.get(16, 2)
    DA = r.get(16, 2); DB = r.get(16, 2)
    EE = r.get(16, 2); NF = r.get(4, 2); DF = r.get(4, 2)
    PA = r.get(8, 2); PB = r.get(8, 2); I0 = r.get(4, 2); I1 = r.get(4, 2)
    WB2 = r.get(64, 2)
    XR = r.get(12, 2)
    OA = r.get(24, 2)
    assert r.n <= 256, r.n
    W1F = [NF + 4 * i for i in range(6)] + [WB2 + 36 + 4 * i for i in range(10)]
    aW = None
    assert PB + 8 == NF + 24 and WB2 + 36 + 40 == OA
    t = R(WB2)
    REC = DB
    assert EE == DB + 16
    RK = t.get(8, 2); TQ = t.get(8, 2); DL4 = t.get(8, 2)
    T0 = t.get(); T1 = t.get(); T2 = t.get(); T3 = t.get()
    IDX3 = t.get(8, 2)
    HMAX = XL + 256
    vMX = XR + 8
    IDX1 = DA; IDX2 = DA + 8
    AF = PA
    X0 = DB + 12
    EA_ = IDX

    sP = 20; sX = 24; sE = 28; sWS = 32; sM = 36; sO = 24
    sWV = 44; sG = 45; sCQ = 46; sHeavy = 47; sB = 48; sPoll = 49; sSplit = 50; sT = 51; sTbase = 52
    sRing = 53; sCnt = 54; sTmp = 55; sTmp2 = 56; sTmp3 = 57; sC = 58
    sMask = 4
    sQs = 68; sOs = 69; sT0 = 70; sT1 = 71; sQt = 72; sWdone = 73; sSv = 74
    sStamp = 76
    sHM = 96; sN0 = 98; sWF = 99; sNN = 3; sBok = 100; sOv = 28; sRdone = 30; sEAT = 31; sAcc = 38; sNM = 36; sSafe = 39; sD = 60; sPw = 64

    names = (stamp if stamp and stamp != '1' else '0,1,2,3,4,5,6,7,8,9').split(',')
    def stampat(nm):
        nm = str(nm)
        if opt.get('padat') and opt['padat'].split(':')[0] == nm:
            a(f's_add_u32 s94, s94, {int(opt["padat"].split(":")[1])}')
            a.label('kf_padat')
            a('s_memrealtime s[92:93]\ns_waitcnt lgkmcnt(0)\ns_sub_u32 s92, s92, s94\ns_cmp_lt_i32 s92, 0\ns_cbranch_scc1 kf_padat')
        if stamp:
            if nm in names:
                i = names.index(nm)
                a(f's_memrealtime s[{sStamp+2*i}:{sStamp+2*i+1}]')
            if nm == '6': a('s_memtime s[100:101]\ns_waitcnt lgkmcnt(0)\ns_mov_b32 s{}, s100'.format(sPoll))
            if nm == '7': a('s_memtime s[100:101]\ns_waitcnt lgkmcnt(0)\ns_sub_u32 s{0}, s100, s{0}'.format(sPoll))
    WS = f's[{sWS}:{sWS+3}]'
    def wload(dst, mat, i, tag):
        off = i * 1024
        ins = [f's_add_u32 s{sTmp3}, s{sWF}, {off & ~4095}',
               f'buffer_load_dwordx4 {vr(dst,4)}, v{vL16}, {WS}, s{sTmp3} offen offset:{off & 4095}']
        vm.issue(tag)
        return ins

    a.raw(f'.globl {KNAME}\n.p2align 8\n.type {KNAME},@function')
    a.label(KNAME)
    a(f's_cmp_ge_u32 s2, {K2_GRID}\ns_cbranch_scc1 k2_done')
    stampat(0)
    if opt.get('diagpad') or opt.get('padat'): a('s_memrealtime s[94:95]')
    BIAS = not opt.get('nobias')
    if BIAS:
        n0code = f'''s_mul_i32 s{sN0}, s{sPoll}, 305
    s_add_u32 s{sNN}, s{sN0}, {305+1927}
    s_add_u32 s{sN0}, s{sN0}, 1927
    s_lshr_b32 s{sN0}, s{sN0}, 3
    s_lshr_b32 s{sNN}, s{sNN}, 3
    s_mul_i32 s{sTmp}, s{sPoll}, 40
    s_min_u32 s{sN0}, s{sN0}, s{sTmp}
    s_add_u32 s{sTmp}, s{sTmp}, 40
    s_min_u32 s{sNN}, s{sNN}, s{sTmp}
    s_sub_u32 s{sNN}, s{sNN}, s{sN0}'''
    else:
        n0code = f'''s_mul_i32 s{sN0}, s{sPoll}, 625
    s_add_u32 s{sNN}, s{sN0}, {625+15}
    s_add_u32 s{sN0}, s{sN0}, 15
    s_lshr_b32 s{sN0}, s{sN0}, 4
    s_lshr_b32 s{sNN}, s{sNN}, 4
    s_sub_u32 s{sNN}, s{sNN}, s{sN0}'''
    eD = 26; eS = 36; eA = 46; eR = 66; eB = 76
    PD = 26; RL = 50; W3 = 58; TOUCH = 86; CT = 58
    UQ = 92; vW = 100; aA = 104; U0 = 108; U1 = 109; U2 = 110; U3 = 111; vW1 = 112; PR0 = 113; PR1 = 114; PG0 = 115; PG1 = 116; aW3 = 117
    vDB = 252; aTO = 253; aB = 90
    BF = NF; AX = WB2
    assert BF == 124 and BF + 32 == WB2 and WB2 + 96 <= 256 and REC == 92
    W3L = QT + 24576
    SW = 1
    TAB = QT; RIMG = QT + 1024; CNTA = QT + 12288
    sS = 20; sDs = 28; sEs = 36; sU = 40
    sWm = 68
    sEM = 76 if not stamp else 8
    a(f'''s_load_dwordx4 s[12:15], s[0:1], 32
    s_load_dwordx4 s[8:11], s[0:1], 16
    s_load_dwordx4 s[4:7], s[0:1], 0
    s_load_dwordx4 s[16:19], s[0:1], 48
    s_load_dwordx2 s[{sWS}:{sWS+1}], s[0:1], 64
    v_lshrrev_b32 v{U0}, 6, v0
    v_and_b32 v{vLane}, 63, v0
    v_readfirstlane_b32 s{sWV}, v{U0}
    v_lshlrev_b32 v{vL16}, 4, v{vLane}
    s_cmp_lg_u32 s{sWV}, 3
    s_cbranch_scc1 kf_noct
    s_getpc_b64 s[{sSv}:{sSv+1}]
    kf_pc:
    s_and_b32 s{sTmp3}, s2, 0xf8
    s_lshl_b32 s{sTmp3}, s{sTmp3}, 7
    s_min_u32 s{sTmp3}, s{sTmp3}, k2_done-kf_pc-1024
    s_add_u32 s{sSv}, s{sSv}, s{sTmp3}
    s_addc_u32 s{sSv+1}, s{sSv+1}, 0
    global_load_dwordx4 {vr(CT,4)}, v{vL16}, s[{sSv}:{sSv+1}]
    kf_noct:
    v_lshlrev_b32 v{U3}, 4, v0
    s_mul_i32 s{sN0}, s2, 625
    s_bfe_u32 s{sTmp3}, s2, 0x50003
    s_lshl_b32 s{sTmp3}, s{sTmp3}, 13
    s_lshl_b32 s{sT}, s{sN0}, 2
    s_lshl_b32 s{sTbase}, s{sN0}, 3
    s_and_b32 s{sPoll}, s2, 7
    s_lshl_b32 s{sPoll}, s{sPoll}, 5
    s_lshr_b32 s{sTmp}, s2, 3
    s_or_b32 s{sPoll}, s{sPoll}, s{sTmp}
    {n0code}
    s_lshr_b32 s{sG}, s{sWV}, 2
    s_and_b32 s{sCQ}, s{sWV}, 3
    s_lshl_b32 s{sWF}, s{sWV}, 14
    s_add_u32 s{sWF}, s{sWF}, {WS_WF - WS_CELLS}
    v_lshrrev_b32 v{U0}, 5, v{vLane}
    v_and_b32 v{U1}, 31, v{vLane}
    s_lshl_b32 s{sTmp}, s{sWV}, 1
    v_xor_b32 v{U2}, v{U1}, v{U0}
    v_xor_b32 v{U2}, s{sTmp}, v{U2}
    v_lshlrev_b32 v{U2}, 4, v{U2}
    v_lshl_add_u32 v{U2}, v{U0}, 9, v{U2}
    v_xor_b32 v{vW1}, s{sWV}, v{U1}
    v_lshlrev_b32 v{vW1}, 4, v{vW1}
    s_waitcnt lgkmcnt(0)
    s_mov_b32 s0, s{sPoll}''')
    a(f'''s_cmp_lg_u32 s{sWV}, {SW}
    s_cbranch_scc1 kf_noedge
    s_setprio 3
    v_mul_u32_u24 v{U0}, 40, v{vLane}
    v_mul_u32_u24 v{U1}, 80, v{vLane}''')
    srd(a, sDs, 10, E * 4)
    a(f'''buffer_load_dwordx4 {vr(eD,4)}, v{U0}, s[{sDs}:{sDs+3}], s{sT} offen
    buffer_load_dwordx4 {vr(eD+4,4)}, v{U0}, s[{sDs}:{sDs+3}], s{sT} offen offset:16
    buffer_load_dwordx2 {vr(eD+8,2)}, v{U0}, s[{sDs}:{sDs+3}], s{sT} offen offset:32''')
    srd(a, sS, 8, E * 4)
    a(f'''buffer_load_dwordx4 {vr(eS,4)}, v{U0}, s[{sS}:{sS+3}], s{sT} offen
    buffer_load_dwordx4 {vr(eS+4,4)}, v{U0}, s[{sS}:{sS+3}], s{sT} offen offset:16
    buffer_load_dwordx2 {vr(eS+8,2)}, v{U0}, s[{sS}:{sS+3}], s{sT} offen offset:32''')
    srd(a, sEs, 6, E * 8)
    for k in range(5): a(f'buffer_load_dwordx4 {vr(eA+4*k,4)}, v{U1}, s[{sEs}:{sEs+3}], s{sTbase} offen offset:{16*k}')
    a.label('kf_noedge')
    a('s_cmp_eq_u32 s2, 0\ns_cbranch_scc1 kf_init')
    a.label('kf_noinit')
    vm.issue('edge')
    vm.ops = vm.ops
    srd(a, sWm, 12, 516 * 512)
    a(f'buffer_load_dwordx4 {vr(TOUCH,4)}, v{U3}, s[{sWm}:{sWm+3}], s{sTmp3} offen')
    vm.issue('touch')
    a(f'''s_cmp_lg_u32 s{sWV}, 6
    s_cbranch_scc1 kf_now3
    s_mov_b32 m0, {W3L}
    s_mov_b32 s{sTmp}, {512*512}
    buffer_load_dwordx4 v{vL16}, s[{sWm}:{sWm+3}], s{sTmp} offen lds
    buffer_load_dwordx4 v{vL16}, s[{sWm}:{sWm+3}], s{sTmp} offen offset:1024 lds''')
    a.label('kf_now3')
    srd(a, sX, 4, N * 512)
    a(f'''s_lshl_b32 s{sTmp}, s{sN0}, 9
    s_lshl_b32 s{sTmp2}, s{sWV}, 10
    s_add_u32 s{sTmp3}, s{sTmp}, s{sTmp2}
    s_add_u32 m0, s{sTmp2}, {XT}
    s_lshl_b32 s{sCnt}, s{sWV}, 9
    buffer_load_dwordx4 v{U2}, s[{sX}:{sX+3}], s{sTmp3} offen lds
    s_add_u32 m0, s{sTmp2}, {XT+8192}
    s_add_u32 s{sTmp3}, s{sTmp3}, 8192
    buffer_load_dwordx4 v{U2}, s[{sX}:{sX+3}], s{sTmp3} offen lds
    s_add_u32 m0, s{sCnt}, {XT+16384}
    s_add_u32 s{sTmp}, s{sTmp}, s{sCnt}
    s_add_u32 s{sTmp}, s{sTmp}, 16384
    s_mov_b32 exec_hi, 0
    buffer_load_dwordx4 v{vW1}, s[{sX}:{sX+3}], s{sTmp} offen lds
    s_mov_b32 exec_hi, -1''')
    for _ in range(3): vm.issue('x')
    stampat('a')
    a(f'''s_add_u32 s{sPw}, s{sWS}, {WS_P}
    s_addc_u32 s{sPw+1}, s{sWS+1}, 0
    s_and_b32 s{sPw+1}, s{sPw+1}, 0xffff
    s_mov_b32 s{sPw+2}, {N*512}
    s_mov_b32 s{sPw+3}, 0x20000
    s_add_u32 s{sWS}, s{sWS}, {WS_CELLS}
    s_addc_u32 s{sWS+1}, s{sWS+1}, 0
    s_and_b32 s{sWS+1}, s{sWS+1}, 0xffff
    s_mov_b32 s{sWS+2}, {WS_END - WS_CELLS + (1 << 20 if stamp else 0)}
    s_mov_b32 s{sWS+3}, 0x20000''')
    srd(a, sD, 18, 256)
    srd(a, sU, 14, 512 * 512)
    a(f'''v_mov_b32 v{UQ+4}, 0
    v_mov_b32 v{UQ+5}, 0
    v_mov_b32 v{UQ+6}, 0
    v_mov_b32 v{UQ+7}, 0
    v_add_u32 v{U1}, {CNTA}, v{vL16}
    s_cmp_lg_u32 s{sWV}, {SW}
    s_cbranch_scc1 kf_nocz
    ds_write_b128 v{U1}, {vr(UQ+4,4)}
    v_mov_b32 v{U1}, {HMAX+8}
    ds_write_b64 v{U1}, {vr(UQ+4,2)}''')
    a.label('kf_nocz')
    nz = (NT * 512 + 256 - 8192) // 16; nf = (NT + 7) * 64 // 16; nx = 16
    def list_prefill(Z, F, t0, t1):
        a(f'''v_lshlrev_b32 v{t0}, 4, v0
        v_add_u32 v{t0}, {EAT}, v{t0}
        v_mov_b32 v{t1}, 0xa0a0a0a0
        ds_write_b128 v{t0}, {vr(Z,4)}
        v_cmp_gt_u32 vcc, {nz}, v0
        s_and_saveexec_b64 s[{sSv}:{sSv+1}], vcc
        ds_write_b128 v{t0}, {vr(Z,4)} offset:8192
        s_mov_b64 exec, -1
        v_cmp_gt_u32 vcc, {nf}, v0
        s_mov_b32 s{sWdone}, 0
        s_nop 0
        v_cndmask_b32 v{F}, v{t1}, -1, vcc
        v_cmp_gt_u32 vcc, {nf+nx}, v0
        v_mov_b32 v{F+1}, v{F}
        v_mov_b32 v{F+2}, v{F}
        v_mov_b32 v{F+3}, v{F}
        s_and_saveexec_b64 s[{sSv}:{sSv+1}], vcc
        ds_write_b128 v{t0}, {vr(F,4)} offset:{SRC-EAT}
        s_mov_b64 exec, -1''')
    stampat('b')
    a(f'''v_lshrrev_b32 v{U0}, 5, v{vLane}
    v_and_b32 v{U1}, 3, v{vLane}
    v_lshlrev_b32 v{U0}, 1, v{U0}
    v_xor_b32 v{U0}, v{U0}, v{U1}
    v_lshrrev_b32 v{U1}, 2, v{vLane}
    v_lshlrev_b32 v{U1}, 9, v{U1}
    v_lshl_add_u32 v{U0}, v{U0}, 4, v{U1}
    s_lshl_b32 s{sTmp}, s{sWV}, 6
    v_add_u32 v{vW}, s{sTmp}, v{U0}
    v_add_u32 v{vW+1}, 7168, v{vW}
    v_add_u32 v{vW+2}, 14336, v{vW}
    v_add_u32 v{vW+3}, 21504, v{vW}
    s_mul_i32 s{sRing}, s{sWV}, 12288''')
    def stage(i):
        a(f's_add_u32 m0, s{sRing}, {(i % 3) * 4096}\ns_mov_b32 s{sTmp3}, {(i & 7) * 32768}')
        sr = sWm if i < 8 else sU
        for t_ in range(4):
            a(f'buffer_load_dwordx4 v{(vW if i < 8 else XR + 8)+t_}, s[{sr}:{sr+3}], s{sTmp3} offen offset:{t_*1024} lds')
            vm.issue(f'st{i}')
    a(f'''v_and_b32 v{U0}, 15, v{vLane}
    v_lshrrev_b32 v{U1}, 4, v{vLane}
    v_xor_b32 v{U2}, v{U1}, v{U0}
    v_lshlrev_b32 v{U2}, 4, v{U2}
    v_lshl_add_u32 v{U0}, v{U0}, 9, v{U2}
    v_add_u32 v{aA}, {XT}, v{U0}''')
    for s_ in range(1, 4):
        a(f'v_xor_b32 v{U2}, {s_<<6}, v{U0}\nv_add_u32 v{aA+s_}, {XT}, v{U2}')
    a(f'''v_bfe_u32 v{U0}, v{vLane}, 2, 2
    v_lshl_add_u32 v{U0}, v{U1}, 3, v{U0}
    v_and_b32 v{U2}, 1, v{U1}
    v_lshlrev_b32 v{U2}, 5, v{U2}
    v_and_b32 v{U3}, 3, v{vLane}
    v_lshl_add_u32 v{U2}, v{U3}, 3, v{U2}
    v_lshl_add_u32 v{U2}, v{U0}, 6, v{U2}
    v_add_u32 v{aB}, s{sRing}, v{U2}
    v_xor_b32 v{aB+1}, 32, v{aB}
    v_mov_b32 v{U3}, 1''')
    list_prefill(UQ + 4, BF + 4, U0, U1)
    NPRE = int(opt.get('npre', 2))
    NPRE2 = int(opt.get('npre2', NPRE))
    stampat('y')
    def early_consts(T0, T1, T2, T3):
        a(f'''v_lshrrev_b32 v{T2}, 5, v{vLane}
        v_and_b32 v{T3}, 31, v{vLane}
        v_bfe_u32 v{T0}, v{T3}, 2, 1
        v_cmp_eq_u32 s[{sHM}:{sHM+1}], v{T0}, v{T2}
        v_bfe_u32 v{T0}, v{T3}, 1, 3
        v_xor_b32 v{T0}, v{T0}, v{T2}
        v_lshlrev_b32 v{T0}, 4, v{T0}
        v_lshl_add_u32 v{T0}, v{T3}, 7, v{T0}
        v_add_u32 v{aP}, s{sRing}, v{T0}
        v_xor_b32 v{aP+1}, 32, v{aP}
        v_xor_b32 v{aP+2}, 64, v{aP}
        v_xor_b32 v{aP+3}, 96, v{aP}
        v_and_b32 v{T0}, 7, v{vLane}
        v_lshrrev_b32 v{T1}, 4, v{vLane}
        v_xor_b32 v{T0}, v{T0}, v{T1}
        s_lshl_b32 s{sTmp}, s{sCQ}, 7
        v_lshl_add_u32 v{T0}, v{T0}, 4, s{sTmp}
        v_xor_b32 v{IDX+7}, 64, v{T0}
        v_add_u32 v{IDX+1}, 3072, v{T0}
        v_add_u32 v{IDX+3}, 2048, v{IDX+7}
        v_add_u32 v{IDX+5}, 1024, v{T0}
        v_bfe_u32 v{T0}, v{vLane}, 4, 1
        v_and_b32 v{T1}, 3, v{vLane}
        v_lshlrev_b32 v{T1}, 3, v{T1}
        v_lshl_add_u32 v{T0}, v{T0}, 5, v{T1}
        s_add_u32 s{sTmp}, s{sTmp}, {QT}
        v_add_u32 v{cQ}, s{sTmp}, v{T0}
        s_lshl_b32 s{sTmp}, s{sG}, 4
        s_add_u32 s{sTmp}, s{sTmp}, {OH}
        v_add_u32 v{cS}, s{sTmp}, v{T0}
        s_mov_b32 s{sC}, {hex(C30)}
        s_mov_b32 s{sC+1}, {hex(C30)}''')
    def list_consts(T0, T1, T2, T3):
        a(f'''v_bfe_u32 v{T0}, v{vLane}, 5, 1
        v_bfe_u32 v{T1}, v{vLane}, 3, 1
        v_bfe_u32 v{T2}, v{vLane}, 4, 1
        v_lshlrev_b32 v{aSRC}, 5, v{T0}
        v_lshl_add_u32 v{aSRC}, v{T1}, 3, v{aSRC}
        v_lshl_add_u32 v{aSRC}, v{T2}, 1, v{aSRC}
        v_bfe_u32 v{T3}, v{vLane}, 2, 2
        v_lshl_add_u32 v{aXL}, v{T0}, 2, v{T3}
        v_and_b32 v{T3}, 1, v{T3}
        v_lshl_add_u32 v{aEAT}, v{T3}, 1, v{T2}
        v_and_b32 v{T0}, 1, v{vLane}
        v_lshl_add_u32 v{aEAT}, v{aEAT}, 1, v{T0}
        v_lshl_add_u32 v{aEAT}, v{aEAT}, 1, v{T1}
        v_bfe_u32 v{T0}, v{vLane}, 1, 1
        v_lshl_add_u32 v{aEAT}, v{aEAT}, 1, v{T0}
        v_lshlrev_b32 v{aEAT}, 4, v{aEAT}''')
    TOUCH_T = 118
    def hoisted():
        sQTs = sT
        a(f's_mov_b32 s{sQTs}, {QT}')
        early_consts(U0, U1, U2, TOUCH_T)
        list_consts(U0, U1, U2, TOUCH_T)
        a(f'''v_and_b32 v{U0}, 15, v{vLane}
    v_lshrrev_b32 v{U1}, 4, v{vLane}
    v_lshlrev_b32 v{U1}, 4, v{U1}
    s_lshl_b32 s{sTmp2}, s{sWV}, 6
    v_add_u32 v{U1}, s{sTmp2}, v{U1}
    v_lshl_add_u32 v{PG0}, v{U0}, 9, v{U1}
    v_mul_u32_u24 v{U0}, {QSTR}, v{U0}
    v_add3_u32 v{aTO}, v{U0}, v{U1}, s{sQTs}
    v_bfe_u32 v{U0}, v{vLane}, 3, 2
    v_and_b32 v{U1}, 3, v{vLane}
    v_lshl_add_u32 v{U0}, v{U0}, 2, v{U1}
    v_bfe_u32 v{U1}, v{vLane}, 2, 1
    v_lshl_add_u32 v{U0}, v{U1}, 4, v{U0}
    v_lshlrev_b32 v{U0}, 1, v{U0}
    s_lshl_b32 s{sTmp}, s{sCQ}, 7
    s_add_u32 s{sTmp}, s{sTmp}, {W3L}
    v_add_u32 v{aW3}, s{sTmp}, v{U0}
    v_lshrrev_b32 v{U0}, 1, v0
    v_mul_u32_u24 v{vNOVF}, {CST}, v{U0}''')
    hoisted()
    dpp = ['row_shr:1 row_mask:0xf bank_mask:0xf', 'row_shr:2 row_mask:0xf bank_mask:0xf', 'row_shr:4 row_mask:0xf bank_mask:0xf',
           'row_shr:8 row_mask:0xf bank_mask:0xf', 'row_bcast:15 row_mask:0xa bank_mask:0xf', 'row_bcast:31 row_mask:0xc bank_mask:0xf']
    a(f'''s_cmp_lg_u32 s{sWV}, {SW}
    s_cbranch_scc1 kf_nohist
    s_movk_i32 s{sTmp}, 625
    s_mov_b32 exec_hi, 0x7fffffff''')
    a(f's_waitcnt vmcnt({vm.count_after("edge") + 8})')
    stampat('z')
    if BIAS: a(f's_movk_i32 s{sTmp}, 305\ns_mov_b32 s{sTmp2}, 110015\nv_mov_b32 v{U1}, {-26405848 & 0xffffffff}\nv_mov_b32 v{U2}, 1927')
    for i in range(10):
        if BIAS:
            a(f'''v_mul_u32_u24 v{eB+i}, 104858, v{eD+i}
            v_mad_u32_u24 v{U0}, v{eD+i}, s{sTmp2}, v{U1}
            v_max_i32 v{eB+i}, v{eB+i}, v{U0}
            v_lshrrev_b32 v{eB+i}, 22, v{eB+i}
            v_mad_u32_u24 v{U0}, v{eB+i}, s{sTmp}, v{U2}
            v_mul_u32_u24 v{TOUCH_T}, 40, v{eB+i}''')
        else:
            a(f'''v_mul_u32_u24 v{eB+i}, 429497, v{eD+i}
            v_lshrrev_b32 v{eB+i}, 24, v{eB+i}
            v_mad_u32_u24 v{U0}, v{eB+i}, s{sTmp}, 15''')
        a(f'''v_lshlrev_b32 v{eB+i}, 2, v{eB+i}
        v_add_u32 v{eB+i}, {CNTA}, v{eB+i}''')
        if i == 5: a('s_mov_b32 exec_hi, 0x3fffffff')
        a(f'ds_add_rtn_u32 v{eR+i}, v{eB+i}, v{U3}\nv_lshrrev_b32 v{U0}, {3 if BIAS else 4}, v{U0}')
        if BIAS: a(f'v_min_u32 v{U0}, v{U0}, v{TOUCH_T}')
        a(f'v_sub_u32 v{eD+i}, v{eD+i}, v{U0}')
    a(f'''s_mov_b32 exec_hi, -1
    v_add_u32 v{U0}, {CNTA}, v{vL16}
    ds_read_b128 {vr(UQ,4)}, v{U0}''')
    a(f's_waitcnt vmcnt({vm.count_after("edge") + 5})')
    for i in range(10): a(f'v_lshl_or_b32 v{eS+i}, v{eD+i}, 16, v{eS+i}')
    a(f'''s_waitcnt lgkmcnt(0)
    v_add_u32 v{UQ+5}, v{UQ}, v{UQ+1}
    v_add_u32 v{UQ+6}, v{UQ+5}, v{UQ+2}
    v_add_u32 v{U1}, v{UQ+6}, v{UQ+3}
    v_mov_b32 v{U2}, v{U1}
    s_nop 1''')
    for k, d in enumerate(dpp):
        a(f'v_add_u32_dpp v{U2}, v{U2}, v{U2} {d}' + (' bound_ctrl:0' if k < 4 else '') + '\ns_nop 1')
    a(f'''v_sub_u32 v{UQ+4}, v{U2}, v{U1}
    v_add_u32 v{UQ+7}, v{UQ+6}, v{UQ+4}
    v_add_u32 v{UQ+6}, v{UQ+5}, v{UQ+4}
    v_add_u32 v{UQ+5}, v{UQ}, v{UQ+4}
    ds_write_b128 v{U0}, {vr(UQ+4,4)} offset:1024''')
    for i in range(10): a(f'ds_read_b32 v{eD+i}, v{eB+i} offset:1024')
    a(f'''v_lshl_or_b32 v{UQ+4}, v{UQ}, 16, v{UQ+4}
    v_lshl_or_b32 v{UQ+5}, v{UQ+1}, 16, v{UQ+5}
    v_lshl_or_b32 v{UQ+6}, v{UQ+2}, 16, v{UQ+6}
    v_lshl_or_b32 v{UQ+7}, v{UQ+3}, 16, v{UQ+7}
    v_subrev_u32 v{U0}, {CNTA-TAB}, v{U0}
    s_mov_b32 s{sTmp}, {RIMG}
    s_mov_b32 exec_hi, 0x7fffffff''')
    a(vm.wait('edge'))
    for i in range(10):
        if i == 5: a('s_mov_b32 exec_hi, 0x3fffffff')
        a(f'''s_waitcnt lgkmcnt({min(9, 9 - i + 2 * i)})
        v_add_u32 v{eD+i}, v{eD+i}, v{eR+i}
        v_mad_u32_u24 v{eD+i}, v{eD+i}, 12, s{sTmp}
        ds_write2_b32 v{eD+i}, v{eA+2*i}, v{eA+2*i+1} offset1:1
        ds_write_b32 v{eD+i}, v{eS+i} offset:8''')
    a(f'''s_mov_b32 exec_hi, -1
    ds_write_b128 v{U0}, {vr(UQ+4,4)}
    s_setprio 0''')
    a.label('kf_nohist')
    for i in range(NPRE): stage(i)
    for i in range(NPRE, NPRE2): stage(i)
    stampat('H')
    a(vm.wait('x') + ' lgkmcnt(0)')
    stampat('I')
    a('s_barrier')
    stampat('c')
    axr = [f'ds_read_b128 {vr(AX+(s_*3+rt)*4,4)}, v{aA+(s_&3)} offset:{rt*8192+(s_>>2)*256}' for s_ in range(8) for rt in range(3)]
    a(f'''s_or_b32 s{sTmp}, s2, s{sWV}
    s_cbranch_scc1 kf_noset
    v_mov_b32 v{U0}, 1
    v_mov_b32 v{U1}, 0
    s_mov_b64 exec, 1
    buffer_store_dword v{U0}, v{U1}, s[{sD}:{sD+3}], 0 offen sc1
    s_mov_b64 exec, -1''')
    a.label('kf_noset')
    if not opt.get('noprioA'): a('s_setprio 2')
    axr = [f'ds_read_b128 {vr(AX+(s_*3+rt)*4,4)}, v{aA+(s_&3)} offset:{rt*8192+(s_>>2)*256}' for s_ in range(8) for rt in range(3)]
    AXE = not opt.get('axlate')
    a(f'''v_lshlrev_b32 v{U3}, 4, v0
    v_add_u32 v{U0}, {TAB}, v{U3}
    ds_read_b128 {vr(UQ,4)}, v{U0}
    ds_read_b128 {vr(UQ+4,4)}, v{U0} offset:8192''')
    RSA = opt.get('rs2')
    def rstores():
        a(f'''s_mul_i32 s{sT}, s2, {CST}
        s_add_u32 s{sTbase}, s{sT}, 8192
        s_cmp_lg_u32 s{sWV}, 0
        s_cbranch_scc1 kf_nost2
        s_mov_b32 exec_hi, 0
        buffer_store_dwordx4 {vr(UQ+4,4)}, v{U3}, {WS}, s{sTbase} offen{CS}
        s_mov_b32 exec_hi, -1''')
        a.label('kf_nost2')
        a(f'buffer_store_dwordx4 {vr(UQ,4)}, v{U3}, {WS}, s{sT} offen{CS}')
        vm.issue('cells')
    RSF = opt.get('rsfirst')
    if AXE:
        for x in axr[:12]: a(x)
    if RSF:
        a('s_waitcnt lgkmcnt(12)')
        rstores()
    LA = int(opt.get('la', 3))
    for i in range(NPRE2, LA): stage(i)
    stampat('A')
    if not RSA and not RSF:
        a('s_waitcnt lgkmcnt(0)')
        rstores()
    else: a('s_waitcnt lgkmcnt(6)')
    stampat('E')
    a(f'''s_cmp_lg_u32 s{sWV}, 0
    s_cbranch_scc1 kf_nodb
    v_mov_b32 v{vDB}, 0
    buffer_load_dword v{vDB}, v{vDB}, s[{sD}:{sD+3}], 0 offen sc1''')
    a.label('kf_nodb')
    a(f'''s_cmp_lg_u32 s{sWV}, 7
    s_cbranch_scc1 kf_norl
    s_cmp_ge_u32 s2, 128
    s_cbranch_scc1 kf_norl
    v_lshrrev_b32 v{U0}, 4, v{vLane}
    v_lshlrev_b32 v{U0}, 11, v{U0}
    v_bfe_u32 v{U1}, v{vLane}, 2, 2
    v_lshl_add_u32 v{U0}, v{U1}, 4, v{U0}
    v_and_b32 v{U1}, 3, v{vLane}
    v_lshl_add_u32 v{U0}, v{U1}, 1, v{U0}
    s_bfe_u32 s{sTmp}, s2, 0x30001
    s_lshl_b32 s{sTmp2}, s{sTmp}, 14
    s_add_u32 s{sTmp2}, s{sTmp2}, {256*512}
    s_bfe_u32 s{sTmp}, s2, 0x30004
    s_lshl_b32 s{sTmp}, s{sTmp}, 6
    s_add_u32 s{sTmp2}, s{sTmp2}, s{sTmp}
    s_and_b32 s{sTmp}, s2, 1
    s_lshl_b32 s{sTmp}, s{sTmp}, 3
    s_add_u32 s{sTmp2}, s{sTmp2}, s{sTmp}
    s_add_u32 s{sTmp}, s{sTmp2}, 8192''')
    for e in range(8):
        a(f'buffer_load_ushort v{RL+e}, v{U0}, s[{sU}:{sU+3}], s{sTmp if e >> 2 else sTmp2} offen offset:{(e&3)*512}')
    a.label('kf_norl')
    stampat('B')
    def breads(i, nowait=False):
        if not nowait: a(vm.wait(f'st{i}'))
        for ks in range(2):
            for c in range(2):
                for t_ in range(2):
                    a(f'ds_read_b64_tr_b16 {vr(BF+(i&1)*16+ks*8+c*4+t_*2,2)}, v{aB+c} offset:{(i%3)*4096+(32*ks+4*t_)*64}')
    def compute(i, nowait=False, nostage=False, noread=False):
        a('s_waitcnt lgkmcnt(0)')
        order = [(ks, rt, c) for ks in range(2) for rt in range(3) for c in range(2)]
        for n_, (ks, rt, c) in enumerate(order):
            s_ = (2 * i + ks) & 7
            d = PD + (rt * 2 + c) * 4
            cin = '0' if s_ == 0 else vr(d, 4)
            a(f'v_mfma_f32_16x16x32_bf16 {vr(d,4)}, {vr(BF+(i&1)*16+ks*8+c*4,4)}, {vr(AX+(s_*3+rt)*4,4)}, {cin}')
            if n_ == 1 and i + 1 < 8 and not noread: breads(i + 1, nowait)
            if n_ == 7 and i + LA < 8 and not nostage: stage(i + LA)
    def poll(off, lab, PR):
        a(f'''s_and_b32 s{sTmp}, s2, 7
        s_lshl_b32 s{sTmp}, s{sTmp}, 10
        s_add_u32 s{sTmp}, s{sTmp}, {off - WS_CELLS}
        s_mov_b32 s{sPoll}, {POLL_LIMIT}''')
        a.label(lab)
        a(f'''buffer_load_dwordx4 {vr(PR,4)}, v{vL16}, {WS}, s{sTmp} offen sc1
        s_waitcnt vmcnt(0)
        v_and_b32 v{PR}, v{PR}, v{PR+1}
        v_and_b32 v{PR+2}, v{PR+2}, v{PR+3}
        v_and_b32 v{PR}, v{PR}, v{PR+2}
        v_cmp_eq_u32 vcc, 1, v{PR}
        s_cmp_eq_u64 vcc, -1
        s_cbranch_scc1 {lab}_ok
        s_sleep 1
        s_sub_u32 s{sPoll}, s{sPoll}, 1
        s_cbranch_scc0 {lab}''')
        a.label(lab + '_ok')
    def tile_out(toP):
        a(f'''s_mov_b32 s{sSv}, {hex(f2u(-LOG2E))}
        s_mov_b32 s{sSv+1}, {hex(f2u(-LOG2E))}
        s_lshl_b32 s{sTmp}, s{sN0}, 9
        s_nop 4''')
        for rt in range(3):
            b = PD + rt * 8; o = UQ + 4 * (rt & 1) if toP else b
            for h in range(4): a(f'v_pk_mul_f32 {pr(b+2*h)}, {pr(b+2*h)}, s[{sSv}:{sSv+1}]')
            for h in range(4): a(f'v_cvt_pk_bf16_f32 v{b+h}, v{b+2*h}, v{b+2*h+1}')
            if rt == 2: a('s_mov_b32 exec_lo, 0x00ff00ff\ns_mov_b32 exec_hi, 0x00ff00ff')
            if toP:
                a(f'buffer_store_dwordx4 {vr(b,4)}, v{PG0}, s[{sPw}:{sPw+3}], s{sTmp} offen{CS}')
                if rt < 2: a(f's_add_u32 s{sTmp}, s{sTmp}, 8192')
                vm.issue('pst')
            else: a(f'ds_write_b128 v{aTO}, {vr(b,4)} offset:{16*rt*QSTR}')
        a('s_mov_b64 exec, -1')
    def signal(off, lab):
        a(f'''s_cmp_lg_u32 s{sWV}, 0
        s_cbranch_scc1 {lab}
        v_lshlrev_b32 v{TOUCH}, 10, v{vLane}
        v_mov_b32 v{TOUCH+1}, 1
        s_lshl_b32 s{sTmp}, s2, 2
        s_add_u32 s{sTmp}, s{sTmp}, {off - WS_CELLS}
        s_mov_b64 exec, 0xff
        buffer_store_dword v{TOUCH+1}, v{TOUCH}, {WS}, s{sTmp} offen sc1
        s_mov_b64 exec, -1''')
        a.label(lab)
    if not AXE:
        for x in axr[:12]: a(x)
        a('s_waitcnt lgkmcnt(6)')
    for ct in range(2):
        for k in range(4): a(f'ds_read_u16 v{W3+4*ct+k}, v{aW3} offset:{k*512+ct*64}')
    a('s_waitcnt lgkmcnt(2)')
    for x in axr[12:]: a(x)
    a('s_waitcnt lgkmcnt(6)')
    stampat('C')
    breads(0)
    stampat('p')
    if RSA:
        a('s_waitcnt lgkmcnt(0)')
        stage(3)
        rstores()
    compute(0, nostage=bool(RSA))
    stampat('d')
    compute(1); stampat('r')
    a(f's_mov_b32 s{sTmp}, {hex(f2u(-LOG2E))}')
    for k in range(8): a(f'v_lshlrev_b32 v{W3+k}, 16, v{W3+k}\nv_mul_f32 v{W3+k}, s{sTmp}, v{W3+k}')
    for p in range(4): a(f'v_cvt_pk_bf16_f32 v{W3+p}, v{W3+2*p}, v{W3+2*p+1}')
    def sigA(extra=''):
        a(vm.wait('cells'))
        a(f'''s_cmp_lg_u32 s{sWV}, 0
    s_cbranch_scc1 kf_initok
    s_mov_b32 s{sPoll}, {POLL_LIMIT}''')
        a.label('kf_initpoll')
        a(f'''v_readfirstlane_b32 s{sTmp}, v{vDB}
    s_cmp_lg_u32 s{sTmp}, 0
    s_cbranch_scc1 kf_initok
    v_mov_b32 v{vDB}, 0
    s_sleep 2
    buffer_load_dword v{vDB}, v{vDB}, s[{sD}:{sD+3}], 0 offen sc1
    s_waitcnt vmcnt(0)
    s_sub_u32 s{sPoll}, s{sPoll}, 1
    s_cbranch_scc0 kf_initpoll''')
        a.label('kf_initok')
        a(extra + 's_barrier')
        signal(WS_FLAG, 'kf_sigA')
    if not RSA: sigA()
    stampat('k')
    a(f'''s_cmp_lt_u32 s{sWV}, 4
    s_cbranch_scc1 kf_nt2
    s_and_b32 s{sTmp}, s2, 0xf8
    s_lshl_b32 s{sTmp}, s{sTmp}, 9
    s_lshl_b32 s{sTmp2}, s{sCQ}, 10
    s_add_u32 s{sTmp}, s{sTmp}, s{sTmp2}
    buffer_load_dwordx4 {vr(66,4)}, v{vL16}, s[{sU}:{sU+3}], s{sTmp} offen''')
    a.label('kf_nt2')
    compute(2); stampat('s')
    S6 = not opt.get('s6early')
    compute(3, nostage=S6, noread=bool(RSA)); stampat('t')
    a(f'''s_cmp_lg_u32 s{sWV}, 7
    s_cbranch_scc1 kf_norl2
    s_cmp_ge_u32 s2, 128
    s_cbranch_scc1 kf_norl2''')
    for p in range(4): a(f'v_lshl_or_b32 v{RL+p}, v{RL+2*p+1}, 16, v{RL+2*p}')
    a(f'''s_lshl_b32 s{sTmp}, s2, 10
    s_add_u32 s{sTmp}, s{sTmp}, {WS_WF - WS_CELLS}
    buffer_store_dwordx4 {vr(RL,4)}, v{vL16}, {WS}, s{sTmp} offen sc1''')
    a.label('kf_norl2')
    tile_out(True)
    a('s_setprio 0' if not opt.get('noprioA') else 's_nop 1')
    if RSA:
        sigA()
        breads(4)
    if S6: stage(6)
    stampat('l')
    def rec_loads(tab, t0, t1, lab):
        a(f'''v_and_b32 v{t1}, 1, v0
        v_and_b32 v{t0}, 0xffff, v{tab}
        v_add_u32 v{t0}, v{t0}, v{t1}
        v_mad_u32_u24 v{t0}, v{t0}, 12, v{vNOVF}
        v_lshrrev_b32 v{tab}, 16, v{tab}
        v_sub_u32 v{t1}, v{tab}, v{t1}
        v_add_u32 v{t1}, 1, v{t1}
        v_lshrrev_b32 v{t1}, 1, v{t1}''')
        for i in range(8): a(f'v_cmp_lt_u32 s[{sMask+2*i}:{sMask+2*i+1}], {i}, v{t1}')
        a(f'v_cmp_lt_u32 s[{sOv}:{sOv+1}], 8, v{t1}')
        for i in range(8):
            a(f'''s_mov_b64 exec, s[{sMask+2*i}:{sMask+2*i+1}]
            s_cbranch_execz {lab}
            buffer_load_dwordx3 {vr(REC+4*i,3)}, v{t0}, {WS}, 0 offen offset:{1024+24*i}{LD}''')
        a.label(lab)
        a('s_mov_b64 exec, -1')
    srd(a, sO, 16, N * 512)
    compute(4); stampat('u')
    compute(5, noread=S6); stampat('v')
    a(f's_cmp_lg_u32 s{sWV}, 0\ns_cbranch_scc1 kf_pollA_ok')
    poll(WS_FLAG, 'kf_pollA', UQ)
    a(vm.wait('st7') + '\ns_barrier')
    a(f'''s_lshl_b32 s{sTmp}, s0, 2
    buffer_load_dword v{vDB}, v{vNOVF}, {WS}, s{sTmp} offen{LD}''')
    vm.issue('tab')
    signal(WS_FLAG + 8192, 'kf_sigB')
    stampat('o')
    if S6: breads(6, True)
    compute(6, nowait=True); compute(7); stampat('x')
    for i in range(4): a(f'v_mov_b32 v{XR+8+i}, v{vW+i}')
    a(f'''v_and_b32 v{U0}, 3, v{vLane}
    v_lshlrev_b32 v{U0}, 3, v{U0}
    v_sub_u32 v{aB}, v{aB}, v{U0}
    v_lshlrev_b32 v{U0}, 1, v{U0}
    v_xor_b32 v{aB}, v{aB}, v{U0}''')
    a(vm.wait('tab'))
    rec_loads(vDB, TOUCH, TOUCH + 1, 'kf_recend')
    stampat('w')
    def w1reads(i, reg):
        for ks in range(2):
            for c in range(2):
                for t_ in range(2):
                    a(f'ds_read_b64_tr_b16 {vr(W1F[((i-8)*2+ks)*2+c]+2*t_,2)}, v{reg} offset:{(i%3)*4096+(32*ks+4*t_)*64+8*c}')
    tile_out(False)
    a(f'v_mov_b32 v{B2A}, v{W3}\nv_mov_b32 v{B2A+1}, v{W3+1}\nv_mov_b32 v{B2B}, v{W3+2}\nv_mov_b32 v{B2B+1}, v{W3+3}')
    stampat('n')
    w1pos = opt.get('w1pos', 'r,g,r').split(',')
    NN_ = sum(1 for x in w1pos if x == 'n')
    for i in (9, 10, 8):
        if w1pos[i - 8] == 'n': stage(i)
    a(f'''s_sub_u32 s{sP}, s{sPw}, 3072
    s_subb_u32 s{sP+1}, s{sPw+1}, 0
    s_or_b32 s{sP+1}, s{sP+1}, {512 << 16}
    s_mov_b32 s{sP+2}, {0 if opt.get('nogather') else N}
    s_mov_b32 s{sP+3}, 0x20000
    v_mov_b32 v{TQ}, 0
    v_mov_b32 v{TQ+1}, 0
    v_mov_b32 v{TQ+2}, 0
    v_mov_b32 v{TQ+3}, 0
    s_mov_b32 s{sHeavy}, 0
    s_mov_b32 s{sB}, 0
    s_mov_b32 s{sRdone}, 0
    s_mov_b32 s{sAcc}, 0
    s_mov_b32 s{sSafe}, {1 if opt.get('allsafe') else 0}
    s_mov_b32 s{sEAT}, {EAT}
    s_cmp_lg_u32 s{sWV}, 7
    s_cbranch_scc1 k2_nooh
    v_add_u32 v{T0}, {QT + 40*QSTR}, v{vL16}
    ds_write_b128 v{T0}, {vr(TQ,4)}
    ds_write_b128 v{T0}, {vr(TQ,4)} offset:1024
    ds_write_b128 v{T0}, {vr(TQ,4)} offset:2048
    ds_write_b128 v{T0}, {vr(TQ,4)} offset:3072
    v_mul_u32_u24 v{T0}, {OSTR+2}, v{vLane}
    v_mov_b32 v{T2}, 0x3f80
    v_add_u32 v{T0}, {OH}, v{T0}
    s_mov_b32 exec_hi, 0xff
    ds_write_b16 v{T0}, v{T2}
    s_mov_b32 exec_hi, -1''')
    a.label('k2_nooh')
    a(f's_cmp_lg_u32 s{sWV}, 0\ns_cselect_b32 s{sBok}, 1, 0\ns_branch k2_first')
    a.label('k2_batch')
    for i in range(4): a(f'v_mov_b32 v{TQ+i}, 0')
    list_prefill(TQ, DL4, T0, T1)
    list_consts(T0, T1, T2, T3)
    a('s_waitcnt lgkmcnt(0)\ns_barrier')
    a.label('k2_first')
    stampat(1)
    a(f'''v_lshrrev_b32 v{T2}, 5, v{vLane}
    v_and_b32 v{T3}, 31, v{vLane}
    v_lshlrev_b32 v{T0}, 3, v{T2}
    v_sub_u32 v{T0}, v{T3}, v{T0}
    v_mov_b32 v{T1}, 0x3f80
    v_and_b32 v{aQ}, 1, v{T0}
    v_lshlrev_b32 v{aQ}, 4, v{aQ}
    v_lshlrev_b32 v{T1}, v{aQ}, v{T1}
    v_lshrrev_b32 v{T0}, 1, v{T0}''')
    for k, reg in enumerate([I0, I0+1, I0+2, I0+3, I1, I1+1, I1+2, I1+3]):
        c = k if k < 4 else k + 4
        m = 'vcc' if k % 2 == 0 else f's[{sSv}:{sSv+1}]'
        a(f'v_cmp_eq_u32 {m}, {c}, v{T0}')
        if k:
            pk, preg = k - 1, [I0, I0+1, I0+2, I0+3, I1, I1+1, I1+2, I1+3][k-1]
            a('s_nop 0')
            a(f'v_cndmask_b32 v{preg}, 0, v{T1}, ' + ('vcc' if pk % 2 == 0 else f's[{sSv}:{sSv+1}]'))
    a(f'''v_mov_b32 v{A2}, 0
    v_mov_b32 v{A2+1}, 0
    v_cndmask_b32 v{I1+3}, 0, v{T1}, s[{sSv}:{sSv+1}]
    v_mov_b32 v{A2+2}, 0
    v_mov_b32 v{A2+3}, 0
    s_mov_b32 s{sQs}, {QSTR//4}
    s_mov_b32 s{sOs}, {OSTR//4}''')
    for d in range(4):
        a(f'v_mov_b32 v{IDX1+2*d+1}, v{IDX+2*d+1}\nv_mov_b32 v{IDX2+2*d+1}, v{IDX+2*d+1}')
    a(f'v_mov_b32 v{T3}, 1')
    stampat('e')
    a(f's_waitcnt vmcnt({4 * NN_})')
    stampat(2)
    for i in range(8):
        a(f'''s_mov_b64 exec, s[{sMask+2*i}:{sMask+2*i+1}]
        s_cbranch_execz kf_histend
        v_lshrrev_b32 v{DL4+i}, 14, v{REC+4*i+2}
        v_add_u32 v{T1}, {CNT}, v{DL4+i}
        ds_add_rtn_u32 v{RK+i}, v{T1}, v{T3}''')
    a(f'''s_mov_b64 exec, s[{sOv}:{sOv+1}]
    v_mov_b32 v{T1}, {CNT + 252}
    ds_add_u32 v{T1}, v{T3}''')
    a.label('kf_histend')
    a(f'''s_mov_b64 exec, -1
    v_lshlrev_b32 v{T0}, 2, v{vLane}
    v_add_u32 v{T0}, {CNT}, v{T0}
    s_waitcnt lgkmcnt(0)
    s_nop 0''')
    def w1stage(pos):
        for i in (8, 9, 10):
            if w1pos[i - 8] == pos:
                a(f's_or_b32 s{sTmp2}, s{sHeavy}, s{sRdone}\ns_cbranch_scc1 kf_nost{i}')
                stage(i)
                a.label(f'kf_nost{i}')
    w1stage('g')
    stampat('f')
    a('s_barrier')
    stampat('g')
    a(f'ds_read_b32 v{T1}, v{T0}\nv_cmp_gt_u32 vcc, 40, v{vLane}')
    w1stage('r')
    a(f'''s_cmp_lg_u32 s{sBok}, 0
    s_cbranch_scc1 kf_nopk1
    s_and_b32 s{sTmp}, s2, 7
    s_lshl_b32 s{sTmp}, s{sTmp}, 10
    s_add_u32 s{sTmp}, s{sTmp}, {WS_FLAG + 8192 - WS_CELLS}
    buffer_load_dwordx4 {vr(IDX3,4)}, v{vL16}, {WS}, s{sTmp} offen sc1''')
    a.label('kf_nopk1')
    dpp = ['row_shr:1 row_mask:0xf bank_mask:0xf', 'row_shr:2 row_mask:0xf bank_mask:0xf', 'row_shr:4 row_mask:0xf bank_mask:0xf',
           'row_shr:8 row_mask:0xf bank_mask:0xf', 'row_bcast:15 row_mask:0xa bank_mask:0xf', 'row_bcast:31 row_mask:0xc bank_mask:0xf']
    a(f'''s_waitcnt lgkmcnt(0)
    v_readlane_b32 s{sT1}, v{T1}, 63
    v_add_u32 v{T1}, 3, v{T1}
    v_lshrrev_b32 v{T1}, 2, v{T1}
    v_cndmask_b32 v{T1}, 0, v{T1}, vcc
    v_mov_b32 v{T2}, v{T1}
    s_lshl_b32 s{sTmp3}, s{sT1}, 8
    s_nop 0''')
    for k, d in enumerate(dpp):
        a(f'v_add_u32_dpp v{T2}, v{T2}, v{T2} {d}' + (' bound_ctrl:0' if k < 4 else ''))
        a('s_nop 1' if k < 5 else 's_nop 0')
    a(f'''v_readlane_b32 s{sQt}, v{T2}, 63
    v_sub_u32 v{T1}, v{T2}, v{T1}
    v_add_u32 v{T2}, 7, v{T1}
    v_lshrrev_b32 v{T2}, 3, v{T2}
    s_add_u32 s{sTmp}, s{sQt}, 7
    v_sub_u32 v{T0}, s{sTmp}, v{T1}
    v_lshrrev_b32 v{T0}, 3, v{T0}
    v_add_u32 v{T2}, v{T2}, v{T0}
    v_lshlrev_b32 v{T0}, 1, v{T1}
    s_add_u32 s{sTmp}, s{sQt}, {int(opt.get('bias', 0))}
    v_sad_u32 v{T0}, v{T0}, s{sTmp}, 0
    v_lshl_add_u32 v{T2}, v{T2}, 5, v{T0}
    v_subrev_u32 v{T0}, 8, v{vLane}
    v_lshl_add_u32 v{T2}, v{T2}, 6, v{vLane}
    v_cmp_gt_u32 vcc, 25, v{T0}
    s_nop 1
    v_cndmask_b32 v{T2}, -1, v{T2}, vcc
    s_nop 1''')
    for k, d in enumerate(dpp):
        a(f'v_min_u32_dpp v{T2}, v{T2}, v{T2} {d}')
        a('s_nop 1' if k < 5 else 's_nop 0')
    a(f'''v_readlane_b32 s{sSplit}, v{T2}, 63
    s_and_b32 s{sSplit}, s{sSplit}, 63
    s_cmp_lg_u32 s{sHeavy}, 0
    s_cselect_b32 s{sSplit}, 20, s{sSplit}
    s_nop 0
    v_readlane_b32 s{sTmp}, v{T1}, s{sSplit}
    v_cmp_le_u32 vcc, s{sSplit}, v{vLane}
    s_add_u32 s{sT0}, s{sTmp}, 7
    s_lshr_b32 s{sT0}, s{sT0}, 3
    s_sub_u32 s{sT1}, s{sQt}, s{sTmp}
    s_add_u32 s{sT1}, s{sT1}, 7
    s_lshr_b32 s{sT1}, s{sT1}, 3
    s_add_u32 s{sTmp2}, s{sT0}, s{sT1}
    s_add_u32 s{sTmp2}, s{sTmp2}, s{sTmp3}
    s_cmp_le_u32 s{sTmp2}, {NT}
    s_cbranch_scc1 k2_fits
    s_mov_b32 s{sHeavy}, 1
    s_branch k2_hentry''')
    a.label('k2_fits')
    stampat('h')
    a(f'''s_lshl_b32 s{sTmp2}, s{sT0}, 3
    s_sub_u32 s{sTmp2}, s{sTmp2}, s{sTmp}
    v_mov_b32 v{T2}, s{sTmp2}
    v_cndmask_b32 v{T2}, 0, v{T2}, vcc
    v_add_lshl_u32 v{T1}, v{T1}, v{T2}, 2''')
    for i in range(8):
        if i in (2, 4, 6): a(f's_cmp_eq_u64 s[{sMask+2*i}:{sMask+2*i+1}], 0\ns_cbranch_scc1 kf_bpend')
        a(f'ds_bpermute_b32 v{TQ+i}, v{DL4+i}, v{T1}')
    a.label('kf_bpend')
    a(f'''s_cmp_eq_u32 s{sG}, 0
    s_cselect_b32 s{sT}, s{sT0}, s{sT1}
    s_cselect_b32 s{sTbase}, 0, s{sT0}
    s_cselect_b32 s{sTmp2}, 0, 192
    s_lshl_b32 s{sT0}, s{sT0}, 5
    s_lshl_b32 s{sTmp}, s{sTbase}, 6
    s_add_u32 s{sTmp}, s{sTmp}, s{sTmp2}
    s_add_u32 s{sTmp}, s{sTmp}, {SRC}
    v_add_u32 v{aSRC}, s{sTmp}, v{aSRC}
    s_lshl_b32 s{sTmp}, s{sTbase}, 9
    s_add_u32 s{sTmp}, s{sTmp}, {EAT}
    v_add_u32 v{aEAT}, s{sTmp}, v{aEAT}
    s_lshl_b32 s{sTmp}, s{sTbase}, 3
    s_add_u32 s{sTmp}, s{sTmp}, {XL}
    v_add_u32 v{aXL}, s{sTmp}, v{aXL}
    v_mov_b32 v{vX}, {SRC}
    v_mov_b32 v{aQ}, {SRC+192}''')
    a(f'v_mov_b32 v{S}, 0x3f80\nv_mov_b32 v{S+1}, 0\ns_mov_b32 s{sTmp}, {XL}\ns_waitcnt lgkmcnt(0)')
    for i in range(8):
        er = REC + 4 * i
        a(f'''s_mov_b64 exec, s[{sMask+2*i}:{sMask+2*i+1}]
        s_cbranch_execz kf_scend
        v_add_u32 v{RK+i}, v{RK+i}, v{TQ+i}
        v_cmp_gt_u32 vcc, s{sT0}, v{RK+i}
        v_lshrrev_b32 v{T2}, 2, v{RK+i}
        v_and_b32 v{T0}, 12, v{RK+i}
        v_cndmask_b32 v{T1}, v{aQ}, v{vX}, vcc
        v_add_u32 v{T2}, s{sTmp}, v{T2}
        v_lshl_add_u32 v{T1}, v{RK+i}, 1, v{T1}
        v_lshlrev_b32 v{T0}, 2, v{T0}
        ds_write_b16 v{T1}, v{er+2}
        ds_write_b8 v{T2}, v{DL4+i}
        v_lshl_add_u32 v{RK+i}, v{RK+i}, 4, s{sEAT}
        v_lshlrev_b64 {vr(er+2,2)}, v{T0}, {vr(S,2)}
        ds_write_b128 v{RK+i}, {vr(er,4)}''')
    a.label('kf_scend')
    a('s_mov_b64 exec, -1')
    a(f's_waitcnt vmcnt(0)\ns_cmp_lg_u32 s{sRdone}, 0\ns_cbranch_scc1 kf_now1\ns_waitcnt lgkmcnt(4)')
    w1reads(9, aB)
    a.label('kf_now1')
    a(f'''s_cmp_lg_u32 s{sBok}, 0
    s_cbranch_scc1 kf_nopeek
    v_and_b32 v{IDX3}, v{IDX3}, v{IDX3+1}
    v_and_b32 v{IDX3+2}, v{IDX3+2}, v{IDX3+3}
    v_and_b32 v{IDX3}, v{IDX3}, v{IDX3+2}
    v_cmp_eq_u32 vcc, 1, v{IDX3}
    s_cmp_eq_u64 vcc, -1
    s_cbranch_scc0 kf_nopeek
    {INV}
    s_mov_b32 s{sBok}, 1''')
    a.label('kf_nopeek')
    a(f's_cmp_lg_u32 s{sBok}, 0\ns_cbranch_scc1 kf_bdone')
    poll(WS_FLAG + 8192, 'kf_pollB', TQ + 4)
    a(f'{INV}\ns_mov_b32 s{sBok}, 1\ns_waitcnt vmcnt(0)')
    a.label('kf_bdone')
    for x in (MA, MA + 1, MB, MB + 1, S, S + 1): a(f'v_mov_b32 v{x}, 0')
    for d in range(4): a(f'v_mov_b32 v{IDX3+2*d+1}, v{IDX+2*d+1}')
    a(f'v_mov_b32 v{T3}, v{aB}\ns_waitcnt lgkmcnt(0)\ns_barrier')
    vm.ops = []
    stampat(3)
    if opt.get('prio3'): a('s_setprio 2')
    DOFF = [0, 4, 16, 20]
    def idx_reads(base, toff):
        return [f'ds_read_u16 v{base+2*d}, v{aSRC} offset:{toff*64+DOFF[d]}' for d in range(4)]
    def dma_ins(base, d, tag):
        vm.issue(tag)
        return f'buffer_load_dwordx4 {vr(base+2*d,2)}, s[{sP}:{sP+3}], 0 idxen offen offset:{d*1024} lds'
    for x in idx_reads(IDX1, 0) + idx_reads(IDX2, 1): a(x)
    a(f's_mov_b32 m0, s{sRing}\ns_waitcnt lgkmcnt(4)')
    for d in range(4): a(dma_ins(IDX1, d, 'dma0'))
    a(f's_cmp_lg_u32 s{sRdone}, 0\ns_cbranch_scc1 kf_now2')
    w1reads(10, T3)
    a('s_waitcnt lgkmcnt(4)')
    w1reads(8, T3)
    a('s_waitcnt lgkmcnt(0)')
    sv_ = list(vm.ops)
    stage(11)
    vm.ops = sv_
    a.label('kf_now2')
    D1 = int(opt.get('d1pos', 2))
    a('s_waitcnt lgkmcnt(0)')
    def dma1():
        a(f's_add_u32 m0, s{sRing}, 4096\ns_nop 0')
        for d in range(4): a(dma_ins(IDX2, d, 'dma1'))
    if D1 < 0: dma1()
    if opt.get('prio3'): a('s_setprio 0')
    stampat(4)
    def gemm(acc, frag, addr, wregs, first, waitv, hook=None):
        def rd(s):
            for rt in range(3):
                f = frag + (s & 1) * 12 + rt * 4
                a(f'ds_read_b128 {vr(f,4)}, v{addr+(s&3)} offset:{rt*8192+(s>>2)*256}')
        rd(0)
        for s in range(8):
            if s + 1 < 8:
                rd(s + 1); w = 'lgkmcnt(3)'
            else: w = 'lgkmcnt(0)'
            wv = waitv(s)
            a((wv + ' ' + w) if wv else 's_waitcnt ' + w)
            if hook: hook(s)
            for rt in range(3):
                for c in range(2):
                    d = acc[rt * 2 + c]; f = frag + (s & 1) * 12 + rt * 4
                    cin = '0' if (first and s == 0) else vr(d, 4)
                    a(f'v_mfma_f32_16x16x32_bf16 {vr(d,4)}, {vr(wregs(s*2+c),4)}, {vr(f,4)}, {cin}')
    def xaddr(dst, t0, t1):
        a(f'''v_and_b32 v{t0}, 15, v{vLane}
        v_lshrrev_b32 v{t1}, 4, v{vLane}
        v_xor_b32 v{t1}, v{t1}, v{t0}
        v_lshlrev_b32 v{t1}, 4, v{t1}
        v_lshl_add_u32 v{t0}, v{t0}, 9, v{t1}
        v_add_u32 v{dst}, {XT}, v{t0}''')
        for s_ in range(1, 4):
            a(f'v_xor_b32 v{t1}, {s_<<6}, v{t0}\nv_add_u32 v{dst+s_}, {XT}, v{t1}')
    if D1 >= 0:
        a(f's_cmp_eq_u32 s{sRdone}, 0\ns_cbranch_scc1 kf_dor')
        sv_ = list(vm.ops); dma1(); vm.ops = sv_
        a('s_branch kf_nor')
        a.label('kf_dor')
    else: a(f's_cmp_lg_u32 s{sRdone}, 0\ns_cbranch_scc1 kf_nor')
    xaddr(RK, T0, T1)
    def hook(s_):
        if s_ == D1: dma1()
        if s_ == 5:
            a('s_waitcnt vmcnt(4)')
            w1reads(11, T3)
            a('s_waitcnt lgkmcnt(8)')
    gemm([OA + 4 * i for i in range(6)], REC, RK, lambda i: W1F[i], True, lambda s_: None, hook)
    a(f'''s_mov_b32 s{sRdone}, 1
    v_mov_b32 v{T0}, {HMAX+8}
    v_mov_b32 v{T1}, 1
    s_mov_b64 exec, 1
    ds_add_u32 v{T0}, v{T1}
    s_mov_b64 exec, -1''')
    for i in range(4): a(f'v_mov_b32 v{XR+i}, v{RK+i}')
    a(f's_mov_b32 s{sSv}, {hex(f2u(-LOG2E))}\ns_mov_b32 s{sSv+1}, {hex(f2u(-LOG2E))}')
    a(f'''v_and_b32 v{T0}, 31, v{vLane}
    s_lshl_b32 s{sTmp2}, s{sG}, 3
    v_add_u32 v{T0}, s{sTmp2}, v{T0}
    v_and_b32 v{T2}, 15, v{T0}
    s_lshl_b32 s{sTmp2}, s{sCQ}, 3
    v_xor_b32 v{T2}, s{sTmp2}, v{T2}
    v_lshlrev_b32 v{T2}, 4, v{T2}
    v_lshl_add_u32 v{T2}, v{T0}, 9, v{T2}
    v_lshrrev_b32 v{T1}, 5, v{vLane}
    v_lshl_add_u32 v{T2}, v{T1}, 3, v{T2}
    v_add_u32 v{XR+4}, {XT}, v{T2}
    v_and_b32 v{T0}, 15, v{vLane}
    v_lshrrev_b32 v{T1}, 4, v{vLane}
    v_lshlrev_b32 v{T1}, 4, v{T1}
    v_lshl_add_u32 v{XR+6}, v{T0}, 9, v{T1}
    v_mov_b32 v{XR+7}, {HMAX+8}
    v_mov_b32 v{vMX}, 0''')
    for i in range(12): a(f'v_pk_mul_f32 {pr(OA+2*i)}, {pr(OA+2*i)}, s[{sSv}:{sSv+1}]')
    a.label('kf_nor')
    a(f'''v_and_b32 v{T0}, 31, v{vLane}
    s_lshl_b32 s{sTmp2}, s{sG}, 3
    v_add_u32 v{T0}, s{sTmp2}, v{T0}
    v_cmp_gt_u32 vcc, s{sSplit}, v{T0}
    s_cmp_eq_u32 s{sG}, 0
    s_cselect_b64 s[{sNM}:{sNM+1}], 0, -1
    s_xor_b64 s[{sNM}:{sNM+1}], s[{sNM}:{sNM+1}], vcc''')
    for x in range(4): a(f'v_mov_b32 v{NF+x}, 0\nv_mov_b32 v{DF+x}, 1.0')
    stampat(5)
    a(f'''s_cmp_eq_u32 s{sT}, 0
    s_cbranch_scc1 k2_loopend
    ds_read_u8 v{vX}, v{aXL}
    s_mov_b64 exec, s[{sHM}:{sHM+1}]
    ds_read_b128 {vr(A2,4)}, v{aEAT}
    s_mov_b64 exec, -1''')
    a(vm.wait('dma0'))
    a(f'''ds_read_b128 {vr(PA,4)}, v{aP}
    ds_read_b128 {vr(PA+4,4)}, v{aP+1}
    ds_read_b128 {vr(PB,4)}, v{aP+2}
    ds_read_b128 {vr(PB+4,4)}, v{aP+3}
    s_waitcnt lgkmcnt(5)
    v_mad_u32_u24 v{aQ}, v{vX}, s{sQs}, v{cQ}
    v_mad_u32_u24 v{aS}, v{vX}, s{sOs}, v{cS}
    ds_read_u8 v{vX}, v{aXL} offset:8
    ds_read_b64_tr_b16 {vr(B2A+2,2)}, v{aQ}
    ds_read_b64_tr_b16 {vr(B2B+2,2)}, v{aQ} offset:64''')
    for x in idx_reads(IDX3, 2) + idx_reads(IDX, 3): a(x)
    a(f's_sub_u32 s{sCnt}, s{sT}, 1\ns_waitcnt lgkmcnt(9)')
    def zchain(D, B2, P):
        return [f'v_mfma_f32_32x32x16_bf16 {vr(D,16)}, {vr(A2,4)}, {vr(B2,4)}, 0',
                f'v_mfma_f32_32x32x16_bf16 {vr(D,16)}, {vr(P,4)}, {vr(I0,4)}, {vr(D,16)}',
                f'v_mfma_f32_32x32x16_bf16 {vr(D,16)}, {vr(P+4,4)}, {vr(I1,4)}, {vr(D,16)}']
    for m in zchain(DA, B2A, PA): a(m)
    if prio == 'young': a(f's_cmp_eq_u32 s{sG}, 0\ns_cbranch_scc1 k2_noprio\ns_setprio 1\nk2_noprio:')
    a('s_nop 7\ns_nop 3')
    stampat(6)

    cur = {'pT': None, 'pP': None, 'safe': bool(opt.get('allsafe'))}
    maxops = [f'v_max3_f32 v{vMX}, v{vMX}, v{DF}, v{DF+1}', f'v_max3_f32 v{vMX}, v{vMX}, v{DF+2}, v{DF+3}'][:2 if opt.get('noshare') else 1]
    def half(D, accprev, Mprev, Mfin, zc, extra_T, extra_P):
        sh = not cur['safe'] and not opt.get('noshare')
        Ts = [f'v_exp_f32 v{EE+i}, v{D+i}' for i in range(16)] + [f'v_rcp_f32 v{DF+i}, v{DF+i}' for i in range(2 if sh else 4)]
        cuts = [0, 4, 8, 12, 18] if sh else [0, 5, 10, 15, 20]
        if not cur['safe']:
            extra_T = dict(extra_T)
            extra_T[2] = extra_T.get(2, []) + maxops
        mf = [f'v_mfma_f32_32x32x8_bf16 {vr(accprev,16)}, {vr(Mprev,2)}, {vr(S,2)}, {vr(accprev,16)}'] + zc
        if cur['pT'] is not None: a(f's_setprio {cur["pT"]}')
        LEAD = int(opt.get('lead', 0))
        for t_ in Ts[:LEAD]: a(t_)
        a('s_waitcnt lgkmcnt(0)')
        Ts = [None] * LEAD + Ts[LEAD:]
        for k in range(4):
            if k == 0 and cur.get('first'):
                lab = cur['first']
                a(f's_cmp_lg_u32 s{sAcc}, 0\ns_cbranch_scc1 {lab}_a')
                a(f'v_mfma_f32_32x32x8_bf16 {vr(accprev,16)}, {vr(Mprev,2)}, {vr(S,2)}, 0')
                a.label(lab + '_a')
                continue_T = True
                for x in extra_T.get(k, []): a(x)
                for t_ in Ts[cuts[k]:cuts[k + 1]]:
                    if t_: a(t_)
                continue
            a(mf[k])
            for x in extra_T.get(k, []): a(x)
            for t_ in Ts[cuts[k]:cuts[k + 1]]:
                if t_: a(t_)
        if cur['pP'] is not None: a(f's_setprio {cur["pP"]}')
        bs = [0, 4, 8, 12]
        fin = [f'v_pk_mul_f32 {pr(NF)}, {pr(NF)}, {pr(DF)}', f'v_pk_mul_f32 {pr(NF+2)}, {pr(NF+2)}, {pr(DF if sh else DF+2)}']
        cvt = [f'v_cvt_pk_bf16_f32 v{Mfin}, v{NF}, v{NF+1}', f'v_cvt_pk_bf16_f32 v{Mfin+1}, v{NF+2}, v{NF+3}']
        if cur['safe']:
            Ps = [f'v_pk_fma_f32 {pr(EE+2*p)}, {pr(EE+2*p)}, s[{sC}:{sC+1}], s[{sC}:{sC+1}] clamp' for p in range(8)]
            Ps += fin
            Ps += [f'v_pk_mul_f32 {pr(D+b)}, {pr(D+b)}, {pr(EE+b+2)}' for b in bs]
            Ps += cvt
            Ps += [f'v_pk_fma_f32 {pr(D+b)}, {pr(D+b+2)}, {pr(EE+b)}, {pr(D+b)}' for b in bs]
            Ps += [f'v_pk_mul_f32 {pr(EE+b)}, {pr(EE+b)}, {pr(EE+b+2)}' for b in bs]
        else:
            Ps = [f'v_pk_add_f32 {pr(EE+b+2)}, {pr(EE+b+2)}, 1.0 op_sel_hi:[1,0]' for b in bs]
            Ps += fin
            Ps += [f'v_pk_fma_f32 {pr(D+b)}, {pr(D+b)}, {pr(EE+b+2)}, {pr(D+b+2)}' for b in bs]
            Ps += cvt
            Ps += [f'v_pk_fma_f32 {pr(D+b)}, {pr(D+b+2)}, {pr(EE+b)}, {pr(D+b)}' for b in bs]
            Ps += [f'v_pk_fma_f32 {pr(EE+b)}, {pr(EE+b)}, {pr(EE+b+2)}, {pr(EE+b+2)}' for b in bs]
        Ps += [f'v_pk_mul_f32 {pr(NF+2*B)}, {pr(D+8*B)}, {pr(EE+8*B+4)}' for B in range(2)]
        Ps += [f'v_pk_mul_f32 {pr(DF+2*B)}, {pr(EE+8*B)}, {pr(EE+8*B+4)}' for B in range(2)]
        Ps += [f'v_pk_fma_f32 {pr(NF+2*B)}, {pr(D+8*B+4)}, {pr(EE+8*B)}, {pr(NF+2*B)}' for B in range(2)]
        if sh:
            Ps += [f'v_pk_mul_f32 {pr(NF)}, {pr(NF)}, {pr(DF+2)}', f'v_pk_mul_f32 {pr(NF+2)}, {pr(NF+2)}, {pr(DF)}',
                   f'v_pk_mul_f32 {pr(DF)}, {pr(DF)}, {pr(DF+2)}']
        nP = len(Ps)
        remap = {}
        for i in sorted(extra_P): remap.setdefault(min(i * nP // 30, nP - 1), []).extend(extra_P[i])
        for i, p in enumerate(Ps):
            for x in remap.get(i, []):
                a(x() if callable(x) else x)
            a(p)
    def spread(d, xs, start, step=1):
        for i, x in enumerate(xs):
            d.setdefault(start + i * step, []).extend(x if isinstance(x, list) else [x])
    wsched = [('u2', i) for i in range(16)]
    NPEEL = int(opt.get('npeel', 6))
    per = {6: [0, 3, 3, 3, 3, 4], 3: [4, 6, 6], 9: [0, 2, 2, 2, 2, 2, 2, 2, 2]}[NPEEL]
    def iteration(tau, u, peeled):
        sl = (u + 1) % 3
        eT = {3: [f'v_mad_u32_u24 v{aQ}, v{vX}, s{sQs}, v{cQ}', f'v_mad_u32_u24 v{aS+sl}, v{vX}, s{sOs}, v{cS}']}
        eP = {}
        spread(eP, [(lambda: vm.wait(f'dma{tau+1}')) if peeled else 's_waitcnt vmcnt(4)',
              f'ds_read_b128 {vr(PA,4)}, v{aP} offset:{sl*4096}', f'ds_read_b128 {vr(PA+4,4)}, v{aP+1} offset:{sl*4096}',
              f'ds_read_b64_tr_b16 {vr(B2A+2,2)}, v{aQ}',
              [f's_mov_b64 exec, s[{sHM}:{sHM+1}]', f'ds_read_b128 {vr(A2,4)}, v{aEAT} offset:{(u+1)*512}', 's_mov_b64 exec, -1'],
              f's_add_u32 m0, s{sRing}, {u*4096}'], 1)
        if peeled and tau == 0:
            eP[6] = [f's_add_u32 m0, s{sRing}, 8192']
            spread(eP, [(lambda d=d: dma_ins(IDX3, d, 'dma2')) for d in range(4)], 7, 3)
            eP.setdefault(18, []).append(f's_mov_b32 m0, s{sRing}')
            spread(eP, [(lambda d=d: dma_ins(IDX, d, 'dma3')) for d in range(4)], 19, 3)
        else:
            spread(eP, [(lambda d=d: dma_ins(IDX, d, f'dma{tau+3}')) for d in range(4)], int(opt.get('d0', 8)), int(opt.get('ds', 7)))
        cur['first'] = f'kf_f{cur["g"]}A' if (peeled and tau == 0) else None
        half(DA, ACCA, MA, MB, zchain(DB, B2B, PB), eT, eP)
        eP = {}
        xs = [f'ds_read_b128 {vr(PB,4)}, v{aP+2} offset:{sl*4096}', f'ds_read_b128 {vr(PB+4,4)}, v{aP+3} offset:{sl*4096}',
              f'ds_read_b64_tr_b16 {vr(B2B+2,2)}, v{aQ} offset:64', f'ds_read_b64_tr_b16 {vr(S,2)}, v{aS+u}',
              f'ds_read_u8 v{vX}, v{aXL} offset:{(u+2)*8}'] + idx_reads(IDX, u + 4)
        spread(eP, xs, int(opt.get('x0', 1)), int(opt.get('xs', 2)))
        if peeled and not opt.get('nowpf') and cur['g'] != 'S':
            k0 = sum(per[:tau])
            for j, (m, i) in enumerate(wsched[k0:k0 + per[tau]]):
                def f(m=m, i=i):
                    ins = wload(WB2 + 4 * i, 2, i, 'wu')
                    return '\n'.join(ins)
                eP.setdefault(18 + 2 * j, []).append(f)
            if tau == NPEEL - 1: eP.setdefault(28, []).append(f's_mov_b32 s{sWdone}, 1')
        if u == 2:
            eP.setdefault(29, []).extend([f'v_add_u32 v{aSRC}, 192, v{aSRC}', f'v_add_u32 v{aEAT}, 1536, v{aEAT}', f'v_add_u32 v{aXL}, 24, v{aXL}'])
        eP.setdefault(29, []).append(f's_sub_u32 s{sCnt}, s{sCnt}, 1')
        cur['first'] = f'kf_f{cur["g"]}B' if (peeled and tau == 0) else None
        if cur['first']: eP.setdefault(27, []).append(f's_mov_b32 s{sAcc}, 1')
        half(DB, ACCB, MB, MA, zchain(DA, B2A, PA), {}, eP)
    spec = {'P': '01', 'none': 'xx', 'young': 'xx'}.get(prio, prio).split('|')
    saved = list(vm.ops)
    a(f's_cmp_lg_u32 s{sSafe}, 0\ns_cbranch_scc1 k2_safe')
    if len(spec) > 1: a(f's_cmp_lg_u32 s{sG}, 0\ns_cbranch_scc1 k2_g1')
    for g, sp in enumerate(spec):
        vm.ops = list(saved)
        sp = sp.split(',')
        def setp(k):
            x = sp[k % len(sp)]
            cur['pT'] = None if x[0] == 'x' else int(x[0]); cur['pP'] = None if x[1] == 'x' else int(x[1])
        cur['g'] = g
        if g: a.label('k2_g1')
        for tau in range(NPEEL):
            setp(tau)
            iteration(tau, tau % 3, True)
            a('s_cbranch_scc1 k2_drain')
        a.label(f'k2_loop{g}')
        for u in range(3):
            setp(u)
            iteration(100 + u, u, False)
            a('s_cbranch_scc1 k2_drain' if u < 2 else f's_cbranch_scc0 k2_loop{g}')
        if g + 1 < len(spec): a('s_branch k2_drain')
    a.label('k2_drain')
    a('s_setprio 0\ns_waitcnt lgkmcnt(0)')
    for x in maxops: a(x)
    a(f'v_mfma_f32_32x32x8_bf16 {vr(ACCA,16)}, {vr(MA,2)}, {vr(S,2)}, {vr(ACCA,16)}')
    if not opt.get('noshare'):
        a(f's_cmp_lg_u32 s{sSafe}, 0\ns_cbranch_scc1 kf_dr4\nv_mov_b32 v{DF+2}, v{DF}\nv_mov_b32 v{DF+3}, v{DF+1}')
        a.label('kf_dr4')
    for i in range(4): a(f'v_rcp_f32 v{DF+i}, v{DF+i}')
    a('s_nop 0')
    for i in range(4): a(f'v_mul_f32 v{NF+i}, v{NF+i}, v{DF+i}')
    a(f'''v_cvt_pk_bf16_f32 v{MB}, v{NF}, v{NF+1}
    v_cvt_pk_bf16_f32 v{MB+1}, v{NF+2}, v{NF+3}
    s_nop 1
    v_mfma_f32_32x32x8_bf16 {vr(ACCB,16)}, {vr(MB,2)}, {vr(S,2)}, {vr(ACCB,16)}''')
    a.label('k2_loopend')
    stampat(7)
    a(f'''s_cmp_eq_u32 s{sHeavy}, 0
    s_cbranch_scc1 k2_epi
    s_add_u32 s{sB}, s{sB}, 1''')
    a.label('k2_fetch')
    a(f'''s_waitcnt vmcnt(0) lgkmcnt(0)
    s_barrier
    s_cmp_ge_u32 s{sB}, s{sHeavy}
    s_cbranch_scc1 k2_epi
    s_lshl_b32 s{sTmp}, s0, 2
    buffer_load_dword v{TQ}, v{vNOVF}, {WS}, s{sTmp} offen sc1
    v_and_b32 v{T1}, 1, v0
    s_lshl_b32 s{sTmp}, s{sB}, 1
    v_add_u32 v{T1}, s{sTmp}, v{T1}
    s_waitcnt vmcnt(0)
    v_and_b32 v{T0}, 0xffff, v{TQ}
    v_lshrrev_b32 v{TQ}, 16, v{TQ}
    v_add_u32 v{T0}, v{T0}, v{T1}
    v_cmp_lt_u32 s[{sMask}:{sMask+1}], v{T1}, v{TQ}
    v_mad_u32_u24 v{T0}, v{T0}, 12, v{vNOVF}
    buffer_load_dwordx3 {vr(REC,3)}, v{T0}, {WS}, 0 offen offset:1024 sc1''')
    for i in range(1, 8): a(f's_mov_b64 s[{sMask+2*i}:{sMask+2*i+1}], 0')
    a(f's_mov_b64 s[{sOv}:{sOv+1}], 0\ns_waitcnt vmcnt(0)\ns_branch k2_batch')
    a.label('k2_redo')
    a(f's_mov_b32 s{sSafe}, 1\ns_mov_b32 s{sAcc}, 0\ns_mov_b32 s{sB}, 0')
    a.label('k2_hentry')
    a(f'''s_waitcnt vmcnt(0) lgkmcnt(0)
    s_lshl_b32 s{sTmp}, s0, 2
    buffer_load_dword v{TQ}, v{vNOVF}, {WS}, s{sTmp} offen sc1
    v_mov_b32 v{T0}, {HMAX}
    v_mov_b32 v{T1}, 1
    ds_write_b32 v{T0}, v{T1}
    s_waitcnt vmcnt(0) lgkmcnt(0)
    s_barrier
    v_lshrrev_b32 v{TQ}, 16, v{TQ}
    v_add_u32 v{TQ}, 1, v{TQ}
    v_lshrrev_b32 v{TQ}, 1, v{TQ}
    ds_max_u32 v{T0}, v{TQ}
    s_waitcnt lgkmcnt(0)
    s_barrier
    ds_read_b32 v{T1}, v{T0}
    s_waitcnt lgkmcnt(0)
    v_readfirstlane_b32 s{sHeavy}, v{T1}
    s_branch k2_fetch''')
    a.label('k2_epi')
    vm.ops = []
    a(f's_waitcnt vmcnt(0)\ns_cmp_lg_u32 s{sWdone}, 0\ns_cbranch_scc1 k2_wok')
    for (m, i) in wsched:
        for x in wload(WB2 + 4 * i, 2, i, 'c'): a(x)
    a('s_waitcnt vmcnt(0)')
    a.label('k2_wok')
    Y0, Y1, Y2, Y3 = X0, X0 + 1, X0 + 2, X0 + 3
    a(f'''s_cmp_lg_u32 s{sSafe}, 0
    s_cbranch_scc1 kf_noflag
    v_cmp_lt_f32 vcc, 0x5d800000, v{vMX}
    s_cbranch_vccz kf_noflag
    v_mov_b32 v{Y0}, 1
    ds_write_b32 v{XR+7}, v{Y0} offset:4
    kf_noflag:
    s_cmp_lg_u32 s{sAcc}, 0
    s_cbranch_scc1 kf_accok''')
    for i in range(32): a(f'v_mov_b32 v{ACCA+i}, 0')
    a.label('kf_accok')
    a(f'''ds_read_b32 v{Y0}, v{XR+7}
    s_waitcnt lgkmcnt(0)
    v_readfirstlane_b32 s{sTmp}, v{Y0}
    s_cmp_lt_u32 s{sTmp}, 8
    s_cbranch_scc1 kf_accok
    s_mov_b64 exec, s[{sNM}:{sNM+1}]''')
    Y2 = XR + 4
    a(f's_cmp_eq_u32 s{sSafe}, 0\ns_cbranch_scc1 kf_noscale')
    for q in range(16): a(f'v_pk_mul_f32 {pr(ACCA+2*q)}, {pr(ACCA+2*q)}, s[{sC}:{sC+1}]')
    a.label('kf_noscale')
    for q in range(8):
        if q: a(f'v_xor_b32 v{Y3}, {q<<4}, v{Y2}')
        a(f'''v_cvt_pk_bf16_f32 v{ACCA+4*q}, v{ACCA+4*q}, v{ACCA+4*q+1}
        v_cvt_pk_bf16_f32 v{ACCA+4*q+1}, v{ACCA+4*q+2}, v{ACCA+4*q+3}
        ds_write_b64 v{Y3 if q else Y2}, {vr(ACCA+4*q,2)}''')
    a('s_mov_b64 exec, -1')
    EA_ = XR; Y2 = XR + 6; Y3 = XR + 5
    a(f'''s_lshl_b32 s{sTmp2}, s{sN0}, 9
    s_lshl_b32 s{sTmp}, s{sWV}, 6
    s_add_u32 s{sTmp2}, s{sTmp2}, s{sTmp}
    s_waitcnt lgkmcnt(0)''')
    stampat(8)
    a(f's_barrier\nds_read_b32 v{Y0}, v{XR+7} offset:4')
    Z = DA
    def silu_ops(rt):
        b = OA + rt * 8
        ops = [f'v_exp_f32 v{Z+p}, v{b+p}' for p in range(8)]
        ops += [f'v_fma_f32 v{Z+p}, v{Z+p}, s{sC}, s{sC}' for p in range(8)]
        ops += [f'v_rcp_f32 v{Z+p}, v{Z+p}' for p in range(8)]
        ops += [f'v_mul_f32 v{Z+p}, v{b+p}, v{Z+p}' for p in range(8)]
        for h in range(4): ops.append(f'v_cvt_pk_bf16_f32 v{Z+8+h}, v{Z+2*h}, v{Z+2*h+1}')
        if rt == 2:
            ops.append(f's_mov_b32 exec_lo, s{sTmp3}\ns_mov_b32 exec_hi, s{sTmp3}')
        ops.append(f'buffer_store_dwordx4 {vr(Z+8,4)}, v{Y2}, s[{sO}:{sO+3}], s{sTmp2} offen' + opt.get('outst' + str(rt), opt.get('outst', ' sc1')))
        ops.append(f's_add_u32 s{sTmp2}, s{sTmp2}, 8192')
        return ops
    seq = [(rt, s) for rt in range(3) for s in range(8)]
    def ard(k):
        rt, s = seq[k]
        a(f'ds_read_b128 {vr(AF+4*(k%6),4)}, v{EA_+(s&3)} offset:{rt*8192+(s>>2)*256}')
    for k in range(5): ard(k)
    a(f'''s_waitcnt lgkmcnt(5)
    v_readfirstlane_b32 s{sTmp}, v{Y0}
    s_cmp_gt_u32 s{sTmp}, s{sSafe}
    s_cbranch_scc1 k2_redo
    s_mov_b32 s{sC}, {hex(f2u(-LOG2E))}''')
    pend = []
    for k, (rt, s) in enumerate(seq):
        if k + 5 < 24: ard(k + 5)
        a(f's_waitcnt lgkmcnt({min(5, 23-k)})')
        for c in range(2):
            d = OA + (rt * 2 + c) * 4
            a(f'v_mfma_f32_16x16x32_bf16 {vr(d,4)}, {vr(WB2+4*(2*s+c),4)}, {vr(AF+4*(k%6),4)}, {vr(d,4)}')
            if s >= 1 or c == 1:
                n = 3 if s >= 1 else 0
                for x in pend[:n]: a(x)
                pend = pend[n:]
        if s == 7:
            for x in pend: a(x)
            pend = silu_ops(rt)
    b = OA + 16
    a(f's_mov_b32 s{sC+1}, {hex(f2u(-LOG2E))}\ns_sub_u32 s{sTmp}, s{sNN}, 32\ns_bfm_b32 s{sTmp3}, s{sTmp}, 0\ns_mul_i32 s{sTmp3}, s{sTmp3}, 0x10001\ns_nop 3')
    for rr in range(4): a(f'v_mov_b32_dpp v{b+rr}, v{b+4+rr} row_shr:8 row_mask:0xf bank_mask:0xc')
    for p in range(4): a(f'v_exp_f32 v{Z+p}, v{b+p}')
    for p in range(2): a(f'v_pk_fma_f32 {pr(Z+2*p)}, {pr(Z+2*p)}, s[{sC}:{sC+1}], s[{sC}:{sC+1}]')
    for p in range(4): a(f'v_rcp_f32 v{Z+p}, v{Z+p}')
    for p in range(2): a(f'v_pk_mul_f32 {pr(Z+2*p)}, {pr(b+2*p)}, {pr(Z+2*p)}')
    a('s_nop 1')
    for rr in range(4): a(f'v_mov_b32_dpp v{Z+4+rr}, v{Z+rr} row_shl:8 row_mask:0xf bank_mask:0x3')
    for x in pend[32:]: a(x)
    if stamp:
        stampat(9)
        a(f's_mov_b64 exec, 1\ns_waitcnt lgkmcnt(0)')
        a(f's_lshl_b32 s{sTmp}, s2, 3\ns_add_u32 s{sTmp}, s{sTmp}, s{sWV}\ns_lshl_b32 s{sTmp}, s{sTmp}, 6\ns_add_u32 s{sTmp}, s{sTmp}, {WS_END - WS_CELLS}\nv_mov_b32 v{Y0}, 0')
        for i in range(10):
            a(f'v_mov_b32 v{Y1}, s{sStamp+2*i}\nbuffer_store_dword v{Y1}, v{Y0}, {WS}, s{sTmp} offen offset:{4*i}')
        a(f'v_mov_b32 v{Y1}, s{sT}\nbuffer_store_dword v{Y1}, v{Y0}, {WS}, s{sTmp} offen offset:40')
        a(f'v_mov_b32 v{Y1}, s{sPoll}\nbuffer_store_dword v{Y1}, v{Y0}, {WS}, s{sTmp} offen offset:44')
    if opt.get('diagpad'):
        a(f's_add_u32 s94, s94, {int(opt["diagpad"])}')
        a.label('kf_diag')
        a('s_memrealtime s[92:93]\ns_waitcnt lgkmcnt(0)\ns_sub_u32 s92, s92, s94\ns_cmp_lt_i32 s92, 0\ns_cbranch_scc1 kf_diag')
    a.label('k2_done')
    a('s_endpgm')
    a.label('kf_init')
    srd(a, sD, sWS, 16384, add=WS_FLAG)
    a(f'''v_mov_b32 v{BF}, 0
    v_mov_b32 v{BF+1}, 0
    v_mov_b32 v{BF+2}, 0
    v_mov_b32 v{BF+3}, 0
    s_mov_b32 s{sTmp2}, 8192
    buffer_store_dwordx4 {vr(BF,4)}, v{U3}, s[{sD}:{sD+3}], 0 offen sc1
    buffer_store_dwordx4 {vr(BF,4)}, v{U3}, s[{sD}:{sD+3}], s{sTmp2} offen sc1''')
    a('s_branch kf_noinit')
    vm.ops = list(saved)
    cur.update({'pT': None, 'pP': None, 'safe': True, 'g': 'S'})
    a.label('k2_safe')
    iteration(0, 0, True)
    a('s_cbranch_scc1 k2_drain')
    a.label('k2_loopS')
    for u in (1, 2, 0):
        iteration(100 + u, u, False)
        a('s_cbranch_scc1 k2_drain' if u != 0 else 's_cbranch_scc0 k2_loopS')
    a('s_branch k2_drain')
    return kd(KNAME, 256, 102)
```

```python
from common import *
FCH = 625; CST = 8704; RB = 12
WS_CELLS = 5242880
WS_WF = WS_CELLS + 256 * 11264
WS_FLAG = WS_WF + 131072
WS_END = WS_FLAG + 16384
KNAME = 'standalone__mpnn_edge_mlp__graph_kernel'
POLL_LIMIT = 40000
K2_GRID = NB
NT = 28
QT = 98304; QSTR = 592
OH = QT + 41 * QSTR; OSTR = 80
XT = 126208
assert QT + 40 * QSTR + 4096 <= XT and OH + 41 * OSTR <= QT + 40 * QSTR + 4096
EAT = XT + 20480
CNT = EAT + NT * 512
SRC = CNT + 256
XL = SRC + (NT + 7) * 64
K2_LDS = 163840
assert XL + 256 + 16 <= K2_LDS
C30 = 0x30800000

class R:
    def __init__(self, start): self.n = start
    def get(self, k=1, align=1):
        self.n = (self.n + align - 1) // align * align
        r = self.n; self.n += k; return r

def vr(r, k): return f'v[{r}:{r+k-1}]' if k > 1 else f'v{r}'
def pr(x): return f'v[{x}:{x+1}]'

def gen_kf(a, opt):
    stamp = opt.get('stamp')
    prio = opt.get('prio', '02,02,13|13,13,02')
    vm = VM()
    INV = 'buffer_inv sc1' if opt.get('inv') else ''
    LD = ' sc1' if opt.get('ldsc1', '0') == '1' else ''
    CS = opt.get('cellst', ' sc1')
    r = R(1)
    vLane = r.get(); vNOVF = r.get(); vL16 = r.get()
    aSRC = r.get(); aEAT = r.get(); aXL = r.get(); cQ = r.get(); cS = r.get(); vX = r.get(); aQ = r.get()
    aS = r.get(3); aP = r.get(4)
    IDX = r.get(8, 2)
    A2 = r.get(4, 2); B2A = r.get(4, 2); B2B = r.get(4, 2)
    S = r.get(2, 2); MA = r.get(2, 2); MB = r.get(2, 2)
    ACCA = r.get(16, 2); ACCB = r.get(16, 2)
    DA = r.get(16, 2); DB = r.get(16, 2)
    EE = r.get(16, 2); NF = r.get(4, 2); DF = r.get(4, 2)
    PA = r.get(8, 2); PB = r.get(8, 2); I0 = r.get(4, 2); I1 = r.get(4, 2)
    WB2 = r.get(64, 2)
    XR = r.get(12, 2)
    OA = r.get(24, 2)
    assert r.n <= 256, r.n
    W1F = [NF + 4 * i for i in range(6)] + [WB2 + 36 + 4 * i for i in range(10)]
    aW = None
    assert PB + 8 == NF + 24 and WB2 + 36 + 40 == OA
    t = R(WB2)
    REC = DB
    assert EE == DB + 16
    RK = t.get(8, 2); TQ = t.get(8, 2); DL4 = t.get(8, 2)
    T0 = t.get(); T1 = t.get(); T2 = t.get(); T3 = t.get()
    IDX3 = t.get(8, 2)
    HMAX = XL + 256
    vMX = XR + 8
    IDX1 = DA; IDX2 = DA + 8
    AF = PA
    X0 = DB + 12
    EA_ = IDX

    sP = 20; sX = 24; sE = 28; sWS = 32; sM = 36; sO = 24
    sWV = 44; sG = 45; sCQ = 46; sHeavy = 47; sB = 48; sPoll = 49; sSplit = 50; sT = 51; sTbase = 52
    sRing = 53; sCnt = 54; sTmp = 55; sTmp2 = 56; sTmp3 = 57; sC = 58
    sMask = 4
    sQs = 68; sOs = 69; sT0 = 70; sT1 = 71; sQt = 72; sWdone = 73; sSv = 74
    sStamp = 76
    sHM = 96; sN0 = 98; sWF = 99; sNN = 3; sBok = 100; sOv = 28; sRdone = 30; sEAT = 31; sAcc = 38; sNM = 36; sSafe = 39; sD = 60; sPw = 64

    names = (stamp if stamp and stamp != '1' else '0,1,2,3,4,5,6,7,8,9').split(',')
    def stampat(nm):
        nm = str(nm)
        if opt.get('padat') and opt['padat'].split(':')[0] == nm:
            a(f's_add_u32 s94, s94, {int(opt["padat"].split(":")[1])}')
            a.label('kf_padat')
            a('s_memrealtime s[92:93]\ns_waitcnt lgkmcnt(0)\ns_sub_u32 s92, s92, s94\ns_cmp_lt_i32 s92, 0\ns_cbranch_scc1 kf_padat')
        if stamp:
            if nm in names:
                i = names.index(nm)
                a(f's_memrealtime s[{sStamp+2*i}:{sStamp+2*i+1}]')
            if nm == '6': a('s_memtime s[100:101]\ns_waitcnt lgkmcnt(0)\ns_mov_b32 s{}, s100'.format(sPoll))
            if nm == '7': a('s_memtime s[100:101]\ns_waitcnt lgkmcnt(0)\ns_sub_u32 s{0}, s100, s{0}'.format(sPoll))
    WS = f's[{sWS}:{sWS+3}]'
    def wload(dst, mat, i, tag):
        off = i * 1024
        ins = [f's_add_u32 s{sTmp3}, s{sWF}, {off & ~4095}',
               f'buffer_load_dwordx4 {vr(dst,4)}, v{vL16}, {WS}, s{sTmp3} offen offset:{off & 4095}']
        vm.issue(tag)
        return ins

    a.raw(f'.globl {KNAME}\n.p2align 8\n.type {KNAME},@function')
    a.label(KNAME)
    a(f's_cmp_ge_u32 s2, {K2_GRID}\ns_cbranch_scc1 k2_done')
    stampat(0)
    if opt.get('diagpad') or opt.get('padat'): a('s_memrealtime s[94:95]')
    BIAS = bool(opt.get('bias2'))
    if BIAS:
        n0code = f'''s_mul_i32 s{sN0}, s{sPoll}, 305
    s_add_u32 s{sNN}, s{sN0}, {305+1927}
    s_add_u32 s{sN0}, s{sN0}, 1927
    s_lshr_b32 s{sN0}, s{sN0}, 3
    s_lshr_b32 s{sNN}, s{sNN}, 3
    s_mul_i32 s{sTmp}, s{sPoll}, 40
    s_min_u32 s{sN0}, s{sN0}, s{sTmp}
    s_add_u32 s{sTmp}, s{sTmp}, 40
    s_min_u32 s{sNN}, s{sNN}, s{sTmp}
    s_sub_u32 s{sNN}, s{sNN}, s{sN0}'''
    else:
        n0code = f'''s_mul_i32 s{sN0}, s{sPoll}, 625
    s_add_u32 s{sNN}, s{sN0}, {625+15}
    s_add_u32 s{sN0}, s{sN0}, 15
    s_lshr_b32 s{sN0}, s{sN0}, 4
    s_lshr_b32 s{sNN}, s{sNN}, 4
    s_sub_u32 s{sNN}, s{sNN}, s{sN0}'''
    eD = 26; eS = 36; eA = 46; eR = 66; eB = 76
    PD = 26; RL = 50; W3 = 58; TOUCH = 86; CT = 58
    UQ = 92; vW = 100; aA = 104; U0 = 108; U1 = 109; U2 = 110; U3 = 111; vW1 = 112; PR0 = 113; PR1 = 114; PG0 = 115; PG1 = 116; aW3 = 117
    vDB = 252; aTO = 253; aB = 90
    BF = NF; AX = WB2
    assert BF == 124 and BF + 32 == WB2 and WB2 + 96 <= 256 and REC == 92
    W3L = QT + 24576
    SW = 1
    TAB = QT; RIMG = QT + 1024; CNTA = QT + 12288
    sS = 20; sDs = 28; sEs = 36; sU = 40
    sWm = 68
    sEM = 76 if not stamp else 8
    a(f'''s_load_dwordx4 s[12:15], s[0:1], 32
    s_load_dwordx4 s[8:11], s[0:1], 16
    s_load_dwordx4 s[4:7], s[0:1], 0
    s_load_dwordx4 s[16:19], s[0:1], 48
    s_load_dwordx2 s[{sWS}:{sWS+1}], s[0:1], 64
    v_lshrrev_b32 v{U0}, 6, v0
    v_and_b32 v{vLane}, 63, v0
    v_readfirstlane_b32 s{sWV}, v{U0}
    v_lshlrev_b32 v{vL16}, 4, v{vLane}
    s_cmp_lg_u32 s{sWV}, 3
    s_cbranch_scc1 kf_noct
    s_getpc_b64 s[{sSv}:{sSv+1}]
    kf_pc:
    s_and_b32 s{sTmp3}, s2, 0xf8
    s_lshl_b32 s{sTmp3}, s{sTmp3}, 7
    s_min_u32 s{sTmp3}, s{sTmp3}, k2_done-kf_pc-1024
    s_add_u32 s{sSv}, s{sSv}, s{sTmp3}
    s_addc_u32 s{sSv+1}, s{sSv+1}, 0
    global_load_dwordx4 {vr(CT,4)}, v{vL16}, s[{sSv}:{sSv+1}]
    kf_noct:
    v_lshlrev_b32 v{U3}, 4, v0
    s_mul_i32 s{sN0}, s2, 625
    s_bfe_u32 s{sTmp3}, s2, 0x50003
    s_lshl_b32 s{sTmp3}, s{sTmp3}, 13
    s_lshl_b32 s{sT}, s{sN0}, 2
    s_lshl_b32 s{sTbase}, s{sN0}, 3
    s_and_b32 s{sPoll}, s2, 7
    s_lshl_b32 s{sPoll}, s{sPoll}, 5
    s_lshr_b32 s{sTmp}, s2, 3
    s_or_b32 s{sPoll}, s{sPoll}, s{sTmp}
    {n0code}
    s_lshr_b32 s{sG}, s{sWV}, 2
    s_and_b32 s{sCQ}, s{sWV}, 3
    s_lshl_b32 s{sWF}, s{sWV}, 14
    s_add_u32 s{sWF}, s{sWF}, {WS_WF - WS_CELLS}
    v_lshrrev_b32 v{U0}, 5, v{vLane}
    v_and_b32 v{U1}, 31, v{vLane}
    s_lshl_b32 s{sTmp}, s{sWV}, 1
    v_xor_b32 v{U2}, v{U1}, v{U0}
    v_xor_b32 v{U2}, s{sTmp}, v{U2}
    v_lshlrev_b32 v{U2}, 4, v{U2}
    v_lshl_add_u32 v{U2}, v{U0}, 9, v{U2}
    v_xor_b32 v{vW1}, s{sWV}, v{U1}
    v_lshlrev_b32 v{vW1}, 4, v{vW1}
    s_waitcnt lgkmcnt(0)
    s_mov_b32 s0, s{sPoll}''')
    a(f'''s_cmp_lg_u32 s{sWV}, {SW}
    s_cbranch_scc1 kf_noedge
    s_setprio 3
    v_mul_u32_u24 v{U0}, 40, v{vLane}
    v_mul_u32_u24 v{U1}, 80, v{vLane}''')
    srd(a, sDs, 10, E * 4)
    a(f'''buffer_load_dwordx4 {vr(eD,4)}, v{U0}, s[{sDs}:{sDs+3}], s{sT} offen
    buffer_load_dwordx4 {vr(eD+4,4)}, v{U0}, s[{sDs}:{sDs+3}], s{sT} offen offset:16
    buffer_load_dwordx2 {vr(eD+8,2)}, v{U0}, s[{sDs}:{sDs+3}], s{sT} offen offset:32''')
    srd(a, sS, 8, E * 4)
    a(f'''buffer_load_dwordx4 {vr(eS,4)}, v{U0}, s[{sS}:{sS+3}], s{sT} offen
    buffer_load_dwordx4 {vr(eS+4,4)}, v{U0}, s[{sS}:{sS+3}], s{sT} offen offset:16
    buffer_load_dwordx2 {vr(eS+8,2)}, v{U0}, s[{sS}:{sS+3}], s{sT} offen offset:32''')
    srd(a, sEs, 6, E * 8)
    for k in range(5): a(f'buffer_load_dwordx4 {vr(eA+4*k,4)}, v{U1}, s[{sEs}:{sEs+3}], s{sTbase} offen offset:{16*k}')
    a.label('kf_noedge')
    a('s_cmp_eq_u32 s2, 0\ns_cbranch_scc1 kf_init')
    a.label('kf_noinit')
    vm.issue('edge')
    vm.ops = vm.ops
    srd(a, sWm, 12, 516 * 512)
    a(f'buffer_load_dwordx4 {vr(TOUCH,4)}, v{U3}, s[{sWm}:{sWm+3}], s{sTmp3} offen')
    vm.issue('touch')
    a(f'''s_cmp_lg_u32 s{sWV}, 6
    s_cbranch_scc1 kf_now3
    s_mov_b32 m0, {W3L}
    s_mov_b32 s{sTmp}, {512*512}
    buffer_load_dwordx4 v{vL16}, s[{sWm}:{sWm+3}], s{sTmp} offen lds
    buffer_load_dwordx4 v{vL16}, s[{sWm}:{sWm+3}], s{sTmp} offen offset:1024 lds''')
    a.label('kf_now3')
    srd(a, sX, 4, N * 512)
    a(f'''s_lshl_b32 s{sTmp}, s{sN0}, 9
    s_lshl_b32 s{sTmp2}, s{sWV}, 10
    s_add_u32 s{sTmp3}, s{sTmp}, s{sTmp2}
    s_add_u32 m0, s{sTmp2}, {XT}
    s_lshl_b32 s{sCnt}, s{sWV}, 9
    buffer_load_dwordx4 v{U2}, s[{sX}:{sX+3}], s{sTmp3} offen lds
    s_add_u32 m0, s{sTmp2}, {XT+8192}
    s_add_u32 s{sTmp3}, s{sTmp3}, 8192
    buffer_load_dwordx4 v{U2}, s[{sX}:{sX+3}], s{sTmp3} offen lds
    s_add_u32 m0, s{sCnt}, {XT+16384}
    s_add_u32 s{sTmp}, s{sTmp}, s{sCnt}
    s_add_u32 s{sTmp}, s{sTmp}, 16384
    s_mov_b32 exec_hi, 0
    buffer_load_dwordx4 v{vW1}, s[{sX}:{sX+3}], s{sTmp} offen lds
    s_mov_b32 exec_hi, -1''')
    for _ in range(3): vm.issue('x')
    stampat('a')
    a(f'''s_add_u32 s{sPw}, s{sWS}, {WS_P}
    s_addc_u32 s{sPw+1}, s{sWS+1}, 0
    s_and_b32 s{sPw+1}, s{sPw+1}, 0xffff
    s_mov_b32 s{sPw+2}, {N*512}
    s_mov_b32 s{sPw+3}, 0x20000
    s_add_u32 s{sWS}, s{sWS}, {WS_CELLS}
    s_addc_u32 s{sWS+1}, s{sWS+1}, 0
    s_and_b32 s{sWS+1}, s{sWS+1}, 0xffff
    s_mov_b32 s{sWS+2}, {WS_END - WS_CELLS + (1 << 20 if stamp else 0)}
    s_mov_b32 s{sWS+3}, 0x20000''')
    srd(a, sD, 18, 256)
    srd(a, sU, 14, 512 * 512)
    a(f'''v_mov_b32 v{UQ+4}, 0
    v_mov_b32 v{UQ+5}, 0
    v_mov_b32 v{UQ+6}, 0
    v_mov_b32 v{UQ+7}, 0
    v_add_u32 v{U1}, {CNTA}, v{vL16}
    s_cmp_lg_u32 s{sWV}, {SW}
    s_cbranch_scc1 kf_nocz
    ds_write_b128 v{U1}, {vr(UQ+4,4)}
    v_mov_b32 v{U1}, {HMAX+8}
    ds_write_b64 v{U1}, {vr(UQ+4,2)}''')
    a.label('kf_nocz')
    nz = (NT * 512 + 256 - 8192) // 16; nf = (NT + 7) * 64 // 16; nx = 16
    def list_prefill(Z, F, t0, t1):
        a(f'''v_lshlrev_b32 v{t0}, 4, v0
        v_add_u32 v{t0}, {EAT}, v{t0}
        v_mov_b32 v{t1}, 0xa0a0a0a0
        ds_write_b128 v{t0}, {vr(Z,4)}
        v_cmp_gt_u32 vcc, {nz}, v0
        s_and_saveexec_b64 s[{sSv}:{sSv+1}], vcc
        ds_write_b128 v{t0}, {vr(Z,4)} offset:8192
        s_mov_b64 exec, -1
        v_cmp_gt_u32 vcc, {nf}, v0
        s_mov_b32 s{sWdone}, 0
        s_nop 0
        v_cndmask_b32 v{F}, v{t1}, -1, vcc
        v_cmp_gt_u32 vcc, {nf+nx}, v0
        v_mov_b32 v{F+1}, v{F}
        v_mov_b32 v{F+2}, v{F}
        v_mov_b32 v{F+3}, v{F}
        s_and_saveexec_b64 s[{sSv}:{sSv+1}], vcc
        ds_write_b128 v{t0}, {vr(F,4)} offset:{SRC-EAT}
        s_mov_b64 exec, -1''')
    stampat('b')
    a(f'''v_lshrrev_b32 v{U0}, 5, v{vLane}
    v_and_b32 v{U1}, 3, v{vLane}
    v_lshlrev_b32 v{U0}, 1, v{U0}
    v_xor_b32 v{U0}, v{U0}, v{U1}
    v_lshrrev_b32 v{U1}, 2, v{vLane}
    v_lshlrev_b32 v{U1}, 9, v{U1}
    v_lshl_add_u32 v{U0}, v{U0}, 4, v{U1}
    s_lshl_b32 s{sTmp}, s{sWV}, 6
    v_add_u32 v{vW}, s{sTmp}, v{U0}
    v_add_u32 v{vW+1}, 7168, v{vW}
    v_add_u32 v{vW+2}, 14336, v{vW}
    v_add_u32 v{vW+3}, 21504, v{vW}
    s_mul_i32 s{sRing}, s{sWV}, 12288''')
    def stage(i):
        a(f's_add_u32 m0, s{sRing}, {(i % 3) * 4096}\ns_mov_b32 s{sTmp3}, {(i & 7) * 32768}')
        sr = sWm if i < 8 else sU
        for t_ in range(4):
            a(f'buffer_load_dwordx4 v{(vW if i < 8 else XR + 8)+t_}, s[{sr}:{sr+3}], s{sTmp3} offen offset:{t_*1024} lds')
            vm.issue(f'st{i}')
    a(f'''v_and_b32 v{U0}, 15, v{vLane}
    v_lshrrev_b32 v{U1}, 4, v{vLane}
    v_xor_b32 v{U2}, v{U1}, v{U0}
    v_lshlrev_b32 v{U2}, 4, v{U2}
    v_lshl_add_u32 v{U0}, v{U0}, 9, v{U2}
    v_add_u32 v{aA}, {XT}, v{U0}''')
    for s_ in range(1, 4):
        a(f'v_xor_b32 v{U2}, {s_<<6}, v{U0}\nv_add_u32 v{aA+s_}, {XT}, v{U2}')
    a(f'''v_bfe_u32 v{U0}, v{vLane}, 2, 2
    v_lshl_add_u32 v{U0}, v{U1}, 3, v{U0}
    v_and_b32 v{U2}, 1, v{U1}
    v_lshlrev_b32 v{U2}, 5, v{U2}
    v_and_b32 v{U3}, 3, v{vLane}
    v_lshl_add_u32 v{U2}, v{U3}, 3, v{U2}
    v_lshl_add_u32 v{U2}, v{U0}, 6, v{U2}
    v_add_u32 v{aB}, s{sRing}, v{U2}
    v_xor_b32 v{aB+1}, 32, v{aB}
    v_mov_b32 v{U3}, 1''')
    list_prefill(UQ + 4, BF + 4, U0, U1)
    NPRE = int(opt.get('npre', 2))
    NPRE2 = int(opt.get('npre2', NPRE))
    stampat('y')
    def early_consts(T0, T1, T2, T3):
        a(f'''v_lshrrev_b32 v{T2}, 5, v{vLane}
        v_and_b32 v{T3}, 31, v{vLane}
        v_bfe_u32 v{T0}, v{T3}, 2, 1
        v_cmp_eq_u32 s[{sHM}:{sHM+1}], v{T0}, v{T2}
        v_bfe_u32 v{T0}, v{T3}, 1, 3
        v_xor_b32 v{T0}, v{T0}, v{T2}
        v_lshlrev_b32 v{T0}, 4, v{T0}
        v_lshl_add_u32 v{T0}, v{T3}, 7, v{T0}
        v_add_u32 v{aP}, s{sRing}, v{T0}
        v_xor_b32 v{aP+1}, 32, v{aP}
        v_xor_b32 v{aP+2}, 64, v{aP}
        v_xor_b32 v{aP+3}, 96, v{aP}
        v_and_b32 v{T0}, 7, v{vLane}
        v_lshrrev_b32 v{T1}, 4, v{vLane}
        v_xor_b32 v{T0}, v{T0}, v{T1}
        s_lshl_b32 s{sTmp}, s{sCQ}, 7
        v_lshl_add_u32 v{T0}, v{T0}, 4, s{sTmp}
        v_xor_b32 v{IDX+7}, 64, v{T0}
        v_add_u32 v{IDX+1}, 3072, v{T0}
        v_add_u32 v{IDX+3}, 2048, v{IDX+7}
        v_add_u32 v{IDX+5}, 1024, v{T0}
        v_bfe_u32 v{T0}, v{vLane}, 4, 1
        v_and_b32 v{T1}, 3, v{vLane}
        v_lshlrev_b32 v{T1}, 3, v{T1}
        v_lshl_add_u32 v{T0}, v{T0}, 5, v{T1}
        s_add_u32 s{sTmp}, s{sTmp}, {QT}
        v_add_u32 v{cQ}, s{sTmp}, v{T0}
        s_lshl_b32 s{sTmp}, s{sG}, 4
        s_add_u32 s{sTmp}, s{sTmp}, {OH}
        v_add_u32 v{cS}, s{sTmp}, v{T0}
        s_mov_b32 s{sC}, {hex(C30)}
        s_mov_b32 s{sC+1}, {hex(C30)}''')
    def list_consts(T0, T1, T2, T3):
        a(f'''v_bfe_u32 v{T0}, v{vLane}, 5, 1
        v_bfe_u32 v{T1}, v{vLane}, 3, 1
        v_bfe_u32 v{T2}, v{vLane}, 4, 1
        v_lshlrev_b32 v{aSRC}, 5, v{T0}
        v_lshl_add_u32 v{aSRC}, v{T1}, 3, v{aSRC}
        v_lshl_add_u32 v{aSRC}, v{T2}, 1, v{aSRC}
        v_bfe_u32 v{T3}, v{vLane}, 2, 2
        v_lshl_add_u32 v{aXL}, v{T0}, 2, v{T3}
        v_and_b32 v{T3}, 1, v{T3}
        v_lshl_add_u32 v{aEAT}, v{T3}, 1, v{T2}
        v_and_b32 v{T0}, 1, v{vLane}
        v_lshl_add_u32 v{aEAT}, v{aEAT}, 1, v{T0}
        v_lshl_add_u32 v{aEAT}, v{aEAT}, 1, v{T1}
        v_bfe_u32 v{T0}, v{vLane}, 1, 1
        v_lshl_add_u32 v{aEAT}, v{aEAT}, 1, v{T0}
        v_lshlrev_b32 v{aEAT}, 4, v{aEAT}''')
    TOUCH_T = 118
    def hoisted():
        sQTs = sT
        a(f's_mov_b32 s{sQTs}, {QT}')
        early_consts(U0, U1, U2, TOUCH_T)
        list_consts(U0, U1, U2, TOUCH_T)
        a(f'''v_and_b32 v{U0}, 15, v{vLane}
    v_lshrrev_b32 v{U1}, 4, v{vLane}
    v_lshlrev_b32 v{U1}, 4, v{U1}
    s_lshl_b32 s{sTmp2}, s{sWV}, 6
    v_add_u32 v{U1}, s{sTmp2}, v{U1}
    v_lshl_add_u32 v{PG0}, v{U0}, 9, v{U1}
    v_mul_u32_u24 v{U0}, {QSTR}, v{U0}
    v_add3_u32 v{aTO}, v{U0}, v{U1}, s{sQTs}
    v_bfe_u32 v{U0}, v{vLane}, 3, 2
    v_and_b32 v{U1}, 3, v{vLane}
    v_lshl_add_u32 v{U0}, v{U0}, 2, v{U1}
    v_bfe_u32 v{U1}, v{vLane}, 2, 1
    v_lshl_add_u32 v{U0}, v{U1}, 4, v{U0}
    v_lshlrev_b32 v{U0}, 1, v{U0}
    s_lshl_b32 s{sTmp}, s{sCQ}, 7
    s_add_u32 s{sTmp}, s{sTmp}, {W3L}
    v_add_u32 v{aW3}, s{sTmp}, v{U0}
    v_lshrrev_b32 v{U0}, 1, v0
    v_mul_u32_u24 v{vNOVF}, {CST}, v{U0}''')
    hoisted()
    dpp = ['row_shr:1 row_mask:0xf bank_mask:0xf', 'row_shr:2 row_mask:0xf bank_mask:0xf', 'row_shr:4 row_mask:0xf bank_mask:0xf',
           'row_shr:8 row_mask:0xf bank_mask:0xf', 'row_bcast:15 row_mask:0xa bank_mask:0xf', 'row_bcast:31 row_mask:0xc bank_mask:0xf']
    a(f'''s_cmp_lg_u32 s{sWV}, {SW}
    s_cbranch_scc1 kf_nohist
    s_movk_i32 s{sTmp}, 625
    s_mov_b32 exec_hi, 0x7fffffff''')
    a(f's_waitcnt vmcnt({vm.count_after("edge") + 8})')
    stampat('z')
    if BIAS: a(f's_movk_i32 s{sTmp}, 305\ns_mov_b32 s{sTmp2}, 110015\nv_mov_b32 v{U1}, {-26405848 & 0xffffffff}\nv_mov_b32 v{U2}, 1927')
    for i in range(10):
        if BIAS:
            a(f'''v_mul_u32_u24 v{eB+i}, 104858, v{eD+i}
            v_mad_u32_u24 v{U0}, v{eD+i}, s{sTmp2}, v{U1}
            v_max_i32 v{eB+i}, v{eB+i}, v{U0}
            v_lshrrev_b32 v{eB+i}, 22, v{eB+i}
            v_mad_u32_u24 v{U0}, v{eB+i}, s{sTmp}, v{U2}
            v_mul_u32_u24 v{TOUCH_T}, 40, v{eB+i}''')
        else:
            a(f'''v_mul_u32_u24 v{eB+i}, 429497, v{eD+i}
            v_lshrrev_b32 v{eB+i}, 24, v{eB+i}
            v_mad_u32_u24 v{U0}, v{eB+i}, s{sTmp}, 15''')
        a(f'''v_lshlrev_b32 v{eB+i}, 2, v{eB+i}
        v_add_u32 v{eB+i}, {CNTA}, v{eB+i}''')
        if i == 5: a('s_mov_b32 exec_hi, 0x3fffffff')
        a(f'ds_add_rtn_u32 v{eR+i}, v{eB+i}, v{U3}\nv_lshrrev_b32 v{U0}, {3 if BIAS else 4}, v{U0}')
        if BIAS: a(f'v_min_u32 v{U0}, v{U0}, v{TOUCH_T}')
        a(f'v_sub_u32 v{eD+i}, v{eD+i}, v{U0}')
    a(f'''s_mov_b32 exec_hi, -1
    v_add_u32 v{U0}, {CNTA}, v{vL16}
    ds_read_b128 {vr(UQ,4)}, v{U0}''')
    a(f's_waitcnt vmcnt({vm.count_after("edge") + 5})')
    for i in range(10): a(f'v_lshl_or_b32 v{eS+i}, v{eD+i}, 16, v{eS+i}')
    a(f'''s_waitcnt lgkmcnt(0)
    v_add_u32 v{UQ+5}, v{UQ}, v{UQ+1}
    v_add_u32 v{UQ+6}, v{UQ+5}, v{UQ+2}
    v_add_u32 v{U1}, v{UQ+6}, v{UQ+3}
    v_mov_b32 v{U2}, v{U1}
    s_nop 1''')
    for k, d in enumerate(dpp):
        a(f'v_add_u32_dpp v{U2}, v{U2}, v{U2} {d}' + (' bound_ctrl:0' if k < 4 else '') + '\ns_nop 1')
    a(f'''v_sub_u32 v{UQ+4}, v{U2}, v{U1}
    v_add_u32 v{UQ+7}, v{UQ+6}, v{UQ+4}
    v_add_u32 v{UQ+6}, v{UQ+5}, v{UQ+4}
    v_add_u32 v{UQ+5}, v{UQ}, v{UQ+4}
    ds_write_b128 v{U0}, {vr(UQ+4,4)} offset:1024''')
    for i in range(10): a(f'ds_read_b32 v{eD+i}, v{eB+i} offset:1024')
    a(f'''v_lshl_or_b32 v{UQ+4}, v{UQ}, 16, v{UQ+4}
    v_lshl_or_b32 v{UQ+5}, v{UQ+1}, 16, v{UQ+5}
    v_lshl_or_b32 v{UQ+6}, v{UQ+2}, 16, v{UQ+6}
    v_lshl_or_b32 v{UQ+7}, v{UQ+3}, 16, v{UQ+7}
    v_subrev_u32 v{U0}, {CNTA-TAB}, v{U0}
    s_mov_b32 s{sTmp}, {RIMG}
    s_mov_b32 exec_hi, 0x7fffffff''')
    a(vm.wait('edge'))
    for i in range(10):
        if i == 5: a('s_mov_b32 exec_hi, 0x3fffffff')
        a(f'''s_waitcnt lgkmcnt({min(9, 9 - i + 2 * i)})
        v_add_u32 v{eD+i}, v{eD+i}, v{eR+i}
        v_mad_u32_u24 v{eD+i}, v{eD+i}, 12, s{sTmp}
        ds_write2_b32 v{eD+i}, v{eA+2*i}, v{eA+2*i+1} offset1:1
        ds_write_b32 v{eD+i}, v{eS+i} offset:8''')
    a(f'''s_mov_b32 exec_hi, -1
    ds_write_b128 v{U0}, {vr(UQ+4,4)}
    s_setprio 0''')
    a.label('kf_nohist')
    for i in range(NPRE): stage(i)
    for i in range(NPRE, NPRE2): stage(i)
    stampat('H')
    a(vm.wait('x') + ' lgkmcnt(0)')
    stampat('I')
    a('s_barrier')
    stampat('c')
    axr = [f'ds_read_b128 {vr(AX+(s_*3+rt)*4,4)}, v{aA+(s_&3)} offset:{rt*8192+(s_>>2)*256}' for s_ in range(8) for rt in range(3)]
    a(f'''s_or_b32 s{sTmp}, s2, s{sWV}
    s_cbranch_scc1 kf_noset
    v_mov_b32 v{U0}, 1
    v_mov_b32 v{U1}, 0
    s_mov_b64 exec, 1
    buffer_store_dword v{U0}, v{U1}, s[{sD}:{sD+3}], 0 offen sc1
    s_mov_b64 exec, -1''')
    a.label('kf_noset')
    if opt.get('xcdiag'):
        a(f'''s_getreg_b32 s90, hwreg(HW_REG_XCC_ID, 0, 4)
        s_add_u32 s90, s90, 1
        s_cmp_ge_u32 s2, 8
        s_cbranch_scc1 kf_xd1
        s_lshl_b32 s91, s2, 2
        s_add_u32 s91, s91, 32
        v_mov_b32 v{U0}, s90
        v_mov_b32 v{U1}, 0
        buffer_store_dword v{U0}, v{U1}, s[{sD}:{sD+3}], s91 offen sc1''')
        a.label('kf_xd1')
    if not opt.get('noprioA'): a('s_setprio 2')
    axr = [f'ds_read_b128 {vr(AX+(s_*3+rt)*4,4)}, v{aA+(s_&3)} offset:{rt*8192+(s_>>2)*256}' for s_ in range(8) for rt in range(3)]
    AXE = not opt.get('axlate')
    a(f'''v_lshlrev_b32 v{U3}, 4, v0
    v_add_u32 v{U0}, {TAB}, v{U3}
    ds_read_b128 {vr(UQ,4)}, v{U0}
    ds_read_b128 {vr(UQ+4,4)}, v{U0} offset:8192''')
    RSA = opt.get('rs2')
    def rstores():
        a(f'''s_mul_i32 s{sT}, s2, {CST}
        s_add_u32 s{sTbase}, s{sT}, 8192
        s_cmp_lg_u32 s{sWV}, 0
        s_cbranch_scc1 kf_nost2
        s_mov_b32 exec_hi, 0
        buffer_store_dwordx4 {vr(UQ+4,4)}, v{U3}, {WS}, s{sTbase} offen{CS}
        s_mov_b32 exec_hi, -1''')
        a.label('kf_nost2')
        a(f'buffer_store_dwordx4 {vr(UQ,4)}, v{U3}, {WS}, s{sT} offen{CS}')
        vm.issue('cells')
    RSF = opt.get('rsfirst')
    if AXE:
        for x in axr[:12]: a(x)
    if RSF:
        a('s_waitcnt lgkmcnt(12)')
        rstores()
    LA = int(opt.get('la', 3))
    for i in range(NPRE2, LA): stage(i)
    stampat('A')
    if not RSA and not RSF:
        a('s_waitcnt lgkmcnt(0)')
        rstores()
    else: a('s_waitcnt lgkmcnt(6)')
    stampat('E')
    a(f'''s_cmp_lg_u32 s{sWV}, 0
    s_cbranch_scc1 kf_nodb
    v_mov_b32 v{vDB}, 0
    buffer_load_dword v{vDB}, v{vDB}, s[{sD}:{sD+3}], 0 offen sc1''')
    a.label('kf_nodb')
    a(f'''s_cmp_lg_u32 s{sWV}, 7
    s_cbranch_scc1 kf_norl
    s_cmp_ge_u32 s2, 128
    s_cbranch_scc1 kf_norl
    v_lshrrev_b32 v{U0}, 4, v{vLane}
    v_lshlrev_b32 v{U0}, 11, v{U0}
    v_bfe_u32 v{U1}, v{vLane}, 2, 2
    v_lshl_add_u32 v{U0}, v{U1}, 4, v{U0}
    v_and_b32 v{U1}, 3, v{vLane}
    v_lshl_add_u32 v{U0}, v{U1}, 1, v{U0}
    s_bfe_u32 s{sTmp}, s2, 0x30001
    s_lshl_b32 s{sTmp2}, s{sTmp}, 14
    s_add_u32 s{sTmp2}, s{sTmp2}, {256*512}
    s_bfe_u32 s{sTmp}, s2, 0x30004
    s_lshl_b32 s{sTmp}, s{sTmp}, 6
    s_add_u32 s{sTmp2}, s{sTmp2}, s{sTmp}
    s_and_b32 s{sTmp}, s2, 1
    s_lshl_b32 s{sTmp}, s{sTmp}, 3
    s_add_u32 s{sTmp2}, s{sTmp2}, s{sTmp}
    s_add_u32 s{sTmp}, s{sTmp2}, 8192''')
    for e in range(8):
        a(f'buffer_load_ushort v{RL+e}, v{U0}, s[{sU}:{sU+3}], s{sTmp if e >> 2 else sTmp2} offen offset:{(e&3)*512}')
    a.label('kf_norl')
    stampat('B')
    def breads(i, nowait=False):
        if not nowait: a(vm.wait(f'st{i}'))
        for ks in range(2):
            for c in range(2):
                for t_ in range(2):
                    a(f'ds_read_b64_tr_b16 {vr(BF+(i&1)*16+ks*8+c*4+t_*2,2)}, v{aB+c} offset:{(i%3)*4096+(32*ks+4*t_)*64}')
    def compute(i, nowait=False, nostage=False, noread=False):
        a('s_waitcnt lgkmcnt(0)')
        order = [(ks, rt, c) for ks in range(2) for rt in range(3) for c in range(2)]
        for n_, (ks, rt, c) in enumerate(order):
            s_ = (2 * i + ks) & 7
            d = PD + (rt * 2 + c) * 4
            cin = '0' if s_ == 0 else vr(d, 4)
            a(f'v_mfma_f32_16x16x32_bf16 {vr(d,4)}, {vr(BF+(i&1)*16+ks*8+c*4,4)}, {vr(AX+(s_*3+rt)*4,4)}, {cin}')
            if n_ == 1 and i + 1 < 8 and not noread: breads(i + 1, nowait)
            if n_ == 7 and i + LA < 8 and not nostage: stage(i + LA)
    def poll(off, lab, PR):
        a(f'''s_and_b32 s{sTmp}, s2, 7
        s_lshl_b32 s{sTmp}, s{sTmp}, 10
        s_add_u32 s{sTmp}, s{sTmp}, {off - WS_CELLS}
        s_mov_b32 s{sPoll}, {POLL_LIMIT}''')
        a.label(lab)
        a(f'''buffer_load_dwordx4 {vr(PR,4)}, v{vL16}, {WS}, s{sTmp} offen sc1
        s_waitcnt vmcnt(0)
        v_and_b32 v{PR}, v{PR}, v{PR+1}
        v_and_b32 v{PR+2}, v{PR+2}, v{PR+3}
        v_and_b32 v{PR}, v{PR}, v{PR+2}
        v_cmp_eq_u32 vcc, 1, v{PR}
        s_cmp_eq_u64 vcc, -1
        s_cbranch_scc1 {lab}_ok
        s_sleep 1
        s_sub_u32 s{sPoll}, s{sPoll}, 1
        s_cbranch_scc0 {lab}''')
        a.label(lab + '_ok')
    def tile_out(toP):
        a(f'''s_mov_b32 s{sSv}, {hex(f2u(-LOG2E))}
        s_mov_b32 s{sSv+1}, {hex(f2u(-LOG2E))}
        s_lshl_b32 s{sTmp}, s{sN0}, 9
        s_nop 4''')
        for rt in range(3):
            b = PD + rt * 8; o = UQ + 4 * (rt & 1) if toP else b
            for h in range(4): a(f'v_pk_mul_f32 {pr(b+2*h)}, {pr(b+2*h)}, s[{sSv}:{sSv+1}]')
            for h in range(4): a(f'v_cvt_pk_bf16_f32 v{b+h}, v{b+2*h}, v{b+2*h+1}')
            if rt == 2: a('s_mov_b32 exec_lo, 0x00ff00ff\ns_mov_b32 exec_hi, 0x00ff00ff')
            if toP:
                a(f'buffer_store_dwordx4 {vr(b,4)}, v{PG0}, s[{sPw}:{sPw+3}], s{sTmp} offen{CS}')
                if rt < 2: a(f's_add_u32 s{sTmp}, s{sTmp}, 8192')
                vm.issue('pst')
            else: a(f'ds_write_b128 v{aTO}, {vr(b,4)} offset:{16*rt*QSTR}')
        a('s_mov_b64 exec, -1')
    def signal(off, lab):
        a(f'''s_cmp_lg_u32 s{sWV}, 0
        s_cbranch_scc1 {lab}
        v_lshlrev_b32 v{TOUCH}, 10, v{vLane}
        v_mov_b32 v{TOUCH+1}, 1
        s_lshl_b32 s{sTmp}, s2, 2
        s_add_u32 s{sTmp}, s{sTmp}, {off - WS_CELLS}
        s_mov_b64 exec, 0xff
        buffer_store_dword v{TOUCH+1}, v{TOUCH}, {WS}, s{sTmp} offen sc1
        s_mov_b64 exec, -1''')
        a.label(lab)
    if not AXE:
        for x in axr[:12]: a(x)
        a('s_waitcnt lgkmcnt(6)')
    for ct in range(2):
        for k in range(4): a(f'ds_read_u16 v{W3+4*ct+k}, v{aW3} offset:{k*512+ct*64}')
    a('s_waitcnt lgkmcnt(2)')
    for x in axr[12:]: a(x)
    a('s_waitcnt lgkmcnt(6)')
    stampat('C')
    breads(0)
    stampat('p')
    if RSA:
        a('s_waitcnt lgkmcnt(0)')
        stage(3)
        rstores()
    compute(0, nostage=bool(RSA))
    stampat('d')
    compute(1); stampat('r')
    a(f's_mov_b32 s{sTmp}, {hex(f2u(-LOG2E))}')
    for k in range(8): a(f'v_lshlrev_b32 v{W3+k}, 16, v{W3+k}\nv_mul_f32 v{W3+k}, s{sTmp}, v{W3+k}')
    for p in range(4): a(f'v_cvt_pk_bf16_f32 v{W3+p}, v{W3+2*p}, v{W3+2*p+1}')
    def sigA(extra=''):
        a(vm.wait('cells'))
        a(f'''s_cmp_lg_u32 s{sWV}, 0
    s_cbranch_scc1 kf_initok
    s_mov_b32 s{sPoll}, {POLL_LIMIT}''')
        a.label('kf_initpoll')
        a(f'''v_readfirstlane_b32 s{sTmp}, v{vDB}
    s_cmp_lg_u32 s{sTmp}, 0
    s_cbranch_scc1 kf_initok
    v_mov_b32 v{vDB}, 0
    s_sleep 2
    buffer_load_dword v{vDB}, v{vDB}, s[{sD}:{sD+3}], 0 offen sc1
    s_waitcnt vmcnt(0)
    s_sub_u32 s{sPoll}, s{sPoll}, 1
    s_cbranch_scc0 kf_initpoll''')
        a.label('kf_initok')
        a(extra + 's_barrier')
        signal(WS_FLAG, 'kf_sigA')
    if not RSA: sigA()
    stampat('k')
    a(f'''s_cmp_lt_u32 s{sWV}, 4
    s_cbranch_scc1 kf_nt2
    s_and_b32 s{sTmp}, s2, 0xf8
    s_lshl_b32 s{sTmp}, s{sTmp}, 9
    s_lshl_b32 s{sTmp2}, s{sCQ}, 10
    s_add_u32 s{sTmp}, s{sTmp}, s{sTmp2}
    buffer_load_dwordx4 {vr(66,4)}, v{vL16}, s[{sU}:{sU+3}], s{sTmp} offen''')
    a.label('kf_nt2')
    compute(2); stampat('s')
    S6 = not opt.get('s6early')
    compute(3, nostage=S6, noread=bool(RSA)); stampat('t')
    a(f'''s_cmp_lg_u32 s{sWV}, 7
    s_cbranch_scc1 kf_norl2
    s_cmp_ge_u32 s2, 128
    s_cbranch_scc1 kf_norl2''')
    for p in range(4): a(f'v_lshl_or_b32 v{RL+p}, v{RL+2*p+1}, 16, v{RL+2*p}')
    a(f'''s_lshl_b32 s{sTmp}, s2, 10
    s_add_u32 s{sTmp}, s{sTmp}, {WS_WF - WS_CELLS}
    buffer_store_dwordx4 {vr(RL,4)}, v{vL16}, {WS}, s{sTmp} offen sc1''')
    a.label('kf_norl2')
    tile_out(True)
    a('s_setprio 0' if not opt.get('noprioA') else 's_nop 1')
    if RSA:
        sigA()
        breads(4)
    if S6: stage(6)
    stampat('l')
    def rec_loads(tab, t0, t1, lab):
        a(f'''v_and_b32 v{t1}, 1, v0
        v_and_b32 v{t0}, 0xffff, v{tab}
        v_add_u32 v{t0}, v{t0}, v{t1}
        v_mad_u32_u24 v{t0}, v{t0}, 12, v{vNOVF}
        v_lshrrev_b32 v{tab}, 16, v{tab}
        v_sub_u32 v{t1}, v{tab}, v{t1}
        v_add_u32 v{t1}, 1, v{t1}
        v_lshrrev_b32 v{t1}, 1, v{t1}''')
        for i in range(8): a(f'v_cmp_lt_u32 s[{sMask+2*i}:{sMask+2*i+1}], {i}, v{t1}')
        a(f'v_cmp_lt_u32 s[{sOv}:{sOv+1}], 8, v{t1}')
        for i in range(8):
            a(f'''s_mov_b64 exec, s[{sMask+2*i}:{sMask+2*i+1}]
            s_cbranch_execz {lab}
            buffer_load_dwordx3 {vr(REC+4*i,3)}, v{t0}, {WS}, 0 offen offset:{1024+24*i}{LD}''')
        a.label(lab)
        a('s_mov_b64 exec, -1')
    srd(a, sO, 16, N * 512)
    compute(4); stampat('u')
    compute(5, noread=S6); stampat('v')
    a(f's_cmp_lg_u32 s{sWV}, 0\ns_cbranch_scc1 kf_pollA_ok')
    poll(WS_FLAG, 'kf_pollA', UQ)
    a(vm.wait('st7') + '\ns_barrier')
    a(f'''s_lshl_b32 s{sTmp}, s0, 2
    buffer_load_dword v{vDB}, v{vNOVF}, {WS}, s{sTmp} offen{LD}''')
    vm.issue('tab')
    signal(WS_FLAG + 8192, 'kf_sigB')
    stampat('o')
    if S6: breads(6, True)
    compute(6, nowait=True); compute(7); stampat('x')
    for i in range(4): a(f'v_mov_b32 v{XR+8+i}, v{vW+i}')
    a(f'''v_and_b32 v{U0}, 3, v{vLane}
    v_lshlrev_b32 v{U0}, 3, v{U0}
    v_sub_u32 v{aB}, v{aB}, v{U0}
    v_lshlrev_b32 v{U0}, 1, v{U0}
    v_xor_b32 v{aB}, v{aB}, v{U0}''')
    a(vm.wait('tab'))
    rec_loads(vDB, TOUCH, TOUCH + 1, 'kf_recend')
    stampat('w')
    def w1reads(i, reg):
        for ks in range(2):
            for c in range(2):
                for t_ in range(2):
                    a(f'ds_read_b64_tr_b16 {vr(W1F[((i-8)*2+ks)*2+c]+2*t_,2)}, v{reg} offset:{(i%3)*4096+(32*ks+4*t_)*64+8*c}')
    tile_out(False)
    a(f'v_mov_b32 v{B2A}, v{W3}\nv_mov_b32 v{B2A+1}, v{W3+1}\nv_mov_b32 v{B2B}, v{W3+2}\nv_mov_b32 v{B2B+1}, v{W3+3}')
    stampat('n')
    w1pos = opt.get('w1pos', 'r,g,r').split(',')
    NN_ = sum(1 for x in w1pos if x == 'n')
    for i in (9, 10, 8):
        if w1pos[i - 8] == 'n': stage(i)
    a(f'''s_sub_u32 s{sP}, s{sPw}, 3072
    s_subb_u32 s{sP+1}, s{sPw+1}, 0
    s_or_b32 s{sP+1}, s{sP+1}, {512 << 16}
    s_mov_b32 s{sP+2}, {0 if opt.get('nogather') else N}
    s_mov_b32 s{sP+3}, 0x20000
    v_mov_b32 v{TQ}, 0
    v_mov_b32 v{TQ+1}, 0
    v_mov_b32 v{TQ+2}, 0
    v_mov_b32 v{TQ+3}, 0
    s_mov_b32 s{sHeavy}, 0
    s_mov_b32 s{sB}, 0
    s_mov_b32 s{sRdone}, 0
    s_mov_b32 s{sAcc}, 0
    s_mov_b32 s{sSafe}, {1 if opt.get('allsafe') else 0}
    s_mov_b32 s{sEAT}, {EAT}
    s_cmp_lg_u32 s{sWV}, 7
    s_cbranch_scc1 k2_nooh
    v_add_u32 v{T0}, {QT + 40*QSTR}, v{vL16}
    ds_write_b128 v{T0}, {vr(TQ,4)}
    ds_write_b128 v{T0}, {vr(TQ,4)} offset:1024
    ds_write_b128 v{T0}, {vr(TQ,4)} offset:2048
    ds_write_b128 v{T0}, {vr(TQ,4)} offset:3072
    v_mul_u32_u24 v{T0}, {OSTR+2}, v{vLane}
    v_mov_b32 v{T2}, 0x3f80
    v_add_u32 v{T0}, {OH}, v{T0}
    s_mov_b32 exec_hi, 0xff
    ds_write_b16 v{T0}, v{T2}
    s_mov_b32 exec_hi, -1''')
    a.label('k2_nooh')
    a(f's_cmp_lg_u32 s{sWV}, 0\ns_cselect_b32 s{sBok}, 1, 0\ns_branch k2_first')
    a.label('k2_batch')
    for i in range(4): a(f'v_mov_b32 v{TQ+i}, 0')
    list_prefill(TQ, DL4, T0, T1)
    list_consts(T0, T1, T2, T3)
    a('s_waitcnt lgkmcnt(0)\ns_barrier')
    a.label('k2_first')
    stampat(1)
    a(f'''v_lshrrev_b32 v{T2}, 5, v{vLane}
    v_and_b32 v{T3}, 31, v{vLane}
    v_lshlrev_b32 v{T0}, 3, v{T2}
    v_sub_u32 v{T0}, v{T3}, v{T0}
    v_mov_b32 v{T1}, 0x3f80
    v_and_b32 v{aQ}, 1, v{T0}
    v_lshlrev_b32 v{aQ}, 4, v{aQ}
    v_lshlrev_b32 v{T1}, v{aQ}, v{T1}
    v_lshrrev_b32 v{T0}, 1, v{T0}''')
    for k, reg in enumerate([I0, I0+1, I0+2, I0+3, I1, I1+1, I1+2, I1+3]):
        c = k if k < 4 else k + 4
        m = 'vcc' if k % 2 == 0 else f's[{sSv}:{sSv+1}]'
        a(f'v_cmp_eq_u32 {m}, {c}, v{T0}')
        if k:
            pk, preg = k - 1, [I0, I0+1, I0+2, I0+3, I1, I1+1, I1+2, I1+3][k-1]
            a('s_nop 0')
            a(f'v_cndmask_b32 v{preg}, 0, v{T1}, ' + ('vcc' if pk % 2 == 0 else f's[{sSv}:{sSv+1}]'))
    a(f'''v_mov_b32 v{A2}, 0
    v_mov_b32 v{A2+1}, 0
    v_cndmask_b32 v{I1+3}, 0, v{T1}, s[{sSv}:{sSv+1}]
    v_mov_b32 v{A2+2}, 0
    v_mov_b32 v{A2+3}, 0
    s_mov_b32 s{sQs}, {QSTR//4}
    s_mov_b32 s{sOs}, {OSTR//4}''')
    for d in range(4):
        a(f'v_mov_b32 v{IDX1+2*d+1}, v{IDX+2*d+1}\nv_mov_b32 v{IDX2+2*d+1}, v{IDX+2*d+1}')
    a(f'v_mov_b32 v{T3}, 1')
    stampat('e')
    a(f's_waitcnt vmcnt({4 * NN_})')
    stampat(2)
    for i in range(8):
        a(f'''s_mov_b64 exec, s[{sMask+2*i}:{sMask+2*i+1}]
        s_cbranch_execz kf_histend
        v_lshrrev_b32 v{DL4+i}, 14, v{REC+4*i+2}
        v_add_u32 v{T1}, {CNT}, v{DL4+i}
        ds_add_rtn_u32 v{RK+i}, v{T1}, v{T3}''')
    a(f'''s_mov_b64 exec, s[{sOv}:{sOv+1}]
    v_mov_b32 v{T1}, {CNT + 252}
    ds_add_u32 v{T1}, v{T3}''')
    a.label('kf_histend')
    a(f'''s_mov_b64 exec, -1
    v_lshlrev_b32 v{T0}, 2, v{vLane}
    v_add_u32 v{T0}, {CNT}, v{T0}
    s_waitcnt lgkmcnt(0)
    s_nop 0''')
    def w1stage(pos):
        for i in (8, 9, 10):
            if w1pos[i - 8] == pos:
                a(f's_or_b32 s{sTmp2}, s{sHeavy}, s{sRdone}\ns_cbranch_scc1 kf_nost{i}')
                stage(i)
                a.label(f'kf_nost{i}')
    w1stage('g')
    stampat('f')
    a('s_barrier')
    stampat('g')
    a(f'ds_read_b32 v{T1}, v{T0}\nv_cmp_gt_u32 vcc, 40, v{vLane}')
    w1stage('r')
    a(f'''s_cmp_lg_u32 s{sBok}, 0
    s_cbranch_scc1 kf_nopk1
    s_and_b32 s{sTmp}, s2, 7
    s_lshl_b32 s{sTmp}, s{sTmp}, 10
    s_add_u32 s{sTmp}, s{sTmp}, {WS_FLAG + 8192 - WS_CELLS}
    buffer_load_dwordx4 {vr(IDX3,4)}, v{vL16}, {WS}, s{sTmp} offen sc1''')
    a.label('kf_nopk1')
    dpp = ['row_shr:1 row_mask:0xf bank_mask:0xf', 'row_shr:2 row_mask:0xf bank_mask:0xf', 'row_shr:4 row_mask:0xf bank_mask:0xf',
           'row_shr:8 row_mask:0xf bank_mask:0xf', 'row_bcast:15 row_mask:0xa bank_mask:0xf', 'row_bcast:31 row_mask:0xc bank_mask:0xf']
    a(f'''s_waitcnt lgkmcnt(0)
    v_readlane_b32 s{sT1}, v{T1}, 63
    v_add_u32 v{T1}, 3, v{T1}
    v_lshrrev_b32 v{T1}, 2, v{T1}
    v_cndmask_b32 v{T1}, 0, v{T1}, vcc
    v_mov_b32 v{T2}, v{T1}
    s_lshl_b32 s{sTmp3}, s{sT1}, 8
    s_nop 0''')
    for k, d in enumerate(dpp):
        a(f'v_add_u32_dpp v{T2}, v{T2}, v{T2} {d}' + (' bound_ctrl:0' if k < 4 else ''))
        a('s_nop 1' if k < 5 else 's_nop 0')
    a(f'''v_readlane_b32 s{sQt}, v{T2}, 63
    v_sub_u32 v{T1}, v{T2}, v{T1}
    v_add_u32 v{T2}, 7, v{T1}
    v_lshrrev_b32 v{T2}, 3, v{T2}
    s_add_u32 s{sTmp}, s{sQt}, 7
    v_sub_u32 v{T0}, s{sTmp}, v{T1}
    v_lshrrev_b32 v{T0}, 3, v{T0}
    v_add_u32 v{T2}, v{T2}, v{T0}
    v_lshlrev_b32 v{T0}, 1, v{T1}
    s_add_u32 s{sTmp}, s{sQt}, {int(opt.get('bias', 0))}
    v_sad_u32 v{T0}, v{T0}, s{sTmp}, 0
    v_lshl_add_u32 v{T2}, v{T2}, 5, v{T0}
    v_subrev_u32 v{T0}, 8, v{vLane}
    v_lshl_add_u32 v{T2}, v{T2}, 6, v{vLane}
    v_cmp_gt_u32 vcc, 25, v{T0}
    s_nop 1
    v_cndmask_b32 v{T2}, -1, v{T2}, vcc
    s_nop 1''')
    for k, d in enumerate(dpp):
        a(f'v_min_u32_dpp v{T2}, v{T2}, v{T2} {d}')
        a('s_nop 1' if k < 5 else 's_nop 0')
    a(f'''v_readlane_b32 s{sSplit}, v{T2}, 63
    s_and_b32 s{sSplit}, s{sSplit}, 63
    s_cmp_lg_u32 s{sHeavy}, 0
    s_cselect_b32 s{sSplit}, 20, s{sSplit}
    s_nop 0
    v_readlane_b32 s{sTmp}, v{T1}, s{sSplit}
    v_cmp_le_u32 vcc, s{sSplit}, v{vLane}
    s_add_u32 s{sT0}, s{sTmp}, 7
    s_lshr_b32 s{sT0}, s{sT0}, 3
    s_sub_u32 s{sT1}, s{sQt}, s{sTmp}
    s_add_u32 s{sT1}, s{sT1}, 7
    s_lshr_b32 s{sT1}, s{sT1}, 3
    s_add_u32 s{sTmp2}, s{sT0}, s{sT1}
    s_add_u32 s{sTmp2}, s{sTmp2}, s{sTmp3}
    s_cmp_le_u32 s{sTmp2}, {NT}
    s_cbranch_scc1 k2_fits
    s_mov_b32 s{sHeavy}, 1
    s_branch k2_hentry''')
    a.label('k2_fits')
    stampat('h')
    a(f'''s_lshl_b32 s{sTmp2}, s{sT0}, 3
    s_sub_u32 s{sTmp2}, s{sTmp2}, s{sTmp}
    v_mov_b32 v{T2}, s{sTmp2}
    v_cndmask_b32 v{T2}, 0, v{T2}, vcc
    v_add_lshl_u32 v{T1}, v{T1}, v{T2}, 2''')
    for i in range(8):
        if i in (2, 4, 6): a(f's_cmp_eq_u64 s[{sMask+2*i}:{sMask+2*i+1}], 0\ns_cbranch_scc1 kf_bpend')
        a(f'ds_bpermute_b32 v{TQ+i}, v{DL4+i}, v{T1}')
    a.label('kf_bpend')
    a(f'''s_cmp_eq_u32 s{sG}, 0
    s_cselect_b32 s{sT}, s{sT0}, s{sT1}
    s_cselect_b32 s{sTbase}, 0, s{sT0}
    s_cselect_b32 s{sTmp2}, 0, 192
    s_lshl_b32 s{sT0}, s{sT0}, 5
    s_lshl_b32 s{sTmp}, s{sTbase}, 6
    s_add_u32 s{sTmp}, s{sTmp}, s{sTmp2}
    s_add_u32 s{sTmp}, s{sTmp}, {SRC}
    v_add_u32 v{aSRC}, s{sTmp}, v{aSRC}
    s_lshl_b32 s{sTmp}, s{sTbase}, 9
    s_add_u32 s{sTmp}, s{sTmp}, {EAT}
    v_add_u32 v{aEAT}, s{sTmp}, v{aEAT}
    s_lshl_b32 s{sTmp}, s{sTbase}, 3
    s_add_u32 s{sTmp}, s{sTmp}, {XL}
    v_add_u32 v{aXL}, s{sTmp}, v{aXL}
    v_mov_b32 v{vX}, {SRC}
    v_mov_b32 v{aQ}, {SRC+192}''')
    a(f'v_mov_b32 v{S}, 0x3f80\nv_mov_b32 v{S+1}, 0\ns_mov_b32 s{sTmp}, {XL}\ns_waitcnt lgkmcnt(0)')
    for i in range(8):
        er = REC + 4 * i
        a(f'''s_mov_b64 exec, s[{sMask+2*i}:{sMask+2*i+1}]
        s_cbranch_execz kf_scend
        v_add_u32 v{RK+i}, v{RK+i}, v{TQ+i}
        v_cmp_gt_u32 vcc, s{sT0}, v{RK+i}
        v_lshrrev_b32 v{T2}, 2, v{RK+i}
        v_and_b32 v{T0}, 12, v{RK+i}
        v_cndmask_b32 v{T1}, v{aQ}, v{vX}, vcc
        v_add_u32 v{T2}, s{sTmp}, v{T2}
        v_lshl_add_u32 v{T1}, v{RK+i}, 1, v{T1}
        v_lshlrev_b32 v{T0}, 2, v{T0}
        ds_write_b16 v{T1}, v{er+2}
        ds_write_b8 v{T2}, v{DL4+i}
        v_lshl_add_u32 v{RK+i}, v{RK+i}, 4, s{sEAT}
        v_lshlrev_b64 {vr(er+2,2)}, v{T0}, {vr(S,2)}
        ds_write_b128 v{RK+i}, {vr(er,4)}''')
    a.label('kf_scend')
    a('s_mov_b64 exec, -1')
    a(f's_waitcnt vmcnt(0)\ns_cmp_lg_u32 s{sRdone}, 0\ns_cbranch_scc1 kf_now1\ns_waitcnt lgkmcnt(4)')
    w1reads(9, aB)
    a.label('kf_now1')
    a(f'''s_cmp_lg_u32 s{sBok}, 0
    s_cbranch_scc1 kf_nopeek
    v_and_b32 v{IDX3}, v{IDX3}, v{IDX3+1}
    v_and_b32 v{IDX3+2}, v{IDX3+2}, v{IDX3+3}
    v_and_b32 v{IDX3}, v{IDX3}, v{IDX3+2}
    v_cmp_eq_u32 vcc, 1, v{IDX3}
    s_cmp_eq_u64 vcc, -1
    s_cbranch_scc0 kf_nopeek
    {INV}
    s_mov_b32 s{sBok}, 1''')
    a.label('kf_nopeek')
    a(f's_cmp_lg_u32 s{sBok}, 0\ns_cbranch_scc1 kf_bdone')
    poll(WS_FLAG + 8192, 'kf_pollB', TQ + 4)
    a(f'{INV}\ns_mov_b32 s{sBok}, 1\ns_waitcnt vmcnt(0)')
    a.label('kf_bdone')
    for x in (MA, MA + 1, MB, MB + 1, S, S + 1): a(f'v_mov_b32 v{x}, 0')
    for d in range(4): a(f'v_mov_b32 v{IDX3+2*d+1}, v{IDX+2*d+1}')
    a(f'v_mov_b32 v{T3}, v{aB}\ns_waitcnt lgkmcnt(0)\ns_barrier')
    vm.ops = []
    stampat(3)
    if opt.get('prio3'): a('s_setprio 2')
    DOFF = [0, 4, 16, 20]
    def idx_reads(base, toff):
        return [f'ds_read_u16 v{base+2*d}, v{aSRC} offset:{toff*64+DOFF[d]}' for d in range(4)]
    def dma_ins(base, d, tag):
        vm.issue(tag)
        return f'buffer_load_dwordx4 {vr(base+2*d,2)}, s[{sP}:{sP+3}], 0 idxen offen offset:{d*1024} lds'
    for x in idx_reads(IDX1, 0) + idx_reads(IDX2, 1): a(x)
    a(f's_mov_b32 m0, s{sRing}\ns_waitcnt lgkmcnt(4)')
    for d in range(4): a(dma_ins(IDX1, d, 'dma0'))
    a(f's_cmp_lg_u32 s{sRdone}, 0\ns_cbranch_scc1 kf_now2')
    w1reads(10, T3)
    a('s_waitcnt lgkmcnt(4)')
    w1reads(8, T3)
    a('s_waitcnt lgkmcnt(0)')
    sv_ = list(vm.ops)
    stage(11)
    vm.ops = sv_
    a.label('kf_now2')
    D1 = int(opt.get('d1pos', 2))
    a('s_waitcnt lgkmcnt(0)')
    def dma1():
        a(f's_add_u32 m0, s{sRing}, 4096\ns_nop 0')
        for d in range(4): a(dma_ins(IDX2, d, 'dma1'))
    if D1 < 0: dma1()
    if opt.get('prio3'): a('s_setprio 0')
    stampat(4)
    def gemm(acc, frag, addr, wregs, first, waitv, hook=None):
        def rd(s):
            for rt in range(3):
                f = frag + (s & 1) * 12 + rt * 4
                a(f'ds_read_b128 {vr(f,4)}, v{addr+(s&3)} offset:{rt*8192+(s>>2)*256}')
        rd(0)
        for s in range(8):
            if s + 1 < 8:
                rd(s + 1); w = 'lgkmcnt(3)'
            else: w = 'lgkmcnt(0)'
            wv = waitv(s)
            a((wv + ' ' + w) if wv else 's_waitcnt ' + w)
            if hook: hook(s)
            for rt in range(3):
                for c in range(2):
                    d = acc[rt * 2 + c]; f = frag + (s & 1) * 12 + rt * 4
                    cin = '0' if (first and s == 0) else vr(d, 4)
                    a(f'v_mfma_f32_16x16x32_bf16 {vr(d,4)}, {vr(wregs(s*2+c),4)}, {vr(f,4)}, {cin}')
    def xaddr(dst, t0, t1):
        a(f'''v_and_b32 v{t0}, 15, v{vLane}
        v_lshrrev_b32 v{t1}, 4, v{vLane}
        v_xor_b32 v{t1}, v{t1}, v{t0}
        v_lshlrev_b32 v{t1}, 4, v{t1}
        v_lshl_add_u32 v{t0}, v{t0}, 9, v{t1}
        v_add_u32 v{dst}, {XT}, v{t0}''')
        for s_ in range(1, 4):
            a(f'v_xor_b32 v{t1}, {s_<<6}, v{t0}\nv_add_u32 v{dst+s_}, {XT}, v{t1}')
    if D1 >= 0:
        a(f's_cmp_eq_u32 s{sRdone}, 0\ns_cbranch_scc1 kf_dor')
        sv_ = list(vm.ops); dma1(); vm.ops = sv_
        a('s_branch kf_nor')
        a.label('kf_dor')
    else: a(f's_cmp_lg_u32 s{sRdone}, 0\ns_cbranch_scc1 kf_nor')
    xaddr(RK, T0, T1)
    def hook(s_):
        if s_ == D1: dma1()
        if s_ == 5:
            a('s_waitcnt vmcnt(4)')
            w1reads(11, T3)
            a('s_waitcnt lgkmcnt(8)')
    gemm([OA + 4 * i for i in range(6)], REC, RK, lambda i: W1F[i], True, lambda s_: None, hook)
    a(f'''s_mov_b32 s{sRdone}, 1
    v_mov_b32 v{T0}, {HMAX+8}
    v_mov_b32 v{T1}, 1
    s_mov_b64 exec, 1
    ds_add_u32 v{T0}, v{T1}
    s_mov_b64 exec, -1''')
    for i in range(4): a(f'v_mov_b32 v{XR+i}, v{RK+i}')
    a(f's_mov_b32 s{sSv}, {hex(f2u(-LOG2E))}\ns_mov_b32 s{sSv+1}, {hex(f2u(-LOG2E))}')
    a(f'''v_and_b32 v{T0}, 31, v{vLane}
    s_lshl_b32 s{sTmp2}, s{sG}, 3
    v_add_u32 v{T0}, s{sTmp2}, v{T0}
    v_and_b32 v{T2}, 15, v{T0}
    s_lshl_b32 s{sTmp2}, s{sCQ}, 3
    v_xor_b32 v{T2}, s{sTmp2}, v{T2}
    v_lshlrev_b32 v{T2}, 4, v{T2}
    v_lshl_add_u32 v{T2}, v{T0}, 9, v{T2}
    v_lshrrev_b32 v{T1}, 5, v{vLane}
    v_lshl_add_u32 v{T2}, v{T1}, 3, v{T2}
    v_add_u32 v{XR+4}, {XT}, v{T2}
    v_and_b32 v{T0}, 15, v{vLane}
    v_lshrrev_b32 v{T1}, 4, v{vLane}
    v_lshlrev_b32 v{T1}, 4, v{T1}
    v_lshl_add_u32 v{XR+6}, v{T0}, 9, v{T1}
    v_mov_b32 v{XR+7}, {HMAX+8}
    v_mov_b32 v{vMX}, 0''')
    for i in range(12): a(f'v_pk_mul_f32 {pr(OA+2*i)}, {pr(OA+2*i)}, s[{sSv}:{sSv+1}]')
    a.label('kf_nor')
    a(f'''v_and_b32 v{T0}, 31, v{vLane}
    s_lshl_b32 s{sTmp2}, s{sG}, 3
    v_add_u32 v{T0}, s{sTmp2}, v{T0}
    v_cmp_gt_u32 vcc, s{sSplit}, v{T0}
    s_cmp_eq_u32 s{sG}, 0
    s_cselect_b64 s[{sNM}:{sNM+1}], 0, -1
    s_xor_b64 s[{sNM}:{sNM+1}], s[{sNM}:{sNM+1}], vcc''')
    for x in range(4): a(f'v_mov_b32 v{NF+x}, 0\nv_mov_b32 v{DF+x}, 1.0')
    stampat(5)
    a(f'''s_cmp_eq_u32 s{sT}, 0
    s_cbranch_scc1 k2_loopend
    ds_read_u8 v{vX}, v{aXL}
    s_mov_b64 exec, s[{sHM}:{sHM+1}]
    ds_read_b128 {vr(A2,4)}, v{aEAT}
    s_mov_b64 exec, -1''')
    a(vm.wait('dma0'))
    a(f'''ds_read_b128 {vr(PA,4)}, v{aP}
    ds_read_b128 {vr(PA+4,4)}, v{aP+1}
    ds_read_b128 {vr(PB,4)}, v{aP+2}
    ds_read_b128 {vr(PB+4,4)}, v{aP+3}
    s_waitcnt lgkmcnt(5)
    v_mad_u32_u24 v{aQ}, v{vX}, s{sQs}, v{cQ}
    v_mad_u32_u24 v{aS}, v{vX}, s{sOs}, v{cS}
    ds_read_u8 v{vX}, v{aXL} offset:8
    ds_read_b64_tr_b16 {vr(B2A+2,2)}, v{aQ}
    ds_read_b64_tr_b16 {vr(B2B+2,2)}, v{aQ} offset:64''')
    for x in idx_reads(IDX3, 2) + idx_reads(IDX, 3): a(x)
    a(f's_sub_u32 s{sCnt}, s{sT}, 1\ns_waitcnt lgkmcnt(9)')
    def zchain(D, B2, P):
        return [f'v_mfma_f32_32x32x16_bf16 {vr(D,16)}, {vr(A2,4)}, {vr(B2,4)}, 0',
                f'v_mfma_f32_32x32x16_bf16 {vr(D,16)}, {vr(P,4)}, {vr(I0,4)}, {vr(D,16)}',
                f'v_mfma_f32_32x32x16_bf16 {vr(D,16)}, {vr(P+4,4)}, {vr(I1,4)}, {vr(D,16)}']
    for m in zchain(DA, B2A, PA): a(m)
    if prio == 'young': a(f's_cmp_eq_u32 s{sG}, 0\ns_cbranch_scc1 k2_noprio\ns_setprio 1\nk2_noprio:')
    a('s_nop 7\ns_nop 3')
    stampat(6)

    cur = {'pT': None, 'pP': None, 'safe': bool(opt.get('allsafe'))}
    maxops = [f'v_max3_f32 v{vMX}, v{vMX}, v{DF}, v{DF+1}', f'v_max3_f32 v{vMX}, v{vMX}, v{DF+2}, v{DF+3}'][:2 if opt.get('noshare') else 1]
    def half(D, accprev, Mprev, Mfin, zc, extra_T, extra_P):
        sh = not cur['safe'] and not opt.get('noshare')
        Ts = [f'v_exp_f32 v{EE+i}, v{D+i}' for i in range(16)] + [f'v_rcp_f32 v{DF+i}, v{DF+i}' for i in range(2 if sh else 4)]
        cuts = [0, 4, 8, 12, 18] if sh else [0, 5, 10, 15, 20]
        if not cur['safe']:
            extra_T = dict(extra_T)
            extra_T[2] = extra_T.get(2, []) + maxops
        mf = [f'v_mfma_f32_32x32x8_bf16 {vr(accprev,16)}, {vr(Mprev,2)}, {vr(S,2)}, {vr(accprev,16)}'] + zc
        if cur['pT'] is not None: a(f's_setprio {cur["pT"]}')
        LEAD = int(opt.get('lead', 0))
        for t_ in Ts[:LEAD]: a(t_)
        a('s_waitcnt lgkmcnt(0)')
        Ts = [None] * LEAD + Ts[LEAD:]
        for k in range(4):
            if k == 0 and cur.get('first'):
                lab = cur['first']
                a(f's_cmp_lg_u32 s{sAcc}, 0\ns_cbranch_scc1 {lab}_a')
                a(f'v_mfma_f32_32x32x8_bf16 {vr(accprev,16)}, {vr(Mprev,2)}, {vr(S,2)}, 0')
                a.label(lab + '_a')
                continue_T = True
                for x in extra_T.get(k, []): a(x)
                for t_ in Ts[cuts[k]:cuts[k + 1]]:
                    if t_: a(t_)
                continue
            a(mf[k])
            for x in extra_T.get(k, []): a(x)
            for t_ in Ts[cuts[k]:cuts[k + 1]]:
                if t_: a(t_)
        if cur['pP'] is not None: a(f's_setprio {cur["pP"]}')
        bs = [0, 4, 8, 12]
        fin = [f'v_pk_mul_f32 {pr(NF)}, {pr(NF)}, {pr(DF)}', f'v_pk_mul_f32 {pr(NF+2)}, {pr(NF+2)}, {pr(DF if sh else DF+2)}']
        cvt = [f'v_cvt_pk_bf16_f32 v{Mfin}, v{NF}, v{NF+1}', f'v_cvt_pk_bf16_f32 v{Mfin+1}, v{NF+2}, v{NF+3}']
        if cur['safe']:
            Ps = [f'v_pk_fma_f32 {pr(EE+2*p)}, {pr(EE+2*p)}, s[{sC}:{sC+1}], s[{sC}:{sC+1}] clamp' for p in range(8)]
            Ps += fin
            Ps += [f'v_pk_mul_f32 {pr(D+b)}, {pr(D+b)}, {pr(EE+b+2)}' for b in bs]
            Ps += cvt
            Ps += [f'v_pk_fma_f32 {pr(D+b)}, {pr(D+b+2)}, {pr(EE+b)}, {pr(D+b)}' for b in bs]
            Ps += [f'v_pk_mul_f32 {pr(EE+b)}, {pr(EE+b)}, {pr(EE+b+2)}' for b in bs]
        else:
            Ps = [f'v_pk_add_f32 {pr(EE+b+2)}, {pr(EE+b+2)}, 1.0 op_sel_hi:[1,0]' for b in bs]
            Ps += fin
            Ps += [f'v_pk_fma_f32 {pr(D+b)}, {pr(D+b)}, {pr(EE+b+2)}, {pr(D+b+2)}' for b in bs]
            Ps += cvt
            Ps += [f'v_pk_fma_f32 {pr(D+b)}, {pr(D+b+2)}, {pr(EE+b)}, {pr(D+b)}' for b in bs]
            Ps += [f'v_pk_fma_f32 {pr(EE+b)}, {pr(EE+b)}, {pr(EE+b+2)}, {pr(EE+b+2)}' for b in bs]
        Ps += [f'v_pk_mul_f32 {pr(NF+2*B)}, {pr(D+8*B)}, {pr(EE+8*B+4)}' for B in range(2)]
        Ps += [f'v_pk_mul_f32 {pr(DF+2*B)}, {pr(EE+8*B)}, {pr(EE+8*B+4)}' for B in range(2)]
        Ps += [f'v_pk_fma_f32 {pr(NF+2*B)}, {pr(D+8*B+4)}, {pr(EE+8*B)}, {pr(NF+2*B)}' for B in range(2)]
        if sh:
            Ps += [f'v_pk_mul_f32 {pr(NF)}, {pr(NF)}, {pr(DF+2)}', f'v_pk_mul_f32 {pr(NF+2)}, {pr(NF+2)}, {pr(DF)}',
                   f'v_pk_mul_f32 {pr(DF)}, {pr(DF)}, {pr(DF+2)}']
        nP = len(Ps)
        remap = {}
        for i in sorted(extra_P): remap.setdefault(min(i * nP // 30, nP - 1), []).extend(extra_P[i])
        for i, p in enumerate(Ps):
            for x in remap.get(i, []):
                a(x() if callable(x) else x)
            a(p)
    def spread(d, xs, start, step=1):
        for i, x in enumerate(xs):
            d.setdefault(start + i * step, []).extend(x if isinstance(x, list) else [x])
    wsched = [('u2', i) for i in range(16)]
    NPEEL = int(opt.get('npeel', 6))
    per = {6: [0, 3, 3, 3, 3, 4], 3: [4, 6, 6], 9: [0, 2, 2, 2, 2, 2, 2, 2, 2]}[NPEEL]
    def iteration(tau, u, peeled):
        sl = (u + 1) % 3
        eT = {3: [f'v_mad_u32_u24 v{aQ}, v{vX}, s{sQs}, v{cQ}', f'v_mad_u32_u24 v{aS+sl}, v{vX}, s{sOs}, v{cS}']}
        eP = {}
        spread(eP, [(lambda: vm.wait(f'dma{tau+1}')) if peeled else 's_waitcnt vmcnt(4)',
              f'ds_read_b128 {vr(PA,4)}, v{aP} offset:{sl*4096}', f'ds_read_b128 {vr(PA+4,4)}, v{aP+1} offset:{sl*4096}',
              f'ds_read_b64_tr_b16 {vr(B2A+2,2)}, v{aQ}',
              [f's_mov_b64 exec, s[{sHM}:{sHM+1}]', f'ds_read_b128 {vr(A2,4)}, v{aEAT} offset:{(u+1)*512}', 's_mov_b64 exec, -1'],
              f's_add_u32 m0, s{sRing}, {u*4096}'], 1)
        if peeled and tau == 0:
            eP[6] = [f's_add_u32 m0, s{sRing}, 8192']
            spread(eP, [(lambda d=d: dma_ins(IDX3, d, 'dma2')) for d in range(4)], 7, 3)
            eP.setdefault(18, []).append(f's_mov_b32 m0, s{sRing}')
            spread(eP, [(lambda d=d: dma_ins(IDX, d, 'dma3')) for d in range(4)], 19, 3)
        else:
            spread(eP, [(lambda d=d: dma_ins(IDX, d, f'dma{tau+3}')) for d in range(4)], int(opt.get('d0', 8)), int(opt.get('ds', 7)))
        cur['first'] = f'kf_f{cur["g"]}A' if (peeled and tau == 0) else None
        half(DA, ACCA, MA, MB, zchain(DB, B2B, PB), eT, eP)
        eP = {}
        xs = [f'ds_read_b128 {vr(PB,4)}, v{aP+2} offset:{sl*4096}', f'ds_read_b128 {vr(PB+4,4)}, v{aP+3} offset:{sl*4096}',
              f'ds_read_b64_tr_b16 {vr(B2B+2,2)}, v{aQ} offset:64', f'ds_read_b64_tr_b16 {vr(S,2)}, v{aS+u}',
              f'ds_read_u8 v{vX}, v{aXL} offset:{(u+2)*8}'] + idx_reads(IDX, u + 4)
        spread(eP, xs, int(opt.get('x0', 1)), int(opt.get('xs', 2)))
        if peeled and not opt.get('nowpf') and cur['g'] != 'S':
            k0 = sum(per[:tau])
            for j, (m, i) in enumerate(wsched[k0:k0 + per[tau]]):
                def f(m=m, i=i):
                    ins = wload(WB2 + 4 * i, 2, i, 'wu')
                    return '\n'.join(ins)
                eP.setdefault(18 + 2 * j, []).append(f)
            if tau == NPEEL - 1: eP.setdefault(28, []).append(f's_mov_b32 s{sWdone}, 1')
        if u == 2:
            eP.setdefault(29, []).extend([f'v_add_u32 v{aSRC}, 192, v{aSRC}', f'v_add_u32 v{aEAT}, 1536, v{aEAT}', f'v_add_u32 v{aXL}, 24, v{aXL}'])
        eP.setdefault(29, []).append(f's_sub_u32 s{sCnt}, s{sCnt}, 1')
        cur['first'] = f'kf_f{cur["g"]}B' if (peeled and tau == 0) else None
        if cur['first']: eP.setdefault(27, []).append(f's_mov_b32 s{sAcc}, 1')
        half(DB, ACCB, MB, MA, zchain(DA, B2A, PA), {}, eP)
    spec = {'P': '01', 'none': 'xx', 'young': 'xx'}.get(prio, prio).split('|')
    saved = list(vm.ops)
    a(f's_cmp_lg_u32 s{sSafe}, 0\ns_cbranch_scc1 k2_safe')
    if len(spec) > 1: a(f's_cmp_lg_u32 s{sG}, 0\ns_cbranch_scc1 k2_g1')
    for g, sp in enumerate(spec):
        vm.ops = list(saved)
        sp = sp.split(',')
        def setp(k):
            x = sp[k % len(sp)]
            cur['pT'] = None if x[0] == 'x' else int(x[0]); cur['pP'] = None if x[1] == 'x' else int(x[1])
        cur['g'] = g
        if g: a.label('k2_g1')
        for tau in range(NPEEL):
            setp(tau)
            iteration(tau, tau % 3, True)
            a('s_cbranch_scc1 k2_drain')
        a.label(f'k2_loop{g}')
        for u in range(3):
            setp(u)
            iteration(100 + u, u, False)
            a('s_cbranch_scc1 k2_drain' if u < 2 else f's_cbranch_scc0 k2_loop{g}')
        if g + 1 < len(spec): a('s_branch k2_drain')
    a.label('k2_drain')
    a('s_setprio 0\ns_waitcnt lgkmcnt(0)')
    for x in maxops: a(x)
    a(f'v_mfma_f32_32x32x8_bf16 {vr(ACCA,16)}, {vr(MA,2)}, {vr(S,2)}, {vr(ACCA,16)}')
    if not opt.get('noshare'):
        a(f's_cmp_lg_u32 s{sSafe}, 0\ns_cbranch_scc1 kf_dr4\nv_mov_b32 v{DF+2}, v{DF}\nv_mov_b32 v{DF+3}, v{DF+1}')
        a.label('kf_dr4')
    for i in range(4): a(f'v_rcp_f32 v{DF+i}, v{DF+i}')
    a('s_nop 0')
    for i in range(4): a(f'v_mul_f32 v{NF+i}, v{NF+i}, v{DF+i}')
    a(f'''v_cvt_pk_bf16_f32 v{MB}, v{NF}, v{NF+1}
    v_cvt_pk_bf16_f32 v{MB+1}, v{NF+2}, v{NF+3}
    s_nop 1
    v_mfma_f32_32x32x8_bf16 {vr(ACCB,16)}, {vr(MB,2)}, {vr(S,2)}, {vr(ACCB,16)}''')
    a.label('k2_loopend')
    stampat(7)
    a(f'''s_cmp_eq_u32 s{sHeavy}, 0
    s_cbranch_scc1 k2_epi
    s_add_u32 s{sB}, s{sB}, 1''')
    a.label('k2_fetch')
    a(f'''s_waitcnt vmcnt(0) lgkmcnt(0)
    s_barrier
    s_cmp_ge_u32 s{sB}, s{sHeavy}
    s_cbranch_scc1 k2_epi
    s_lshl_b32 s{sTmp}, s0, 2
    buffer_load_dword v{TQ}, v{vNOVF}, {WS}, s{sTmp} offen sc1
    v_and_b32 v{T1}, 1, v0
    s_lshl_b32 s{sTmp}, s{sB}, 1
    v_add_u32 v{T1}, s{sTmp}, v{T1}
    s_waitcnt vmcnt(0)
    v_and_b32 v{T0}, 0xffff, v{TQ}
    v_lshrrev_b32 v{TQ}, 16, v{TQ}
    v_add_u32 v{T0}, v{T0}, v{T1}
    v_cmp_lt_u32 s[{sMask}:{sMask+1}], v{T1}, v{TQ}
    v_mad_u32_u24 v{T0}, v{T0}, 12, v{vNOVF}
    buffer_load_dwordx3 {vr(REC,3)}, v{T0}, {WS}, 0 offen offset:1024 sc1''')
    for i in range(1, 8): a(f's_mov_b64 s[{sMask+2*i}:{sMask+2*i+1}], 0')
    a(f's_mov_b64 s[{sOv}:{sOv+1}], 0\ns_waitcnt vmcnt(0)\ns_branch k2_batch')
    a.label('k2_redo')
    a(f's_mov_b32 s{sSafe}, 1\ns_mov_b32 s{sAcc}, 0\ns_mov_b32 s{sB}, 0')
    a.label('k2_hentry')
    a(f'''s_waitcnt vmcnt(0) lgkmcnt(0)
    s_lshl_b32 s{sTmp}, s0, 2
    buffer_load_dword v{TQ}, v{vNOVF}, {WS}, s{sTmp} offen sc1
    v_mov_b32 v{T0}, {HMAX}
    v_mov_b32 v{T1}, 1
    ds_write_b32 v{T0}, v{T1}
    s_waitcnt vmcnt(0) lgkmcnt(0)
    s_barrier
    v_lshrrev_b32 v{TQ}, 16, v{TQ}
    v_add_u32 v{TQ}, 1, v{TQ}
    v_lshrrev_b32 v{TQ}, 1, v{TQ}
    ds_max_u32 v{T0}, v{TQ}
    s_waitcnt lgkmcnt(0)
    s_barrier
    ds_read_b32 v{T1}, v{T0}
    s_waitcnt lgkmcnt(0)
    v_readfirstlane_b32 s{sHeavy}, v{T1}
    s_branch k2_fetch''')
    a.label('k2_epi')
    vm.ops = []
    a(f's_waitcnt vmcnt(0)\ns_cmp_lg_u32 s{sWdone}, 0\ns_cbranch_scc1 k2_wok')
    for (m, i) in wsched:
        for x in wload(WB2 + 4 * i, 2, i, 'c'): a(x)
    a('s_waitcnt vmcnt(0)')
    a.label('k2_wok')
    Y0, Y1, Y2, Y3 = X0, X0 + 1, X0 + 2, X0 + 3
    a(f'''s_cmp_lg_u32 s{sSafe}, 0
    s_cbranch_scc1 kf_noflag
    v_cmp_lt_f32 vcc, 0x5d800000, v{vMX}
    s_cbranch_vccz kf_noflag
    v_mov_b32 v{Y0}, 1
    ds_write_b32 v{XR+7}, v{Y0} offset:4
    kf_noflag:
    s_cmp_lg_u32 s{sAcc}, 0
    s_cbranch_scc1 kf_accok''')
    for i in range(32): a(f'v_mov_b32 v{ACCA+i}, 0')
    a.label('kf_accok')
    a(f'''ds_read_b32 v{Y0}, v{XR+7}
    s_waitcnt lgkmcnt(0)
    v_readfirstlane_b32 s{sTmp}, v{Y0}
    s_cmp_lt_u32 s{sTmp}, 8
    s_cbranch_scc1 kf_accok
    s_mov_b64 exec, s[{sNM}:{sNM+1}]''')
    Y2 = XR + 4
    a(f's_cmp_eq_u32 s{sSafe}, 0\ns_cbranch_scc1 kf_noscale')
    for q in range(16): a(f'v_pk_mul_f32 {pr(ACCA+2*q)}, {pr(ACCA+2*q)}, s[{sC}:{sC+1}]')
    a.label('kf_noscale')
    for q in range(8):
        if q: a(f'v_xor_b32 v{Y3}, {q<<4}, v{Y2}')
        a(f'''v_cvt_pk_bf16_f32 v{ACCA+4*q}, v{ACCA+4*q}, v{ACCA+4*q+1}
        v_cvt_pk_bf16_f32 v{ACCA+4*q+1}, v{ACCA+4*q+2}, v{ACCA+4*q+3}
        ds_write_b64 v{Y3 if q else Y2}, {vr(ACCA+4*q,2)}''')
    a('s_mov_b64 exec, -1')
    EA_ = XR; Y2 = XR + 6; Y3 = XR + 5
    a(f'''s_lshl_b32 s{sTmp2}, s{sN0}, 9
    s_lshl_b32 s{sTmp}, s{sWV}, 6
    s_add_u32 s{sTmp2}, s{sTmp2}, s{sTmp}
    s_waitcnt lgkmcnt(0)''')
    stampat(8)
    a(f's_barrier\nds_read_b32 v{Y0}, v{XR+7} offset:4')
    Z = DA
    def silu_ops(rt):
        b = OA + rt * 8
        ops = [f'v_exp_f32 v{Z+p}, v{b+p}' for p in range(8)]
        ops += [f'v_fma_f32 v{Z+p}, v{Z+p}, s{sC}, s{sC}' for p in range(8)]
        ops += [f'v_rcp_f32 v{Z+p}, v{Z+p}' for p in range(8)]
        ops += [f'v_mul_f32 v{Z+p}, v{b+p}, v{Z+p}' for p in range(8)]
        for h in range(4): ops.append(f'v_cvt_pk_bf16_f32 v{Z+8+h}, v{Z+2*h}, v{Z+2*h+1}')
        if rt == 2:
            ops.append(f's_mov_b32 exec_lo, s{sTmp3}\ns_mov_b32 exec_hi, s{sTmp3}')
        ops.append(f'buffer_store_dwordx4 {vr(Z+8,4)}, v{Y2}, s[{sO}:{sO+3}], s{sTmp2} offen' + opt.get('outst' + str(rt), opt.get('outst', ' sc1')))
        ops.append(f's_add_u32 s{sTmp2}, s{sTmp2}, 8192')
        return ops
    seq = [(rt, s) for rt in range(3) for s in range(8)]
    def ard(k):
        rt, s = seq[k]
        a(f'ds_read_b128 {vr(AF+4*(k%6),4)}, v{EA_+(s&3)} offset:{rt*8192+(s>>2)*256}')
    for k in range(5): ard(k)
    a(f'''s_waitcnt lgkmcnt(5)
    v_readfirstlane_b32 s{sTmp}, v{Y0}
    s_cmp_gt_u32 s{sTmp}, s{sSafe}
    s_cbranch_scc1 k2_redo
    s_mov_b32 s{sC}, {hex(f2u(-LOG2E))}''')
    pend = []
    for k, (rt, s) in enumerate(seq):
        if k + 5 < 24: ard(k + 5)
        a(f's_waitcnt lgkmcnt({min(5, 23-k)})')
        for c in range(2):
            d = OA + (rt * 2 + c) * 4
            a(f'v_mfma_f32_16x16x32_bf16 {vr(d,4)}, {vr(WB2+4*(2*s+c),4)}, {vr(AF+4*(k%6),4)}, {vr(d,4)}')
            if s >= 1 or c == 1:
                n = 3 if s >= 1 else 0
                for x in pend[:n]: a(x)
                pend = pend[n:]
        if s == 7:
            for x in pend: a(x)
            pend = silu_ops(rt)
    b = OA + 16
    a(f's_mov_b32 s{sC+1}, {hex(f2u(-LOG2E))}\ns_sub_u32 s{sTmp}, s{sNN}, 32\ns_bfm_b32 s{sTmp3}, s{sTmp}, 0\ns_mul_i32 s{sTmp3}, s{sTmp3}, 0x10001\ns_nop 3')
    for rr in range(4): a(f'v_mov_b32_dpp v{b+rr}, v{b+4+rr} row_shr:8 row_mask:0xf bank_mask:0xc')
    for p in range(4): a(f'v_exp_f32 v{Z+p}, v{b+p}')
    for p in range(2): a(f'v_pk_fma_f32 {pr(Z+2*p)}, {pr(Z+2*p)}, s[{sC}:{sC+1}], s[{sC}:{sC+1}]')
    for p in range(4): a(f'v_rcp_f32 v{Z+p}, v{Z+p}')
    for p in range(2): a(f'v_pk_mul_f32 {pr(Z+2*p)}, {pr(b+2*p)}, {pr(Z+2*p)}')
    a('s_nop 1')
    for rr in range(4): a(f'v_mov_b32_dpp v{Z+4+rr}, v{Z+rr} row_shl:8 row_mask:0xf bank_mask:0x3')
    for x in pend[32:]: a(x)
    if stamp:
        stampat(9)
        a(f's_mov_b64 exec, 1\ns_waitcnt lgkmcnt(0)')
        a(f's_lshl_b32 s{sTmp}, s2, 3\ns_add_u32 s{sTmp}, s{sTmp}, s{sWV}\ns_lshl_b32 s{sTmp}, s{sTmp}, 6\ns_add_u32 s{sTmp}, s{sTmp}, {WS_END - WS_CELLS}\nv_mov_b32 v{Y0}, 0')
        for i in range(10):
            a(f'v_mov_b32 v{Y1}, s{sStamp+2*i}\nbuffer_store_dword v{Y1}, v{Y0}, {WS}, s{sTmp} offen offset:{4*i}')
        a(f'v_mov_b32 v{Y1}, s{sT}\nbuffer_store_dword v{Y1}, v{Y0}, {WS}, s{sTmp} offen offset:40')
        a(f'v_mov_b32 v{Y1}, s{sPoll}\nbuffer_store_dword v{Y1}, v{Y0}, {WS}, s{sTmp} offen offset:44')
    if opt.get('diagpad'):
        a(f's_add_u32 s94, s94, {int(opt["diagpad"])}')
        a.label('kf_diag')
        a('s_memrealtime s[92:93]\ns_waitcnt lgkmcnt(0)\ns_sub_u32 s92, s92, s94\ns_cmp_lt_i32 s92, 0\ns_cbranch_scc1 kf_diag')
    if opt.get('xcdiag'):
        a(f'''s_mov_b64 exec, -1
        s_and_b32 s91, s2, 7
        s_lshl_b32 s91, s91, 2
        s_add_u32 s91, s91, 32
        v_mov_b32 v1, 0
        buffer_load_dword v2, v1, s[{sD}:{sD+3}], s91 offen sc1
        s_memrealtime s[94:95]
        s_waitcnt vmcnt(0) lgkmcnt(0)
        v_readfirstlane_b32 s91, v2
        s_cmp_eq_u32 s91, s90
        s_cbranch_scc1 k2_done
        s_add_u32 s94, s94, 2000''')
        a.label('kf_xd2')
        a('s_memrealtime s[92:93]\ns_waitcnt lgkmcnt(0)\ns_sub_u32 s92, s92, s94\ns_cmp_lt_i32 s92, 0\ns_cbranch_scc1 kf_xd2')
    a.label('k2_done')
    a('s_endpgm')
    a.label('kf_init')
    srd(a, sD, sWS, 16384, add=WS_FLAG)
    a(f'''v_mov_b32 v{BF}, 0
    v_mov_b32 v{BF+1}, 0
    v_mov_b32 v{BF+2}, 0
    v_mov_b32 v{BF+3}, 0
    s_mov_b32 s{sTmp2}, 8192
    buffer_store_dwordx4 {vr(BF,4)}, v{U3}, s[{sD}:{sD+3}], 0 offen sc1
    buffer_store_dwordx4 {vr(BF,4)}, v{U3}, s[{sD}:{sD+3}], s{sTmp2} offen sc1''')
    a('s_branch kf_noinit')
    vm.ops = list(saved)
    cur.update({'pT': None, 'pP': None, 'safe': True, 'g': 'S'})
    a.label('k2_safe')
    iteration(0, 0, True)
    a('s_cbranch_scc1 k2_drain')
    a.label('k2_loopS')
    for u in (1, 2, 0):
        iteration(100 + u, u, False)
        a('s_cbranch_scc1 k2_drain' if u != 0 else 's_cbranch_scc0 k2_loopS')
    a('s_branch k2_drain')
    return kd(KNAME, 256, 102)
```

```python
from common import *
FCH = 625; CST = 8704; RB = 12
WS_CELLS = 5242880
WS_WF = WS_CELLS + 256 * 11264
WS_FLAG = WS_WF + 131072
WS_END = WS_FLAG + 16384
KNAME = 'standalone__mpnn_edge_mlp__graph_kernel'
POLL_LIMIT = 40000
K2_GRID = NB
NT = 28
QT = 98304; QSTR = 592
ZR = QT + 40 * QSTR
XT = 126208
assert ZR + 4096 <= XT
EAT = XT + 20480
CNT = EAT + NT * 512
SRC = CNT + 256
XL = SRC + (NT + 7) * 64
K2_LDS = 163840
assert XL + 256 + 16 <= K2_LDS
C30 = 0x30800000

class R:
    def __init__(self, start): self.n = start
    def get(self, k=1, align=1):
        self.n = (self.n + align - 1) // align * align
        r = self.n; self.n += k; return r

def vr(r, k): return f'v[{r}:{r+k-1}]' if k > 1 else f'v{r}'
def pr(x): return f'v[{x}:{x+1}]'

def gen_kf(a, opt):
    stamp = opt.get('stamp')
    prio = opt.get('prio', '02,02,13|13,13,02')
    vm = VM()
    INV = 'buffer_inv sc1' if opt.get('inv') else ''
    LD = ' sc1' if opt.get('ldsc1', '0') == '1' else ''
    CS = opt.get('cellst', ' sc1')
    r = R(1)
    vLane = r.get(); vNOVF = r.get(); vL16 = r.get()
    aSRC = r.get(); aEAT = r.get(); aXL = r.get(); cQ = r.get(); cS = r.get(); vX = r.get(); aQ = r.get()
    aS = r.get(3); aP = r.get(4)
    IDX = r.get(8, 2)
    A2 = r.get(4, 2); B2A = r.get(4, 2); B2B = r.get(4, 2)
    S = r.get(2, 2); MA = r.get(2, 2); MB = r.get(2, 2)
    ACCA = r.get(16, 2); ACCB = r.get(16, 2)
    DA = r.get(16, 2); DB = r.get(16, 2)
    EE = r.get(16, 2); NF = r.get(4, 2); DF = r.get(4, 2)
    PA = r.get(8, 2); PB = r.get(8, 2); I0 = r.get(4, 2); I1 = r.get(4, 2)
    WB2 = r.get(64, 2)
    XR = r.get(12, 2)
    OA = r.get(24, 2)
    assert r.n <= 256, r.n
    W1F = [NF + 4 * i for i in range(6)] + [WB2 + 36 + 4 * i for i in range(10)]
    aW = None
    assert PB + 8 == NF + 24 and WB2 + 36 + 40 == OA
    t = R(WB2)
    REC = DB
    assert EE == DB + 16
    RK = t.get(8, 2); TQ = t.get(8, 2); DL4 = t.get(8, 2)
    T0 = t.get(); T1 = t.get(); T2 = t.get(); T3 = t.get()
    IDX3 = t.get(8, 2)
    HMAX = XL + 256
    PAIR = not opt.get('nopair')
    MA4 = WB2; MB4 = WB2 + 4; S4 = WB2 + 8
    vMX = XR + 8
    IDX1 = DA; IDX2 = DA + 8
    AF = PA
    X0 = DB + 12
    EA_ = IDX

    sP = 20; sX = 24; sE = 28; sWS = 32; sM = 36; sO = 24
    sWV = 44; sG = 45; sCQ = 46; sHeavy = 47; sB = 48; sPoll = 49; sSplit = 50; sT = 51; sTbase = 52
    sRing = 53; sCnt = 54; sTmp = 55; sTmp2 = 56; sTmp3 = 57; sC = 58
    sMask = 4
    sQs = 68; sOs = 69; sT0 = 70; sT1 = 71; sQt = 72; sWdone = 73; sSv = 74
    sStamp = 76
    sHM = 96; sN0 = 98; sWF = 99; sNN = 3; sBok = 100; sOv = 28; sRdone = 30; sEAT = 31; sAcc = 38; sNM = 36; sSafe = 39; sD = 60; sPw = 64

    names = (stamp if stamp and stamp != '1' else '0,1,2,3,4,5,6,7,8,9').split(',')
    def stampat(nm):
        nm = str(nm)
        if opt.get('padat') and opt['padat'].split(':')[0] == nm:
            a(f's_add_u32 s94, s94, {int(opt["padat"].split(":")[1])}')
            a.label('kf_padat')
            a('s_memrealtime s[92:93]\ns_waitcnt lgkmcnt(0)\ns_sub_u32 s92, s92, s94\ns_cmp_lt_i32 s92, 0\ns_cbranch_scc1 kf_padat')
        if stamp:
            if nm in names:
                i = names.index(nm)
                a(f's_memrealtime s[{sStamp+2*i}:{sStamp+2*i+1}]')
            if nm == '6': a('s_memtime s[100:101]\ns_waitcnt lgkmcnt(0)\ns_mov_b32 s{}, s100'.format(sPoll))
            if nm == '7': a('s_memtime s[100:101]\ns_waitcnt lgkmcnt(0)\ns_sub_u32 s{0}, s100, s{0}'.format(sPoll))
    WS = f's[{sWS}:{sWS+3}]'
    def wload(dst, mat, i, tag):
        off = i * 1024
        ins = [f's_add_u32 s{sTmp3}, s{sWF}, {off & ~4095}',
               f'buffer_load_dwordx4 {vr(dst,4)}, v{vL16}, {WS}, s{sTmp3} offen offset:{off & 4095}']
        vm.issue(tag)
        return ins

    a.raw(f'.globl {KNAME}\n.p2align 8\n.type {KNAME},@function')
    a.label(KNAME)
    a(f's_cmp_ge_u32 s2, {K2_GRID}\ns_cbranch_scc1 k2_done')
    stampat(0)
    if opt.get('diagpad') or opt.get('padat'): a('s_memrealtime s[94:95]')
    BIAS = bool(opt.get('bias2'))
    if BIAS:
        n0code = f'''s_mul_i32 s{sN0}, s{sPoll}, 305
    s_add_u32 s{sNN}, s{sN0}, {305+1927}
    s_add_u32 s{sN0}, s{sN0}, 1927
    s_lshr_b32 s{sN0}, s{sN0}, 3
    s_lshr_b32 s{sNN}, s{sNN}, 3
    s_mul_i32 s{sTmp}, s{sPoll}, 40
    s_min_u32 s{sN0}, s{sN0}, s{sTmp}
    s_add_u32 s{sTmp}, s{sTmp}, 40
    s_min_u32 s{sNN}, s{sNN}, s{sTmp}
    s_sub_u32 s{sNN}, s{sNN}, s{sN0}'''
    else:
        n0code = f'''s_mul_i32 s{sN0}, s{sPoll}, 625
    s_add_u32 s{sNN}, s{sN0}, {625+15}
    s_add_u32 s{sN0}, s{sN0}, 15
    s_lshr_b32 s{sN0}, s{sN0}, 4
    s_lshr_b32 s{sNN}, s{sNN}, 4
    s_sub_u32 s{sNN}, s{sNN}, s{sN0}'''
    eD = 26; eS = 36; eA = 46; eR = 66; eB = 76
    PD = 26; RL = 50; W3 = 58; TOUCH = 86; CT = 58
    UQ = 92; vW = 100; aA = 104; U0 = 108; U1 = 109; U2 = 110; U3 = 111; vW1 = 112; PR0 = 113; PR1 = 114; PG0 = 115; PG1 = 116; aW3 = 117
    vDB = 252; aTO = 253; aB = 90
    BF = NF; AX = WB2
    assert BF == 124 and BF + 32 == WB2 and WB2 + 96 <= 256 and REC == 92
    W3L = QT + 24576
    SW = 1
    TAB = QT; RIMG = QT + 1024; CNTA = QT + 12288
    sS = 20; sDs = 28; sEs = 36; sU = 40
    sWm = 68
    sEM = 76 if not stamp else 8
    a(f'''s_load_dwordx4 s[12:15], s[0:1], 32
    s_load_dwordx4 s[8:11], s[0:1], 16
    s_load_dwordx4 s[4:7], s[0:1], 0
    s_load_dwordx4 s[16:19], s[0:1], 48
    s_load_dwordx2 s[{sWS}:{sWS+1}], s[0:1], 64
    v_lshrrev_b32 v{U0}, 6, v0
    v_and_b32 v{vLane}, 63, v0
    v_readfirstlane_b32 s{sWV}, v{U0}
    v_lshlrev_b32 v{vL16}, 4, v{vLane}
    s_cmp_lg_u32 s{sWV}, 3
    s_cbranch_scc1 kf_noct
    s_getpc_b64 s[{sSv}:{sSv+1}]
    kf_pc:
    s_and_b32 s{sTmp3}, s2, 0xf8
    s_lshl_b32 s{sTmp3}, s{sTmp3}, 7
    s_min_u32 s{sTmp3}, s{sTmp3}, k2_done-kf_pc-1024
    s_add_u32 s{sSv}, s{sSv}, s{sTmp3}
    s_addc_u32 s{sSv+1}, s{sSv+1}, 0
    global_load_dwordx4 {vr(CT,4)}, v{vL16}, s[{sSv}:{sSv+1}]
    kf_noct:
    v_lshlrev_b32 v{U3}, 4, v0
    s_mul_i32 s{sN0}, s2, 625
    s_bfe_u32 s{sTmp3}, s2, 0x50003
    s_lshl_b32 s{sTmp3}, s{sTmp3}, 13
    s_lshl_b32 s{sT}, s{sN0}, 2
    s_lshl_b32 s{sTbase}, s{sN0}, 3
    s_and_b32 s{sPoll}, s2, 7
    s_lshl_b32 s{sPoll}, s{sPoll}, 5
    s_lshr_b32 s{sTmp}, s2, 3
    s_or_b32 s{sPoll}, s{sPoll}, s{sTmp}
    {n0code}
    s_lshr_b32 s{sG}, s{sWV}, 2
    s_and_b32 s{sCQ}, s{sWV}, 3
    s_lshl_b32 s{sWF}, s{sWV}, 14
    s_add_u32 s{sWF}, s{sWF}, {WS_WF - WS_CELLS}
    v_lshrrev_b32 v{U0}, 5, v{vLane}
    v_and_b32 v{U1}, 31, v{vLane}
    s_lshl_b32 s{sTmp}, s{sWV}, 1
    v_xor_b32 v{U2}, v{U1}, v{U0}
    v_xor_b32 v{U2}, s{sTmp}, v{U2}
    v_lshlrev_b32 v{U2}, 4, v{U2}
    v_lshl_add_u32 v{U2}, v{U0}, 9, v{U2}
    v_xor_b32 v{vW1}, s{sWV}, v{U1}
    v_lshlrev_b32 v{vW1}, 4, v{vW1}
    s_waitcnt lgkmcnt(0)
    s_mov_b32 s0, s{sPoll}''')
    a(f'''s_cmp_lg_u32 s{sWV}, {SW}
    s_cbranch_scc1 kf_noedge
    s_setprio 3
    v_mul_u32_u24 v{U0}, 40, v{vLane}
    v_mul_u32_u24 v{U1}, 80, v{vLane}''')
    srd(a, sDs, 10, E * 4)
    a(f'''buffer_load_dwordx4 {vr(eD,4)}, v{U0}, s[{sDs}:{sDs+3}], s{sT} offen
    buffer_load_dwordx4 {vr(eD+4,4)}, v{U0}, s[{sDs}:{sDs+3}], s{sT} offen offset:16
    buffer_load_dwordx2 {vr(eD+8,2)}, v{U0}, s[{sDs}:{sDs+3}], s{sT} offen offset:32''')
    srd(a, sS, 8, E * 4)
    a(f'''buffer_load_dwordx4 {vr(eS,4)}, v{U0}, s[{sS}:{sS+3}], s{sT} offen
    buffer_load_dwordx4 {vr(eS+4,4)}, v{U0}, s[{sS}:{sS+3}], s{sT} offen offset:16
    buffer_load_dwordx2 {vr(eS+8,2)}, v{U0}, s[{sS}:{sS+3}], s{sT} offen offset:32''')
    srd(a, sEs, 6, E * 8)
    for k in range(5): a(f'buffer_load_dwordx4 {vr(eA+4*k,4)}, v{U1}, s[{sEs}:{sEs+3}], s{sTbase} offen offset:{16*k}')
    a.label('kf_noedge')
    a('s_cmp_eq_u32 s2, 0\ns_cbranch_scc1 kf_init')
    a.label('kf_noinit')
    vm.issue('edge')
    vm.ops = vm.ops
    srd(a, sWm, 12, 516 * 512)
    a(f'buffer_load_dwordx4 {vr(TOUCH,4)}, v{U3}, s[{sWm}:{sWm+3}], s{sTmp3} offen')
    vm.issue('touch')
    a(f'''s_cmp_lg_u32 s{sWV}, 6
    s_cbranch_scc1 kf_now3
    s_mov_b32 m0, {W3L}
    s_mov_b32 s{sTmp}, {512*512}
    buffer_load_dwordx4 v{vL16}, s[{sWm}:{sWm+3}], s{sTmp} offen lds
    buffer_load_dwordx4 v{vL16}, s[{sWm}:{sWm+3}], s{sTmp} offen offset:1024 lds''')
    a.label('kf_now3')
    srd(a, sX, 4, N * 512)
    a(f'''s_lshl_b32 s{sTmp}, s{sN0}, 9
    s_lshl_b32 s{sTmp2}, s{sWV}, 10
    s_add_u32 s{sTmp3}, s{sTmp}, s{sTmp2}
    s_add_u32 m0, s{sTmp2}, {XT}
    s_lshl_b32 s{sCnt}, s{sWV}, 9
    buffer_load_dwordx4 v{U2}, s[{sX}:{sX+3}], s{sTmp3} offen lds
    s_add_u32 m0, s{sTmp2}, {XT+8192}
    s_add_u32 s{sTmp3}, s{sTmp3}, 8192
    buffer_load_dwordx4 v{U2}, s[{sX}:{sX+3}], s{sTmp3} offen lds
    s_add_u32 m0, s{sCnt}, {XT+16384}
    s_add_u32 s{sTmp}, s{sTmp}, s{sCnt}
    s_add_u32 s{sTmp}, s{sTmp}, 16384
    s_mov_b32 exec_hi, 0
    buffer_load_dwordx4 v{vW1}, s[{sX}:{sX+3}], s{sTmp} offen lds
    s_mov_b32 exec_hi, -1''')
    for _ in range(3): vm.issue('x')
    stampat('a')
    a(f'''s_add_u32 s{sPw}, s{sWS}, {WS_P}
    s_addc_u32 s{sPw+1}, s{sWS+1}, 0
    s_and_b32 s{sPw+1}, s{sPw+1}, 0xffff
    s_mov_b32 s{sPw+2}, {N*512}
    s_mov_b32 s{sPw+3}, 0x20000
    s_add_u32 s{sWS}, s{sWS}, {WS_CELLS}
    s_addc_u32 s{sWS+1}, s{sWS+1}, 0
    s_and_b32 s{sWS+1}, s{sWS+1}, 0xffff
    s_mov_b32 s{sWS+2}, {WS_END - WS_CELLS + (1 << 20 if stamp else 0)}
    s_mov_b32 s{sWS+3}, 0x20000''')
    srd(a, sD, 18, 256)
    srd(a, sU, 14, 512 * 512)
    a(f'''v_mov_b32 v{UQ+4}, 0
    v_mov_b32 v{UQ+5}, 0
    v_mov_b32 v{UQ+6}, 0
    v_mov_b32 v{UQ+7}, 0
    v_add_u32 v{U1}, {CNTA}, v{vL16}
    s_cmp_lg_u32 s{sWV}, {SW}
    s_cbranch_scc1 kf_nocz
    ds_write_b128 v{U1}, {vr(UQ+4,4)}
    v_mov_b32 v{U1}, {HMAX+8}
    ds_write_b64 v{U1}, {vr(UQ+4,2)}''')
    a.label('kf_nocz')
    nz = (NT * 512 + 256 - 8192) // 16; nf = (NT + 7) * 64 // 16; nx = 16
    def list_prefill(Z, F, t0, t1):
        a(f'''v_lshlrev_b32 v{t0}, 4, v0
        v_add_u32 v{t0}, {EAT}, v{t0}
        v_mov_b32 v{t1}, 0xa0a0a0a0
        ds_write_b128 v{t0}, {vr(Z,4)}
        v_cmp_gt_u32 vcc, {nz}, v0
        s_and_saveexec_b64 s[{sSv}:{sSv+1}], vcc
        ds_write_b128 v{t0}, {vr(Z,4)} offset:8192
        s_mov_b64 exec, -1
        v_cmp_gt_u32 vcc, {nf}, v0
        s_nop 0
        s_nop 0
        v_cndmask_b32 v{F}, v{t1}, -1, vcc
        v_cmp_gt_u32 vcc, {nf+nx}, v0
        v_mov_b32 v{F+1}, v{F}
        v_mov_b32 v{F+2}, v{F}
        v_mov_b32 v{F+3}, v{F}
        s_and_saveexec_b64 s[{sSv}:{sSv+1}], vcc
        ds_write_b128 v{t0}, {vr(F,4)} offset:{SRC-EAT}
        s_mov_b64 exec, -1''')
    stampat('b')
    a(f'''v_lshrrev_b32 v{U0}, 5, v{vLane}
    v_and_b32 v{U1}, 3, v{vLane}
    v_lshlrev_b32 v{U0}, 1, v{U0}
    v_xor_b32 v{U0}, v{U0}, v{U1}
    v_lshrrev_b32 v{U1}, 2, v{vLane}
    v_lshlrev_b32 v{U1}, 9, v{U1}
    v_lshl_add_u32 v{U0}, v{U0}, 4, v{U1}
    s_lshl_b32 s{sTmp}, s{sWV}, 6
    v_add_u32 v{vW}, s{sTmp}, v{U0}
    v_add_u32 v{vW+1}, 7168, v{vW}
    v_add_u32 v{vW+2}, 14336, v{vW}
    v_add_u32 v{vW+3}, 21504, v{vW}
    s_mul_i32 s{sRing}, s{sWV}, 12288''')
    def stage(i):
        a(f's_add_u32 m0, s{sRing}, {(i % 3) * 4096}\ns_mov_b32 s{sTmp3}, {(i & 7) * 32768}')
        sr = sWm if i < 8 else sU
        for t_ in range(4):
            a(f'buffer_load_dwordx4 v{(vW if i < 8 else XR + 8)+t_}, s[{sr}:{sr+3}], s{sTmp3} offen offset:{t_*1024} lds')
            vm.issue(f'st{i}')
    a(f'''v_and_b32 v{U0}, 15, v{vLane}
    v_lshrrev_b32 v{U1}, 4, v{vLane}
    v_xor_b32 v{U2}, v{U1}, v{U0}
    v_lshlrev_b32 v{U2}, 4, v{U2}
    v_lshl_add_u32 v{U0}, v{U0}, 9, v{U2}
    v_add_u32 v{aA}, {XT}, v{U0}''')
    for s_ in range(1, 4):
        a(f'v_xor_b32 v{U2}, {s_<<6}, v{U0}\nv_add_u32 v{aA+s_}, {XT}, v{U2}')
    a(f'''v_bfe_u32 v{U0}, v{vLane}, 2, 2
    v_lshl_add_u32 v{U0}, v{U1}, 3, v{U0}
    v_and_b32 v{U2}, 1, v{U1}
    v_lshlrev_b32 v{U2}, 5, v{U2}
    v_and_b32 v{U3}, 3, v{vLane}
    v_lshl_add_u32 v{U2}, v{U3}, 3, v{U2}
    v_lshl_add_u32 v{U2}, v{U0}, 6, v{U2}
    v_add_u32 v{aB}, s{sRing}, v{U2}
    v_xor_b32 v{aB+1}, 32, v{aB}
    v_mov_b32 v{U3}, 1''')
    list_prefill(UQ + 4, BF + 4, U0, U1)
    NPRE = int(opt.get('npre', 2))
    NPRE2 = int(opt.get('npre2', NPRE))
    stampat('y')
    def early_consts(T0, T1, T2, T3):
        a(f'''v_lshrrev_b32 v{T2}, 5, v{vLane}
        v_and_b32 v{T3}, 31, v{vLane}
        v_bfe_u32 v{T0}, v{T3}, 2, 1
        v_cmp_eq_u32 s[{sHM}:{sHM+1}], v{T0}, v{T2}
        v_bfe_u32 v{T0}, v{T3}, 1, 3
        v_xor_b32 v{T0}, v{T0}, v{T2}
        v_lshlrev_b32 v{T0}, 4, v{T0}
        v_lshl_add_u32 v{T0}, v{T3}, 7, v{T0}
        v_add_u32 v{aP}, s{sRing}, v{T0}
        v_xor_b32 v{aP+1}, 32, v{aP}
        v_xor_b32 v{aP+2}, 64, v{aP}
        v_xor_b32 v{aP+3}, 96, v{aP}
        v_and_b32 v{T0}, 7, v{vLane}
        v_lshrrev_b32 v{T1}, 4, v{vLane}
        v_xor_b32 v{T0}, v{T0}, v{T1}
        s_lshl_b32 s{sTmp}, s{sCQ}, 7
        v_lshl_add_u32 v{T0}, v{T0}, 4, s{sTmp}
        v_xor_b32 v{IDX+7}, 64, v{T0}
        v_add_u32 v{IDX+1}, 3072, v{T0}
        v_add_u32 v{IDX+3}, 2048, v{IDX+7}
        v_add_u32 v{IDX+5}, 1024, v{T0}
        v_bfe_u32 v{T0}, v{vLane}, 4, 1
        v_and_b32 v{T1}, 3, v{vLane}
        v_lshlrev_b32 v{T1}, 3, v{T1}
        v_lshl_add_u32 v{T0}, v{T0}, 5, v{T1}
        s_add_u32 s{sTmp}, s{sTmp}, {QT}
        v_add_u32 v{cQ}, s{sTmp}, v{T0}
        v_mov_b32 v{T0}, 1536
        v_cndmask_b32 v{cS}, 0, v{T0}, s[{sHM}:{sHM+1}]
        s_mov_b32 s{sC}, {hex(C30)}
        s_mov_b32 s{sC+1}, {hex(C30)}''')
    def list_consts(T0, T1, T2, T3):
        a(f'''v_bfe_u32 v{T0}, v{vLane}, 5, 1
        v_bfe_u32 v{T1}, v{vLane}, 3, 1
        v_bfe_u32 v{T2}, v{vLane}, 4, 1
        v_lshlrev_b32 v{aSRC}, 5, v{T0}
        v_lshl_add_u32 v{aSRC}, v{T1}, 3, v{aSRC}
        v_lshl_add_u32 v{aSRC}, v{T2}, 1, v{aSRC}
        v_bfe_u32 v{T3}, v{vLane}, 2, 2
        v_lshl_add_u32 v{aXL}, v{T0}, 2, v{T3}
        v_and_b32 v{T3}, 1, v{T3}
        v_lshl_add_u32 v{aEAT}, v{T3}, 1, v{T2}
        v_and_b32 v{T0}, 1, v{vLane}
        v_lshl_add_u32 v{aEAT}, v{aEAT}, 1, v{T0}
        v_lshl_add_u32 v{aEAT}, v{aEAT}, 1, v{T1}
        v_bfe_u32 v{T0}, v{vLane}, 1, 1
        v_lshl_add_u32 v{aEAT}, v{aEAT}, 1, v{T0}
        v_lshlrev_b32 v{aEAT}, 4, v{aEAT}''')
    TOUCH_T = 118
    def hoisted():
        sQTs = sT
        a(f's_mov_b32 s{sQTs}, {QT}')
        early_consts(U0, U1, U2, TOUCH_T)
        list_consts(U0, U1, U2, TOUCH_T)
        a(f'''v_and_b32 v{U0}, 15, v{vLane}
    v_lshrrev_b32 v{U1}, 4, v{vLane}
    v_lshlrev_b32 v{U1}, 4, v{U1}
    s_lshl_b32 s{sTmp2}, s{sWV}, 6
    v_add_u32 v{U1}, s{sTmp2}, v{U1}
    v_lshl_add_u32 v{PG0}, v{U0}, 9, v{U1}
    v_mul_u32_u24 v{U0}, {QSTR}, v{U0}
    v_add3_u32 v{aTO}, v{U0}, v{U1}, s{sQTs}
    v_bfe_u32 v{U0}, v{vLane}, 3, 2
    v_and_b32 v{U1}, 3, v{vLane}
    v_lshl_add_u32 v{U0}, v{U0}, 2, v{U1}
    v_bfe_u32 v{U1}, v{vLane}, 2, 1
    v_lshl_add_u32 v{U0}, v{U1}, 4, v{U0}
    v_lshlrev_b32 v{U0}, 1, v{U0}
    s_lshl_b32 s{sTmp}, s{sCQ}, 7
    s_add_u32 s{sTmp}, s{sTmp}, {W3L}
    v_add_u32 v{aW3}, s{sTmp}, v{U0}
    v_lshrrev_b32 v{U0}, 1, v0
    v_mul_u32_u24 v{vNOVF}, {CST}, v{U0}''')
    hoisted()
    dpp = ['row_shr:1 row_mask:0xf bank_mask:0xf', 'row_shr:2 row_mask:0xf bank_mask:0xf', 'row_shr:4 row_mask:0xf bank_mask:0xf',
           'row_shr:8 row_mask:0xf bank_mask:0xf', 'row_bcast:15 row_mask:0xa bank_mask:0xf', 'row_bcast:31 row_mask:0xc bank_mask:0xf']
    a(f'''s_cmp_lg_u32 s{sWV}, {SW}
    s_cbranch_scc1 kf_nohist
    s_movk_i32 s{sTmp}, 625
    s_mov_b32 exec_hi, 0x7fffffff''')
    a(f's_waitcnt vmcnt({vm.count_after("edge") + 8})')
    stampat('z')
    if BIAS: a(f's_movk_i32 s{sTmp}, 305\ns_mov_b32 s{sTmp2}, 110015\nv_mov_b32 v{U1}, {-26405848 & 0xffffffff}\nv_mov_b32 v{U2}, 1927')
    for i in range(10):
        if BIAS:
            a(f'''v_mul_u32_u24 v{eB+i}, 104858, v{eD+i}
            v_mad_u32_u24 v{U0}, v{eD+i}, s{sTmp2}, v{U1}
            v_max_i32 v{eB+i}, v{eB+i}, v{U0}
            v_lshrrev_b32 v{eB+i}, 22, v{eB+i}
            v_mad_u32_u24 v{U0}, v{eB+i}, s{sTmp}, v{U2}
            v_mul_u32_u24 v{TOUCH_T}, 40, v{eB+i}''')
        else:
            a(f'''v_mul_u32_u24 v{eB+i}, 429497, v{eD+i}
            v_lshrrev_b32 v{eB+i}, 24, v{eB+i}
            v_mad_u32_u24 v{U0}, v{eB+i}, s{sTmp}, 15''')
        a(f'''v_lshlrev_b32 v{eB+i}, 2, v{eB+i}
        v_add_u32 v{eB+i}, {CNTA}, v{eB+i}''')
        if i == 5: a('s_mov_b32 exec_hi, 0x3fffffff')
        a(f'ds_add_rtn_u32 v{eR+i}, v{eB+i}, v{U3}\nv_lshrrev_b32 v{U0}, {3 if BIAS else 4}, v{U0}')
        if BIAS: a(f'v_min_u32 v{U0}, v{U0}, v{TOUCH_T}')
        a(f'v_sub_u32 v{eD+i}, v{eD+i}, v{U0}')
    a(f'''s_mov_b32 exec_hi, -1
    v_add_u32 v{U0}, {CNTA}, v{vL16}
    ds_read_b128 {vr(UQ,4)}, v{U0}''')
    a(f's_waitcnt vmcnt({vm.count_after("edge") + 5})')
    for i in range(10): a(f'v_lshl_or_b32 v{eS+i}, v{eD+i}, 16, v{eS+i}')
    a(f'''s_waitcnt lgkmcnt(0)
    v_add_u32 v{UQ+5}, v{UQ}, v{UQ+1}
    v_add_u32 v{UQ+6}, v{UQ+5}, v{UQ+2}
    v_add_u32 v{U1}, v{UQ+6}, v{UQ+3}
    v_mov_b32 v{U2}, v{U1}
    s_nop 1''')
    for k, d in enumerate(dpp):
        a(f'v_add_u32_dpp v{U2}, v{U2}, v{U2} {d}' + (' bound_ctrl:0' if k < 4 else '') + '\ns_nop 1')
    a(f'''v_sub_u32 v{UQ+4}, v{U2}, v{U1}
    v_add_u32 v{UQ+7}, v{UQ+6}, v{UQ+4}
    v_add_u32 v{UQ+6}, v{UQ+5}, v{UQ+4}
    v_add_u32 v{UQ+5}, v{UQ}, v{UQ+4}
    ds_write_b128 v{U0}, {vr(UQ+4,4)} offset:1024''')
    for i in range(10): a(f'ds_read_b32 v{eD+i}, v{eB+i} offset:1024')
    a(f'''v_lshl_or_b32 v{UQ+4}, v{UQ}, 16, v{UQ+4}
    v_lshl_or_b32 v{UQ+5}, v{UQ+1}, 16, v{UQ+5}
    v_lshl_or_b32 v{UQ+6}, v{UQ+2}, 16, v{UQ+6}
    v_lshl_or_b32 v{UQ+7}, v{UQ+3}, 16, v{UQ+7}
    v_subrev_u32 v{U0}, {CNTA-TAB}, v{U0}
    s_mov_b32 s{sTmp}, {RIMG}
    s_mov_b32 exec_hi, 0x7fffffff''')
    a(vm.wait('edge'))
    for i in range(10):
        if i == 5: a('s_mov_b32 exec_hi, 0x3fffffff')
        a(f'''s_waitcnt lgkmcnt({min(9, 9 - i + 2 * i)})
        v_add_u32 v{eD+i}, v{eD+i}, v{eR+i}
        v_mad_u32_u24 v{eD+i}, v{eD+i}, 12, s{sTmp}
        ds_write2_b32 v{eD+i}, v{eA+2*i}, v{eA+2*i+1} offset1:1
        ds_write_b32 v{eD+i}, v{eS+i} offset:8''')
    a(f'''s_mov_b32 exec_hi, -1
    ds_write_b128 v{U0}, {vr(UQ+4,4)}
    s_setprio 0''')
    a.label('kf_nohist')
    for i in range(NPRE): stage(i)
    for i in range(NPRE, NPRE2): stage(i)
    stampat('H')
    a(vm.wait('x') + ' lgkmcnt(0)')
    stampat('I')
    a('s_barrier')
    stampat('c')
    axr = [f'ds_read_b128 {vr(AX+(s_*3+rt)*4,4)}, v{aA+(s_&3)} offset:{rt*8192+(s_>>2)*256}' for s_ in range(8) for rt in range(3)]
    a(f'''s_or_b32 s{sTmp}, s2, s{sWV}
    s_cbranch_scc1 kf_noset
    v_mov_b32 v{U0}, 1
    v_mov_b32 v{U1}, 0
    s_mov_b64 exec, 1
    buffer_store_dword v{U0}, v{U1}, s[{sD}:{sD+3}], 0 offen sc1
    s_mov_b64 exec, -1''')
    a.label('kf_noset')
    if opt.get('xcdiag'):
        a(f'''s_getreg_b32 s90, hwreg(HW_REG_XCC_ID, 0, 4)
        s_add_u32 s90, s90, 1
        s_cmp_ge_u32 s2, 8
        s_cbranch_scc1 kf_xd1
        s_lshl_b32 s91, s2, 2
        s_add_u32 s91, s91, 32
        v_mov_b32 v{U0}, s90
        v_mov_b32 v{U1}, 0
        buffer_store_dword v{U0}, v{U1}, s[{sD}:{sD+3}], s91 offen sc1''')
        a.label('kf_xd1')
    if not opt.get('noprioA'): a('s_setprio 2')
    axr = [f'ds_read_b128 {vr(AX+(s_*3+rt)*4,4)}, v{aA+(s_&3)} offset:{rt*8192+(s_>>2)*256}' for s_ in range(8) for rt in range(3)]
    AXE = not opt.get('axlate')
    a(f'''v_lshlrev_b32 v{U3}, 4, v0
    v_add_u32 v{U0}, {TAB}, v{U3}
    ds_read_b128 {vr(UQ,4)}, v{U0}
    ds_read_b128 {vr(UQ+4,4)}, v{U0} offset:8192''')
    RSA = opt.get('rs2')
    def rstores():
        a(f'''s_mul_i32 s{sT}, s2, {CST}
        s_add_u32 s{sTbase}, s{sT}, 8192
        s_cmp_lg_u32 s{sWV}, 0
        s_cbranch_scc1 kf_nost2
        s_mov_b32 exec_hi, 0
        buffer_store_dwordx4 {vr(UQ+4,4)}, v{U3}, {WS}, s{sTbase} offen{CS}
        s_mov_b32 exec_hi, -1''')
        a.label('kf_nost2')
        a(f'buffer_store_dwordx4 {vr(UQ,4)}, v{U3}, {WS}, s{sT} offen{CS}')
        vm.issue('cells')
    RSF = opt.get('rsfirst')
    if AXE:
        for x in axr[:12]: a(x)
    if RSF:
        a('s_waitcnt lgkmcnt(12)')
        rstores()
    LA = int(opt.get('la', 3))
    for i in range(NPRE2, LA): stage(i)
    stampat('A')
    if not RSA and not RSF:
        a('s_waitcnt lgkmcnt(0)')
        rstores()
    else: a('s_waitcnt lgkmcnt(6)')
    stampat('E')
    a(f'''s_cmp_lg_u32 s{sWV}, 0
    s_cbranch_scc1 kf_nodb
    v_mov_b32 v{vDB}, 0
    buffer_load_dword v{vDB}, v{vDB}, s[{sD}:{sD+3}], 0 offen sc1''')
    a.label('kf_nodb')
    a(f'''s_cmp_lg_u32 s{sWV}, 7
    s_cbranch_scc1 kf_norl
    s_cmp_ge_u32 s2, 128
    s_cbranch_scc1 kf_norl
    v_lshrrev_b32 v{U0}, 4, v{vLane}
    v_lshlrev_b32 v{U0}, 11, v{U0}
    v_bfe_u32 v{U1}, v{vLane}, 2, 2
    v_lshl_add_u32 v{U0}, v{U1}, 4, v{U0}
    v_and_b32 v{U1}, 3, v{vLane}
    v_lshl_add_u32 v{U0}, v{U1}, 1, v{U0}
    s_bfe_u32 s{sTmp}, s2, 0x30001
    s_lshl_b32 s{sTmp2}, s{sTmp}, 14
    s_add_u32 s{sTmp2}, s{sTmp2}, {256*512}
    s_bfe_u32 s{sTmp}, s2, 0x30004
    s_lshl_b32 s{sTmp}, s{sTmp}, 6
    s_add_u32 s{sTmp2}, s{sTmp2}, s{sTmp}
    s_and_b32 s{sTmp}, s2, 1
    s_lshl_b32 s{sTmp}, s{sTmp}, 3
    s_add_u32 s{sTmp2}, s{sTmp2}, s{sTmp}
    s_add_u32 s{sTmp}, s{sTmp2}, 8192''')
    for e in range(8):
        a(f'buffer_load_ushort v{RL+e}, v{U0}, s[{sU}:{sU+3}], s{sTmp if e >> 2 else sTmp2} offen offset:{(e&3)*512}')
    a.label('kf_norl')
    stampat('B')
    def breads(i, nowait=False):
        if not nowait: a(vm.wait(f'st{i}'))
        for ks in range(2):
            for c in range(2):
                for t_ in range(2):
                    a(f'ds_read_b64_tr_b16 {vr(BF+(i&1)*16+ks*8+c*4+t_*2,2)}, v{aB+c} offset:{(i%3)*4096+(32*ks+4*t_)*64}')
    def compute(i, nowait=False, nostage=False, noread=False):
        a('s_waitcnt lgkmcnt(0)')
        order = [(ks, rt, c) for ks in range(2) for rt in range(3) for c in range(2)]
        for n_, (ks, rt, c) in enumerate(order):
            s_ = (2 * i + ks) & 7
            d = PD + (rt * 2 + c) * 4
            cin = '0' if s_ == 0 else vr(d, 4)
            a(f'v_mfma_f32_16x16x32_bf16 {vr(d,4)}, {vr(BF+(i&1)*16+ks*8+c*4,4)}, {vr(AX+(s_*3+rt)*4,4)}, {cin}')
            if n_ == 1 and i + 1 < 8 and not noread: breads(i + 1, nowait)
            if n_ == 7 and i + LA < 8 and not nostage: stage(i + LA)
    def poll(off, lab, PR):
        a(f'''s_and_b32 s{sTmp}, s2, 7
        s_lshl_b32 s{sTmp}, s{sTmp}, 10
        s_add_u32 s{sTmp}, s{sTmp}, {off - WS_CELLS}
        s_mov_b32 s{sPoll}, {POLL_LIMIT}''')
        a.label(lab)
        a(f'''buffer_load_dwordx4 {vr(PR,4)}, v{vL16}, {WS}, s{sTmp} offen sc1
        s_waitcnt vmcnt(0)
        v_and_b32 v{PR}, v{PR}, v{PR+1}
        v_and_b32 v{PR+2}, v{PR+2}, v{PR+3}
        v_and_b32 v{PR}, v{PR}, v{PR+2}
        v_cmp_eq_u32 vcc, 1, v{PR}
        s_cmp_eq_u64 vcc, -1
        s_cbranch_scc1 {lab}_ok
        s_sleep 1
        s_sub_u32 s{sPoll}, s{sPoll}, 1
        s_cbranch_scc0 {lab}''')
        a.label(lab + '_ok')
    def tile_out(toP):
        a(f'''s_mov_b32 s{sSv}, {hex(f2u(-LOG2E))}
        s_mov_b32 s{sSv+1}, {hex(f2u(-LOG2E))}
        s_lshl_b32 s{sTmp}, s{sN0}, 9
        s_nop 4''')
        for rt in range(3):
            b = PD + rt * 8; o = UQ + 4 * (rt & 1) if toP else b
            for h in range(4): a(f'v_pk_mul_f32 {pr(b+2*h)}, {pr(b+2*h)}, s[{sSv}:{sSv+1}]')
            for h in range(4): a(f'v_cvt_pk_bf16_f32 v{b+h}, v{b+2*h}, v{b+2*h+1}')
            if rt == 2: a('s_mov_b32 exec_lo, 0x00ff00ff\ns_mov_b32 exec_hi, 0x00ff00ff')
            if toP:
                a(f'buffer_store_dwordx4 {vr(b,4)}, v{PG0}, s[{sPw}:{sPw+3}], s{sTmp} offen{CS}')
                if rt < 2: a(f's_add_u32 s{sTmp}, s{sTmp}, 8192')
                vm.issue('pst')
            else: a(f'ds_write_b128 v{aTO}, {vr(b,4)} offset:{16*rt*QSTR}')
        a('s_mov_b64 exec, -1')
    def signal(off, lab):
        a(f'''s_cmp_lg_u32 s{sWV}, 0
        s_cbranch_scc1 {lab}
        v_lshlrev_b32 v{TOUCH}, 10, v{vLane}
        v_mov_b32 v{TOUCH+1}, 1
        s_lshl_b32 s{sTmp}, s2, 2
        s_add_u32 s{sTmp}, s{sTmp}, {off - WS_CELLS}
        s_mov_b64 exec, 0xff
        buffer_store_dword v{TOUCH+1}, v{TOUCH}, {WS}, s{sTmp} offen sc1
        s_mov_b64 exec, -1''')
        a.label(lab)
    if not AXE:
        for x in axr[:12]: a(x)
        a('s_waitcnt lgkmcnt(6)')
    for ct in range(2):
        for k in range(4): a(f'ds_read_u16 v{W3+4*ct+k}, v{aW3} offset:{k*512+ct*64}')
    a('s_waitcnt lgkmcnt(2)')
    for x in axr[12:]: a(x)
    a('s_waitcnt lgkmcnt(6)')
    stampat('C')
    breads(0)
    stampat('p')
    if RSA:
        a('s_waitcnt lgkmcnt(0)')
        stage(3)
        rstores()
    compute(0, nostage=bool(RSA))
    stampat('d')
    compute(1); stampat('r')
    a(f's_mov_b32 s{sTmp}, {hex(f2u(-LOG2E))}')
    for k in range(8): a(f'v_lshlrev_b32 v{W3+k}, 16, v{W3+k}\nv_mul_f32 v{W3+k}, s{sTmp}, v{W3+k}')
    for p in range(4): a(f'v_cvt_pk_bf16_f32 v{W3+p}, v{W3+2*p}, v{W3+2*p+1}')
    def sigA(extra=''):
        a(vm.wait('cells'))
        a(f'''s_cmp_lg_u32 s{sWV}, 0
    s_cbranch_scc1 kf_initok
    s_mov_b32 s{sPoll}, {POLL_LIMIT}''')
        a.label('kf_initpoll')
        a(f'''v_readfirstlane_b32 s{sTmp}, v{vDB}
    s_cmp_lg_u32 s{sTmp}, 0
    s_cbranch_scc1 kf_initok
    v_mov_b32 v{vDB}, 0
    s_sleep 2
    buffer_load_dword v{vDB}, v{vDB}, s[{sD}:{sD+3}], 0 offen sc1
    s_waitcnt vmcnt(0)
    s_sub_u32 s{sPoll}, s{sPoll}, 1
    s_cbranch_scc0 kf_initpoll''')
        a.label('kf_initok')
        a(extra + 's_barrier')
        signal(WS_FLAG, 'kf_sigA')
    if not RSA: sigA()
    stampat('k')
    a(f'''s_cmp_lt_u32 s{sWV}, 4
    s_cbranch_scc1 kf_nt2
    s_and_b32 s{sTmp}, s2, 0xf8
    s_lshl_b32 s{sTmp}, s{sTmp}, 9
    s_lshl_b32 s{sTmp2}, s{sCQ}, 10
    s_add_u32 s{sTmp}, s{sTmp}, s{sTmp2}
    buffer_load_dwordx4 {vr(66,4)}, v{vL16}, s[{sU}:{sU+3}], s{sTmp} offen''')
    a.label('kf_nt2')
    compute(2); stampat('s')
    S6 = not opt.get('s6early')
    compute(3, nostage=S6, noread=bool(RSA)); stampat('t')
    a(f'''s_cmp_lg_u32 s{sWV}, 7
    s_cbranch_scc1 kf_norl2
    s_cmp_ge_u32 s2, 128
    s_cbranch_scc1 kf_norl2''')
    for p in range(4): a(f'v_lshl_or_b32 v{RL+p}, v{RL+2*p+1}, 16, v{RL+2*p}')
    a(f'''s_and_b32 s{sTmp2}, s2, 15
    s_cmp_lt_u32 s{sTmp2}, 12
    s_cbranch_scc1 kf_rlring
    s_lshl_b32 s{sTmp}, s2, 10
    s_add_u32 s{sTmp}, s{sTmp}, {WS_WF - WS_CELLS}
    buffer_store_dwordx4 {vr(RL,4)}, v{vL16}, {WS}, s{sTmp} offen sc1
    s_branch kf_norl2''')
    a.label('kf_rlring')
    a(f'''s_add_u32 s{sS}, s{sPw}, {N*512}
    s_addc_u32 s{sS+1}, s{sPw+1}, 0
    s_mov_b32 s{sS+2}, {192*512}
    s_mov_b32 s{sS+3}, 0x20000
    s_bfe_u32 s{sTmp}, s2, 0x10006
    s_mul_i32 s{sTmp}, s{sTmp}, 96
    s_lshr_b32 s{sTmp3}, s{sTmp2}, 2
    s_lshl_b32 s{sTmp3}, s{sTmp3}, 5
    s_add_u32 s{sTmp}, s{sTmp}, s{sTmp3}
    s_and_b32 s{sTmp3}, s{sTmp2}, 2
    s_lshl_b32 s{sTmp3}, s{sTmp3}, 2
    s_add_u32 s{sTmp}, s{sTmp}, s{sTmp3}
    s_and_b32 s{sTmp2}, s{sTmp2}, 1
    s_lshl_b32 s{sTmp3}, s{sTmp2}, 1
    s_add_u32 s{sTmp}, s{sTmp}, s{sTmp3}
    s_lshl_b32 s{sTmp}, s{sTmp}, 9
    s_bfe_u32 s{sTmp3}, s2, 0x20004
    s_lshl_b32 s{sTmp3}, s{sTmp3}, 7
    s_add_u32 s{sTmp}, s{sTmp}, s{sTmp3}
    s_lshl_b32 s{sTmp2}, s{sTmp2}, 6
    v_and_b32 v{U0}, 7, v{vLane}
    v_lshrrev_b32 v{U1}, 4, v{vLane}
    v_xor_b32 v{U0}, v{U0}, v{U1}
    v_lshlrev_b32 v{U0}, 4, v{U0}
    v_xor_b32 v{U0}, s{sTmp2}, v{U0}
    v_lshl_add_u32 v{U0}, v{aSRC}, 8, v{U0}
    buffer_store_dwordx4 {vr(RL,4)}, v{U0}, s[{sS}:{sS+3}], s{sTmp} offen sc1''')
    a.label('kf_norl2')
    tile_out(True)
    a('s_setprio 0' if not opt.get('noprioA') else 's_nop 1')
    if RSA:
        sigA()
        breads(4)
    if S6: stage(6)
    stampat('l')
    def rec_loads(tab, t0, t1, lab):
        a(f'''v_and_b32 v{t1}, 1, v0
        v_and_b32 v{t0}, 0xffff, v{tab}
        v_add_u32 v{t0}, v{t0}, v{t1}
        v_mad_u32_u24 v{t0}, v{t0}, 12, v{vNOVF}
        v_lshrrev_b32 v{tab}, 16, v{tab}
        v_sub_u32 v{t1}, v{tab}, v{t1}
        v_add_u32 v{t1}, 1, v{t1}
        v_lshrrev_b32 v{t1}, 1, v{t1}''')
        for i in range(8): a(f'v_cmp_lt_u32 s[{sMask+2*i}:{sMask+2*i+1}], {i}, v{t1}')
        a(f'v_cmp_lt_u32 s[{sOv}:{sOv+1}], 8, v{t1}')
        for i in range(8):
            a(f'''s_mov_b64 exec, s[{sMask+2*i}:{sMask+2*i+1}]
            s_cbranch_execz {lab}
            buffer_load_dwordx3 {vr(REC+4*i,3)}, v{t0}, {WS}, 0 offen offset:{1024+24*i}{LD}''')
        a.label(lab)
        a('s_mov_b64 exec, -1')
    srd(a, sO, 16, N * 512)
    compute(4); stampat('u')
    compute(5, noread=S6); stampat('v')
    a(f's_cmp_lg_u32 s{sWV}, 0\ns_cbranch_scc1 kf_pollA_ok')
    poll(WS_FLAG, 'kf_pollA', UQ)
    a(vm.wait('st7') + '\ns_barrier')
    a(f'''s_lshl_b32 s{sTmp}, s0, 2
    buffer_load_dword v{vDB}, v{vNOVF}, {WS}, s{sTmp} offen{LD}''')
    vm.issue('tab')
    signal(WS_FLAG + 8192, 'kf_sigB')
    stampat('o')
    if S6: breads(6, True)
    compute(6, nowait=True); compute(7); stampat('x')
    for i in range(4): a(f'v_mov_b32 v{XR+8+i}, v{vW+i}')
    a(f'''v_and_b32 v{U0}, 3, v{vLane}
    v_lshlrev_b32 v{U0}, 3, v{U0}
    v_sub_u32 v{aB}, v{aB}, v{U0}
    v_lshlrev_b32 v{U0}, 1, v{U0}
    v_xor_b32 v{aB}, v{aB}, v{U0}''')
    a(vm.wait('tab'))
    rec_loads(vDB, TOUCH, TOUCH + 1, 'kf_recend')
    stampat('w')
    def w1reads(i, reg):
        for ks in range(2):
            for c in range(2):
                for t_ in range(2):
                    a(f'ds_read_b64_tr_b16 {vr(W1F[((i-8)*2+ks)*2+c]+2*t_,2)}, v{reg} offset:{(i%3)*4096+(32*ks+4*t_)*64+8*c}')
    tile_out(False)
    a(f'v_mov_b32 v{B2A}, v{W3}\nv_mov_b32 v{B2A+1}, v{W3+1}\nv_mov_b32 v{B2B}, v{W3+2}\nv_mov_b32 v{B2B+1}, v{W3+3}')
    stampat('n')
    w1pos = opt.get('w1pos', 'r,g,r').split(',')
    NN_ = sum(1 for x in w1pos if x == 'n')
    for i in (9, 10, 8):
        if w1pos[i - 8] == 'n': stage(i)
    a(f'''s_sub_u32 s{sP}, s{sPw}, 3072
    s_subb_u32 s{sP+1}, s{sPw+1}, 0
    s_or_b32 s{sP+1}, s{sP+1}, {512 << 16}
    s_mov_b32 s{sP+2}, {0 if opt.get('nogather') else N + 192}
    s_mov_b32 s{sP+3}, 0x20000
    v_mov_b32 v{TQ}, 0
    v_mov_b32 v{TQ+1}, 0
    v_mov_b32 v{TQ+2}, 0
    v_mov_b32 v{TQ+3}, 0
    s_mov_b32 s{sHeavy}, 0
    s_mov_b32 s{sB}, 0
    s_mov_b32 s{sRdone}, 0
    s_mov_b32 s{sAcc}, 0
    s_mov_b32 s{sSafe}, {1 if opt.get('allsafe') else 0}
    s_mov_b32 s{sEAT}, {EAT}
    s_cmp_lg_u32 s{sWV}, 7
    s_cbranch_scc1 k2_nooh
    v_add_u32 v{T0}, {QT + 40*QSTR}, v{vL16}
    ds_write_b128 v{T0}, {vr(TQ,4)}
    ds_write_b128 v{T0}, {vr(TQ,4)} offset:1024
    ds_write_b128 v{T0}, {vr(TQ,4)} offset:2048
    ds_write_b128 v{T0}, {vr(TQ,4)} offset:3072
    v_mul_u32_u24 v{T0}, {QSTR}, v{vLane}
    v_mov_b32 v{T2}, 0x3f80
    v_add_u32 v{T0}, {QT+512}, v{T0}
    v_lshl_add_u32 v{T1}, v{vLane}, 1, v{T0}
    s_mov_b32 exec_hi, 0xff
    ds_write_b128 v{T0}, {vr(TQ,4)}
    ds_write_b128 v{T0}, {vr(TQ,4)} offset:16
    ds_write_b128 v{T0}, {vr(TQ,4)} offset:32
    ds_write_b128 v{T0}, {vr(TQ,4)} offset:48
    ds_write_b128 v{T0}, {vr(TQ,4)} offset:64
    ds_write_b16 v{T1}, v{T2}
    s_mov_b32 exec_hi, -1''')
    a.label('k2_nooh')
    a(f's_cmp_lg_u32 s{sWV}, 0\ns_cselect_b32 s{sBok}, 1, 0\ns_branch k2_first')
    a.label('k2_batch')
    for i in range(4): a(f'v_mov_b32 v{TQ+i}, 0')
    list_prefill(TQ, DL4, T0, T1)
    list_consts(T0, T1, T2, T3)
    a('s_waitcnt lgkmcnt(0)\ns_barrier')
    a.label('k2_first')
    stampat(1)
    a(f'''v_lshrrev_b32 v{T2}, 5, v{vLane}
    v_and_b32 v{T3}, 31, v{vLane}
    v_lshlrev_b32 v{T0}, 3, v{T2}
    v_sub_u32 v{T0}, v{T3}, v{T0}
    v_mov_b32 v{T1}, 0x3f80
    v_and_b32 v{aQ}, 1, v{T0}
    v_lshlrev_b32 v{aQ}, 4, v{aQ}
    v_lshlrev_b32 v{T1}, v{aQ}, v{T1}
    v_lshrrev_b32 v{T0}, 1, v{T0}''')
    for k, reg in enumerate([I0, I0+1, I0+2, I0+3, I1, I1+1, I1+2, I1+3]):
        c = k if k < 4 else k + 4
        m = 'vcc' if k % 2 == 0 else f's[{sSv}:{sSv+1}]'
        a(f'v_cmp_eq_u32 {m}, {c}, v{T0}')
        if k:
            pk, preg = k - 1, [I0, I0+1, I0+2, I0+3, I1, I1+1, I1+2, I1+3][k-1]
            a('s_nop 0')
            a(f'v_cndmask_b32 v{preg}, 0, v{T1}, ' + ('vcc' if pk % 2 == 0 else f's[{sSv}:{sSv+1}]'))
    a(f'''s_nop 0
    v_cndmask_b32 v{I1+3}, 0, v{T1}, s[{sSv}:{sSv+1}]
    s_mov_b32 s{sQs}, {QSTR//4}
    s_lshl_b32 s{sOs}, s{sG}, 4
    s_lshl_b32 s{sTmp}, s{sCQ}, 7
    s_sub_u32 s{sOs}, s{sOs}, s{sTmp}
    s_add_u32 s{sOs}, s{sOs}, 512''')
    for d in range(4):
        a(f'v_mov_b32 v{IDX1+2*d+1}, v{IDX+2*d+1}\nv_mov_b32 v{IDX2+2*d+1}, v{IDX+2*d+1}')
    a(f'v_mov_b32 v{T3}, 1')
    stampat('e')
    a(f's_waitcnt vmcnt({4 * NN_})')
    stampat(2)
    for i in range(8):
        a(f'''s_mov_b64 exec, s[{sMask+2*i}:{sMask+2*i+1}]
        s_cbranch_execz kf_histend
        v_lshrrev_b32 v{DL4+i}, 14, v{REC+4*i+2}
        v_add_u32 v{T1}, {CNT}, v{DL4+i}
        ds_add_rtn_u32 v{RK+i}, v{T1}, v{T3}''')
    a(f'''s_mov_b64 exec, s[{sOv}:{sOv+1}]
    v_mov_b32 v{T1}, {CNT + 252}
    ds_add_u32 v{T1}, v{T3}''')
    a.label('kf_histend')
    a(f'''s_mov_b64 exec, -1
    v_lshlrev_b32 v{T0}, 2, v{vLane}
    v_add_u32 v{T0}, {CNT}, v{T0}
    s_waitcnt lgkmcnt(0)
    s_nop 0''')
    def w1stage(pos):
        for i in (8, 9, 10):
            if w1pos[i - 8] == pos:
                a(f's_or_b32 s{sTmp2}, s{sHeavy}, s{sRdone}\ns_cbranch_scc1 kf_nost{i}')
                stage(i)
                a.label(f'kf_nost{i}')
    w1stage('g')
    stampat('f')
    a('s_barrier')
    stampat('g')
    a(f'ds_read_b32 v{T1}, v{T0}\nv_cmp_gt_u32 vcc, 40, v{vLane}')
    w1stage('r')
    a(f'''s_cmp_lg_u32 s{sBok}, 0
    s_cbranch_scc1 kf_nopk1
    s_and_b32 s{sTmp}, s2, 7
    s_lshl_b32 s{sTmp}, s{sTmp}, 10
    s_add_u32 s{sTmp}, s{sTmp}, {WS_FLAG + 8192 - WS_CELLS}
    buffer_load_dwordx4 {vr(IDX3,4)}, v{vL16}, {WS}, s{sTmp} offen sc1''')
    a.label('kf_nopk1')
    dpp = ['row_shr:1 row_mask:0xf bank_mask:0xf', 'row_shr:2 row_mask:0xf bank_mask:0xf', 'row_shr:4 row_mask:0xf bank_mask:0xf',
           'row_shr:8 row_mask:0xf bank_mask:0xf', 'row_bcast:15 row_mask:0xa bank_mask:0xf', 'row_bcast:31 row_mask:0xc bank_mask:0xf']
    a(f'''s_waitcnt lgkmcnt(0)
    v_readlane_b32 s{sT1}, v{T1}, 63
    v_add_u32 v{T1}, 3, v{T1}
    v_lshrrev_b32 v{T1}, 2, v{T1}
    v_cndmask_b32 v{T1}, 0, v{T1}, vcc
    v_mov_b32 v{T2}, v{T1}
    s_lshl_b32 s{sTmp3}, s{sT1}, 8
    s_nop 0''')
    for k, d in enumerate(dpp):
        a(f'v_add_u32_dpp v{T2}, v{T2}, v{T2} {d}' + (' bound_ctrl:0' if k < 4 else ''))
        a('s_nop 1' if k < 5 else 's_nop 0')
    a(f'''v_readlane_b32 s{sQt}, v{T2}, 63
    v_sub_u32 v{T1}, v{T2}, v{T1}
    v_add_u32 v{T2}, 7, v{T1}
    v_lshrrev_b32 v{T2}, 3, v{T2}
    s_add_u32 s{sTmp}, s{sQt}, 7
    v_sub_u32 v{T0}, s{sTmp}, v{T1}
    v_lshrrev_b32 v{T0}, 3, v{T0}
    v_add_u32 v{T2}, v{T2}, v{T0}
    v_lshlrev_b32 v{T0}, 1, v{T1}
    s_add_u32 s{sTmp}, s{sQt}, {int(opt.get('bias', 0))}
    v_sad_u32 v{T0}, v{T0}, s{sTmp}, 0
    v_lshl_add_u32 v{T2}, v{T2}, 5, v{T0}
    v_subrev_u32 v{T0}, 8, v{vLane}
    v_lshl_add_u32 v{T2}, v{T2}, 6, v{vLane}
    v_cmp_gt_u32 vcc, 25, v{T0}
    s_nop 1
    v_cndmask_b32 v{T2}, -1, v{T2}, vcc
    s_nop 1''')
    for k, d in enumerate(dpp):
        a(f'v_min_u32_dpp v{T2}, v{T2}, v{T2} {d}')
        a('s_nop 1' if k < 5 else 's_nop 0')
    a(f'''v_readlane_b32 s{sSplit}, v{T2}, 63
    s_and_b32 s{sSplit}, s{sSplit}, 63
    s_cmp_lg_u32 s{sHeavy}, 0
    s_cselect_b32 s{sSplit}, 20, s{sSplit}
    s_nop 0
    v_readlane_b32 s{sTmp}, v{T1}, s{sSplit}
    v_cmp_le_u32 vcc, s{sSplit}, v{vLane}
    s_add_u32 s{sT0}, s{sTmp}, 7
    s_lshr_b32 s{sT0}, s{sT0}, 3
    s_sub_u32 s{sT1}, s{sQt}, s{sTmp}
    s_add_u32 s{sT1}, s{sT1}, 7
    s_lshr_b32 s{sT1}, s{sT1}, 3
    s_add_u32 s{sTmp2}, s{sT0}, s{sT1}
    s_add_u32 s{sTmp2}, s{sTmp2}, s{sTmp3}
    s_cmp_le_u32 s{sTmp2}, {NT}
    s_cbranch_scc1 k2_fits
    s_mov_b32 s{sHeavy}, 1
    s_branch k2_hentry''')
    a.label('k2_fits')
    stampat('h')
    a(f'''s_lshl_b32 s{sTmp2}, s{sT0}, 3
    s_sub_u32 s{sTmp2}, s{sTmp2}, s{sTmp}
    v_mov_b32 v{T2}, s{sTmp2}
    v_cndmask_b32 v{T2}, 0, v{T2}, vcc
    v_add_lshl_u32 v{T1}, v{T1}, v{T2}, 2''')
    for i in range(8):
        if i in (2, 4, 6): a(f's_cmp_eq_u64 s[{sMask+2*i}:{sMask+2*i+1}], 0\ns_cbranch_scc1 kf_bpend')
        a(f'ds_bpermute_b32 v{TQ+i}, v{DL4+i}, v{T1}')
    a.label('kf_bpend')
    a(f'''s_cmp_eq_u32 s{sG}, 0
    s_cselect_b32 s{sT}, s{sT0}, s{sT1}
    s_cselect_b32 s{sTbase}, 0, s{sT0}
    s_cselect_b32 s{sTmp2}, 0, 192
    s_lshl_b32 s{sT0}, s{sT0}, 5
    s_lshl_b32 s{sTmp}, s{sTbase}, 6
    s_add_u32 s{sTmp}, s{sTmp}, s{sTmp2}
    s_add_u32 s{sTmp}, s{sTmp}, {SRC}
    v_add_u32 v{aSRC}, s{sTmp}, v{aSRC}
    s_lshl_b32 s{sTmp}, s{sTbase}, 9
    s_add_u32 s{sTmp}, s{sTmp}, {EAT}
    v_add_u32 v{aEAT}, s{sTmp}, v{aEAT}
    v_mov_b32 v{vX}, {ZR}
    v_cndmask_b32 v{aEAT}, v{vX}, v{aEAT}, s[{sHM}:{sHM+1}]
    s_lshl_b32 s{sTmp}, s{sTbase}, 3
    s_add_u32 s{sTmp}, s{sTmp}, {XL}
    v_add_u32 v{aXL}, s{sTmp}, v{aXL}
    v_mov_b32 v{vX}, {SRC}
    v_mov_b32 v{aQ}, {SRC+192}''')
    a(f'''s_lshl_b32 s{sTmp}, s{sT1}, 5
    v_mov_b32 v{T0}, s{sTmp}
    v_cmp_le_u32 vcc, 96, v0
    v_add_u32 v{T1}, s{sT0}, v0
    v_add_u32 v{T2}, {N}, v0
    v_cndmask_b32 v{T0}, 0, v{T0}, vcc
    v_cmp_gt_u32 vcc, 192, v0
    v_add_lshl_u32 v{T0}, v{T0}, v{T1}, 1
    v_add_u32 v{T0}, {SRC}, v{T0}
    s_and_saveexec_b64 s[{sSv}:{sSv+1}], vcc
    ds_write_b16 v{T0}, v{T2}
    s_mov_b64 exec, -1''')
    a(f'v_mov_b32 v{S}, 0x3f80\nv_mov_b32 v{S+1}, 0\ns_mov_b32 s{sTmp}, {XL}\ns_waitcnt lgkmcnt(0)')
    for i in range(8):
        er = REC + 4 * i
        a(f'''s_mov_b64 exec, s[{sMask+2*i}:{sMask+2*i+1}]
        s_cbranch_execz kf_scend
        v_add_u32 v{RK+i}, v{RK+i}, v{TQ+i}
        v_cmp_gt_u32 vcc, s{sT0}, v{RK+i}
        v_lshrrev_b32 v{T2}, 2, v{RK+i}
        v_and_b32 v{T0}, 12, v{RK+i}
        v_cndmask_b32 v{T1}, v{aQ}, v{vX}, vcc
        v_add_u32 v{T2}, s{sTmp}, v{T2}
        v_lshl_add_u32 v{T1}, v{RK+i}, 1, v{T1}
        v_lshlrev_b32 v{T0}, 2, v{T0}
        ds_write_b16 v{T1}, v{er+2}
        ds_write_b8 v{T2}, v{DL4+i}
        v_lshl_add_u32 v{RK+i}, v{RK+i}, 4, s{sEAT}
        v_lshlrev_b64 {vr(er+2,2)}, v{T0}, {vr(S,2)}
        ds_write_b128 v{RK+i}, {vr(er,4)}''')
    a.label('kf_scend')
    a('s_mov_b64 exec, -1')
    a(f's_waitcnt vmcnt(0)\ns_cmp_lg_u32 s{sRdone}, 0\ns_cbranch_scc1 kf_now1\ns_waitcnt lgkmcnt(4)')
    w1reads(9, aB)
    a.label('kf_now1')
    a(f'''s_cmp_lg_u32 s{sBok}, 0
    s_cbranch_scc1 kf_nopeek
    v_and_b32 v{IDX3}, v{IDX3}, v{IDX3+1}
    v_and_b32 v{IDX3+2}, v{IDX3+2}, v{IDX3+3}
    v_and_b32 v{IDX3}, v{IDX3}, v{IDX3+2}
    v_cmp_eq_u32 vcc, 1, v{IDX3}
    s_cmp_eq_u64 vcc, -1
    s_cbranch_scc0 kf_nopeek
    {INV}
    s_mov_b32 s{sBok}, 1''')
    a.label('kf_nopeek')
    a(f's_cmp_lg_u32 s{sBok}, 0\ns_cbranch_scc1 kf_bdone')
    poll(WS_FLAG + 8192, 'kf_pollB', TQ + 4)
    a(f'{INV}\ns_mov_b32 s{sBok}, 1\ns_waitcnt vmcnt(0)')
    a.label('kf_bdone')
    for d in range(4): a(f'v_mov_b32 v{IDX3+2*d+1}, v{IDX+2*d+1}')
    a(f'v_mov_b32 v{T3}, v{aB}\ns_waitcnt lgkmcnt(0)\ns_barrier')
    vm.ops = []
    stampat(3)
    if opt.get('prio3'): a('s_setprio 2')
    DOFF = [0, 4, 16, 20]
    def idx_reads(base, toff):
        return [f'ds_read_u16 v{base+2*d}, v{aSRC} offset:{toff*64+DOFF[d]}' for d in range(4)]
    def dma_ins(base, d, tag):
        vm.issue(tag)
        return f'buffer_load_dwordx4 {vr(base+2*d,2)}, s[{sP}:{sP+3}], 0 idxen offen offset:{d*1024} lds'
    for x in idx_reads(IDX1, 0) + idx_reads(IDX2, 1): a(x)
    a(f's_mov_b32 m0, s{sRing}\ns_waitcnt lgkmcnt(4)')
    for d in range(4): a(dma_ins(IDX1, d, 'dma0'))
    a(f's_cmp_lg_u32 s{sRdone}, 0\ns_cbranch_scc1 kf_now2')
    w1reads(10, T3)
    a('s_waitcnt lgkmcnt(4)')
    w1reads(8, T3)
    a('s_waitcnt lgkmcnt(0)')
    sv_ = list(vm.ops)
    stage(11)
    vm.ops = sv_
    a.label('kf_now2')
    D1 = int(opt.get('d1pos', 2))
    a('s_waitcnt lgkmcnt(0)')
    def dma1():
        a(f's_add_u32 m0, s{sRing}, 4096\ns_nop 0')
        for d in range(4): a(dma_ins(IDX2, d, 'dma1'))
    if D1 < 0: dma1()
    if opt.get('prio3'): a('s_setprio 0')
    stampat(4)
    def gemm(acc, frag, addr, wregs, first, waitv, hook=None):
        def rd(s):
            for rt in range(3):
                f = frag + (s & 1) * 12 + rt * 4
                a(f'ds_read_b128 {vr(f,4)}, v{addr+(s&3)} offset:{rt*8192+(s>>2)*256}')
        rd(0)
        for s in range(8):
            if s + 1 < 8:
                rd(s + 1); w = 'lgkmcnt(3)'
            else: w = 'lgkmcnt(0)'
            wv = waitv(s)
            a((wv + ' ' + w) if wv else 's_waitcnt ' + w)
            if hook: hook(s)
            for rt in range(3):
                for c in range(2):
                    d = acc[rt * 2 + c]; f = frag + (s & 1) * 12 + rt * 4
                    cin = '0' if (first and s == 0) else vr(d, 4)
                    a(f'v_mfma_f32_16x16x32_bf16 {vr(d,4)}, {vr(wregs(s*2+c),4)}, {vr(f,4)}, {cin}')
    def xaddr(dst, t0, t1):
        a(f'''v_and_b32 v{t0}, 15, v{vLane}
        v_lshrrev_b32 v{t1}, 4, v{vLane}
        v_xor_b32 v{t1}, v{t1}, v{t0}
        v_lshlrev_b32 v{t1}, 4, v{t1}
        v_lshl_add_u32 v{t0}, v{t0}, 9, v{t1}
        v_add_u32 v{dst}, {XT}, v{t0}''')
        for s_ in range(1, 4):
            a(f'v_xor_b32 v{t1}, {s_<<6}, v{t0}\nv_add_u32 v{dst+s_}, {XT}, v{t1}')
    if D1 >= 0:
        a(f's_cmp_eq_u32 s{sRdone}, 0\ns_cbranch_scc1 kf_dor')
        sv_ = list(vm.ops); dma1(); vm.ops = sv_
        a('s_branch kf_nor')
        a.label('kf_dor')
    else: a(f's_cmp_lg_u32 s{sRdone}, 0\ns_cbranch_scc1 kf_nor')
    xaddr(RK, T0, T1)
    def hook(s_):
        if s_ == D1: dma1()
        if s_ == 5:
            a('s_waitcnt vmcnt(4)')
            w1reads(11, T3)
            a('s_waitcnt lgkmcnt(8)')
    gemm([OA + 4 * i for i in range(6)], REC, RK, lambda i: W1F[i], True, lambda s_: None, hook)
    a(f'''s_mov_b32 s{sRdone}, 1
    v_mov_b32 v{T0}, {HMAX+8}
    v_mov_b32 v{T1}, 1
    s_mov_b64 exec, 1
    ds_add_u32 v{T0}, v{T1}
    s_mov_b64 exec, -1''')
    for i in range(4): a(f'v_mov_b32 v{XR+i}, v{RK+i}')
    a(f's_mov_b32 s{sSv}, {hex(f2u(-LOG2E))}\ns_mov_b32 s{sSv+1}, {hex(f2u(-LOG2E))}')
    a(f'''v_and_b32 v{T0}, 31, v{vLane}
    s_lshl_b32 s{sTmp2}, s{sG}, 3
    v_add_u32 v{T0}, s{sTmp2}, v{T0}
    v_and_b32 v{T2}, 15, v{T0}
    s_lshl_b32 s{sTmp2}, s{sCQ}, 3
    v_xor_b32 v{T2}, s{sTmp2}, v{T2}
    v_lshlrev_b32 v{T2}, 4, v{T2}
    v_lshl_add_u32 v{T2}, v{T0}, 9, v{T2}
    v_lshrrev_b32 v{T1}, 5, v{vLane}
    v_lshl_add_u32 v{T2}, v{T1}, 3, v{T2}
    v_add_u32 v{XR+4}, {XT}, v{T2}
    v_and_b32 v{T0}, 15, v{vLane}
    v_lshrrev_b32 v{T1}, 4, v{vLane}
    v_lshlrev_b32 v{T1}, 4, v{T1}
    v_lshl_add_u32 v{XR+6}, v{T0}, 9, v{T1}
    v_mov_b32 v{XR+7}, {HMAX+8}
    v_mov_b32 v{vMX}, 0''')
    for i in range(12): a(f'v_pk_mul_f32 {pr(OA+2*i)}, {pr(OA+2*i)}, s[{sSv}:{sSv+1}]')
    a.label('kf_nor')
    a(f'''v_and_b32 v{T0}, 31, v{vLane}
    s_lshl_b32 s{sTmp2}, s{sG}, 3
    v_add_u32 v{T0}, s{sTmp2}, v{T0}
    v_cmp_gt_u32 vcc, s{sSplit}, v{T0}
    s_cmp_eq_u32 s{sG}, 0
    s_cselect_b64 s[{sNM}:{sNM+1}], 0, -1
    s_xor_b64 s[{sNM}:{sNM+1}], s[{sNM}:{sNM+1}], vcc''')
    for i in range(12, 16):
        for x in wload(WB2 + 4 * i, 2, i, 'wu'): a(x)
    for x in range(4): a(f'v_mov_b32 v{NF+x}, 0\nv_mov_b32 v{DF+x}, 1.0')
    for x in (MA4, MA4 + 1, MB4, MB4 + 1, S4, S4 + 1): a(f'v_mov_b32 v{x}, 0')
    stampat(5)
    a(f'''s_cmp_eq_u32 s{sT}, 0
    s_cbranch_scc1 k2_notile
    ds_read_u8 v{vX}, v{aXL}
    ds_read_b128 {vr(A2,4)}, v{aEAT}''')
    a(vm.wait('dma0'))
    a(f'''ds_read_b128 {vr(PA,4)}, v{aP}
    ds_read_b128 {vr(PA+4,4)}, v{aP+1}
    ds_read_b128 {vr(PB,4)}, v{aP+2}
    ds_read_b128 {vr(PB+4,4)}, v{aP+3}
    s_waitcnt lgkmcnt(5)
    v_mad_u32_u24 v{aQ}, v{vX}, s{sQs}, v{cQ}
    v_add_u32 v{aS}, s{sOs}, v{aQ}
    ds_read_u8 v{vX}, v{aXL} offset:8
    ds_read_b64_tr_b16 {vr(B2A+2,2)}, v{aQ}
    ds_read_b64_tr_b16 {vr(B2B+2,2)}, v{aQ} offset:64''')
    for x in idx_reads(IDX3, 2) + idx_reads(IDX, 3): a(x)
    a(f's_sub_u32 s{sCnt}, s{sT}, 1\ns_waitcnt lgkmcnt(9)')
    def zchain(D, B2, P):
        return [f'v_mfma_f32_32x32x16_bf16 {vr(D,16)}, {vr(A2,4)}, {vr(B2,4)}, 0',
                f'v_mfma_f32_32x32x16_bf16 {vr(D,16)}, {vr(P,4)}, {vr(I0,4)}, {vr(D,16)}',
                f'v_mfma_f32_32x32x16_bf16 {vr(D,16)}, {vr(P+4,4)}, {vr(I1,4)}, {vr(D,16)}']
    for m in zchain(DA, B2A, PA): a(m)
    if prio == 'young': a(f's_cmp_eq_u32 s{sG}, 0\ns_cbranch_scc1 k2_noprio\ns_setprio 1\nk2_noprio:')
    a('s_nop 7\ns_nop 3')
    stampat(6)

    cur = {'pT': None, 'pP': None, 'safe': bool(opt.get('allsafe'))}
    maxops = [f'v_max3_f32 v{vMX}, v{vMX}, v{DF}, v{DF+1}', f'v_max3_f32 v{vMX}, v{vMX}, v{DF+2}, v{DF+3}'][:2 if opt.get('noshare') else 1]
    def half(D, accprev, Mprev, Mfin, zc, extra_T, extra_P, accmode=8):
        sh = not cur['safe'] and not opt.get('noshare')
        Ts = [f'v_exp_f32 v{EE+i}, v{D+i}' for i in range(16)] + [f'v_rcp_f32 v{DF+i}, v{DF+i}' for i in range(2 if sh else 4)]
        cuts = [0, 4, 8, 12, 18] if sh else [0, 5, 10, 15, 20]
        if not cur['safe']:
            extra_T = dict(extra_T)
            extra_T[2] = extra_T.get(2, []) + maxops
        if accmode == 8: mf = [f'v_mfma_f32_32x32x8_bf16 {vr(accprev,16)}, {vr(Mprev,2)}, {vr(S4,2)}, {vr(accprev,16)}'] + zc
        elif accmode == 16: mf = [f'v_mfma_f32_32x32x16_bf16 {vr(accprev,16)}, {vr(Mprev,4)}, {vr(S4,4)}, {vr(accprev,16)}'] + zc
        else:
            mf = [None] + zc
            cuts = [0, 0, 6, 12, 18]
        if cur['pT'] is not None: a(f's_setprio {cur["pT"]}')
        LEAD = int(opt.get('lead', 0))
        for t_ in Ts[:LEAD]: a(t_)
        a('s_waitcnt lgkmcnt(0)')
        Ts = [None] * LEAD + Ts[LEAD:]
        for k in range(4):
            if k == 0 and cur.get('first'):
                lab = cur['first']
                a(f's_cmp_lg_u32 s{sAcc}, 0\ns_cbranch_scc1 {lab}_a')
                a(f'v_mfma_f32_32x32x8_bf16 {vr(accprev,16)}, {vr(Mprev,2)}, {vr(S4,2)}, 0')
                a.label(lab + '_a')
                continue_T = True
                for x in extra_T.get(k, []): a(x)
                for t_ in Ts[cuts[k]:cuts[k + 1]]:
                    if t_: a(t_)
                continue
            if mf[k]: a(mf[k])
            for x in extra_T.get(k, []): a(x)
            for t_ in Ts[cuts[k]:cuts[k + 1]]:
                if t_: a(t_)
        if cur['pP'] is not None: a(f's_setprio {cur["pP"]}')
        bs = [0, 4, 8, 12]
        fin = [f'v_pk_mul_f32 {pr(NF)}, {pr(NF)}, {pr(DF)}', f'v_pk_mul_f32 {pr(NF+2)}, {pr(NF+2)}, {pr(DF if sh else DF+2)}']
        cvt = [f'v_cvt_pk_bf16_f32 v{Mfin}, v{NF}, v{NF+1}', f'v_cvt_pk_bf16_f32 v{Mfin+1}, v{NF+2}, v{NF+3}']
        if cur['safe']:
            Ps = [f'v_pk_fma_f32 {pr(EE+2*p)}, {pr(EE+2*p)}, s[{sC}:{sC+1}], s[{sC}:{sC+1}] clamp' for p in range(8)]
            Ps += fin
            Ps += [f'v_pk_mul_f32 {pr(D+b)}, {pr(D+b)}, {pr(EE+b+2)}' for b in bs]
            Ps += cvt
            Ps += [f'v_pk_fma_f32 {pr(D+b)}, {pr(D+b+2)}, {pr(EE+b)}, {pr(D+b)}' for b in bs]
            Ps += [f'v_pk_mul_f32 {pr(EE+b)}, {pr(EE+b)}, {pr(EE+b+2)}' for b in bs]
        else:
            Ps = [f'v_pk_add_f32 {pr(EE+b+2)}, {pr(EE+b+2)}, 1.0 op_sel_hi:[1,0]' for b in bs]
            Ps += fin
            Ps += [f'v_pk_fma_f32 {pr(D+b)}, {pr(D+b)}, {pr(EE+b+2)}, {pr(D+b+2)}' for b in bs]
            Ps += cvt
            Ps += [f'v_pk_fma_f32 {pr(D+b)}, {pr(D+b+2)}, {pr(EE+b)}, {pr(D+b)}' for b in bs]
            Ps += [f'v_pk_fma_f32 {pr(EE+b)}, {pr(EE+b)}, {pr(EE+b+2)}, {pr(EE+b+2)}' for b in bs]
        Ps += [f'v_pk_mul_f32 {pr(NF+2*B)}, {pr(D+8*B)}, {pr(EE+8*B+4)}' for B in range(2)]
        Ps += [f'v_pk_mul_f32 {pr(DF+2*B)}, {pr(EE+8*B)}, {pr(EE+8*B+4)}' for B in range(2)]
        Ps += [f'v_pk_fma_f32 {pr(NF+2*B)}, {pr(D+8*B+4)}, {pr(EE+8*B)}, {pr(NF+2*B)}' for B in range(2)]
        if sh:
            Ps += [f'v_pk_mul_f32 {pr(NF)}, {pr(NF)}, {pr(DF+2)}', f'v_pk_mul_f32 {pr(NF+2)}, {pr(NF+2)}, {pr(DF)}',
                   f'v_pk_mul_f32 {pr(DF)}, {pr(DF)}, {pr(DF+2)}']
        nP = len(Ps)
        remap = {}
        for i in sorted(extra_P): remap.setdefault(min(i * nP // 30, nP - 1), []).extend(extra_P[i])
        for i, p in enumerate(Ps):
            for x in remap.get(i, []):
                a(x() if callable(x) else x)
            a(p)
    def spread(d, xs, start, step=1):
        for i, x in enumerate(xs):
            d.setdefault(start + i * step, []).extend(x if isinstance(x, list) else [x])
    wsched = [('u2', i) for i in range(16)]
    NPEEL = int(opt.get('npeel', 6))
    per = {6: [0, 3, 3, 3, 3, 4], 3: [4, 6, 6], 9: [0, 2, 2, 2, 2, 2, 2, 2, 2]}[NPEEL]
    def iteration(tau, u, peeled, par=None):
        am = 8 if par is None else (16 if par == 0 else 0)
        o_cur = 0 if par is None else 2 * par; o_prev = 0 if par is None else 2 * (1 - par)
        sl = (u + 1) % 3
        eT = {3: [f'v_mad_u32_u24 v{aQ}, v{vX}, s{sQs}, v{cQ}', f'v_add_u32 v{aS+sl}, s{sOs}, v{aQ}']}
        eP = {}
        spread(eP, [(lambda: vm.wait(f'dma{tau+1}')) if peeled else 's_waitcnt vmcnt(4)',
              f'ds_read_b128 {vr(PA,4)}, v{aP} offset:{sl*4096}', f'ds_read_b128 {vr(PA+4,4)}, v{aP+1} offset:{sl*4096}',
              f'ds_read_b64_tr_b16 {vr(B2A+2,2)}, v{aQ}',
              f'ds_read_b128 {vr(A2,4)}, v{aEAT} offset:{(u+1)*512}',
              f's_add_u32 m0, s{sRing}, {u*4096}'], 1)
        if peeled and tau == 0:
            eP[6] = [f's_add_u32 m0, s{sRing}, 8192']
            spread(eP, [(lambda d=d: dma_ins(IDX3, d, 'dma2')) for d in range(4)], 7, 3)
            eP.setdefault(18, []).append(f's_mov_b32 m0, s{sRing}')
            spread(eP, [(lambda d=d: dma_ins(IDX, d, 'dma3')) for d in range(4)], 19, 3)
        else:
            spread(eP, [(lambda d=d: dma_ins(IDX, d, f'dma{tau+3}')) for d in range(4)], int(opt.get('d0', 8)), int(opt.get('ds', 7)))
        cur['first'] = f'kf_f{cur["g"]}A' if (peeled and tau == 0) else None
        half(DA, ACCA, MA4, MB4 + o_prev, zchain(DB, B2B, PB), eT, eP, am)
        eP = {}
        xs = [f'ds_read_b128 {vr(PB,4)}, v{aP+2} offset:{sl*4096}', f'ds_read_b128 {vr(PB+4,4)}, v{aP+3} offset:{sl*4096}',
              f'ds_read_b64_tr_b16 {vr(B2B+2,2)}, v{aQ} offset:64', f'ds_read_b64_tr_b16 {vr(S4+o_cur,2)}, v{aS+u}',
              f'ds_read_u8 v{vX}, v{aXL} offset:{(u+2)*8}'] + idx_reads(IDX, u + 4)
        spread(eP, xs, int(opt.get('x0', 1)), int(opt.get('xs', 2)))
        if u == 2:
            eP.setdefault(29, []).extend([f'v_add_u32 v{aSRC}, 192, v{aSRC}', f'v_add_u32 v{aEAT}, v{cS}, v{aEAT}', f'v_add_u32 v{aXL}, 24, v{aXL}'])
        eP.setdefault(29, []).append(f's_sub_u32 s{sCnt}, s{sCnt}, 1')
        cur['first'] = f'kf_f{cur["g"]}B' if (peeled and tau == 0) else None
        if cur['first']: eP.setdefault(27, []).append(f's_mov_b32 s{sAcc}, 1')
        half(DB, ACCB, MB4, MA4 + o_cur, zchain(DA, B2A, PA), {}, eP, am)
    spec = {'P': '01', 'none': 'xx', 'young': 'xx'}.get(prio, prio).split('|')
    saved = list(vm.ops)
    a(f's_cmp_lg_u32 s{sSafe}, 0\ns_cbranch_scc1 k2_safe')
    if len(spec) > 1: a(f's_cmp_lg_u32 s{sG}, 0\ns_cbranch_scc1 k2_g1')
    for g, sp in enumerate(spec):
        vm.ops = list(saved)
        sp = sp.split(',')
        def setp(k):
            x = sp[k % len(sp)]
            cur['pT'] = None if x[0] == 'x' else int(x[0]); cur['pP'] = None if x[1] == 'x' else int(x[1])
        cur['g'] = g
        if g: a.label('k2_g1')
        setp(0)
        iteration(0, 0, True, 0 if PAIR else None)
        a('s_cbranch_scc1 k2_drain')
        a.label(f'k2_loop{g}')
        nun = 6 if PAIR else 3
        for t_ in range(1, nun + 1):
            setp(t_ % 3)
            iteration(100 + t_, t_ % 3, False, (t_ & 1) if PAIR else None)
            tgt = 'k2_drain1' if (PAIR and t_ & 1) else 'k2_drain'
            a(f's_cbranch_scc1 {tgt}' if t_ != nun else f's_cbranch_scc0 k2_loop{g}')
        if g + 1 < len(spec): a('s_branch k2_drain')
    a.label('k2_drain')
    a('s_setprio 0\ns_waitcnt lgkmcnt(0)')
    a(f'ds_read_b32 v{X0}, v{XR+7}')
    for x in maxops: a(x)
    a(f'v_mfma_f32_32x32x8_bf16 {vr(ACCA,16)}, {vr(MA4,2)}, {vr(S4,2)}, {vr(ACCA,16)}')
    if not opt.get('noshare'):
        a(f's_cmp_lg_u32 s{sSafe}, 0\ns_cbranch_scc1 kf_dr4\nv_mov_b32 v{DF+2}, v{DF}\nv_mov_b32 v{DF+3}, v{DF+1}')
        a.label('kf_dr4')
    for i in range(4): a(f'v_rcp_f32 v{DF+i}, v{DF+i}')
    a('s_nop 0')
    for i in range(4): a(f'v_mul_f32 v{NF+i}, v{NF+i}, v{DF+i}')
    a(f'''v_cvt_pk_bf16_f32 v{MB4}, v{NF}, v{NF+1}
    v_cvt_pk_bf16_f32 v{MB4+1}, v{NF+2}, v{NF+3}
    s_nop 1
    v_mfma_f32_32x32x8_bf16 {vr(ACCB,16)}, {vr(MB4,2)}, {vr(S4,2)}, {vr(ACCB,16)}''')
    a.label('k2_loopend')
    stampat(7)
    a(f'''s_cmp_eq_u32 s{sHeavy}, 0
    s_cbranch_scc1 k2_epi
    s_add_u32 s{sB}, s{sB}, 1''')
    a.label('k2_fetch')
    a(f'''s_waitcnt vmcnt(0) lgkmcnt(0)
    s_barrier
    s_cmp_ge_u32 s{sB}, s{sHeavy}
    s_cbranch_scc1 k2_epi
    s_lshl_b32 s{sTmp}, s0, 2
    buffer_load_dword v{TQ}, v{vNOVF}, {WS}, s{sTmp} offen sc1
    v_and_b32 v{T1}, 1, v0
    s_lshl_b32 s{sTmp}, s{sB}, 1
    v_add_u32 v{T1}, s{sTmp}, v{T1}
    s_waitcnt vmcnt(0)
    v_and_b32 v{T0}, 0xffff, v{TQ}
    v_lshrrev_b32 v{TQ}, 16, v{TQ}
    v_add_u32 v{T0}, v{T0}, v{T1}
    v_cmp_lt_u32 s[{sMask}:{sMask+1}], v{T1}, v{TQ}
    v_mad_u32_u24 v{T0}, v{T0}, 12, v{vNOVF}
    buffer_load_dwordx3 {vr(REC,3)}, v{T0}, {WS}, 0 offen offset:1024 sc1''')
    for i in range(1, 8): a(f's_mov_b64 s[{sMask+2*i}:{sMask+2*i+1}], 0')
    a(f's_mov_b64 s[{sOv}:{sOv+1}], 0\ns_waitcnt vmcnt(0)\ns_branch k2_batch')
    a.label('k2_redo')
    a(f's_mov_b32 s{sSafe}, 1\ns_mov_b32 s{sAcc}, 0\ns_mov_b32 s{sB}, 0')
    a.label('k2_hentry')
    a(f'''s_waitcnt vmcnt(0) lgkmcnt(0)
    s_lshl_b32 s{sTmp}, s0, 2
    buffer_load_dword v{TQ}, v{vNOVF}, {WS}, s{sTmp} offen sc1
    v_mov_b32 v{T0}, {HMAX}
    v_mov_b32 v{T1}, 1
    ds_write_b32 v{T0}, v{T1}
    s_waitcnt vmcnt(0) lgkmcnt(0)
    s_barrier
    v_lshrrev_b32 v{TQ}, 16, v{TQ}
    v_add_u32 v{TQ}, 1, v{TQ}
    v_lshrrev_b32 v{TQ}, 1, v{TQ}
    ds_max_u32 v{T0}, v{TQ}
    s_waitcnt lgkmcnt(0)
    s_barrier
    ds_read_b32 v{T1}, v{T0}
    s_waitcnt lgkmcnt(0)
    v_readfirstlane_b32 s{sHeavy}, v{T1}
    s_branch k2_fetch''')
    a.label('k2_epi')
    vm.ops = []
    a(f'''s_mul_i32 s{sTmp}, s{sT}, 171
    s_lshr_b32 s{sTmp}, s{sTmp}, 9
    s_mul_i32 s{sTmp}, s{sTmp}, 3
    s_sub_u32 s{sTmp}, s{sT}, s{sTmp}
    s_lshl_b32 s{sTmp}, s{sTmp}, 12''')
    for k in range(3):
        a(f's_add_u32 s{sTmp2}, s{sTmp}, s{sRing}\nv_add_u32 v{DA+k}, s{sTmp2}, v{vL16}')
        if k < 2: a(f's_add_u32 s{sTmp}, s{sTmp}, 4096\ns_cmp_eq_u32 s{sTmp}, 12288\ns_cselect_b32 s{sTmp}, 0, s{sTmp}')
    a('s_waitcnt vmcnt(4) lgkmcnt(0)')
    for f in range(8): a(f'ds_read_b128 {vr(WB2+4*f,4)}, v{DA+(f>>2)} offset:{(f&3)*1024}')
    Y0, Y1, Y2, Y3 = X0, X0 + 1, X0 + 2, X0 + 3
    a(f'''s_cmp_lg_u32 s{sSafe}, 0
    s_cbranch_scc1 kf_noflag
    v_cmp_lt_f32 vcc, 0x5d800000, v{vMX}
    s_cbranch_vccz kf_noflag
    v_mov_b32 v{Y1}, 1
    ds_write_b32 v{XR+7}, v{Y1} offset:4
    kf_noflag:
    s_cmp_lg_u32 s{sAcc}, 0
    s_cbranch_scc1 kf_accok''')
    for i in range(32): a(f'v_mov_b32 v{ACCA+i}, 0')
    a.label('kf_rspin')
    a(f'ds_read_b32 v{Y0}, v{XR+7}')
    a('s_waitcnt lgkmcnt(0)')
    a.label('kf_accok')
    a(f'''v_readfirstlane_b32 s{sTmp}, v{Y0}
    s_cmp_lt_u32 s{sTmp}, 8
    s_cbranch_scc1 kf_rspin
    s_mov_b64 exec, s[{sNM}:{sNM+1}]''')
    Y2 = XR + 4
    a(f's_cmp_eq_u32 s{sSafe}, 0\ns_cbranch_scc1 kf_noscale')
    for q in range(16): a(f'v_pk_mul_f32 {pr(ACCA+2*q)}, {pr(ACCA+2*q)}, s[{sC}:{sC+1}]')
    a.label('kf_noscale')
    for q in range(8):
        if q: a(f'v_xor_b32 v{Y3}, {q<<4}, v{Y2}')
        a(f'''v_cvt_pk_bf16_f32 v{ACCA+4*q}, v{ACCA+4*q}, v{ACCA+4*q+1}
        v_cvt_pk_bf16_f32 v{ACCA+4*q+1}, v{ACCA+4*q+2}, v{ACCA+4*q+3}
        ds_write_b64 v{Y3 if q else Y2}, {vr(ACCA+4*q,2)}''')
    a('s_mov_b64 exec, -1')
    a('s_waitcnt vmcnt(0)')
    for f in range(8, 12): a(f'ds_read_b128 {vr(WB2+4*f,4)}, v{DA+(f>>2)} offset:{(f&3)*1024}')
    EA_ = XR; Y2 = XR + 6; Y3 = XR + 5
    a(f'''s_lshl_b32 s{sTmp2}, s{sN0}, 9
    s_lshl_b32 s{sTmp}, s{sWV}, 6
    s_add_u32 s{sTmp2}, s{sTmp2}, s{sTmp}
    s_waitcnt lgkmcnt(0)''')
    stampat(8)
    a(f's_barrier\nds_read_b32 v{Y0}, v{XR+7} offset:4')
    Z = DA
    def silu_ops(rt):
        b = OA + rt * 8
        ops = [f'v_exp_f32 v{Z+p}, v{b+p}' for p in range(8)]
        ops += [f'v_fma_f32 v{Z+p}, v{Z+p}, s{sC}, s{sC}' for p in range(8)]
        ops += [f'v_rcp_f32 v{Z+p}, v{Z+p}' for p in range(8)]
        ops += [f'v_mul_f32 v{Z+p}, v{b+p}, v{Z+p}' for p in range(8)]
        for h in range(4): ops.append(f'v_cvt_pk_bf16_f32 v{Z+8+h}, v{Z+2*h}, v{Z+2*h+1}')
        if rt == 2:
            ops.append(f's_mov_b32 exec_lo, s{sTmp3}\ns_mov_b32 exec_hi, s{sTmp3}')
        ops.append(f'buffer_store_dwordx4 {vr(Z+8,4)}, v{Y2}, s[{sO}:{sO+3}], s{sTmp2} offen' + opt.get('outst' + str(rt), opt.get('outst', ' sc1')))
        ops.append(f's_add_u32 s{sTmp2}, s{sTmp2}, 8192')
        return ops
    seq = [(rt, s) for rt in range(3) for s in range(8)]
    def ard(k):
        rt, s = seq[k]
        a(f'ds_read_b128 {vr(AF+4*(k%6),4)}, v{EA_+(s&3)} offset:{rt*8192+(s>>2)*256}')
    for k in range(5): ard(k)
    a(f'''s_waitcnt lgkmcnt(5)
    v_readfirstlane_b32 s{sTmp}, v{Y0}
    s_cmp_gt_u32 s{sTmp}, s{sSafe}
    s_cbranch_scc1 k2_redo
    s_mov_b32 s{sC}, {hex(f2u(-LOG2E))}''')
    pend = []
    for k, (rt, s) in enumerate(seq):
        if k + 5 < 24: ard(k + 5)
        a(f's_waitcnt lgkmcnt({min(5, 23-k)})')
        for c in range(2):
            d = OA + (rt * 2 + c) * 4
            a(f'v_mfma_f32_16x16x32_bf16 {vr(d,4)}, {vr(WB2+4*(2*s+c),4)}, {vr(AF+4*(k%6),4)}, {vr(d,4)}')
            if s >= 1 or c == 1:
                n = 3 if s >= 1 else 0
                for x in pend[:n]: a(x)
                pend = pend[n:]
        if s == 7:
            for x in pend: a(x)
            pend = silu_ops(rt)
    b = OA + 16
    a(f's_mov_b32 s{sC+1}, {hex(f2u(-LOG2E))}\ns_sub_u32 s{sTmp}, s{sNN}, 32\ns_bfm_b32 s{sTmp3}, s{sTmp}, 0\ns_mul_i32 s{sTmp3}, s{sTmp3}, 0x10001\ns_nop 3')
    for rr in range(4): a(f'v_mov_b32_dpp v{b+rr}, v{b+4+rr} row_shr:8 row_mask:0xf bank_mask:0xc')
    for p in range(4): a(f'v_exp_f32 v{Z+p}, v{b+p}')
    for p in range(2): a(f'v_pk_fma_f32 {pr(Z+2*p)}, {pr(Z+2*p)}, s[{sC}:{sC+1}], s[{sC}:{sC+1}]')
    for p in range(4): a(f'v_rcp_f32 v{Z+p}, v{Z+p}')
    for p in range(2): a(f'v_pk_mul_f32 {pr(Z+2*p)}, {pr(b+2*p)}, {pr(Z+2*p)}')
    a('s_nop 1')
    for rr in range(4): a(f'v_mov_b32_dpp v{Z+4+rr}, v{Z+rr} row_shl:8 row_mask:0xf bank_mask:0x3')
    for x in pend[32:]: a(x)
    if stamp:
        stampat(9)
        a(f's_mov_b64 exec, 1\ns_waitcnt lgkmcnt(0)')
        a(f's_lshl_b32 s{sTmp}, s2, 3\ns_add_u32 s{sTmp}, s{sTmp}, s{sWV}\ns_lshl_b32 s{sTmp}, s{sTmp}, 6\ns_add_u32 s{sTmp}, s{sTmp}, {WS_END - WS_CELLS}\nv_mov_b32 v{Y0}, 0')
        for i in range(10):
            a(f'v_mov_b32 v{Y1}, s{sStamp+2*i}\nbuffer_store_dword v{Y1}, v{Y0}, {WS}, s{sTmp} offen offset:{4*i}')
        a(f'v_mov_b32 v{Y1}, s{sT}\nbuffer_store_dword v{Y1}, v{Y0}, {WS}, s{sTmp} offen offset:40')
        a(f'v_mov_b32 v{Y1}, s{sPoll}\nbuffer_store_dword v{Y1}, v{Y0}, {WS}, s{sTmp} offen offset:44')
    if opt.get('diagpad'):
        a(f's_add_u32 s94, s94, {int(opt["diagpad"])}')
        a.label('kf_diag')
        a('s_memrealtime s[92:93]\ns_waitcnt lgkmcnt(0)\ns_sub_u32 s92, s92, s94\ns_cmp_lt_i32 s92, 0\ns_cbranch_scc1 kf_diag')
    if opt.get('xcdiag'):
        a(f'''s_mov_b64 exec, -1
        s_and_b32 s91, s2, 7
        s_lshl_b32 s91, s91, 2
        s_add_u32 s91, s91, 32
        v_mov_b32 v1, 0
        buffer_load_dword v2, v1, s[{sD}:{sD+3}], s91 offen sc1
        s_memrealtime s[94:95]
        s_waitcnt vmcnt(0) lgkmcnt(0)
        v_readfirstlane_b32 s91, v2
        s_cmp_eq_u32 s91, s90
        s_cbranch_scc1 k2_done
        s_add_u32 s94, s94, 2000''')
        a.label('kf_xd2')
        a('s_memrealtime s[92:93]\ns_waitcnt lgkmcnt(0)\ns_sub_u32 s92, s92, s94\ns_cmp_lt_i32 s92, 0\ns_cbranch_scc1 kf_xd2')
    a.label('k2_done')
    a('s_endpgm')
    a.label('k2_drain1')
    a('s_setprio 0\ns_waitcnt lgkmcnt(0)')
    a(f'ds_read_b32 v{X0}, v{XR+7}')
    for x in maxops: a(x)
    a(f'v_mfma_f32_32x32x16_bf16 {vr(ACCA,16)}, {vr(MA4,4)}, {vr(S4,4)}, {vr(ACCA,16)}')
    if not opt.get('noshare'):
        a(f's_cmp_lg_u32 s{sSafe}, 0\ns_cbranch_scc1 kf_dr41\nv_mov_b32 v{DF+2}, v{DF}\nv_mov_b32 v{DF+3}, v{DF+1}')
        a.label('kf_dr41')
    for i in range(4): a(f'v_rcp_f32 v{DF+i}, v{DF+i}')
    a('s_nop 0')
    for i in range(4): a(f'v_mul_f32 v{NF+i}, v{NF+i}, v{DF+i}')
    a(f'''v_cvt_pk_bf16_f32 v{MB4+2}, v{NF}, v{NF+1}
    v_cvt_pk_bf16_f32 v{MB4+3}, v{NF+2}, v{NF+3}
    s_nop 1
    v_mfma_f32_32x32x16_bf16 {vr(ACCB,16)}, {vr(MB4,4)}, {vr(S4,4)}, {vr(ACCB,16)}''')
    a('s_branch k2_loopend')
    a.label('k2_notile')
    for x in idx_reads(IDX3, 2): a(x)
    a(f's_add_u32 m0, s{sRing}, 8192\ns_waitcnt lgkmcnt(0)')
    for d in range(4): a(dma_ins(IDX3, d, 'x'))
    a('s_branch k2_loopend')
    a.label('kf_init')
    srd(a, sD, sWS, 16384, add=WS_FLAG)
    a(f'''v_mov_b32 v{BF}, 0
    v_mov_b32 v{BF+1}, 0
    v_mov_b32 v{BF+2}, 0
    v_mov_b32 v{BF+3}, 0
    s_mov_b32 s{sTmp2}, 8192
    buffer_store_dwordx4 {vr(BF,4)}, v{U3}, s[{sD}:{sD+3}], 0 offen sc1
    buffer_store_dwordx4 {vr(BF,4)}, v{U3}, s[{sD}:{sD+3}], s{sTmp2} offen sc1''')
    a('s_branch kf_noinit')
    vm.ops = list(saved)
    cur.update({'pT': None, 'pP': None, 'safe': True, 'g': 'S'})
    a.label('k2_safe')
    iteration(0, 0, True)
    a('s_cbranch_scc1 k2_drain')
    a.label('k2_loopS')
    for u in (1, 2, 0):
        iteration(100 + u, u, False)
        a('s_cbranch_scc1 k2_drain' if u != 0 else 's_cbranch_scc0 k2_loopS')
    a('s_branch k2_drain')
    return kd(KNAME, 256, 102)
```

```python
from common import *
FCH = 625; CST = 8704; RB = 12
WS_CELLS = 5242880
WS_WF = WS_CELLS + 256 * 11264
WS_FLAG = WS_WF + 131072
WS_END = WS_FLAG + 16384
KNAME = 'standalone__mpnn_edge_mlp__graph_kernel'
POLL_LIMIT = 400000
K2_GRID = NB
NT = 28
QT = 98304; QSTR = 592
ZR = QT + 40 * QSTR
XT = 126208
assert ZR + 4096 <= XT
EAT = XT + 20480
CNT = EAT + NT * 512
SRC = CNT + 256
XL = SRC + (NT + 7) * 64
K2_LDS = 163840
assert XL + 256 + 16 <= K2_LDS
C30 = 0x30800000

class R:
    def __init__(self, start): self.n = start
    def get(self, k=1, align=1):
        self.n = (self.n + align - 1) // align * align
        r = self.n; self.n += k; return r

def vr(r, k): return f'v[{r}:{r+k-1}]' if k > 1 else f'v{r}'
def pr(x): return f'v[{x}:{x+1}]'

def gen_kf(a, opt):
    stamp = opt.get('stamp')
    prio = opt.get('prio', '02,02,13|13,13,02')
    vm = VM()
    NTX = ' nt' if opt.get('ntx') else ''
    NTE = ' nt' if opt.get('nte') else ''
    INV = 'buffer_inv sc1' if opt.get('inv') else ''
    LD = ' sc1' if opt.get('ldsc1', '0') == '1' else ''
    CS = opt.get('cellst', ' sc1')
    r = R(1)
    vLane = r.get(); vNOVF = r.get(); vL16 = r.get()
    aSRC = r.get(); aEAT = r.get(); aXL = r.get(); cQ = r.get(); cS = r.get(); vX = r.get(); aQ = r.get()
    aS = r.get(3); aP = r.get(4)
    IDX = r.get(8, 2)
    A2 = r.get(4, 2); B2A = r.get(4, 2); B2B = r.get(4, 2)
    S = r.get(2, 2); MA = r.get(2, 2); MB = r.get(2, 2)
    ACCA = r.get(16, 2); ACCB = r.get(16, 2)
    DA = r.get(16, 2); DB = r.get(16, 2)
    EE = r.get(16, 2); NF = r.get(4, 2); DF = r.get(4, 2)
    PA = r.get(8, 2); PB = r.get(8, 2); I0 = r.get(4, 2); I1 = r.get(4, 2)
    WB2 = r.get(64, 2)
    XR = r.get(12, 2)
    OA = r.get(24, 2)
    assert r.n <= 256, r.n
    W1F = [NF + 4 * i for i in range(6)] + [WB2 + 36 + 4 * i for i in range(10)]
    aW = None
    assert PB + 8 == NF + 24 and WB2 + 36 + 40 == OA
    t = R(WB2)
    REC = DB
    assert EE == DB + 16
    RK = t.get(8, 2); TQ = t.get(8, 2); DL4 = t.get(8, 2)
    T0 = t.get(); T1 = t.get(); T2 = t.get(); T3 = t.get()
    IDX3 = t.get(8, 2)
    HMAX = XL + 256
    PAIR = not opt.get('nopair')
    MA4 = WB2; MB4 = WB2 + 4; S4 = WB2 + 8
    vMX = XR + 8
    IDX1 = DA; IDX2 = DA + 8
    AF = PA
    X0 = DB + 12
    EA_ = IDX

    sP = 20; sX = 24; sE = 28; sWS = 32; sM = 36; sO = 24
    sWV = 44; sG = 45; sCQ = 46; sHeavy = 47; sB = 48; sPoll = 49; sSplit = 50; sT = 51; sTbase = 52
    sRing = 53; sCnt = 54; sTmp = 55; sTmp2 = 56; sTmp3 = 57; sC = 58
    sMask = 4
    sQs = 68; sOs = 69; sT0 = 70; sT1 = 71; sQt = 72; sWdone = 73; sSv = 74
    sStamp = 76
    sHM = 96; sN0 = 98; sWF = 99; sNN = 3; sBok = 100; sOv = 28; sRdone = 30; sEAT = 31; sAcc = 38; sNM = 36; sSafe = 39; sD = 60; sPw = 64

    names = (stamp if stamp and stamp != '1' else '0,1,2,3,4,5,6,7,8,9').split(',')
    def stampat(nm):
        nm = str(nm)
        if opt.get('padat') and opt['padat'].split(':')[0] == nm:
            a(f's_add_u32 s94, s94, {int(opt["padat"].split(":")[1])}')
            a.label('kf_padat')
            a('s_memrealtime s[92:93]\ns_waitcnt lgkmcnt(0)\ns_sub_u32 s92, s92, s94\ns_cmp_lt_i32 s92, 0\ns_cbranch_scc1 kf_padat')
        if stamp:
            if nm in names:
                i = names.index(nm)
                a(f's_memrealtime s[{sStamp+2*i}:{sStamp+2*i+1}]')
            if nm == '6': a('s_memtime s[100:101]\ns_waitcnt lgkmcnt(0)\ns_mov_b32 s{}, s100'.format(sPoll))
            if nm == '7': a('s_memtime s[100:101]\ns_waitcnt lgkmcnt(0)\ns_sub_u32 s{0}, s100, s{0}'.format(sPoll))
    WS = f's[{sWS}:{sWS+3}]'
    def wload(dst, mat, i, tag):
        off = i * 1024
        ins = [f's_add_u32 s{sTmp3}, s{sWF}, {off & ~4095}',
               f'buffer_load_dwordx4 {vr(dst,4)}, v{vL16}, {WS}, s{sTmp3} offen offset:{off & 4095}']
        vm.issue(tag)
        return ins

    a.raw(f'.globl {KNAME}\n.p2align 8\n.type {KNAME},@function')
    a.label(KNAME)
    a(f's_cmp_ge_u32 s2, {K2_GRID}\ns_cbranch_scc1 k2_done')
    stampat(0)
    if opt.get('diagpad') or opt.get('padat'): a('s_memrealtime s[94:95]')
    BIAS = bool(opt.get('bias2'))
    if BIAS:
        n0code = f'''s_mul_i32 s{sN0}, s{sPoll}, 305
    s_add_u32 s{sNN}, s{sN0}, {305+1927}
    s_add_u32 s{sN0}, s{sN0}, 1927
    s_lshr_b32 s{sN0}, s{sN0}, 3
    s_lshr_b32 s{sNN}, s{sNN}, 3
    s_mul_i32 s{sTmp}, s{sPoll}, 40
    s_min_u32 s{sN0}, s{sN0}, s{sTmp}
    s_add_u32 s{sTmp}, s{sTmp}, 40
    s_min_u32 s{sNN}, s{sNN}, s{sTmp}
    s_sub_u32 s{sNN}, s{sNN}, s{sN0}'''
    else:
        n0code = f'''s_mul_i32 s{sN0}, s{sPoll}, 625
    s_add_u32 s{sNN}, s{sN0}, {625+15}
    s_add_u32 s{sN0}, s{sN0}, 15
    s_lshr_b32 s{sN0}, s{sN0}, 4
    s_lshr_b32 s{sNN}, s{sNN}, 4
    s_sub_u32 s{sNN}, s{sNN}, s{sN0}'''
    eD = 26; eS = 36; eA = 46; eR = 66; eB = 76
    PD = 26; RL = 50; W3 = 58; TOUCH = 86; CT = 58
    UQ = 92; vW = 100; aA = 104; U0 = 108; U1 = 109; U2 = 110; U3 = 111; vW1 = 112; PR0 = 113; PR1 = 114; PG0 = 115; PG1 = 116; aW3 = 117
    vDB = 252; aTO = 253; aB = 90
    BF = NF; AX = WB2
    assert BF == 124 and BF + 32 == WB2 and WB2 + 96 <= 256 and REC == 92
    W3L = QT + 24576
    SW = 1
    TAB = QT; RIMG = QT + 1024; CNTA = QT + 12288
    sS = 20; sDs = 28; sEs = 36; sU = 40
    sWm = 68
    sEM = 76 if not stamp else 8
    a(f'''s_load_dwordx4 s[12:15], s[0:1], 32
    s_load_dwordx4 s[8:11], s[0:1], 16
    s_load_dwordx4 s[4:7], s[0:1], 0
    s_load_dwordx4 s[16:19], s[0:1], 48
    s_load_dwordx2 s[{sWS}:{sWS+1}], s[0:1], 64
    v_lshrrev_b32 v{U0}, 6, v0
    v_and_b32 v{vLane}, 63, v0
    v_readfirstlane_b32 s{sWV}, v{U0}
    v_lshlrev_b32 v{vL16}, 4, v{vLane}
    s_cmp_lg_u32 s{sWV}, 3
    s_cbranch_scc1 kf_noct
    s_getpc_b64 s[{sSv}:{sSv+1}]
    kf_pc:
    s_and_b32 s{sTmp3}, s2, 0xf8
    s_lshl_b32 s{sTmp3}, s{sTmp3}, 7
    s_min_u32 s{sTmp3}, s{sTmp3}, k2_done-kf_pc-1024
    s_add_u32 s{sSv}, s{sSv}, s{sTmp3}
    s_addc_u32 s{sSv+1}, s{sSv+1}, 0
    global_load_dwordx4 {vr(CT,4)}, v{vL16}, s[{sSv}:{sSv+1}]
    kf_noct:
    v_lshlrev_b32 v{U3}, 4, v0
    s_mul_i32 s{sN0}, s2, 625
    s_bfe_u32 s{sTmp3}, s2, 0x50003
    s_lshl_b32 s{sTmp3}, s{sTmp3}, 13
    s_lshl_b32 s{sT}, s{sN0}, 2
    s_lshl_b32 s{sTbase}, s{sN0}, 3
    s_and_b32 s{sPoll}, s2, 7
    s_lshl_b32 s{sPoll}, s{sPoll}, 5
    s_lshr_b32 s{sTmp}, s2, 3
    s_or_b32 s{sPoll}, s{sPoll}, s{sTmp}
    {n0code}
    s_lshr_b32 s{sG}, s{sWV}, 2
    s_and_b32 s{sCQ}, s{sWV}, 3
    s_lshl_b32 s{sWF}, s{sWV}, 14
    s_add_u32 s{sWF}, s{sWF}, {WS_WF - WS_CELLS}
    v_lshrrev_b32 v{U0}, 5, v{vLane}
    v_and_b32 v{U1}, 31, v{vLane}
    s_lshl_b32 s{sTmp}, s{sWV}, 1
    v_xor_b32 v{U2}, v{U1}, v{U0}
    v_xor_b32 v{U2}, s{sTmp}, v{U2}
    v_lshlrev_b32 v{U2}, 4, v{U2}
    v_lshl_add_u32 v{U2}, v{U0}, 9, v{U2}
    v_xor_b32 v{vW1}, s{sWV}, v{U1}
    v_lshlrev_b32 v{vW1}, 4, v{vW1}
    s_waitcnt lgkmcnt(0)
    s_mov_b32 s0, s{sPoll}''')
    a(f'''s_cmp_lg_u32 s{sWV}, {SW}
    s_cbranch_scc1 kf_noedge
    s_setprio 3
    v_mul_u32_u24 v{U0}, 40, v{vLane}
    v_mul_u32_u24 v{U1}, 80, v{vLane}''')
    srd(a, sDs, 10, E * 4)
    a(f'''buffer_load_dwordx4 {vr(eD,4)}, v{U0}, s[{sDs}:{sDs+3}], s{sT} offen{NTE}
    buffer_load_dwordx4 {vr(eD+4,4)}, v{U0}, s[{sDs}:{sDs+3}], s{sT} offen offset:16{NTE}
    buffer_load_dwordx2 {vr(eD+8,2)}, v{U0}, s[{sDs}:{sDs+3}], s{sT} offen offset:32{NTE}''')
    srd(a, sS, 8, E * 4)
    a(f'''buffer_load_dwordx4 {vr(eS,4)}, v{U0}, s[{sS}:{sS+3}], s{sT} offen{NTE}
    buffer_load_dwordx4 {vr(eS+4,4)}, v{U0}, s[{sS}:{sS+3}], s{sT} offen offset:16{NTE}
    buffer_load_dwordx2 {vr(eS+8,2)}, v{U0}, s[{sS}:{sS+3}], s{sT} offen offset:32{NTE}''')
    srd(a, sEs, 6, E * 8)
    for k in range(5): a(f'buffer_load_dwordx4 {vr(eA+4*k,4)}, v{U1}, s[{sEs}:{sEs+3}], s{sTbase} offen offset:{16*k}{NTE}')
    a.label('kf_noedge')
    a('s_cmp_eq_u32 s2, 0\ns_cbranch_scc1 kf_init')
    a.label('kf_noinit')
    vm.issue('edge')
    vm.ops = vm.ops
    srd(a, sWm, 12, 516 * 512)
    a(f'buffer_load_dwordx4 {vr(TOUCH,4)}, v{U3}, s[{sWm}:{sWm+3}], s{sTmp3} offen')
    vm.issue('touch')
    a(f'''s_cmp_lg_u32 s{sWV}, 6
    s_cbranch_scc1 kf_now3
    s_mov_b32 m0, {W3L}
    s_mov_b32 s{sTmp}, {512*512}
    buffer_load_dwordx4 v{vL16}, s[{sWm}:{sWm+3}], s{sTmp} offen lds
    buffer_load_dwordx4 v{vL16}, s[{sWm}:{sWm+3}], s{sTmp} offen offset:1024 lds''')
    a.label('kf_now3')
    srd(a, sX, 4, N * 512)
    a(f'''s_lshl_b32 s{sTmp}, s{sN0}, 9
    s_lshl_b32 s{sTmp2}, s{sWV}, 10
    s_add_u32 s{sTmp3}, s{sTmp}, s{sTmp2}
    s_add_u32 m0, s{sTmp2}, {XT}
    s_lshl_b32 s{sCnt}, s{sWV}, 9
    buffer_load_dwordx4 v{U2}, s[{sX}:{sX+3}], s{sTmp3} offen{NTX} lds
    s_add_u32 m0, s{sTmp2}, {XT+8192}
    s_add_u32 s{sTmp3}, s{sTmp3}, 8192
    buffer_load_dwordx4 v{U2}, s[{sX}:{sX+3}], s{sTmp3} offen{NTX} lds
    s_add_u32 m0, s{sCnt}, {XT+16384}
    s_add_u32 s{sTmp}, s{sTmp}, s{sCnt}
    s_add_u32 s{sTmp}, s{sTmp}, 16384
    s_mov_b32 exec_hi, 0
    buffer_load_dwordx4 v{vW1}, s[{sX}:{sX+3}], s{sTmp} offen{NTX} lds
    s_mov_b32 exec_hi, -1''')
    for _ in range(3): vm.issue('x')
    stampat('a')
    a(f'''s_add_u32 s{sPw}, s{sWS}, {WS_P}
    s_addc_u32 s{sPw+1}, s{sWS+1}, 0
    s_and_b32 s{sPw+1}, s{sPw+1}, 0xffff
    s_mov_b32 s{sPw+2}, {N*512}
    s_mov_b32 s{sPw+3}, 0x20000
    s_add_u32 s{sWS}, s{sWS}, {WS_CELLS}
    s_addc_u32 s{sWS+1}, s{sWS+1}, 0
    s_and_b32 s{sWS+1}, s{sWS+1}, 0xffff
    s_mov_b32 s{sWS+2}, {WS_END - WS_CELLS + (1 << 20 if stamp else 0)}
    s_mov_b32 s{sWS+3}, 0x20000''')
    srd(a, sD, 18, 256)
    srd(a, sU, 14, 512 * 512)
    a(f'''v_mov_b32 v{UQ+4}, 0
    v_mov_b32 v{UQ+5}, 0
    v_mov_b32 v{UQ+6}, 0
    v_mov_b32 v{UQ+7}, 0
    v_add_u32 v{U1}, {CNTA}, v{vL16}
    s_cmp_lg_u32 s{sWV}, {SW}
    s_cbranch_scc1 kf_nocz
    ds_write_b128 v{U1}, {vr(UQ+4,4)}
    v_mov_b32 v{U1}, {HMAX+8}
    ds_write_b64 v{U1}, {vr(UQ+4,2)}''')
    a.label('kf_nocz')
    nz = (NT * 512 + 256 - 8192) // 16; nf = (NT + 7) * 64 // 16; nx = 16
    def list_prefill(Z, F, t0, t1):
        a(f'''v_lshlrev_b32 v{t0}, 4, v0
        v_add_u32 v{t0}, {EAT}, v{t0}
        v_mov_b32 v{t1}, 0xa0a0a0a0
        ds_write_b128 v{t0}, {vr(Z,4)}
        v_cmp_gt_u32 vcc, {nz}, v0
        s_and_saveexec_b64 s[{sSv}:{sSv+1}], vcc
        ds_write_b128 v{t0}, {vr(Z,4)} offset:8192
        s_mov_b64 exec, -1
        v_cmp_gt_u32 vcc, {nf}, v0
        s_nop 0
        s_nop 0
        v_cndmask_b32 v{F}, v{t1}, -1, vcc
        v_cmp_gt_u32 vcc, {nf+nx}, v0
        v_mov_b32 v{F+1}, v{F}
        v_mov_b32 v{F+2}, v{F}
        v_mov_b32 v{F+3}, v{F}
        s_and_saveexec_b64 s[{sSv}:{sSv+1}], vcc
        ds_write_b128 v{t0}, {vr(F,4)} offset:{SRC-EAT}
        s_mov_b64 exec, -1''')
    stampat('b')
    a(f'''v_lshrrev_b32 v{U0}, 5, v{vLane}
    v_and_b32 v{U1}, 3, v{vLane}
    v_lshlrev_b32 v{U0}, 1, v{U0}
    v_xor_b32 v{U0}, v{U0}, v{U1}
    v_lshrrev_b32 v{U1}, 2, v{vLane}
    v_lshlrev_b32 v{U1}, 9, v{U1}
    v_lshl_add_u32 v{U0}, v{U0}, 4, v{U1}
    s_lshl_b32 s{sTmp}, s{sWV}, 6
    v_add_u32 v{vW}, s{sTmp}, v{U0}
    v_add_u32 v{vW+1}, 7168, v{vW}
    v_add_u32 v{vW+2}, 14336, v{vW}
    v_add_u32 v{vW+3}, 21504, v{vW}
    s_mul_i32 s{sRing}, s{sWV}, 12288''')
    def stage(i):
        a(f's_add_u32 m0, s{sRing}, {(i % 3) * 4096}\ns_mov_b32 s{sTmp3}, {(i & 7) * 32768}')
        sr = sWm if i < 8 else sU
        for t_ in range(4):
            a(f'buffer_load_dwordx4 v{(vW if i < 8 else XR + 8)+t_}, s[{sr}:{sr+3}], s{sTmp3} offen offset:{t_*1024} lds')
            vm.issue(f'st{i}')
    a(f'''v_and_b32 v{U0}, 15, v{vLane}
    v_lshrrev_b32 v{U1}, 4, v{vLane}
    v_xor_b32 v{U2}, v{U1}, v{U0}
    v_lshlrev_b32 v{U2}, 4, v{U2}
    v_lshl_add_u32 v{U0}, v{U0}, 9, v{U2}
    v_add_u32 v{aA}, {XT}, v{U0}''')
    for s_ in range(1, 4):
        a(f'v_xor_b32 v{U2}, {s_<<6}, v{U0}\nv_add_u32 v{aA+s_}, {XT}, v{U2}')
    a(f'''v_bfe_u32 v{U0}, v{vLane}, 2, 2
    v_lshl_add_u32 v{U0}, v{U1}, 3, v{U0}
    v_and_b32 v{U2}, 1, v{U1}
    v_lshlrev_b32 v{U2}, 5, v{U2}
    v_and_b32 v{U3}, 3, v{vLane}
    v_lshl_add_u32 v{U2}, v{U3}, 3, v{U2}
    v_lshl_add_u32 v{U2}, v{U0}, 6, v{U2}
    v_add_u32 v{aB}, s{sRing}, v{U2}
    v_xor_b32 v{aB+1}, 32, v{aB}
    v_mov_b32 v{U3}, 1''')
    list_prefill(UQ + 4, BF + 4, U0, U1)
    NPRE = int(opt.get('npre', 2))
    NPRE2 = int(opt.get('npre2', NPRE))
    stampat('y')
    def early_consts(T0, T1, T2, T3):
        a(f'''v_lshrrev_b32 v{T2}, 5, v{vLane}
        v_and_b32 v{T3}, 31, v{vLane}
        v_bfe_u32 v{T0}, v{T3}, 2, 1
        v_cmp_eq_u32 s[{sHM}:{sHM+1}], v{T0}, v{T2}
        v_bfe_u32 v{T0}, v{T3}, 1, 3
        v_xor_b32 v{T0}, v{T0}, v{T2}
        v_lshlrev_b32 v{T0}, 4, v{T0}
        v_lshl_add_u32 v{T0}, v{T3}, 7, v{T0}
        v_add_u32 v{aP}, s{sRing}, v{T0}
        v_xor_b32 v{aP+1}, 32, v{aP}
        v_xor_b32 v{aP+2}, 64, v{aP}
        v_xor_b32 v{aP+3}, 96, v{aP}
        v_and_b32 v{T0}, 7, v{vLane}
        v_lshrrev_b32 v{T1}, 4, v{vLane}
        v_xor_b32 v{T0}, v{T0}, v{T1}
        s_lshl_b32 s{sTmp}, s{sCQ}, 7
        v_lshl_add_u32 v{T0}, v{T0}, 4, s{sTmp}
        v_xor_b32 v{IDX+7}, 64, v{T0}
        v_add_u32 v{IDX+1}, 3072, v{T0}
        v_add_u32 v{IDX+3}, 2048, v{IDX+7}
        v_add_u32 v{IDX+5}, 1024, v{T0}
        v_bfe_u32 v{T0}, v{vLane}, 4, 1
        v_and_b32 v{T1}, 3, v{vLane}
        v_lshlrev_b32 v{T1}, 3, v{T1}
        v_lshl_add_u32 v{T0}, v{T0}, 5, v{T1}
        s_add_u32 s{sTmp}, s{sTmp}, {QT}
        v_add_u32 v{cQ}, s{sTmp}, v{T0}
        v_mov_b32 v{T0}, 1536
        v_cndmask_b32 v{cS}, 0, v{T0}, s[{sHM}:{sHM+1}]
        s_mov_b32 s{sC}, {hex(C30)}
        s_mov_b32 s{sC+1}, {hex(C30)}''')
    def list_consts(T0, T1, T2, T3):
        a(f'''v_bfe_u32 v{T0}, v{vLane}, 5, 1
        v_bfe_u32 v{T1}, v{vLane}, 3, 1
        v_bfe_u32 v{T2}, v{vLane}, 4, 1
        v_lshlrev_b32 v{aSRC}, 5, v{T0}
        v_lshl_add_u32 v{aSRC}, v{T1}, 3, v{aSRC}
        v_lshl_add_u32 v{aSRC}, v{T2}, 1, v{aSRC}
        v_bfe_u32 v{T3}, v{vLane}, 2, 2
        v_lshl_add_u32 v{aXL}, v{T0}, 2, v{T3}
        v_and_b32 v{T3}, 1, v{T3}
        v_lshl_add_u32 v{aEAT}, v{T3}, 1, v{T2}
        v_and_b32 v{T0}, 1, v{vLane}
        v_lshl_add_u32 v{aEAT}, v{aEAT}, 1, v{T0}
        v_lshl_add_u32 v{aEAT}, v{aEAT}, 1, v{T1}
        v_bfe_u32 v{T0}, v{vLane}, 1, 1
        v_lshl_add_u32 v{aEAT}, v{aEAT}, 1, v{T0}
        v_lshlrev_b32 v{aEAT}, 4, v{aEAT}''')
    TOUCH_T = 118
    def hoisted():
        sQTs = sT
        a(f's_mov_b32 s{sQTs}, {QT}')
        early_consts(U0, U1, U2, TOUCH_T)
        list_consts(U0, U1, U2, TOUCH_T)
        a(f'''v_and_b32 v{U0}, 15, v{vLane}
    v_lshrrev_b32 v{U1}, 4, v{vLane}
    v_lshlrev_b32 v{U1}, 4, v{U1}
    s_lshl_b32 s{sTmp2}, s{sWV}, 6
    v_add_u32 v{U1}, s{sTmp2}, v{U1}
    v_lshl_add_u32 v{PG0}, v{U0}, 9, v{U1}
    v_mul_u32_u24 v{U0}, {QSTR}, v{U0}
    v_add3_u32 v{aTO}, v{U0}, v{U1}, s{sQTs}
    v_bfe_u32 v{U0}, v{vLane}, 3, 2
    v_and_b32 v{U1}, 3, v{vLane}
    v_lshl_add_u32 v{U0}, v{U0}, 2, v{U1}
    v_bfe_u32 v{U1}, v{vLane}, 2, 1
    v_lshl_add_u32 v{U0}, v{U1}, 4, v{U0}
    v_lshlrev_b32 v{U0}, 1, v{U0}
    s_lshl_b32 s{sTmp}, s{sCQ}, 7
    s_add_u32 s{sTmp}, s{sTmp}, {W3L}
    v_add_u32 v{aW3}, s{sTmp}, v{U0}
    v_lshrrev_b32 v{U0}, 1, v0
    v_mul_u32_u24 v{vNOVF}, {CST}, v{U0}''')
    hoisted()
    dpp = ['row_shr:1 row_mask:0xf bank_mask:0xf', 'row_shr:2 row_mask:0xf bank_mask:0xf', 'row_shr:4 row_mask:0xf bank_mask:0xf',
           'row_shr:8 row_mask:0xf bank_mask:0xf', 'row_bcast:15 row_mask:0xa bank_mask:0xf', 'row_bcast:31 row_mask:0xc bank_mask:0xf']
    a(f'''s_cmp_lg_u32 s{sWV}, {SW}
    s_cbranch_scc1 kf_nohist
    s_movk_i32 s{sTmp}, 625
    s_mov_b32 exec_hi, 0x7fffffff''')
    a(f's_waitcnt vmcnt({vm.count_after("edge") + 8})')
    stampat('z')
    if BIAS: a(f's_movk_i32 s{sTmp}, 305\ns_mov_b32 s{sTmp2}, 110015\nv_mov_b32 v{U1}, {-26405848 & 0xffffffff}\nv_mov_b32 v{U2}, 1927')
    for i in range(10):
        if BIAS:
            a(f'''v_mul_u32_u24 v{eB+i}, 104858, v{eD+i}
            v_mad_u32_u24 v{U0}, v{eD+i}, s{sTmp2}, v{U1}
            v_max_i32 v{eB+i}, v{eB+i}, v{U0}
            v_lshrrev_b32 v{eB+i}, 22, v{eB+i}
            v_mad_u32_u24 v{U0}, v{eB+i}, s{sTmp}, v{U2}
            v_mul_u32_u24 v{TOUCH_T}, 40, v{eB+i}''')
        else:
            a(f'''v_mul_u32_u24 v{eB+i}, 429497, v{eD+i}
            v_lshrrev_b32 v{eB+i}, 24, v{eB+i}
            v_mad_u32_u24 v{U0}, v{eB+i}, s{sTmp}, 15''')
        a(f'''v_lshlrev_b32 v{eB+i}, 2, v{eB+i}
        v_add_u32 v{eB+i}, {CNTA}, v{eB+i}''')
        if i == 5: a('s_mov_b32 exec_hi, 0x3fffffff')
        a(f'ds_add_rtn_u32 v{eR+i}, v{eB+i}, v{U3}\nv_lshrrev_b32 v{U0}, {3 if BIAS else 4}, v{U0}')
        if BIAS: a(f'v_min_u32 v{U0}, v{U0}, v{TOUCH_T}')
        a(f'v_sub_u32 v{eD+i}, v{eD+i}, v{U0}')
    a(f'''s_mov_b32 exec_hi, -1
    v_add_u32 v{U0}, {CNTA}, v{vL16}
    ds_read_b128 {vr(UQ,4)}, v{U0}''')
    a(f's_waitcnt vmcnt({vm.count_after("edge") + 5})')
    for i in range(10): a(f'v_lshl_or_b32 v{eS+i}, v{eD+i}, 16, v{eS+i}')
    a(f'''s_waitcnt lgkmcnt(0)
    v_add_u32 v{UQ+5}, v{UQ}, v{UQ+1}
    v_add_u32 v{UQ+6}, v{UQ+5}, v{UQ+2}
    v_add_u32 v{U1}, v{UQ+6}, v{UQ+3}
    v_mov_b32 v{U2}, v{U1}
    s_nop 1''')
    for k, d in enumerate(dpp):
        a(f'v_add_u32_dpp v{U2}, v{U2}, v{U2} {d}' + (' bound_ctrl:0' if k < 4 else '') + '\ns_nop 1')
    a(f'''v_sub_u32 v{UQ+4}, v{U2}, v{U1}
    v_add_u32 v{UQ+7}, v{UQ+6}, v{UQ+4}
    v_add_u32 v{UQ+6}, v{UQ+5}, v{UQ+4}
    v_add_u32 v{UQ+5}, v{UQ}, v{UQ+4}
    ds_write_b128 v{U0}, {vr(UQ+4,4)} offset:1024''')
    for i in range(10): a(f'ds_read_b32 v{eD+i}, v{eB+i} offset:1024')
    a(f'''v_lshl_or_b32 v{UQ+4}, v{UQ}, 16, v{UQ+4}
    v_lshl_or_b32 v{UQ+5}, v{UQ+1}, 16, v{UQ+5}
    v_lshl_or_b32 v{UQ+6}, v{UQ+2}, 16, v{UQ+6}
    v_lshl_or_b32 v{UQ+7}, v{UQ+3}, 16, v{UQ+7}
    v_subrev_u32 v{U0}, {CNTA-TAB}, v{U0}
    s_mov_b32 s{sTmp}, {RIMG}
    s_mov_b32 exec_hi, 0x7fffffff''')
    a(vm.wait('edge'))
    for i in range(10):
        if i == 5: a('s_mov_b32 exec_hi, 0x3fffffff')
        a(f'''s_waitcnt lgkmcnt({min(9, 9 - i + 2 * i)})
        v_add_u32 v{eD+i}, v{eD+i}, v{eR+i}
        v_mad_u32_u24 v{eD+i}, v{eD+i}, 12, s{sTmp}
        ds_write2_b32 v{eD+i}, v{eA+2*i}, v{eA+2*i+1} offset1:1
        ds_write_b32 v{eD+i}, v{eS+i} offset:8''')
    a(f'''s_mov_b32 exec_hi, -1
    ds_write_b128 v{U0}, {vr(UQ+4,4)}
    s_setprio 0''')
    a.label('kf_nohist')
    for i in range(NPRE): stage(i)
    for i in range(NPRE, NPRE2): stage(i)
    stampat('H')
    a(vm.wait('x') + ' lgkmcnt(0)')
    stampat('I')
    a('s_barrier')
    stampat('c')
    axr = [f'ds_read_b128 {vr(AX+(s_*3+rt)*4,4)}, v{aA+(s_&3)} offset:{rt*8192+(s_>>2)*256}' for s_ in range(8) for rt in range(3)]
    a(f'''s_or_b32 s{sTmp}, s2, s{sWV}
    s_cbranch_scc1 kf_noset
    v_mov_b32 v{U0}, 1
    v_mov_b32 v{U1}, 0
    s_mov_b64 exec, 1
    buffer_store_dword v{U0}, v{U1}, s[{sD}:{sD+3}], 0 offen sc1
    s_mov_b64 exec, -1''')
    a.label('kf_noset')
    if opt.get('xcdiag'):
        a(f'''s_getreg_b32 s90, hwreg(HW_REG_XCC_ID, 0, 4)
        s_add_u32 s90, s90, 1
        s_cmp_ge_u32 s2, 8
        s_cbranch_scc1 kf_xd1
        s_lshl_b32 s91, s2, 2
        s_add_u32 s91, s91, 32
        v_mov_b32 v{U0}, s90
        v_mov_b32 v{U1}, 0
        buffer_store_dword v{U0}, v{U1}, s[{sD}:{sD+3}], s91 offen sc1''')
        a.label('kf_xd1')
    if not opt.get('noprioA'): a('s_setprio 2')
    axr = [f'ds_read_b128 {vr(AX+(s_*3+rt)*4,4)}, v{aA+(s_&3)} offset:{rt*8192+(s_>>2)*256}' for s_ in range(8) for rt in range(3)]
    AXE = not opt.get('axlate')
    a(f'''v_lshlrev_b32 v{U3}, 4, v0
    v_add_u32 v{U0}, {TAB}, v{U3}
    ds_read_b128 {vr(UQ,4)}, v{U0}
    ds_read_b128 {vr(UQ+4,4)}, v{U0} offset:8192''')
    RSA = opt.get('rs2')
    def rstores():
        a(f'''s_mul_i32 s{sT}, s2, {CST}
        s_add_u32 s{sTbase}, s{sT}, 8192
        s_cmp_lg_u32 s{sWV}, 0
        s_cbranch_scc1 kf_nost2
        s_mov_b32 exec_hi, 0
        buffer_store_dwordx4 {vr(UQ+4,4)}, v{U3}, {WS}, s{sTbase} offen{CS}
        s_mov_b32 exec_hi, -1''')
        a.label('kf_nost2')
        a(f'buffer_store_dwordx4 {vr(UQ,4)}, v{U3}, {WS}, s{sT} offen{CS}')
        vm.issue('cells')
    RSF = opt.get('rsfirst')
    if AXE:
        for x in axr[:12]: a(x)
    if RSF:
        a('s_waitcnt lgkmcnt(12)')
        rstores()
    LA = int(opt.get('la', 3))
    for i in range(NPRE2, LA): stage(i)
    stampat('A')
    if not RSA and not RSF:
        a('s_waitcnt lgkmcnt(0)')
        rstores()
    else: a('s_waitcnt lgkmcnt(6)')
    stampat('E')
    a(f'''s_cmp_lg_u32 s{sWV}, 0
    s_cbranch_scc1 kf_nodb
    v_mov_b32 v{vDB}, 0
    buffer_load_dword v{vDB}, v{vDB}, s[{sD}:{sD+3}], 0 offen sc1''')
    a.label('kf_nodb')
    a(f'''s_cmp_lg_u32 s{sWV}, 7
    s_cbranch_scc1 kf_norl
    s_cmp_ge_u32 s2, 128
    s_cbranch_scc1 kf_norl
    v_lshrrev_b32 v{U0}, 4, v{vLane}
    v_lshlrev_b32 v{U0}, 11, v{U0}
    v_bfe_u32 v{U1}, v{vLane}, 2, 2
    v_lshl_add_u32 v{U0}, v{U1}, 4, v{U0}
    v_and_b32 v{U1}, 3, v{vLane}
    v_lshl_add_u32 v{U0}, v{U1}, 1, v{U0}
    s_bfe_u32 s{sTmp}, s2, 0x30001
    s_lshl_b32 s{sTmp2}, s{sTmp}, 14
    s_add_u32 s{sTmp2}, s{sTmp2}, {256*512}
    s_bfe_u32 s{sTmp}, s2, 0x30004
    s_lshl_b32 s{sTmp}, s{sTmp}, 6
    s_add_u32 s{sTmp2}, s{sTmp2}, s{sTmp}
    s_and_b32 s{sTmp}, s2, 1
    s_lshl_b32 s{sTmp}, s{sTmp}, 3
    s_add_u32 s{sTmp2}, s{sTmp2}, s{sTmp}
    s_add_u32 s{sTmp}, s{sTmp2}, 8192''')
    for e in range(8):
        a(f'buffer_load_ushort v{RL+e}, v{U0}, s[{sU}:{sU+3}], s{sTmp if e >> 2 else sTmp2} offen offset:{(e&3)*512}')
    a.label('kf_norl')
    stampat('B')
    def breads(i, nowait=False):
        if not nowait: a(vm.wait(f'st{i}'))
        for ks in range(2):
            for c in range(2):
                for t_ in range(2):
                    a(f'ds_read_b64_tr_b16 {vr(BF+(i&1)*16+ks*8+c*4+t_*2,2)}, v{aB+c} offset:{(i%3)*4096+(32*ks+4*t_)*64}')
    def compute(i, nowait=False, nostage=False, noread=False):
        a('s_waitcnt lgkmcnt(0)')
        order = [(ks, rt, c) for ks in range(2) for rt in range(3) for c in range(2)]
        for n_, (ks, rt, c) in enumerate(order):
            s_ = (2 * i + ks) & 7
            d = PD + (rt * 2 + c) * 4
            cin = '0' if s_ == 0 else vr(d, 4)
            a(f'v_mfma_f32_16x16x32_bf16 {vr(d,4)}, {vr(BF+(i&1)*16+ks*8+c*4,4)}, {vr(AX+(s_*3+rt)*4,4)}, {cin}')
            if n_ == 1 and i + 1 < 8 and not noread: breads(i + 1, nowait)
            if n_ == 7 and i + LA < 8 and not nostage: stage(i + LA)
    def poll(off, lab, PR):
        a(f'''s_and_b32 s{sTmp}, s2, 7
        s_lshl_b32 s{sTmp}, s{sTmp}, 10
        s_add_u32 s{sTmp}, s{sTmp}, {off - WS_CELLS}
        s_mov_b32 s{sPoll}, {POLL_LIMIT}''')
        a.label(lab)
        a(f'''buffer_load_dwordx4 {vr(PR,4)}, v{vL16}, {WS}, s{sTmp} offen sc1
        s_waitcnt vmcnt(0)
        v_and_b32 v{PR}, v{PR}, v{PR+1}
        v_and_b32 v{PR+2}, v{PR+2}, v{PR+3}
        v_and_b32 v{PR}, v{PR}, v{PR+2}
        v_cmp_eq_u32 vcc, 1, v{PR}
        s_cmp_eq_u64 vcc, -1
        s_cbranch_scc1 {lab}_ok
        s_sleep {opt.get('psleep', 1)}
        s_sub_u32 s{sPoll}, s{sPoll}, 1
        s_cbranch_scc0 {lab}''')
        a.label(lab + '_ok')
    def tile_out(toP):
        a(f'''s_mov_b32 s{sSv}, {hex(f2u(-LOG2E))}
        s_mov_b32 s{sSv+1}, {hex(f2u(-LOG2E))}
        s_lshl_b32 s{sTmp}, s{sN0}, 9
        s_nop 4''')
        for rt in range(3):
            b = PD + rt * 8; o = UQ + 4 * (rt & 1) if toP else b
            for h in range(4): a(f'v_pk_mul_f32 {pr(b+2*h)}, {pr(b+2*h)}, s[{sSv}:{sSv+1}]')
            for h in range(4): a(f'v_cvt_pk_bf16_f32 v{b+h}, v{b+2*h}, v{b+2*h+1}')
            if rt == 2: a('s_mov_b32 exec_lo, 0x00ff00ff\ns_mov_b32 exec_hi, 0x00ff00ff')
            if toP:
                a(f'buffer_store_dwordx4 {vr(b,4)}, v{PG0}, s[{sPw}:{sPw+3}], s{sTmp} offen{CS}')
                if rt < 2: a(f's_add_u32 s{sTmp}, s{sTmp}, 8192')
                vm.issue('pst')
            else: a(f'ds_write_b128 v{aTO}, {vr(b,4)} offset:{16*rt*QSTR}')
        a('s_mov_b64 exec, -1')
    def signal(off, lab):
        a(f'''s_cmp_lg_u32 s{sWV}, 0
        s_cbranch_scc1 {lab}
        v_lshlrev_b32 v{TOUCH}, 10, v{vLane}
        v_mov_b32 v{TOUCH+1}, 1
        s_lshl_b32 s{sTmp}, s2, 2
        s_add_u32 s{sTmp}, s{sTmp}, {off - WS_CELLS}
        s_mov_b64 exec, 0xff
        buffer_store_dword v{TOUCH+1}, v{TOUCH}, {WS}, s{sTmp} offen sc1
        s_mov_b64 exec, -1''')
        a.label(lab)
    if not AXE:
        for x in axr[:12]: a(x)
        a('s_waitcnt lgkmcnt(6)')
    for ct in range(2):
        for k in range(4): a(f'ds_read_u16 v{W3+4*ct+k}, v{aW3} offset:{k*512+ct*64}')
    a('s_waitcnt lgkmcnt(2)')
    for x in axr[12:]: a(x)
    a('s_waitcnt lgkmcnt(6)')
    stampat('C')
    breads(0)
    stampat('p')
    if RSA:
        a('s_waitcnt lgkmcnt(0)')
        stage(3)
        rstores()
    compute(0, nostage=bool(RSA))
    stampat('d')
    compute(1); stampat('r')
    a(f's_mov_b32 s{sTmp}, {hex(f2u(-LOG2E))}')
    for k in range(8): a(f'v_lshlrev_b32 v{W3+k}, 16, v{W3+k}\nv_mul_f32 v{W3+k}, s{sTmp}, v{W3+k}')
    for p in range(4): a(f'v_cvt_pk_bf16_f32 v{W3+p}, v{W3+2*p}, v{W3+2*p+1}')
    def sigA(extra=''):
        a(vm.wait('cells'))
        a(f'''s_cmp_lg_u32 s{sWV}, 0
    s_cbranch_scc1 kf_initok
    s_mov_b32 s{sPoll}, {POLL_LIMIT}''')
        a.label('kf_initpoll')
        a(f'''v_readfirstlane_b32 s{sTmp}, v{vDB}
    s_cmp_lg_u32 s{sTmp}, 0
    s_cbranch_scc1 kf_initok
    v_mov_b32 v{vDB}, 0
    s_sleep 2
    buffer_load_dword v{vDB}, v{vDB}, s[{sD}:{sD+3}], 0 offen sc1
    s_waitcnt vmcnt(0)
    s_sub_u32 s{sPoll}, s{sPoll}, 1
    s_cbranch_scc0 kf_initpoll''')
        a.label('kf_initok')
        a(extra + 's_barrier')
        signal(WS_FLAG, 'kf_sigA')
    if not RSA: sigA()
    stampat('k')
    a(f'''s_cmp_lt_u32 s{sWV}, 4
    s_cbranch_scc1 kf_nt2
    s_and_b32 s{sTmp}, s2, 0xf8
    s_lshl_b32 s{sTmp}, s{sTmp}, 9
    s_lshl_b32 s{sTmp2}, s{sCQ}, 10
    s_add_u32 s{sTmp}, s{sTmp}, s{sTmp2}
    buffer_load_dwordx4 {vr(66,4)}, v{vL16}, s[{sU}:{sU+3}], s{sTmp} offen''')
    a.label('kf_nt2')
    compute(2); stampat('s')
    S6 = not opt.get('s6early')
    compute(3, nostage=S6, noread=bool(RSA)); stampat('t')
    a(f'''s_cmp_lg_u32 s{sWV}, 7
    s_cbranch_scc1 kf_norl2
    s_cmp_ge_u32 s2, 128
    s_cbranch_scc1 kf_norl2''')
    for p in range(4): a(f'v_lshl_or_b32 v{RL+p}, v{RL+2*p+1}, 16, v{RL+2*p}')
    a(f'''s_and_b32 s{sTmp2}, s2, 15
    s_cmp_lt_u32 s{sTmp2}, 12
    s_cbranch_scc1 kf_rlring
    s_lshl_b32 s{sTmp}, s2, 10
    s_add_u32 s{sTmp}, s{sTmp}, {WS_WF - WS_CELLS}
    buffer_store_dwordx4 {vr(RL,4)}, v{vL16}, {WS}, s{sTmp} offen sc1
    s_branch kf_norl2''')
    a.label('kf_rlring')
    a(f'''s_add_u32 s{sS}, s{sPw}, {N*512}
    s_addc_u32 s{sS+1}, s{sPw+1}, 0
    s_mov_b32 s{sS+2}, {192*512}
    s_mov_b32 s{sS+3}, 0x20000
    s_bfe_u32 s{sTmp}, s2, 0x10006
    s_mul_i32 s{sTmp}, s{sTmp}, 96
    s_lshr_b32 s{sTmp3}, s{sTmp2}, 2
    s_lshl_b32 s{sTmp3}, s{sTmp3}, 5
    s_add_u32 s{sTmp}, s{sTmp}, s{sTmp3}
    s_and_b32 s{sTmp3}, s{sTmp2}, 2
    s_lshl_b32 s{sTmp3}, s{sTmp3}, 2
    s_add_u32 s{sTmp}, s{sTmp}, s{sTmp3}
    s_and_b32 s{sTmp2}, s{sTmp2}, 1
    s_lshl_b32 s{sTmp3}, s{sTmp2}, 1
    s_add_u32 s{sTmp}, s{sTmp}, s{sTmp3}
    s_lshl_b32 s{sTmp}, s{sTmp}, 9
    s_bfe_u32 s{sTmp3}, s2, 0x20004
    s_lshl_b32 s{sTmp3}, s{sTmp3}, 7
    s_add_u32 s{sTmp}, s{sTmp}, s{sTmp3}
    s_lshl_b32 s{sTmp2}, s{sTmp2}, 6
    v_and_b32 v{U0}, 7, v{vLane}
    v_lshrrev_b32 v{U1}, 4, v{vLane}
    v_xor_b32 v{U0}, v{U0}, v{U1}
    v_lshlrev_b32 v{U0}, 4, v{U0}
    v_xor_b32 v{U0}, s{sTmp2}, v{U0}
    v_lshl_add_u32 v{U0}, v{aSRC}, 8, v{U0}
    buffer_store_dwordx4 {vr(RL,4)}, v{U0}, s[{sS}:{sS+3}], s{sTmp} offen sc1''')
    a.label('kf_norl2')
    tile_out(True)
    a('s_setprio 0' if not opt.get('noprioA') else 's_nop 1')
    if RSA:
        sigA()
        breads(4)
    if S6: stage(6)
    stampat('l')
    def rec_loads(tab, t0, t1, lab):
        a(f'''v_and_b32 v{t1}, 1, v0
        v_and_b32 v{t0}, 0xffff, v{tab}
        v_add_u32 v{t0}, v{t0}, v{t1}
        v_mad_u32_u24 v{t0}, v{t0}, 12, v{vNOVF}
        v_lshrrev_b32 v{tab}, 16, v{tab}
        v_sub_u32 v{t1}, v{tab}, v{t1}
        v_add_u32 v{t1}, 1, v{t1}
        v_lshrrev_b32 v{t1}, 1, v{t1}''')
        for i in range(8): a(f'v_cmp_lt_u32 s[{sMask+2*i}:{sMask+2*i+1}], {i}, v{t1}')
        a(f'v_cmp_lt_u32 s[{sOv}:{sOv+1}], 8, v{t1}')
        for i in range(8):
            a(f'''s_mov_b64 exec, s[{sMask+2*i}:{sMask+2*i+1}]
            s_cbranch_execz {lab}
            buffer_load_dwordx3 {vr(REC+4*i,3)}, v{t0}, {WS}, 0 offen offset:{1024+24*i}{LD}''')
        a.label(lab)
        a('s_mov_b64 exec, -1')
    srd(a, sO, 16, N * 512)
    compute(4); stampat('u')
    compute(5, noread=S6); stampat('v')
    a(f's_cmp_lg_u32 s{sWV}, 0\ns_cbranch_scc1 kf_pollA_ok')
    poll(WS_FLAG, 'kf_pollA', UQ)
    a(vm.wait('st7') + '\ns_barrier')
    a(f'''s_lshl_b32 s{sTmp}, s0, 2
    buffer_load_dword v{vDB}, v{vNOVF}, {WS}, s{sTmp} offen{LD}''')
    vm.issue('tab')
    signal(WS_FLAG + 8192, 'kf_sigB')
    stampat('o')
    if S6: breads(6, True)
    compute(6, nowait=True); compute(7); stampat('x')
    for i in range(4): a(f'v_mov_b32 v{XR+8+i}, v{vW+i}')
    a(f'''v_and_b32 v{U0}, 3, v{vLane}
    v_lshlrev_b32 v{U0}, 3, v{U0}
    v_sub_u32 v{aB}, v{aB}, v{U0}
    v_lshlrev_b32 v{U0}, 1, v{U0}
    v_xor_b32 v{aB}, v{aB}, v{U0}''')
    a(vm.wait('tab'))
    rec_loads(vDB, TOUCH, TOUCH + 1, 'kf_recend')
    stampat('w')
    def w1reads(i, reg):
        for ks in range(2):
            for c in range(2):
                for t_ in range(2):
                    a(f'ds_read_b64_tr_b16 {vr(W1F[((i-8)*2+ks)*2+c]+2*t_,2)}, v{reg} offset:{(i%3)*4096+(32*ks+4*t_)*64+8*c}')
    tile_out(False)
    a(f'v_mov_b32 v{B2A}, v{W3}\nv_mov_b32 v{B2A+1}, v{W3+1}\nv_mov_b32 v{B2B}, v{W3+2}\nv_mov_b32 v{B2B+1}, v{W3+3}')
    stampat('n')
    w1pos = opt.get('w1pos', 'r,g,r').split(',')
    NN_ = sum(1 for x in w1pos if x == 'n')
    for i in (9, 10, 8):
        if w1pos[i - 8] == 'n': stage(i)
    a(f'''s_sub_u32 s{sP}, s{sPw}, 3072
    s_subb_u32 s{sP+1}, s{sPw+1}, 0
    s_or_b32 s{sP+1}, s{sP+1}, {512 << 16}
    s_mov_b32 s{sP+2}, {0 if opt.get('nogather') else N + 192}
    s_mov_b32 s{sP+3}, 0x20000
    v_mov_b32 v{TQ}, 0
    v_mov_b32 v{TQ+1}, 0
    v_mov_b32 v{TQ+2}, 0
    v_mov_b32 v{TQ+3}, 0
    s_mov_b32 s{sHeavy}, 0
    s_mov_b32 s{sB}, 0
    s_mov_b32 s{sRdone}, 0
    s_mov_b32 s{sAcc}, 0
    s_mov_b32 s{sSafe}, {1 if opt.get('allsafe') else 0}
    s_mov_b32 s{sEAT}, {EAT}
    s_cmp_lg_u32 s{sWV}, 7
    s_cbranch_scc1 k2_nooh
    v_add_u32 v{T0}, {QT + 40*QSTR}, v{vL16}
    ds_write_b128 v{T0}, {vr(TQ,4)}
    ds_write_b128 v{T0}, {vr(TQ,4)} offset:1024
    ds_write_b128 v{T0}, {vr(TQ,4)} offset:2048
    ds_write_b128 v{T0}, {vr(TQ,4)} offset:3072
    v_mul_u32_u24 v{T0}, {QSTR}, v{vLane}
    v_mov_b32 v{T2}, 0x3f80
    v_add_u32 v{T0}, {QT+512}, v{T0}
    v_lshl_add_u32 v{T1}, v{vLane}, 1, v{T0}
    s_mov_b32 exec_hi, 0xff
    ds_write_b128 v{T0}, {vr(TQ,4)}
    ds_write_b128 v{T0}, {vr(TQ,4)} offset:16
    ds_write_b128 v{T0}, {vr(TQ,4)} offset:32
    ds_write_b128 v{T0}, {vr(TQ,4)} offset:48
    ds_write_b128 v{T0}, {vr(TQ,4)} offset:64
    ds_write_b16 v{T1}, v{T2}
    s_mov_b32 exec_hi, -1''')
    a.label('k2_nooh')
    a(f's_cmp_lg_u32 s{sWV}, 0\ns_cselect_b32 s{sBok}, 1, 0\ns_branch k2_first')
    a.label('k2_batch')
    for i in range(4): a(f'v_mov_b32 v{TQ+i}, 0')
    list_prefill(TQ, DL4, T0, T1)
    list_consts(T0, T1, T2, T3)
    a('s_waitcnt lgkmcnt(0)\ns_barrier')
    a.label('k2_first')
    stampat(1)
    a(f'''v_lshrrev_b32 v{T2}, 5, v{vLane}
    v_and_b32 v{T3}, 31, v{vLane}
    v_lshlrev_b32 v{T0}, 3, v{T2}
    v_sub_u32 v{T0}, v{T3}, v{T0}
    v_mov_b32 v{T1}, 0x3f80
    v_and_b32 v{aQ}, 1, v{T0}
    v_lshlrev_b32 v{aQ}, 4, v{aQ}
    v_lshlrev_b32 v{T1}, v{aQ}, v{T1}
    v_lshrrev_b32 v{T0}, 1, v{T0}''')
    for k, reg in enumerate([I0, I0+1, I0+2, I0+3, I1, I1+1, I1+2, I1+3]):
        c = k if k < 4 else k + 4
        m = 'vcc' if k % 2 == 0 else f's[{sSv}:{sSv+1}]'
        a(f'v_cmp_eq_u32 {m}, {c}, v{T0}')
        if k:
            pk, preg = k - 1, [I0, I0+1, I0+2, I0+3, I1, I1+1, I1+2, I1+3][k-1]
            a('s_nop 0')
            a(f'v_cndmask_b32 v{preg}, 0, v{T1}, ' + ('vcc' if pk % 2 == 0 else f's[{sSv}:{sSv+1}]'))
    a(f'''s_nop 0
    v_cndmask_b32 v{I1+3}, 0, v{T1}, s[{sSv}:{sSv+1}]
    s_mov_b32 s{sQs}, {QSTR//4}
    s_lshl_b32 s{sOs}, s{sG}, 4
    s_lshl_b32 s{sTmp}, s{sCQ}, 7
    s_sub_u32 s{sOs}, s{sOs}, s{sTmp}
    s_add_u32 s{sOs}, s{sOs}, 512''')
    for d in range(4):
        a(f'v_mov_b32 v{IDX1+2*d+1}, v{IDX+2*d+1}\nv_mov_b32 v{IDX2+2*d+1}, v{IDX+2*d+1}')
    a(f'v_mov_b32 v{T3}, 1')
    stampat('e')
    a(f's_waitcnt vmcnt({4 * NN_})')
    stampat(2)
    for i in range(8):
        a(f'''s_mov_b64 exec, s[{sMask+2*i}:{sMask+2*i+1}]
        s_cbranch_execz kf_histend
        v_lshrrev_b32 v{DL4+i}, 14, v{REC+4*i+2}
        v_add_u32 v{T1}, {CNT}, v{DL4+i}
        ds_add_rtn_u32 v{RK+i}, v{T1}, v{T3}''')
    a(f'''s_mov_b64 exec, s[{sOv}:{sOv+1}]
    v_mov_b32 v{T1}, {CNT + 252}
    ds_add_u32 v{T1}, v{T3}''')
    a.label('kf_histend')
    a(f'''s_mov_b64 exec, -1
    v_lshlrev_b32 v{T0}, 2, v{vLane}
    v_add_u32 v{T0}, {CNT}, v{T0}
    s_waitcnt lgkmcnt(0)
    s_nop 0''')
    def w1stage(pos):
        for i in (8, 9, 10):
            if w1pos[i - 8] == pos:
                a(f's_or_b32 s{sTmp2}, s{sHeavy}, s{sRdone}\ns_cbranch_scc1 kf_nost{i}')
                stage(i)
                a.label(f'kf_nost{i}')
    w1stage('g')
    stampat('f')
    a('s_barrier')
    stampat('g')
    a(f'ds_read_b32 v{T1}, v{T0}\nv_cmp_gt_u32 vcc, 40, v{vLane}')
    w1stage('r')
    a(f'''s_cmp_lg_u32 s{sBok}, 0
    s_cbranch_scc1 kf_nopk1
    s_and_b32 s{sTmp}, s2, 7
    s_lshl_b32 s{sTmp}, s{sTmp}, 10
    s_add_u32 s{sTmp}, s{sTmp}, {WS_FLAG + 8192 - WS_CELLS}
    buffer_load_dwordx4 {vr(IDX3,4)}, v{vL16}, {WS}, s{sTmp} offen sc1''')
    a.label('kf_nopk1')
    dpp = ['row_shr:1 row_mask:0xf bank_mask:0xf', 'row_shr:2 row_mask:0xf bank_mask:0xf', 'row_shr:4 row_mask:0xf bank_mask:0xf',
           'row_shr:8 row_mask:0xf bank_mask:0xf', 'row_bcast:15 row_mask:0xa bank_mask:0xf', 'row_bcast:31 row_mask:0xc bank_mask:0xf']
    a(f'''s_waitcnt lgkmcnt(0)
    v_readlane_b32 s{sT1}, v{T1}, 63
    v_add_u32 v{T1}, 3, v{T1}
    v_lshrrev_b32 v{T1}, 2, v{T1}
    v_cndmask_b32 v{T1}, 0, v{T1}, vcc
    v_mov_b32 v{T2}, v{T1}
    s_lshl_b32 s{sTmp3}, s{sT1}, 8
    s_nop 0''')
    for k, d in enumerate(dpp):
        a(f'v_add_u32_dpp v{T2}, v{T2}, v{T2} {d}' + (' bound_ctrl:0' if k < 4 else ''))
        a('s_nop 1' if k < 5 else 's_nop 0')
    a(f'''v_readlane_b32 s{sQt}, v{T2}, 63
    v_sub_u32 v{T1}, v{T2}, v{T1}
    v_add_u32 v{T2}, 7, v{T1}
    v_lshrrev_b32 v{T2}, 3, v{T2}
    s_add_u32 s{sTmp}, s{sQt}, 7
    v_sub_u32 v{T0}, s{sTmp}, v{T1}
    v_lshrrev_b32 v{T0}, 3, v{T0}
    v_add_u32 v{T2}, v{T2}, v{T0}
    v_lshlrev_b32 v{T0}, 1, v{T1}
    s_add_u32 s{sTmp}, s{sQt}, {int(opt.get('bias', 0))}
    v_sad_u32 v{T0}, v{T0}, s{sTmp}, 0
    v_lshl_add_u32 v{T2}, v{T2}, 5, v{T0}
    v_subrev_u32 v{T0}, 8, v{vLane}
    v_lshl_add_u32 v{T2}, v{T2}, 6, v{vLane}
    v_cmp_gt_u32 vcc, 25, v{T0}
    s_nop 1
    v_cndmask_b32 v{T2}, -1, v{T2}, vcc
    s_nop 1''')
    for k, d in enumerate(dpp):
        a(f'v_min_u32_dpp v{T2}, v{T2}, v{T2} {d}')
        a('s_nop 1' if k < 5 else 's_nop 0')
    a(f'''v_readlane_b32 s{sSplit}, v{T2}, 63
    s_and_b32 s{sSplit}, s{sSplit}, 63
    s_cmp_lg_u32 s{sHeavy}, 0
    s_cselect_b32 s{sSplit}, 20, s{sSplit}
    s_nop 0
    v_readlane_b32 s{sTmp}, v{T1}, s{sSplit}
    v_cmp_le_u32 vcc, s{sSplit}, v{vLane}
    s_add_u32 s{sT0}, s{sTmp}, 7
    s_lshr_b32 s{sT0}, s{sT0}, 3
    s_sub_u32 s{sT1}, s{sQt}, s{sTmp}
    s_add_u32 s{sT1}, s{sT1}, 7
    s_lshr_b32 s{sT1}, s{sT1}, 3
    s_add_u32 s{sTmp2}, s{sT0}, s{sT1}
    s_add_u32 s{sTmp2}, s{sTmp2}, s{sTmp3}
    s_cmp_le_u32 s{sTmp2}, {NT}
    s_cbranch_scc1 k2_fits
    s_mov_b32 s{sHeavy}, 1
    s_branch k2_hentry''')
    a.label('k2_fits')
    stampat('h')
    a(f'''s_lshl_b32 s{sTmp2}, s{sT0}, 3
    s_sub_u32 s{sTmp2}, s{sTmp2}, s{sTmp}
    v_mov_b32 v{T2}, s{sTmp2}
    v_cndmask_b32 v{T2}, 0, v{T2}, vcc
    v_add_lshl_u32 v{T1}, v{T1}, v{T2}, 2''')
    for i in range(8):
        if i in (2, 4, 6): a(f's_cmp_eq_u64 s[{sMask+2*i}:{sMask+2*i+1}], 0\ns_cbranch_scc1 kf_bpend')
        a(f'ds_bpermute_b32 v{TQ+i}, v{DL4+i}, v{T1}')
    a.label('kf_bpend')
    a(f'''s_cmp_eq_u32 s{sG}, 0
    s_cselect_b32 s{sT}, s{sT0}, s{sT1}
    s_cselect_b32 s{sTbase}, 0, s{sT0}
    s_cselect_b32 s{sTmp2}, 0, 192
    s_lshl_b32 s{sT0}, s{sT0}, 5
    s_lshl_b32 s{sTmp}, s{sTbase}, 6
    s_add_u32 s{sTmp}, s{sTmp}, s{sTmp2}
    s_add_u32 s{sTmp}, s{sTmp}, {SRC}
    v_add_u32 v{aSRC}, s{sTmp}, v{aSRC}
    s_lshl_b32 s{sTmp}, s{sTbase}, 9
    s_add_u32 s{sTmp}, s{sTmp}, {EAT}
    v_add_u32 v{aEAT}, s{sTmp}, v{aEAT}
    v_mov_b32 v{vX}, {ZR}
    v_cndmask_b32 v{aEAT}, v{vX}, v{aEAT}, s[{sHM}:{sHM+1}]
    s_lshl_b32 s{sTmp}, s{sTbase}, 3
    s_add_u32 s{sTmp}, s{sTmp}, {XL}
    v_add_u32 v{aXL}, s{sTmp}, v{aXL}
    v_mov_b32 v{vX}, {SRC}
    v_mov_b32 v{aQ}, {SRC+192}''')
    a(f'''s_lshl_b32 s{sTmp}, s{sT1}, 5
    v_mov_b32 v{T0}, s{sTmp}
    v_cmp_le_u32 vcc, 96, v0
    v_add_u32 v{T1}, s{sT0}, v0
    v_add_u32 v{T2}, {N}, v0
    v_cndmask_b32 v{T0}, 0, v{T0}, vcc
    v_cmp_gt_u32 vcc, 192, v0
    v_add_lshl_u32 v{T0}, v{T0}, v{T1}, 1
    v_add_u32 v{T0}, {SRC}, v{T0}
    s_and_saveexec_b64 s[{sSv}:{sSv+1}], vcc
    ds_write_b16 v{T0}, v{T2}
    s_mov_b64 exec, -1''')
    a(f'v_mov_b32 v{S}, 0x3f80\nv_mov_b32 v{S+1}, 0\ns_mov_b32 s{sTmp}, {XL}\ns_waitcnt lgkmcnt(0)')
    for i in range(8):
        er = REC + 4 * i
        a(f'''s_mov_b64 exec, s[{sMask+2*i}:{sMask+2*i+1}]
        s_cbranch_execz kf_scend
        v_add_u32 v{RK+i}, v{RK+i}, v{TQ+i}
        v_cmp_gt_u32 vcc, s{sT0}, v{RK+i}
        v_lshrrev_b32 v{T2}, 2, v{RK+i}
        v_and_b32 v{T0}, 12, v{RK+i}
        v_cndmask_b32 v{T1}, v{aQ}, v{vX}, vcc
        v_add_u32 v{T2}, s{sTmp}, v{T2}
        v_lshl_add_u32 v{T1}, v{RK+i}, 1, v{T1}
        v_lshlrev_b32 v{T0}, 2, v{T0}
        ds_write_b16 v{T1}, v{er+2}
        ds_write_b8 v{T2}, v{DL4+i}
        v_lshl_add_u32 v{RK+i}, v{RK+i}, 4, s{sEAT}
        v_lshlrev_b64 {vr(er+2,2)}, v{T0}, {vr(S,2)}
        ds_write_b128 v{RK+i}, {vr(er,4)}''')
    a.label('kf_scend')
    a('s_mov_b64 exec, -1')
    a(f's_waitcnt vmcnt(0)\ns_cmp_lg_u32 s{sRdone}, 0\ns_cbranch_scc1 kf_now1\ns_waitcnt lgkmcnt(4)')
    w1reads(9, aB)
    a.label('kf_now1')
    a(f'''s_cmp_lg_u32 s{sBok}, 0
    s_cbranch_scc1 kf_nopeek
    v_and_b32 v{IDX3}, v{IDX3}, v{IDX3+1}
    v_and_b32 v{IDX3+2}, v{IDX3+2}, v{IDX3+3}
    v_and_b32 v{IDX3}, v{IDX3}, v{IDX3+2}
    v_cmp_eq_u32 vcc, 1, v{IDX3}
    s_cmp_eq_u64 vcc, -1
    s_cbranch_scc0 kf_nopeek
    {INV}
    s_mov_b32 s{sBok}, 1''')
    a.label('kf_nopeek')
    a(f's_cmp_lg_u32 s{sBok}, 0\ns_cbranch_scc1 kf_bdone')
    poll(WS_FLAG + 8192, 'kf_pollB', TQ + 4)
    a(f'{INV}\ns_mov_b32 s{sBok}, 1\ns_waitcnt vmcnt(0)')
    a.label('kf_bdone')
    for d in range(4): a(f'v_mov_b32 v{IDX3+2*d+1}, v{IDX+2*d+1}')
    a(f'v_mov_b32 v{T3}, v{aB}\ns_waitcnt lgkmcnt(0)\ns_barrier')
    vm.ops = []
    stampat(3)
    if opt.get('prio3'): a('s_setprio 2')
    DOFF = [0, 4, 16, 20]
    def idx_reads(base, toff):
        return [f'ds_read_u16 v{base+2*d}, v{aSRC} offset:{toff*64+DOFF[d]}' for d in range(4)]
    def dma_ins(base, d, tag):
        vm.issue(tag)
        return f'buffer_load_dwordx4 {vr(base+2*d,2)}, s[{sP}:{sP+3}], 0 idxen offen offset:{d*1024} lds'
    for x in idx_reads(IDX1, 0) + idx_reads(IDX2, 1): a(x)
    a(f's_mov_b32 m0, s{sRing}\ns_waitcnt lgkmcnt(4)')
    for d in range(4): a(dma_ins(IDX1, d, 'dma0'))
    a(f's_cmp_lg_u32 s{sRdone}, 0\ns_cbranch_scc1 kf_now2')
    w1reads(10, T3)
    a('s_waitcnt lgkmcnt(4)')
    w1reads(8, T3)
    a('s_waitcnt lgkmcnt(0)')
    sv_ = list(vm.ops)
    stage(11)
    vm.ops = sv_
    a.label('kf_now2')
    D1 = int(opt.get('d1pos', 2))
    a('s_waitcnt lgkmcnt(0)')
    def dma1():
        a(f's_add_u32 m0, s{sRing}, 4096\ns_nop 0')
        for d in range(4): a(dma_ins(IDX2, d, 'dma1'))
    if D1 < 0: dma1()
    if opt.get('prio3'): a('s_setprio 0')
    stampat(4)
    def gemm(acc, frag, addr, wregs, first, waitv, hook=None):
        def rd(s):
            for rt in range(3):
                f = frag + (s & 1) * 12 + rt * 4
                a(f'ds_read_b128 {vr(f,4)}, v{addr+(s&3)} offset:{rt*8192+(s>>2)*256}')
        rd(0)
        for s in range(8):
            if s + 1 < 8:
                rd(s + 1); w = 'lgkmcnt(3)'
            else: w = 'lgkmcnt(0)'
            wv = waitv(s)
            a((wv + ' ' + w) if wv else 's_waitcnt ' + w)
            if hook: hook(s)
            for rt in range(3):
                for c in range(2):
                    d = acc[rt * 2 + c]; f = frag + (s & 1) * 12 + rt * 4
                    cin = '0' if (first and s == 0) else vr(d, 4)
                    a(f'v_mfma_f32_16x16x32_bf16 {vr(d,4)}, {vr(wregs(s*2+c),4)}, {vr(f,4)}, {cin}')
    def xaddr(dst, t0, t1):
        a(f'''v_and_b32 v{t0}, 15, v{vLane}
        v_lshrrev_b32 v{t1}, 4, v{vLane}
        v_xor_b32 v{t1}, v{t1}, v{t0}
        v_lshlrev_b32 v{t1}, 4, v{t1}
        v_lshl_add_u32 v{t0}, v{t0}, 9, v{t1}
        v_add_u32 v{dst}, {XT}, v{t0}''')
        for s_ in range(1, 4):
            a(f'v_xor_b32 v{t1}, {s_<<6}, v{t0}\nv_add_u32 v{dst+s_}, {XT}, v{t1}')
    if D1 >= 0:
        a(f's_cmp_eq_u32 s{sRdone}, 0\ns_cbranch_scc1 kf_dor')
        sv_ = list(vm.ops); dma1(); vm.ops = sv_
        a('s_branch kf_nor')
        a.label('kf_dor')
    else: a(f's_cmp_lg_u32 s{sRdone}, 0\ns_cbranch_scc1 kf_nor')
    xaddr(RK, T0, T1)
    def hook(s_):
        if s_ == D1: dma1()
        if s_ == 5:
            a('s_waitcnt vmcnt(4)')
            w1reads(11, T3)
            a('s_waitcnt lgkmcnt(8)')
    gemm([OA + 4 * i for i in range(6)], REC, RK, lambda i: W1F[i], True, lambda s_: None, hook)
    a(f'''s_mov_b32 s{sRdone}, 1
    v_mov_b32 v{T0}, {HMAX+8}
    v_mov_b32 v{T1}, 1
    s_mov_b64 exec, 1
    ds_add_u32 v{T0}, v{T1}
    s_mov_b64 exec, -1''')
    for i in range(4): a(f'v_mov_b32 v{XR+i}, v{RK+i}')
    a(f's_mov_b32 s{sSv}, {hex(f2u(-LOG2E))}\ns_mov_b32 s{sSv+1}, {hex(f2u(-LOG2E))}')
    a(f'''v_and_b32 v{T0}, 31, v{vLane}
    s_lshl_b32 s{sTmp2}, s{sG}, 3
    v_add_u32 v{T0}, s{sTmp2}, v{T0}
    v_and_b32 v{T2}, 15, v{T0}
    s_lshl_b32 s{sTmp2}, s{sCQ}, 3
    v_xor_b32 v{T2}, s{sTmp2}, v{T2}
    v_lshlrev_b32 v{T2}, 4, v{T2}
    v_lshl_add_u32 v{T2}, v{T0}, 9, v{T2}
    v_lshrrev_b32 v{T1}, 5, v{vLane}
    v_lshl_add_u32 v{T2}, v{T1}, 3, v{T2}
    v_add_u32 v{XR+4}, {XT}, v{T2}
    v_and_b32 v{T0}, 15, v{vLane}
    v_lshrrev_b32 v{T1}, 4, v{vLane}
    v_lshlrev_b32 v{T1}, 4, v{T1}
    v_lshl_add_u32 v{XR+6}, v{T0}, 9, v{T1}
    v_mov_b32 v{XR+7}, {HMAX+8}
    v_mov_b32 v{vMX}, 0''')
    for i in range(12): a(f'v_pk_mul_f32 {pr(OA+2*i)}, {pr(OA+2*i)}, s[{sSv}:{sSv+1}]')
    a.label('kf_nor')
    a(f'''v_and_b32 v{T0}, 31, v{vLane}
    s_lshl_b32 s{sTmp2}, s{sG}, 3
    v_add_u32 v{T0}, s{sTmp2}, v{T0}
    v_cmp_gt_u32 vcc, s{sSplit}, v{T0}
    s_cmp_eq_u32 s{sG}, 0
    s_cselect_b64 s[{sNM}:{sNM+1}], 0, -1
    s_xor_b64 s[{sNM}:{sNM+1}], s[{sNM}:{sNM+1}], vcc''')
    for i in range(12, 16):
        for x in wload(WB2 + 4 * i, 2, i, 'wu'): a(x)
    for x in range(4): a(f'v_mov_b32 v{NF+x}, 0\nv_mov_b32 v{DF+x}, 1.0')
    for x in (MA4, MA4 + 1, MB4, MB4 + 1, S4, S4 + 1): a(f'v_mov_b32 v{x}, 0')
    stampat(5)
    a(f'''s_cmp_eq_u32 s{sT}, 0
    s_cbranch_scc1 k2_notile
    ds_read_u8 v{vX}, v{aXL}
    ds_read_b128 {vr(A2,4)}, v{aEAT}''')
    a(vm.wait('dma0'))
    a(f'''ds_read_b128 {vr(PA,4)}, v{aP}
    ds_read_b128 {vr(PA+4,4)}, v{aP+1}
    ds_read_b128 {vr(PB,4)}, v{aP+2}
    ds_read_b128 {vr(PB+4,4)}, v{aP+3}
    s_waitcnt lgkmcnt(5)
    v_mad_u32_u24 v{aQ}, v{vX}, s{sQs}, v{cQ}
    v_add_u32 v{aS}, s{sOs}, v{aQ}
    ds_read_u8 v{vX}, v{aXL} offset:8
    ds_read_b64_tr_b16 {vr(B2A+2,2)}, v{aQ}
    ds_read_b64_tr_b16 {vr(B2B+2,2)}, v{aQ} offset:64''')
    for x in idx_reads(IDX3, 2) + idx_reads(IDX, 3): a(x)
    a(f's_sub_u32 s{sCnt}, s{sT}, 1\ns_waitcnt lgkmcnt(9)')
    def zchain(D, B2, P):
        return [f'v_mfma_f32_32x32x16_bf16 {vr(D,16)}, {vr(A2,4)}, {vr(B2,4)}, 0',
                f'v_mfma_f32_32x32x16_bf16 {vr(D,16)}, {vr(P,4)}, {vr(I0,4)}, {vr(D,16)}',
                f'v_mfma_f32_32x32x16_bf16 {vr(D,16)}, {vr(P+4,4)}, {vr(I1,4)}, {vr(D,16)}']
    for m in zchain(DA, B2A, PA): a(m)
    if prio == 'young': a(f's_cmp_eq_u32 s{sG}, 0\ns_cbranch_scc1 k2_noprio\ns_setprio 1\nk2_noprio:')
    a('s_nop 7\ns_nop 3')
    stampat(6)

    cur = {'pT': None, 'pP': None, 'safe': bool(opt.get('allsafe'))}
    maxops = [f'v_max3_f32 v{vMX}, v{vMX}, v{DF}, v{DF+1}', f'v_max3_f32 v{vMX}, v{vMX}, v{DF+2}, v{DF+3}'][:2 if opt.get('noshare') else 1]
    def half(D, accprev, Mprev, Mfin, zc, extra_T, extra_P, accmode=8):
        sh = not cur['safe'] and not opt.get('noshare')
        Ts = [f'v_exp_f32 v{EE+i}, v{D+i}' for i in range(16)] + [f'v_rcp_f32 v{DF+i}, v{DF+i}' for i in range(2 if sh else 4)]
        cuts = [0, 4, 8, 12, 18] if sh else [0, 5, 10, 15, 20]
        if not cur['safe']:
            extra_T = dict(extra_T)
            extra_T[2] = extra_T.get(2, []) + maxops
        if accmode == 8: mf = [f'v_mfma_f32_32x32x8_bf16 {vr(accprev,16)}, {vr(Mprev,2)}, {vr(S4,2)}, {vr(accprev,16)}'] + zc
        elif accmode == 16: mf = [f'v_mfma_f32_32x32x16_bf16 {vr(accprev,16)}, {vr(Mprev,4)}, {vr(S4,4)}, {vr(accprev,16)}'] + zc
        else:
            mf = [None] + zc
            cuts = [0, 0, 6, 12, 18]
        if cur['pT'] is not None: a(f's_setprio {cur["pT"]}')
        LEAD = int(opt.get('lead', 0))
        for t_ in Ts[:LEAD]: a(t_)
        a('s_waitcnt lgkmcnt(0)')
        Ts = [None] * LEAD + Ts[LEAD:]
        for k in range(4):
            if k == 0 and cur.get('first'):
                lab = cur['first']
                a(f's_cmp_lg_u32 s{sAcc}, 0\ns_cbranch_scc1 {lab}_a')
                a(f'v_mfma_f32_32x32x8_bf16 {vr(accprev,16)}, {vr(Mprev,2)}, {vr(S4,2)}, 0')
                a.label(lab + '_a')
                continue_T = True
                for x in extra_T.get(k, []): a(x)
                for t_ in Ts[cuts[k]:cuts[k + 1]]:
                    if t_: a(t_)
                continue
            if mf[k]: a(mf[k])
            for x in extra_T.get(k, []): a(x)
            for t_ in Ts[cuts[k]:cuts[k + 1]]:
                if t_: a(t_)
        if cur['pP'] is not None: a(f's_setprio {cur["pP"]}')
        bs = [0, 4, 8, 12]
        fin = [f'v_pk_mul_f32 {pr(NF)}, {pr(NF)}, {pr(DF)}', f'v_pk_mul_f32 {pr(NF+2)}, {pr(NF+2)}, {pr(DF if sh else DF+2)}']
        cvt = [f'v_cvt_pk_bf16_f32 v{Mfin}, v{NF}, v{NF+1}', f'v_cvt_pk_bf16_f32 v{Mfin+1}, v{NF+2}, v{NF+3}']
        if cur['safe']:
            Ps = [f'v_pk_fma_f32 {pr(EE+2*p)}, {pr(EE+2*p)}, s[{sC}:{sC+1}], s[{sC}:{sC+1}] clamp' for p in range(8)]
            Ps += fin
            Ps += [f'v_pk_mul_f32 {pr(D+b)}, {pr(D+b)}, {pr(EE+b+2)}' for b in bs]
            Ps += cvt
            Ps += [f'v_pk_fma_f32 {pr(D+b)}, {pr(D+b+2)}, {pr(EE+b)}, {pr(D+b)}' for b in bs]
            Ps += [f'v_pk_mul_f32 {pr(EE+b)}, {pr(EE+b)}, {pr(EE+b+2)}' for b in bs]
        else:
            Ps = [f'v_pk_add_f32 {pr(EE+b+2)}, {pr(EE+b+2)}, 1.0 op_sel_hi:[1,0]' for b in bs]
            Ps += fin
            Ps += [f'v_pk_fma_f32 {pr(D+b)}, {pr(D+b)}, {pr(EE+b+2)}, {pr(D+b+2)}' for b in bs]
            Ps += cvt
            Ps += [f'v_pk_fma_f32 {pr(D+b)}, {pr(D+b+2)}, {pr(EE+b)}, {pr(D+b)}' for b in bs]
            Ps += [f'v_pk_fma_f32 {pr(EE+b)}, {pr(EE+b)}, {pr(EE+b+2)}, {pr(EE+b+2)}' for b in bs]
        Ps += [f'v_pk_mul_f32 {pr(NF+2*B)}, {pr(D+8*B)}, {pr(EE+8*B+4)}' for B in range(2)]
        Ps += [f'v_pk_mul_f32 {pr(DF+2*B)}, {pr(EE+8*B)}, {pr(EE+8*B+4)}' for B in range(2)]
        Ps += [f'v_pk_fma_f32 {pr(NF+2*B)}, {pr(D+8*B+4)}, {pr(EE+8*B)}, {pr(NF+2*B)}' for B in range(2)]
        if sh:
            Ps += [f'v_pk_mul_f32 {pr(NF)}, {pr(NF)}, {pr(DF+2)}', f'v_pk_mul_f32 {pr(NF+2)}, {pr(NF+2)}, {pr(DF)}',
                   f'v_pk_mul_f32 {pr(DF)}, {pr(DF)}, {pr(DF+2)}']
        nP = len(Ps)
        remap = {}
        for i in sorted(extra_P): remap.setdefault(min(i * nP // 30, nP - 1), []).extend(extra_P[i])
        for i, p in enumerate(Ps):
            for x in remap.get(i, []):
                a(x() if callable(x) else x)
            a(p)
    def spread(d, xs, start, step=1):
        for i, x in enumerate(xs):
            d.setdefault(start + i * step, []).extend(x if isinstance(x, list) else [x])
    wsched = [('u2', i) for i in range(16)]
    NPEEL = int(opt.get('npeel', 6))
    per = {6: [0, 3, 3, 3, 3, 4], 3: [4, 6, 6], 9: [0, 2, 2, 2, 2, 2, 2, 2, 2]}[NPEEL]
    def iteration(tau, u, peeled, par=None):
        am = 8 if par is None else (16 if par == 0 else 0)
        o_cur = 0 if par is None else 2 * par; o_prev = 0 if par is None else 2 * (1 - par)
        sl = (u + 1) % 3
        eT = {3: [f'v_mad_u32_u24 v{aQ}, v{vX}, s{sQs}, v{cQ}', f'v_add_u32 v{aS+sl}, s{sOs}, v{aQ}']}
        eP = {}
        spread(eP, [(lambda: vm.wait(f'dma{tau+1}')) if peeled else 's_waitcnt vmcnt(4)',
              f'ds_read_b128 {vr(PA,4)}, v{aP} offset:{sl*4096}', f'ds_read_b128 {vr(PA+4,4)}, v{aP+1} offset:{sl*4096}',
              f'ds_read_b64_tr_b16 {vr(B2A+2,2)}, v{aQ}',
              f'ds_read_b128 {vr(A2,4)}, v{aEAT} offset:{(u+1)*512}',
              f's_add_u32 m0, s{sRing}, {u*4096}'], 1)
        if peeled and tau == 0:
            eP[6] = [f's_add_u32 m0, s{sRing}, 8192']
            spread(eP, [(lambda d=d: dma_ins(IDX3, d, 'dma2')) for d in range(4)], 7, 3)
            eP.setdefault(18, []).append(f's_mov_b32 m0, s{sRing}')
            spread(eP, [(lambda d=d: dma_ins(IDX, d, 'dma3')) for d in range(4)], 19, 3)
        else:
            spread(eP, [(lambda d=d: dma_ins(IDX, d, f'dma{tau+3}')) for d in range(4)], int(opt.get('d0', 8)), int(opt.get('ds', 7)))
        cur['first'] = f'kf_f{cur["g"]}A' if (peeled and tau == 0) else None
        half(DA, ACCA, MA4, MB4 + o_prev, zchain(DB, B2B, PB), eT, eP, am)
        eP = {}
        xs = [f'ds_read_b128 {vr(PB,4)}, v{aP+2} offset:{sl*4096}', f'ds_read_b128 {vr(PB+4,4)}, v{aP+3} offset:{sl*4096}',
              f'ds_read_b64_tr_b16 {vr(B2B+2,2)}, v{aQ} offset:64', f'ds_read_b64_tr_b16 {vr(S4+o_cur,2)}, v{aS+u}',
              f'ds_read_u8 v{vX}, v{aXL} offset:{(u+2)*8}'] + idx_reads(IDX, u + 4)
        spread(eP, xs, int(opt.get('x0', 1)), int(opt.get('xs', 2)))
        if u == 2:
            eP.setdefault(29, []).extend([f'v_add_u32 v{aSRC}, 192, v{aSRC}', f'v_add_u32 v{aEAT}, v{cS}, v{aEAT}', f'v_add_u32 v{aXL}, 24, v{aXL}'])
        eP.setdefault(29, []).append(f's_sub_u32 s{sCnt}, s{sCnt}, 1')
        cur['first'] = f'kf_f{cur["g"]}B' if (peeled and tau == 0) else None
        if cur['first']: eP.setdefault(27, []).append(f's_mov_b32 s{sAcc}, 1')
        half(DB, ACCB, MB4, MA4 + o_cur, zchain(DA, B2A, PA), {}, eP, am)
    spec = {'P': '01', 'none': 'xx', 'young': 'xx'}.get(prio, prio).split('|')
    saved = list(vm.ops)
    a(f's_cmp_lg_u32 s{sSafe}, 0\ns_cbranch_scc1 k2_safe')
    if len(spec) > 1: a(f's_cmp_lg_u32 s{sG}, 0\ns_cbranch_scc1 k2_g1')
    for g, sp in enumerate(spec):
        vm.ops = list(saved)
        sp = sp.split(',')
        def setp(k):
            x = sp[k % len(sp)]
            cur['pT'] = None if x[0] == 'x' else int(x[0]); cur['pP'] = None if x[1] == 'x' else int(x[1])
        cur['g'] = g
        if g: a.label('k2_g1')
        setp(0)
        iteration(0, 0, True, 0 if PAIR else None)
        a('s_cbranch_scc1 k2_drain')
        a.label(f'k2_loop{g}')
        nun = 6 if PAIR else 3
        for t_ in range(1, nun + 1):
            setp(t_ % 3)
            iteration(100 + t_, t_ % 3, False, (t_ & 1) if PAIR else None)
            tgt = 'k2_drain1' if (PAIR and t_ & 1) else 'k2_drain'
            a(f's_cbranch_scc1 {tgt}' if t_ != nun else f's_cbranch_scc0 k2_loop{g}')
        if g + 1 < len(spec): a('s_branch k2_drain')
    a.label('k2_drain')
    a('s_setprio 0\ns_waitcnt lgkmcnt(0)')
    a(f'ds_read_b32 v{X0}, v{XR+7}')
    for x in maxops: a(x)
    a(f'v_mfma_f32_32x32x8_bf16 {vr(ACCA,16)}, {vr(MA4,2)}, {vr(S4,2)}, {vr(ACCA,16)}')
    if not opt.get('noshare'):
        a(f's_cmp_lg_u32 s{sSafe}, 0\ns_cbranch_scc1 kf_dr4\nv_mov_b32 v{DF+2}, v{DF}\nv_mov_b32 v{DF+3}, v{DF+1}')
        a.label('kf_dr4')
    for i in range(4): a(f'v_rcp_f32 v{DF+i}, v{DF+i}')
    a('s_nop 0')
    for i in range(4): a(f'v_mul_f32 v{NF+i}, v{NF+i}, v{DF+i}')
    a(f'''v_cvt_pk_bf16_f32 v{MB4}, v{NF}, v{NF+1}
    v_cvt_pk_bf16_f32 v{MB4+1}, v{NF+2}, v{NF+3}
    s_nop 1
    v_mfma_f32_32x32x8_bf16 {vr(ACCB,16)}, {vr(MB4,2)}, {vr(S4,2)}, {vr(ACCB,16)}''')
    a.label('k2_loopend')
    stampat(7)
    a(f'''s_cmp_eq_u32 s{sHeavy}, 0
    s_cbranch_scc1 k2_epi
    s_add_u32 s{sB}, s{sB}, 1''')
    a.label('k2_fetch')
    a(f'''s_waitcnt vmcnt(0) lgkmcnt(0)
    s_barrier
    s_cmp_ge_u32 s{sB}, s{sHeavy}
    s_cbranch_scc1 k2_epi
    s_lshl_b32 s{sTmp}, s0, 2
    buffer_load_dword v{TQ}, v{vNOVF}, {WS}, s{sTmp} offen sc1
    v_and_b32 v{T1}, 1, v0
    s_lshl_b32 s{sTmp}, s{sB}, 1
    v_add_u32 v{T1}, s{sTmp}, v{T1}
    s_waitcnt vmcnt(0)
    v_and_b32 v{T0}, 0xffff, v{TQ}
    v_lshrrev_b32 v{TQ}, 16, v{TQ}
    v_add_u32 v{T0}, v{T0}, v{T1}
    v_cmp_lt_u32 s[{sMask}:{sMask+1}], v{T1}, v{TQ}
    v_mad_u32_u24 v{T0}, v{T0}, 12, v{vNOVF}
    buffer_load_dwordx3 {vr(REC,3)}, v{T0}, {WS}, 0 offen offset:1024 sc1''')
    for i in range(1, 8): a(f's_mov_b64 s[{sMask+2*i}:{sMask+2*i+1}], 0')
    a(f's_mov_b64 s[{sOv}:{sOv+1}], 0\ns_waitcnt vmcnt(0)\ns_branch k2_batch')
    a.label('k2_redo')
    a(f's_mov_b32 s{sSafe}, 1\ns_mov_b32 s{sAcc}, 0\ns_mov_b32 s{sB}, 0')
    a.label('k2_hentry')
    a(f'''s_waitcnt vmcnt(0) lgkmcnt(0)
    s_lshl_b32 s{sTmp}, s0, 2
    buffer_load_dword v{TQ}, v{vNOVF}, {WS}, s{sTmp} offen sc1
    v_mov_b32 v{T0}, {HMAX}
    v_mov_b32 v{T1}, 1
    ds_write_b32 v{T0}, v{T1}
    s_waitcnt vmcnt(0) lgkmcnt(0)
    s_barrier
    v_lshrrev_b32 v{TQ}, 16, v{TQ}
    v_add_u32 v{TQ}, 1, v{TQ}
    v_lshrrev_b32 v{TQ}, 1, v{TQ}
    ds_max_u32 v{T0}, v{TQ}
    s_waitcnt lgkmcnt(0)
    s_barrier
    ds_read_b32 v{T1}, v{T0}
    s_waitcnt lgkmcnt(0)
    v_readfirstlane_b32 s{sHeavy}, v{T1}
    s_branch k2_fetch''')
    a.label('k2_epi')
    vm.ops = []
    a(f'''s_mul_i32 s{sTmp}, s{sT}, 171
    s_lshr_b32 s{sTmp}, s{sTmp}, 9
    s_mul_i32 s{sTmp}, s{sTmp}, 3
    s_sub_u32 s{sTmp}, s{sT}, s{sTmp}
    s_lshl_b32 s{sTmp}, s{sTmp}, 12''')
    for k in range(3):
        a(f's_add_u32 s{sTmp2}, s{sTmp}, s{sRing}\nv_add_u32 v{DA+k}, s{sTmp2}, v{vL16}')
        if k < 2: a(f's_add_u32 s{sTmp}, s{sTmp}, 4096\ns_cmp_eq_u32 s{sTmp}, 12288\ns_cselect_b32 s{sTmp}, 0, s{sTmp}')
    a('s_waitcnt vmcnt(4) lgkmcnt(0)')
    for f in range(8): a(f'ds_read_b128 {vr(WB2+4*f,4)}, v{DA+(f>>2)} offset:{(f&3)*1024}')
    Y0, Y1, Y2, Y3 = X0, X0 + 1, X0 + 2, X0 + 3
    a(f'''s_cmp_lg_u32 s{sSafe}, 0
    s_cbranch_scc1 kf_noflag
    v_cmp_lt_f32 vcc, 0x5d800000, v{vMX}
    s_cbranch_vccz kf_noflag
    v_mov_b32 v{Y1}, 1
    ds_write_b32 v{XR+7}, v{Y1} offset:4
    kf_noflag:
    s_cmp_lg_u32 s{sAcc}, 0
    s_cbranch_scc1 kf_accok''')
    for i in range(32): a(f'v_mov_b32 v{ACCA+i}, 0')
    a.label('kf_rspin')
    a(f'ds_read_b32 v{Y0}, v{XR+7}')
    a('s_waitcnt lgkmcnt(0)')
    a.label('kf_accok')
    a(f'''v_readfirstlane_b32 s{sTmp}, v{Y0}
    s_cmp_lt_u32 s{sTmp}, 8
    s_cbranch_scc1 kf_rspin
    s_mov_b64 exec, s[{sNM}:{sNM+1}]''')
    Y2 = XR + 4
    a(f's_cmp_eq_u32 s{sSafe}, 0\ns_cbranch_scc1 kf_noscale')
    for q in range(16): a(f'v_pk_mul_f32 {pr(ACCA+2*q)}, {pr(ACCA+2*q)}, s[{sC}:{sC+1}]')
    a.label('kf_noscale')
    for q in range(8):
        if q: a(f'v_xor_b32 v{Y3}, {q<<4}, v{Y2}')
        a(f'''v_cvt_pk_bf16_f32 v{ACCA+4*q}, v{ACCA+4*q}, v{ACCA+4*q+1}
        v_cvt_pk_bf16_f32 v{ACCA+4*q+1}, v{ACCA+4*q+2}, v{ACCA+4*q+3}
        ds_write_b64 v{Y3 if q else Y2}, {vr(ACCA+4*q,2)}''')
    a('s_mov_b64 exec, -1')
    a('s_waitcnt vmcnt(0)')
    for f in range(8, 12): a(f'ds_read_b128 {vr(WB2+4*f,4)}, v{DA+(f>>2)} offset:{(f&3)*1024}')
    EA_ = XR; Y2 = XR + 6; Y3 = XR + 5
    a(f'''s_lshl_b32 s{sTmp2}, s{sN0}, 9
    s_lshl_b32 s{sTmp}, s{sWV}, 6
    s_add_u32 s{sTmp2}, s{sTmp2}, s{sTmp}
    s_waitcnt lgkmcnt(0)''')
    stampat(8)
    a(f's_barrier\nds_read_b32 v{Y0}, v{XR+7} offset:4')
    Z = DA
    def silu_ops(rt):
        b = OA + rt * 8
        ops = [f'v_exp_f32 v{Z+p}, v{b+p}' for p in range(8)]
        ops += [f'v_fma_f32 v{Z+p}, v{Z+p}, s{sC}, s{sC}' for p in range(8)]
        ops += [f'v_rcp_f32 v{Z+p}, v{Z+p}' for p in range(8)]
        ops += [f'v_mul_f32 v{Z+p}, v{b+p}, v{Z+p}' for p in range(8)]
        for h in range(4): ops.append(f'v_cvt_pk_bf16_f32 v{Z+8+h}, v{Z+2*h}, v{Z+2*h+1}')
        if rt == 2:
            ops.append(f's_mov_b32 exec_lo, s{sTmp3}\ns_mov_b32 exec_hi, s{sTmp3}')
        ops.append(f'buffer_store_dwordx4 {vr(Z+8,4)}, v{Y2}, s[{sO}:{sO+3}], s{sTmp2} offen' + opt.get('outst' + str(rt), opt.get('outst', ' sc1')))
        ops.append(f's_add_u32 s{sTmp2}, s{sTmp2}, 8192')
        return ops
    seq = [(rt, s) for rt in range(3) for s in range(8)]
    def ard(k):
        rt, s = seq[k]
        a(f'ds_read_b128 {vr(AF+4*(k%6),4)}, v{EA_+(s&3)} offset:{rt*8192+(s>>2)*256}')
    for k in range(5): ard(k)
    a(f'''s_waitcnt lgkmcnt(5)
    v_readfirstlane_b32 s{sTmp}, v{Y0}
    s_cmp_gt_u32 s{sTmp}, s{sSafe}
    s_cbranch_scc1 k2_redo
    s_mov_b32 s{sC}, {hex(f2u(-LOG2E))}''')
    pend = []
    for k, (rt, s) in enumerate(seq):
        if k + 5 < 24: ard(k + 5)
        a(f's_waitcnt lgkmcnt({min(5, 23-k)})')
        for c in range(2):
            d = OA + (rt * 2 + c) * 4
            a(f'v_mfma_f32_16x16x32_bf16 {vr(d,4)}, {vr(WB2+4*(2*s+c),4)}, {vr(AF+4*(k%6),4)}, {vr(d,4)}')
            if s >= 1 or c == 1:
                n = 3 if s >= 1 else 0
                for x in pend[:n]: a(x)
                pend = pend[n:]
        if s == 7:
            for x in pend: a(x)
            pend = silu_ops(rt)
    b = OA + 16
    a(f's_mov_b32 s{sC+1}, {hex(f2u(-LOG2E))}\ns_sub_u32 s{sTmp}, s{sNN}, 32\ns_bfm_b32 s{sTmp3}, s{sTmp}, 0\ns_mul_i32 s{sTmp3}, s{sTmp3}, 0x10001\ns_nop 3')
    for rr in range(4): a(f'v_mov_b32_dpp v{b+rr}, v{b+4+rr} row_shr:8 row_mask:0xf bank_mask:0xc')
    for p in range(4): a(f'v_exp_f32 v{Z+p}, v{b+p}')
    for p in range(2): a(f'v_pk_fma_f32 {pr(Z+2*p)}, {pr(Z+2*p)}, s[{sC}:{sC+1}], s[{sC}:{sC+1}]')
    for p in range(4): a(f'v_rcp_f32 v{Z+p}, v{Z+p}')
    for p in range(2): a(f'v_pk_mul_f32 {pr(Z+2*p)}, {pr(b+2*p)}, {pr(Z+2*p)}')
    a('s_nop 1')
    for rr in range(4): a(f'v_mov_b32_dpp v{Z+4+rr}, v{Z+rr} row_shl:8 row_mask:0xf bank_mask:0x3')
    for x in pend[32:]: a(x)
    if stamp:
        stampat(9)
        a(f's_mov_b64 exec, 1\ns_waitcnt lgkmcnt(0)')
        a(f's_lshl_b32 s{sTmp}, s2, 3\ns_add_u32 s{sTmp}, s{sTmp}, s{sWV}\ns_lshl_b32 s{sTmp}, s{sTmp}, 6\ns_add_u32 s{sTmp}, s{sTmp}, {WS_END - WS_CELLS}\nv_mov_b32 v{Y0}, 0')
        for i in range(10):
            a(f'v_mov_b32 v{Y1}, s{sStamp+2*i}\nbuffer_store_dword v{Y1}, v{Y0}, {WS}, s{sTmp} offen offset:{4*i}')
        a(f'v_mov_b32 v{Y1}, s{sT}\nbuffer_store_dword v{Y1}, v{Y0}, {WS}, s{sTmp} offen offset:40')
        a(f'v_mov_b32 v{Y1}, s{sPoll}\nbuffer_store_dword v{Y1}, v{Y0}, {WS}, s{sTmp} offen offset:44')
    if opt.get('diagpad'):
        a(f's_add_u32 s94, s94, {int(opt["diagpad"])}')
        a.label('kf_diag')
        a('s_memrealtime s[92:93]\ns_waitcnt lgkmcnt(0)\ns_sub_u32 s92, s92, s94\ns_cmp_lt_i32 s92, 0\ns_cbranch_scc1 kf_diag')
    if opt.get('xcdiag'):
        a(f'''s_mov_b64 exec, -1
        s_and_b32 s91, s2, 7
        s_lshl_b32 s91, s91, 2
        s_add_u32 s91, s91, 32
        v_mov_b32 v1, 0
        buffer_load_dword v2, v1, s[{sD}:{sD+3}], s91 offen sc1
        s_memrealtime s[94:95]
        s_waitcnt vmcnt(0) lgkmcnt(0)
        v_readfirstlane_b32 s91, v2
        s_cmp_eq_u32 s91, s90
        s_cbranch_scc1 k2_done
        s_add_u32 s94, s94, 2000''')
        a.label('kf_xd2')
        a('s_memrealtime s[92:93]\ns_waitcnt lgkmcnt(0)\ns_sub_u32 s92, s92, s94\ns_cmp_lt_i32 s92, 0\ns_cbranch_scc1 kf_xd2')
    a.label('k2_done')
    a('s_endpgm')
    a.label('k2_drain1')
    a('s_setprio 0\ns_waitcnt lgkmcnt(0)')
    a(f'ds_read_b32 v{X0}, v{XR+7}')
    for x in maxops: a(x)
    a(f'v_mfma_f32_32x32x16_bf16 {vr(ACCA,16)}, {vr(MA4,4)}, {vr(S4,4)}, {vr(ACCA,16)}')
    if not opt.get('noshare'):
        a(f's_cmp_lg_u32 s{sSafe}, 0\ns_cbranch_scc1 kf_dr41\nv_mov_b32 v{DF+2}, v{DF}\nv_mov_b32 v{DF+3}, v{DF+1}')
        a.label('kf_dr41')
    for i in range(4): a(f'v_rcp_f32 v{DF+i}, v{DF+i}')
    a('s_nop 0')
    for i in range(4): a(f'v_mul_f32 v{NF+i}, v{NF+i}, v{DF+i}')
    a(f'''v_cvt_pk_bf16_f32 v{MB4+2}, v{NF}, v{NF+1}
    v_cvt_pk_bf16_f32 v{MB4+3}, v{NF+2}, v{NF+3}
    s_nop 1
    v_mfma_f32_32x32x16_bf16 {vr(ACCB,16)}, {vr(MB4,4)}, {vr(S4,4)}, {vr(ACCB,16)}''')
    a('s_branch k2_loopend')
    a.label('k2_notile')
    for x in idx_reads(IDX3, 2): a(x)
    a(f's_add_u32 m0, s{sRing}, 8192\ns_waitcnt lgkmcnt(0)')
    for d in range(4): a(dma_ins(IDX3, d, 'x'))
    a('s_branch k2_loopend')
    a.label('kf_init')
    srd(a, sD, sWS, 16384, add=WS_FLAG)
    a(f'''v_mov_b32 v{BF}, 0
    v_mov_b32 v{BF+1}, 0
    v_mov_b32 v{BF+2}, 0
    v_mov_b32 v{BF+3}, 0
    s_mov_b32 s{sTmp2}, 8192
    buffer_store_dwordx4 {vr(BF,4)}, v{U3}, s[{sD}:{sD+3}], 0 offen sc1
    buffer_store_dwordx4 {vr(BF,4)}, v{U3}, s[{sD}:{sD+3}], s{sTmp2} offen sc1''')
    a('s_branch kf_noinit')
    vm.ops = list(saved)
    cur.update({'pT': None, 'pP': None, 'safe': True, 'g': 'S'})
    a.label('k2_safe')
    iteration(0, 0, True)
    a('s_cbranch_scc1 k2_drain')
    a.label('k2_loopS')
    for u in (1, 2, 0):
        iteration(100 + u, u, False)
        a('s_cbranch_scc1 k2_drain' if u != 0 else 's_cbranch_scc0 k2_loopS')
    a('s_branch k2_drain')
    return kd(KNAME, 256, 102)
```
